```python
import torch

def _softmax(x, axis=-1):
    return torch.softmax(x, dim=axis)
def _gelu(x):
    return torch.nn.functional.gelu(x, approximate="tanh")
def _silu(x):
    return torch.nn.functional.silu(x)
def _sigmoid(x):
    return torch.sigmoid(x)
def _layernorm(x, axis=-1, eps=1e-5):
    m = x.mean(dim=axis, keepdim=True)
    v = x.var(dim=axis, keepdim=True, unbiased=False)
    return (x - m) / torch.sqrt(v + eps)
def _scatter_add(tgt, idx, src, axis=0):
    return tgt.clone().index_add_(axis, idx, src)
def _segment_sum(src, seg, n):
    out = torch.zeros((n,) + src.shape[1:], dtype=src.dtype)
    return out.index_add_(0, seg, src)
def _pad(x, pw):
    flat = tuple(v for pair in reversed(pw) for v in pair)
    return torch.nn.functional.pad(x, flat)

kernel_name = 'parallel_sum__sliding_local_dilated__dense_activation_gelu__prompt'

def setup_inputs():

    _w = (lambda a: (lambda t: t.to(torch.bfloat16) if t.is_floating_point() else t)(torch.as_tensor(a)))
    def _A_setup():
        B, S, D = 1, 2048, 448
        return {
            "x": _w((lambda *s: torch.randn(*s, dtype=torch.bfloat16) * 0.05)(B, S, D)),
            "wqkv": _w((lambda *s: torch.randn(*s, dtype=torch.bfloat16) * 0.05)(D, 3 * D)),
            "wo": _w((lambda *s: torch.randn(*s, dtype=torch.bfloat16) * 0.05)(D, D)),
        }
    _A_in = _A_setup()

    def _B_setup():
        B, S, D, F = 1, 2048, 448, 1792
        return {
            "x": _w((lambda *s: torch.randn(*s, dtype=torch.bfloat16) * 0.05)(B, S, D)),
            "w1": _w((lambda *s: torch.randn(*s, dtype=torch.bfloat16) * 0.8)(D, F) * (D ** -0.5)),
            "b1": _w((lambda *s: torch.randn(*s, dtype=torch.bfloat16) * 0.8)(F) * 0.01),
            "w2": _w((lambda *s: torch.randn(*s, dtype=torch.bfloat16) * 0.8)(F, D) * (F ** -0.5)),
            "b2": _w((lambda *s: torch.randn(*s, dtype=torch.bfloat16) * 0.8)(D) * 0.01),
        }
    _B_in = _B_setup()

    return {
        "A_x": _A_in["x"],
        "A_wqkv": _A_in["wqkv"],
        "A_wo": _A_in["wo"],
        "B_x": _B_in["x"],
        "B_w1": _B_in["w1"],
        "B_b1": _B_in["b1"],
        "B_w2": _B_in["w2"],
        "B_b2": _B_in["b2"],
    }

def reference(A_x, A_wqkv, A_wo, B_x, B_w1, B_b1, B_w2, B_b2):
    def _A_ref(x, wqkv, wo):
        B, S, D = x.shape
        H = 16; Dh = D // H
        W, dil = 8, 2
        qkv = (lambda x, *d: x.permute(*d))((x @ wqkv).reshape(B, S, 3, H, Dh), 2, 0, 3, 1, 4)
        q, k, v = qkv[0], qkv[1], qkv[2]
        scale = Dh ** -0.5
        pos = torch.arange(S)
        off = torch.arange(W) * dil
        idx = pos[:, None] - off[None, :]
        mask = idx >= 0
        idx_c = torch.where(mask, idx, 0).reshape(-1)
        kg = k[:, :, idx_c, :].reshape(B, H, S, W, Dh)
        vg = v[:, :, idx_c, :].reshape(B, H, S, W, Dh)
        logits = torch.einsum("bhsd,bhswd->bhsw", q, kg) * scale
        logits = torch.where(mask[None, None, :, :], logits, -1e9)
        attn = _softmax(logits, axis=-1)
        o = torch.einsum("bhsw,bhswd->bhsd", attn, vg)
        return (lambda x, *d: x.permute(*d))(o, 0, 2, 1, 3).reshape(B, S, D) @ wo

    def _B_ref(x, w1, b1, w2, b2):
        h = torch.einsum("bsd,df->bsf", x, w1) + b1
        h = _gelu(h)
        return torch.einsum("bsf,fd->bsd", h, w2) + b2

    x = A_x
    xn = _layernorm(x, axis=-1)
    return x + _A_ref(xn, A_wqkv, A_wo) + _B_ref(xn, B_w1, B_b1, B_w2, B_b2)
```

```python
import sys, math
NAME = "parallel_sum__sliding_local_dilated__dense_activation_gelu__prompt"

class A:
    def __init__(self):
        self.L = []
        self.vm = []
        self.lg = []
        self.smem = False
    def __call__(self, s):
        for l in s.strip("\n").split("\n"):
            self.L.append("  " + l.strip() if not l.strip().endswith(":") else l.strip())
    def fork(self):
        b = A(); b.vm = list(self.vm); b.lg = list(self.lg); b.smem = self.smem; return b
    def vmem(self, s, tag):
        self(s); self.vm.append(tag)
    def ds(self, s, tag):
        self(s); self.lg.append(tag)
    def _cnt(self, q, tags):
        last = -1
        for i, t in enumerate(q):
            if t in tags: last = i
        if last < 0: return None
        return len(q) - 1 - last
    def need(self, vm=(), lg=()):
        parts = []
        n = self._cnt(self.vm, set(vm))
        if n is not None:
            n = min(n, 63); parts.append(f"vmcnt({n})"); self.vm = self.vm[len(self.vm) - n:] if n else []
        n = self._cnt(self.lg, set(lg))
        if n is not None:
            n = 0 if self.smem else min(n, 15)
            parts.append(f"lgkmcnt({n})"); self.lg = self.lg[len(self.lg) - n:] if n else []
            if n == 0: self.smem = False
        if parts: self("s_waitcnt " + " ".join(parts))
    def drain_lg(self):
        if self.lg or self.smem:
            self("s_waitcnt lgkmcnt(0)"); self.lg = []; self.smem = False
    def text(self): return "\n".join(self.L) + "\n"

def vr(a, n=1): return f"v{a}" if n == 1 else f"v[{a}:{a+n-1}]"
def sr(a, n=1): return f"s{a}" if n == 1 else f"s[{a}:{a+n-1}]"
def f2u(x):
    import struct; return "0x%08x" % struct.unpack("<I", struct.pack("<f", x))[0]

XB = 14336
RING = 5 * XB
SLOT = 28672
ACT = 0
WOR = 36864
LDS_BYTES = RING + 3 * SLOT
SX, SWQ, SWO, SW1, SW2, SB1, SWS, SB2, SOUT, SDBG = 28, 32, 36, 40, 44, 48, 52, 56, 60, 64
sW, sS, sRB, sA, sRH, sHI, sROW0, sT0, sT1, sT2, sT3 = 68, 69, 70, 71, 72, 73, 74, 75, 76, 77, 78
sW1o, sWQo, sW2o, sWOo, sM0, sPart, sC2, sCH = 79, 80, 81, 82, 83, 84, 85, 86
sSTAMP = 94
WS_STAMP = 0x8000000

def gen(cfg):
    STAMP = cfg.get("stamp", False)
    a = A()
    nst = [0]
    def stamp(b, idx):
        if not STAMP: return
        b(f"s_memrealtime s[96:97]")
        b("s_waitcnt lgkmcnt(0)"); b.lg = []; b.smem = False
        b(f"v_writelane_b32 v250, s96, {idx}")
    vL, vG, vM, vT0, vT1, vT2, vT3 = 1, 2, 3, 4, 5, 6, 7
    vW1A = 8
    vWQA = 15
    vW2A = 21
    vXE, vXO = 22, 23
    vXPE, vXPO = 24, 25
    vWA, vWB, vWA2, vWB2 = 26, 27, 28, 29
    vG2W, vG2W2, vG2O0, vG2O2 = 30, 31, 32, 33
    vL16 = 34
    vActW = 35
    vPF = 36
    vC1 = 37
    vHalo = 40
    vMask = 48
    vBias = 48
    ACC = 64
    BUF = (128, 164)
    RAW = 200
    UNP = 128
    a(f"""
s_load_dwordx16 s[4:19], s[0:1], 0
s_load_dwordx4 s[20:23], s[0:1], 64
s_load_dwordx2 s[24:25], s[0:1], 80
s_cmp_ge_u32 s2, 256
s_cbranch_scc1 L_end
v_lshrrev_b32 v{vT0}, 6, v0
v_and_b32 v{vL}, 63, v0
v_readfirstlane_b32 s{sW}, v{vT0}
""")
    if STAMP:
        a("v_mov_b32 v250, 0")
        a("s_memrealtime s[98:99]")
    xm = cfg.get("xmap", 1)
    if xm == 1:
        a(f"s_and_b32 s{sS}, s2, 7\ns_lshr_b32 s{sRB}, s2, 3")
    else:
        lb = xm.bit_length() - 1
        a(f"""
s_and_b32 s{sT0}, s2, {8//xm - 1}
s_lshl_b32 s{sT0}, s{sT0}, {lb}
s_lshr_b32 s{sT1}, s2, 3
s_and_b32 s{sT2}, s{sT1}, {xm-1}
s_add_u32 s{sS}, s{sT0}, s{sT2}
s_and_b32 s{sT0}, s2, 7
s_lshr_b32 s{sT0}, s{sT0}, {3-lb}
s_lshl_b32 s{sT0}, s{sT0}, {5-lb}
s_lshr_b32 s{sT1}, s{sT1}, {lb}
s_add_u32 s{sRB}, s{sT0}, s{sT1}
""")
    a(f"""
s_lshr_b32 s{sT0}, s{sRB}, 1
s_lshl_b32 s{sT0}, s{sT0}, 7
s_and_b32 s{sT1}, s{sRB}, 1
s_add_u32 s{sROW0}, s{sT0}, s{sT1}
s_and_b32 s{sA}, s{sW}, 3
s_and_b32 s{sRH}, s{sW}, 1
s_bfe_u32 s{sHI}, s{sW}, 0x10001
v_lshrrev_b32 v{vT0}, 3, v0
v_lshlrev_b32 v{vT0}, 1, v{vT0}
v_add_u32 v{vT0}, s{sROW0}, v{vT0}
v_mul_u32_u24 v{vT0}, 896, v{vT0}
v_and_b32 v{vT1}, 7, v0
v_lshl_add_u32 v{vT0}, v{vT1}, 4, v{vT0}
v_lshlrev_b32 v{vL16}, 4, v{vL}
v_lshrrev_b32 v{vG}, 4, v{vL}
v_and_b32 v{vM}, 15, v{vL}
""")
    if cfg.get("codepf", True):
        a(f"""
s_getpc_b64 s[26:27]
L_pc:
s_lshr_b32 s{sT0}, s2, 3
s_lshl_b32 s{sT0}, s{sT0}, 3
s_add_u32 s{sT0}, s{sT0}, s{sW}
s_lshl_b32 s{sT0}, s{sT0}, 7
s_min_u32 s{sT0}, s{sT0}, L_codeend - L_pc - 4
v_mov_b32 v{vT1}, s{sT0}
""")
        a.vmem(f"global_load_dword v{vPF}, v{vT1}, s[26:27]", "pf")
    a("s_waitcnt lgkmcnt(0)")
    def srd(d, p, n):
        a(f"s_mov_b32 s{d}, s{p}\ns_and_b32 s{d+1}, s{p+1}, 0xffff\ns_mov_b32 s{d+2}, {n}\ns_mov_b32 s{d+3}, 0x20000")
    srd(SW1, 12, 448 * 1792 * 2)
    srd(SX, 4, 2048 * 896)
    if STAMP:
        a("v_writelane_b32 v250, s98, 0")
    nsh = 32 // xm
    if cfg.get("wpf", True):
        a(f"""
s_and_b32 s{sT0}, s{sRB}, {nsh-1}
s_mul_i32 s{sT0}, s{sT0}, {56*xm}
s_mul_i32 s{sT1}, s{sW}, {7*xm}
s_add_u32 s{sT0}, s{sT0}, s{sT1}
v_min_u32 v{vT1}, {7*xm-1}, v{vL}
v_add_u32 v{vT1}, s{sT0}, v{vT1}
v_lshrrev_b32 v{vT2}, 2, v{vT1}
v_and_b32 v{vT1}, 3, v{vT1}
v_mul_u32_u24 v{vT2}, 3584, v{vT2}
v_lshl_add_u32 v{vT1}, v{vT1}, 7, v{vT2}
s_mul_i32 s{sT1}, s{sS}, 448
s_and_b32 s{sT1}, s{sT1}, 0xffffff80
""")
        a.vmem(f"buffer_load_dword v{vPF}, v{vT1}, s[{SW1}:{SW1+3}], s{sT1} offen", "pf")
    for t in range(7):
        a.vmem(f"buffer_load_dwordx4 {vr(RAW+4*t,4)}, v{vT0}, s[{SX}:{SX+3}], 0 offen offset:{128*t}", f"x{t}")
    srd(SWQ, 6, 448 * 1344 * 2)
    srd(SWO, 8, 448 * 448 * 2)
    srd(SW2, 16, 1792 * 448 * 2)
    srd(SB1, 14, 1792 * 2)
    srd(SWS, 24, 0x10000000)
    if cfg.get("wpf", True):
        per = 84 * xm
        pw = (per + 7) // 8
        a(f"""
s_and_b32 s{sT0}, s{sRB}, {nsh-1}
s_mul_i32 s{sT2}, s{sT0}, {per}
s_mul_i32 s{sT1}, s{sW}, {pw}
v_min_u32 v{vT1}, {pw-1}, v{vL}
v_add_u32 v{vT1}, s{sT1}, v{vT1}
v_min_u32 v{vT1}, {per-1}, v{vT1}
v_add_u32 v{vT1}, s{sT2}, v{vT1}
v_lshrrev_b32 v{vT2}, 1, v{vT1}
v_and_b32 v{vT1}, 1, v{vT1}
v_mul_u32_u24 v{vT2}, 896, v{vT2}
v_mul_u32_u24 v{vT1}, 108, v{vT1}
v_add_u32 v{vT1}, v{vT1}, v{vT2}
s_mul_i32 s{sT1}, s{sS}, 112
""")
        a.vmem(f"buffer_load_dword v{vPF}, v{vT1}, s[{SWQ}:{SWQ+3}], s{sT1} offen", "pf")
        per = 49 * xm; pw = (per + 7) // 8
        a(f"""
s_mul_i32 s{sT2}, s{sT0}, {per}
s_mul_i32 s{sT1}, s{sW}, {pw}
v_min_u32 v{vT1}, {pw-1}, v{vL}
v_add_u32 v{vT1}, s{sT1}, v{vT1}
v_min_u32 v{vT1}, {per-1}, v{vT1}
v_add_lshl_u32 v{vT1}, v{vT1}, s{sT2}, 7
s_mul_i32 s{sT1}, s{sS}, {224*896}
""")
        a.vmem(f"buffer_load_dword v{vPF}, v{vT1}, s[{SW2}:{SW2+3}], s{sT1} offen", "pf")
        per = 13 * xm; pw = (per + 7) // 8
        a(f"""
s_mul_i32 s{sT2}, s{sT0}, {per}
s_mul_i32 s{sT1}, s{sW}, {pw}
v_min_u32 v{vT1}, {pw-1}, v{vL}
v_add_u32 v{vT1}, s{sT1}, v{vT1}
v_min_u32 v{vT1}, {per-1}, v{vT1}
v_add_u32 v{vT1}, s{sT2}, v{vT1}
v_min_u32 v{vT1}, 391, v{vT1}
v_lshlrev_b32 v{vT1}, 7, v{vT1}
s_mul_i32 s{sT1}, s{sS}, {56*896}
""")
        a.vmem(f"buffer_load_dword v{vPF}, v{vT1}, s[{SWO}:{SWO+3}], s{sT1} offen", "pf")
    for i in range(6):
        d = vWQA + i
        a(f"""
v_add_u32 v{vT0}, {64*i}, v{vL}
v_mul_u32_u24 v{vT1}, 2979, v{vT0}
v_lshrrev_b32 v{vT1}, 16, v{vT1}
v_mul_u32_u24 v{vT2}, 22, v{vT1}
v_sub_u32 v{vT0}, v{vT0}, v{vT2}
v_min_u32 v{vT0}, 20, v{vT0}
v_mul_u32_u24 v{vT2}, 37, v{vT0}
v_lshrrev_b32 v{vT2}, 8, v{vT2}
v_mul_u32_u24 v{vT2}, {896-112}, v{vT2}
v_lshl_add_u32 v{vT0}, v{vT0}, 4, v{vT2}
v_and_b32 v{vT2}, 0x13, v{vT1}
v_and_b32 v{vT3}, 4, v{vT1}
v_lshl_or_b32 v{vT2}, v{vT3}, 1, v{vT2}
v_and_b32 v{vT3}, 8, v{vT1}
v_lshrrev_b32 v{vT3}, 1, v{vT3}
v_or_b32 v{vT2}, v{vT2}, v{vT3}
v_mul_u32_u24 v{vT2}, 2688, v{vT2}
v_add_u32 v{d}, v{vT0}, v{vT2}
""")
    a(f"""
v_lshrrev_b32 v{vT0}, 3, v{vL}
v_lshrrev_b32 v{vT1}, 4, v{vL}
v_lshlrev_b32 v{vT1}, 1, v{vT1}
v_and_b32 v{vT2}, 7, v{vL}
v_xor_b32 v{vT1}, v{vT1}, v{vT2}
v_mul_u32_u24 v{vT0}, 896, v{vT0}
v_lshl_add_u32 v{vW2A}, v{vT1}, 4, v{vT0}
v_xor_b32 v{vT0}, v{vM}, v{vG}
v_lshlrev_b32 v{vT1}, 8, v{vG}
s_mul_i32 s{sT0}, s{sRH}, {2*XB}
s_add_u32 s{sT1}, s{sT0}, {XB}
v_lshl_add_u32 v{vXE}, v{vT0}, 4, v{vT1}
v_add_u32 v{vXE}, s{sT1}, v{vXE}
v_xor_b32 v{vXO}, {12*16}, v{vXE}
v_lshrrev_b32 v{vT0}, 2, v{vL}
v_lshrrev_b32 v{vT1}, 1, v{vT0}
v_and_b32 v{vT1}, 3, v{vT1}
s_lshr_b32 s{sT2}, s{sW}, 1
v_xor_b32 v{vT1}, s{sT2}, v{vT1}
v_lshlrev_b32 v{vT1}, 5, v{vT1}
v_lshl_add_u32 v{vT1}, v{vT0}, 7, v{vT1}
v_and_b32 v{vT2}, 3, v{vL}
v_lshl_add_u32 v{vG2O0}, v{vT2}, 3, v{vT1}
v_xor_b32 v{vG2O2}, 64, v{vG2O0}
v_add_u32 v{vG2W}, {RING}, v{vG2O0}
v_add_u32 v{vG2W2}, {RING+2*SLOT}, v{vG2O0}
s_mul_i32 s{sWQo}, s{sA}, {16*2688}
s_mul_i32 s{sT2}, s{sS}, 112
s_add_u32 s{sWQo}, s{sWQo}, s{sT2}
s_mul_i32 s{sW2o}, s{sS}, {224*896}
s_mul_i32 s{sWOo}, s{sS}, {56*896}
""")
    for i in range(7):
        a(f"""
s_add_u32 s{sT2}, s{sS}, {1+i}
s_mul_i32 s{sT3}, s{sT2}, 37
s_lshr_b32 s{sT3}, s{sT3}, 8
s_mul_i32 s{sT3}, s{sT3}, 7
s_sub_u32 s{sCH+i}, s{sT2}, s{sT3}
""")
    a(f"""
s_mul_i32 s{sPart}, s{sRB}, {7*8*8192}
s_lshl_b32 s{sT2}, s{sS}, 13
s_add_u32 s{sPart}, s{sPart}, s{sT2}
s_lshl_b32 s{sT2}, s{sW}, 10
s_add_u32 s{sPart}, s{sPart}, s{sT2}
s_cmp_ge_u32 s{sW}, 4
s_cbranch_scc1 L_A
""")

    def dma_w1(b, st):
        slot = st % 3
        for i in range(7):
            b(f"s_add_u32 m0, s{sM0}, {slot*SLOT + 1024*i}")
            if i == 0: b(f"s_add_u32 s{sT0}, s{sW1o}, {st*64*3584}")
            else: b("s_nop 0")
            b.vmem(f"buffer_load_dwordx4 v{vW1A+i}, s[{SW1}:{SW1+3}], s{sT0} offen lds", f"st{st}")
    def dma_wq(b, st):
        slot = st % 3; q = st - 7
        b(f"s_mul_i32 s{sT1}, s{sA}, {16*352}")
        for i in range(6):
            b(f"s_add_u32 m0, s{sT1}, {RING + slot*SLOT + 1024*i}")
            if i == 0: b(f"s_add_u32 s{sT0}, s{sWQo}, {q*64*2688}")
            elif i == 5: b("s_mov_b32 exec_hi, 0")
            else: b("s_nop 0")
            b.vmem(f"buffer_load_dwordx4 v{vWQA+i}, s[{SWQ}:{SWQ+3}], s{sT0} offen lds", f"st{st}")
        b("s_mov_b32 exec_hi, -1")
    def dma_w2(b, st, first_expr, n):
        slot = st % 3; c = st - 14
        b(f"""s_lshl_b32 s{sT1}, {first_expr}, 10
s_mul_i32 s{sT0}, {first_expr}, {8*896}
s_lshl_b32 s{sT2}, s{sCH+c}, 7
s_add_u32 s{sT0}, s{sT0}, s{sT2}
s_add_u32 s{sT0}, s{sT0}, s{sW2o}""")
        for i in range(n):
            b(f"s_add_u32 m0, s{sT1}, {RING + slot*SLOT + 1024*i}")
            if i: b(f"s_add_u32 s{sT0}, s{sT0}, {8*896}")
            else: b("s_nop 0")
            b.vmem(f"buffer_load_dwordx4 v{vW2A}, s[{SW2}:{SW2+3}], s{sT0} offen lds", f"st{st}")
    def barrier(b, j, vm=()):
        b.need(vm=vm)
        b.drain_lg()
        b("s_barrier")

    def ln_core(b, raw, nraw, unp, tags, nlanes_log2):
        S, Q = vT0, vT2
        for d in range(nraw):
            if d % 4 == 0: b.need(vm=[tags[d // 4]])
            u = unp + 2 * d
            b(f"v_lshlrev_b32 v{u}, 16, v{raw+d}\nv_and_b32 v{u+1}, 0xffff0000, v{raw+d}")
            if d == 0:
                b(f"v_pk_mul_f32 {vr(Q,2)}, {vr(u,2)}, {vr(u,2)}")
            elif d == 1:
                b(f"v_pk_add_f32 {vr(S,2)}, {vr(u-2,2)}, {vr(u,2)}\nv_pk_fma_f32 {vr(Q,2)}, {vr(u,2)}, {vr(u,2)}, {vr(Q,2)}")
            else:
                b(f"v_pk_add_f32 {vr(S,2)}, {vr(S,2)}, {vr(u,2)}\nv_pk_fma_f32 {vr(Q,2)}, {vr(u,2)}, {vr(u,2)}, {vr(Q,2)}")
        b(f"v_add_f32 v{S}, v{S}, v{S+1}\nv_add_f32 v{Q}, v{Q}, v{Q+1}\ns_nop 0")
        steps = ["quad_perm:[1,0,3,2]", "quad_perm:[2,3,0,1]", "row_half_mirror", "row_mirror"][:min(nlanes_log2, 4)]
        for st in steps:
            b(f"v_add_f32_dpp v{S}, v{S}, v{S} {st} row_mask:0xf bank_mask:0xf\nv_add_f32_dpp v{Q}, v{Q}, v{Q} {st} row_mask:0xf bank_mask:0xf\ns_nop 0")
        if nlanes_log2 >= 5:
            b(f"""v_mov_b32 v{S+1}, v{S}
v_mov_b32 v{Q+1}, v{Q}
s_nop 1
v_permlane16_swap_b32 v{S}, v{S+1}
v_permlane16_swap_b32 v{Q}, v{Q+1}
s_nop 1
v_add_f32 v{S}, v{S}, v{S+1}
v_add_f32 v{Q}, v{Q}, v{Q+1}""")
        b(f"""v_mul_f32 v{S}, {f2u(1/448)}, v{S}
v_mul_f32 v{Q}, {f2u(1/448)}, v{Q}
v_fma_f32 v{Q}, -v{S}, v{S}, v{Q}
v_max_f32 v{Q}, 0, v{Q}
v_add_f32 v{Q}, {f2u(1e-5)}, v{Q}
v_rsq_f32 v{Q}, v{Q}
s_nop 0
v_mul_f32 v{S}, v{S}, v{Q}""")
        for d in range(nraw):
            u = unp + 2 * d
            b(f"v_pk_fma_f32 {vr(u,2)}, {vr(u,2)}, {vr(Q,2)}, {vr(S,2)} op_sel_hi:[1,0,0] neg_lo:[0,0,1] neg_hi:[0,0,1]")
            if d >= 1: b(f"v_cvt_pk_bf16_f32 v{raw+d-1}, v{u-2}, v{u-1}")
            yield d - 1
        u = unp + 2 * (nraw - 1)
        b(f"v_cvt_pk_bf16_f32 v{raw+nraw-1}, v{u}, v{u+1}")
        yield nraw - 1

    def ln_main(b):
        vA = vActW
        b(f"""
v_lshrrev_b32 v{vT0}, 3, v0
v_and_b32 v{vT0}, 15, v{vT0}
v_and_b32 v{vT1}, 3, v{vL}
v_bfe_u32 v{vT2}, v{vL}, 2, 1
v_mul_u32_u24 v{vT3}, 12, v{vT2}
v_or_b32 v{vT3}, v{vT3}, v{vT1}
v_xor_b32 v{vT0}, v{vT0}, v{vT3}
v_lshlrev_b32 v{vT0}, 4, v{vT0}
v_lshl_add_u32 v{vT0}, v{vT1}, 8, v{vT0}
v_lshl_add_u32 v{vT0}, v{vT2}, 10, v{vT0}
s_lshr_b32 s{sT0}, s{sW}, 1
s_add_u32 s{sT0}, s{sT0}, 1
s_mul_i32 s{sT0}, s{sT0}, {XB}
v_add_u32 v{vA}, s{sT0}, v{vT0}
""")
        for d in ln_core(b, RAW, 28, UNP, [f"x{t}" for t in range(7)], 3):
            if d >= 0 and d % 4 == 3:
                t = d // 4
                b.ds(f"ds_write_b128 v{vA}, {vr(RAW+4*t,4)} offset:{2048*t}", "xw")

    def mfma(b, d, x, y, c=None):
        b(f"v_mfma_f32_16x16x32_bf16 {vr(d,4)}, {vr(x,4)}, {vr(y,4)}, {vr(d,4) if c is None else c}")

    def g1_phase(b, st0, reads, mfmas, between, vmneed):
        for ks in range(15):
            R = reads(ks) if ks < 14 else []
            M = mfmas(ks - 1) if ks >= 1 else []
            pre = 0
            if ks % 2 == 0:
                pre = min(len(M), cfg.get("pre", 3))
                for fn, tg in M[:pre]:
                    b.need(lg=tg); fn()
                j = st0 + ks // 2
                barrier(b, j, vm=vmneed(j))
                between(j)
            M = M[pre:]
            ri = 0
            for fn, tg in M:
                b.need(lg=tg); fn()
                for _ in range(2):
                    if ri < len(R): b.ds(*R[ri]); ri += 1
            while ri < len(R): b.ds(*R[ri]); ri += 1

    def g2_phase(b, role):
        ACTR = 64
        WR = 136
        NR = 6
        AC = 160
        PK = 176
        LAG = 4
        b(f"s_mul_i32 s{sT0}, s{sRH}, {2*9*1024}\nv_add_u32 v{vActW}, s{sT0}, v{vL16}")
        steps = [(c, t) for c in range(7) for t in range(9)]
        def reads(n):
            c, t = steps[n]; st = 14 + c; slot = st % 3
            out = []
            w = WR + 4 * (n % NR)
            if t < 7:
                base = vG2W if slot < 2 else vG2W2
                o = (slot % 2) * SLOT if slot < 2 else 0
                for u in range(2):
                    out.append((f"ds_read_b64_tr_b16 {vr(w+2*u,2)}, v{base} offset:{o + (16*t + 112*u)*128}", f"w{n}"))
            else:
                hd = t - 7
                for u in range(2):
                    base = vG2O0 if (14*hd + 6*u) % 4 == 0 else vG2O2
                    out.append((f"ds_read_b64_tr_b16 {vr(w+2*u,2)}, v{base} offset:{WOR + (c%4)*7168 + (28*hd + 12*u)*128}", f"w{n}"))
            if c == 0:
                for pb in range(2):
                    out.append((f"ds_read_b128 {vr(ACTR+4*(9*pb+t),4)}, v{vActW} offset:{ACT + (9*pb+t)*1024}", f"w{n}"))
            return out
        def epi(c):
            ac = AC + 8 * (c % 2); pk = PK + 4 * (c % 2)
            for q in range(4):
                b(f"v_cvt_pk_bf16_f32 v{pk+q}, v{ac+2*q}, v{ac+2*q+1}")
            b(f"s_lshl_b32 s{sT0}, s{sCH+c}, 16\ns_add_u32 s{sT0}, s{sT0}, s{sPart}")
            b.vmem(f"buffer_store_dwordx4 {vr(pk,4)}, v{vL16}, s[{SWS}:{SWS+3}], s{sT0} offen {cfg.get('pst','sc1')}", f"p{c}")
        nread = 0
        N = len(steps)
        def issue(n):
            c, t = steps[n]
            if t == 0:
                j = 15 + c
                barrier(b, j, vm=[f"st{14+c}", f"wo{c}"])
                stamp(b, 8 + c)
                if 1 <= c <= 4:
                    st = 16 + c
                    if role == "F":
                        b(f"s_lshl_b32 s{sT3}, s{sA}, 2")
                        dma_w2(b, st, f"s{sT3}", 4)
                    else:
                        b(f"s_mul_i32 s{sT3}, s{sA}, 3\ns_add_u32 s{sT3}, s{sT3}, 16")
                        dma_w2(b, st, f"s{sT3}", 3)
                        if c <= 3:
                            cc = 3 + c
                            for i in range(2):
                                b(f"""s_lshl_b32 s{sT3}, s{sA}, 1
s_add_u32 s{sT3}, s{sT3}, {i}
s_min_u32 s{sT3}, s{sT3}, 6
s_lshl_b32 s{sT1}, s{sT3}, 10
s_add_u32 m0, s{sT1}, {WOR + (cc%4)*7168}
s_mul_i32 s{sT0}, s{sT3}, {8*896}
s_lshl_b32 s{sT2}, s{sCH+cc}, 7
s_add_u32 s{sT0}, s{sT0}, s{sT2}
s_add_u32 s{sT0}, s{sT0}, s{sWOo}""")
                                b.vmem(f"buffer_load_dwordx4 v{vW2A}, s[{SWO}:{SWO+3}], s{sT0} offen lds", f"wo{cc}")
            for r in reads(n): b.ds(*r)
        for n in range(N):
            while nread < N and nread <= n + LAG:
                if steps[nread][1] == 0 and nread > 0 and nread > n + LAG - 2: break
                if nread - n >= NR: break
                issue(nread); nread += 1
            c, t = steps[n]
            b.need(lg=[f"w{n}"])
            ac = AC + 8 * (c % 2); w = WR + 4 * (n % NR)
            for pb in range(2):
                mfma(b, ac + 4 * pb, w, ACTR + 4 * (9 * pb + t), "0" if t == 0 else None)
            if t == 4 and c >= 1: epi(c - 1)
        b("s_nop 7")
        epi(6)

    f = a.fork()
    f(f"""
s_mul_i32 s{sT0}, s{sS}, 448
s_mul_i32 s{sT1}, s{sHI}, 224
s_add_u32 s{sT0}, s{sT0}, s{sT1}
v_lshlrev_b32 v{vT0}, 3, v{vG}
""")
    for cb in range(7):
        f.vmem(f"buffer_load_dwordx2 {vr(vBias+2*cb,2)}, v{vT0}, s[{SB1}:{SB1+3}], s{sT0} offen offset:{32*cb}", "bias")
    f(f"""
v_lshrrev_b32 v{vT0}, 2, v{vM}
v_lshl_add_u32 v{vT0}, v{vG}, 3, v{vT0}
v_mul_u32_u24 v{vT0}, 448, v{vT0}
v_and_b32 v{vT1}, 3, v{vL}
v_lshl_add_u32 v{vT0}, v{vT1}, 3, v{vT0}
s_add_u32 s{sT1}, s{sT1}, {RING}
v_add_u32 v{vT0}, s{sT1}, v{vT0}
v_and_b32 v{vT1}, 1, v{vG}
v_lshlrev_b32 v{vT1}, 5, v{vT1}
s_lshl_b32 s{sT2}, s{sHI}, 1
s_sub_u32 s{sT2}, 1, s{sT2}
v_mul_lo_u32 v{vT1}, v{vT1}, s{sT2}
v_add_u32 v{vWA}, v{vT0}, v{vT1}
v_sub_u32 v{vWB}, v{vT0}, v{vT1}
v_add_u32 v{vWA2}, {2*SLOT}, v{vWA}
v_add_u32 v{vWB2}, {2*SLOT}, v{vWB}
v_mov_b32 v{vC1}, {f2u(-2.3022081981)}
s_mov_b32 s{sC2}, {f2u(-2.3022081981*0.044715)}
""")
    stamp(f, 1)
    ln_main(f)
    stamp(f, 2)
    f.need(vm=["bias"])
    for cb in range(7):
        for pb in range(2):
            d = ACC + 8 * cb + 4 * pb
            f(f"""v_lshlrev_b32 v{d}, 16, v{vBias+2*cb}
v_and_b32 v{d+1}, 0xffff0000, v{vBias+2*cb}
v_lshlrev_b32 v{d+2}, 16, v{vBias+2*cb+1}
v_and_b32 v{d+3}, 0xffff0000, v{vBias+2*cb+1}""")
    f("s_setprio 1")
    def f_reads(ks):
        B = BUF[ks % 2]; st = ks // 2; slot = st % 3; out = []
        xb = vXE if ks % 2 == 0 else vXO
        for pb in range(2):
            out.append((f"ds_read_b128 {vr(B+4*pb,4)}, v{xb} offset:{pb*XB + ks*1024}", f"x{ks}"))
        for cb in range(7):
            base = (vWA if cb % 2 == 0 else vWB) + (2 if slot == 2 else 0)
            o = (SLOT if slot == 1 else 0) + (ks % 2) * 14336 + cb * 32
            for u in range(2):
                out.append((f"ds_read_b64_tr_b16 {vr(B+8+4*cb+2*u,2)}, v{base} offset:{o + u*1792}", f"w{ks}_{cb}"))
        return out
    def f_mfmas(ks):
        B = BUF[ks % 2]; out = []
        for cb in range(7):
            for pb in range(2):
                out.append((lambda cb=cb, pb=pb: mfma(f, ACC + 8*cb + 4*pb, B + 8 + 4*cb, B + 4*pb), [f"x{ks}", f"w{ks}_{cb}"]))
        return out
    def f_between(j):
        if j == 0: stamp(f, 3)
        if j == 7: stamp(f, 4)
    g1_phase(f, 0, f_reads, f_mfmas, f_between, lambda j: [])
    f("s_setprio 0")
    H = 128
    GT = 160
    dma_wq(f, 9)
    for cb in range(7):
        a0 = ACC + 8 * cb
        E = range(8)
        for e in E: f(f"v_mul_f32 v{GT+e}, v{a0+e}, v{a0+e}")
        for e in E: f(f"v_fma_f32 v{GT+e}, v{GT+e}, s{sC2}, v{vC1}")
        for e in E: f(f"v_mul_f32 v{GT+e}, v{GT+e}, v{a0+e}")
        for e in E: f(f"v_exp_f32 v{GT+e}, v{GT+e}")
        for e in E: f(f"v_add_f32 v{GT+e}, 1.0, v{GT+e}")
        for e in E: f(f"v_rcp_f32 v{GT+e}, v{GT+e}")
        for e in E: f(f"v_mul_f32 v{GT+e}, v{GT+e}, v{a0+e}")
        for q in range(4): f(f"v_cvt_pk_bf16_f32 v{H+4*cb+q}, v{GT+2*q}, v{GT+2*q+1}")
        j = 8 + cb
        barrier(f, j, vm=[f"st{j}"] if j <= 13 else [])
        if j + 2 <= 13: dma_wq(f, j + 2)
        elif j <= 13:
            f(f"s_mul_i32 s{sT3}, s{sA}, 7"); dma_w2(f, j + 2, f"s{sT3}", 7)
    stamp(f, 5)
    f(f"""s_mul_i32 s{sT0}, s{sRH}, {2*9*1024}
s_lshl_b32 s{sT1}, s{sHI}, 3
s_add_u32 s{sT0}, s{sT0}, s{sT1}
v_add_u32 v{vActW}, s{sT0}, v{vL16}""")
    for cb in range(7):
        for pb in range(2):
            f.ds(f"ds_write_b64 v{vActW}, {vr(H+4*cb+2*pb,2)} offset:{ACT + (9*pb+cb)*1024}", "hw")
    f(f"""s_cmp_eq_u32 s{sA}, 1
s_cselect_b32 s{sT2}, s{sCH+1}, s{sCH}
s_cmp_eq_u32 s{sA}, 2
s_cselect_b32 s{sT2}, s{sCH+2}, s{sT2}
s_cmp_eq_u32 s{sA}, 3
s_cselect_b32 s{sT2}, s{sCH+3}, s{sT2}
s_lshl_b32 s{sT2}, s{sT2}, 7
s_add_u32 s{sT0}, s{sT2}, s{sWOo}
s_mul_i32 s{sT1}, s{sA}, 7168""")
    for i in range(7):
        f(f"s_add_u32 m0, s{sT1}, {WOR + 1024*i}")
        if i: f(f"s_add_u32 s{sT0}, s{sT0}, {8*896}")
        else: f("s_nop 0")
        f.vmem(f"buffer_load_dwordx4 v{vW2A}, s[{SWO}:{SWO+3}], s{sT0} offen lds", "wo0")
    f(f"s_mul_i32 s{sT3}, s{sA}, 7"); dma_w2(f, 16, f"s{sT3}", 7)
    g2_phase(f, "F")
    stamp(f, 15)
    f("s_branch L_fin")

    w = a.fork()
    w("L_A:")
    for i in range(7):
        w(f"""
v_add_u32 v{vT0}, {64*i}, v{vL}
v_mul_u32_u24 v{vT1}, 2341, v{vT0}
v_lshrrev_b32 v{vT1}, 16, v{vT1}
v_mul_u32_u24 v{vT2}, 28, v{vT1}
v_sub_u32 v{vT0}, v{vT0}, v{vT2}
v_lshrrev_b32 v{vT2}, 2, v{vT1}
v_and_b32 v{vT2}, 2, v{vT2}
v_xor_b32 v{vT0}, v{vT0}, v{vT2}
v_mul_u32_u24 v{vT1}, 3584, v{vT1}
v_lshl_add_u32 v{vW1A+i}, v{vT0}, 4, v{vT1}
""")
    w(f"""
s_mul_i32 s{sW1o}, s{sA}, {16*3584}
s_mul_i32 s{sT2}, s{sS}, 448
s_add_u32 s{sW1o}, s{sW1o}, s{sT2}
s_mul_i32 s{sM0}, s{sA}, 7168
s_add_u32 s{sM0}, s{sM0}, {RING}
v_lshrrev_b32 v{vT0}, 5, v{vL}
s_lshl_b32 s{sT0}, s{sA}, 2
s_add_u32 s{sT0}, s{sT0}, s{sROW0}
s_sub_u32 s{sT0}, s{sT0}, 16
v_lshl_add_u32 v{vT0}, v{vT0}, 1, s{sT0}
s_movk_i32 s{sT1}, 896
v_mul_lo_u32 v{vT0}, v{vT0}, s{sT1}
v_and_b32 v{vT1}, 31, v{vL}
v_lshl_add_u32 v{vT0}, v{vT1}, 4, v{vT0}
v_cmp_gt_u32 vcc, 24, v{vT1}
v_add_u32 v{vT2}, 512, v{vT0}
v_mov_b32 v{vT3}, 0x80000000
v_cndmask_b32 v{vT2}, v{vT3}, v{vT2}, vcc
v_min_u32 v{vT0}, v{vT3}, v{vT0}
v_min_u32 v{vT2}, v{vT3}, v{vT2}
""")
    w.vmem(f"buffer_load_dwordx4 {vr(vHalo,4)}, v{vT0}, s[{SX}:{SX+3}], 0 offen", "h0")
    w.vmem(f"buffer_load_dwordx4 {vr(vHalo+4,4)}, v{vT2}, s[{SX}:{SX+3}], 0 offen", "h1")
    for st in range(3): dma_w1(w, st)
    stamp(w, 1)
    ln_main(w)
    stamp(w, 2)
    for j in range(7):
        barrier(w, j, vm=[f"st{j}"])
        if j == 0: stamp(w, 3)
        if j >= 1:
            if j + 2 <= 6: dma_w1(w, j + 2)
            else: dma_wq(w, j + 2)
        if j == 0:
            w(f"""
v_and_b32 v{vActW}, 31, v{vL}
v_lshrrev_b32 v{vT0}, 5, v{vL}
s_lshl_b32 s{sT0}, s{sA}, 1
s_add_u32 s{sT0}, s{sT0}, 8
v_add_u32 v{vT0}, s{sT0}, v{vT0}
v_and_b32 v{vT1}, 3, v{vL}
v_bfe_u32 v{vT2}, v{vL}, 2, 1
v_mul_u32_u24 v{vT3}, 12, v{vT2}
v_or_b32 v{vT3}, v{vT3}, v{vT1}
v_xor_b32 v{vT0}, v{vT0}, v{vT3}
v_lshlrev_b32 v{vT0}, 4, v{vT0}
v_lshl_add_u32 v{vActW}, v{vActW}, 8, v{vT0}
""")
            for d in ln_core(w, vHalo, 8, UNP, ["h0", "h1"], 5): pass
            w.ds(f"ds_write_b128 v{vActW}, {vr(vHalo,4)}", "xw")
            w("s_mov_b32 exec_lo, 0x00ffffff\ns_mov_b32 exec_hi, 0x00ffffff")
            w.ds(f"ds_write_b128 v{vActW}, {vr(vHalo+4,4)} offset:8192", "xw")
            w("s_mov_b64 exec, -1")
        if j == 1:
            w(f"""
v_lshrrev_b32 v{vT0}, 1, v{vG}
v_and_b32 v{vT1}, 1, v{vG}
v_lshlrev_b32 v{vT1}, 2, v{vT1}
v_lshl_add_u32 v{vT0}, v{vT0}, 4, v{vT1}
v_lshrrev_b32 v{vT1}, 2, v{vM}
v_add_u32 v{vT0}, v{vT0}, v{vT1}
v_mul_u32_u24 v{vT0}, 352, v{vT0}
v_and_b32 v{vT1}, 3, v{vL}
v_lshl_add_u32 v{vT0}, v{vT1}, 3, v{vT0}
s_mul_i32 s{sT0}, s{sHI}, 56
s_add_u32 s{sT0}, s{sT0}, {RING}
v_add_u32 v{vWA}, s{sT0}, v{vT0}
v_add_u32 v{vWA2}, {2*SLOT}, v{vWA}
s_xor_b32 s{sT0}, s{sRH}, 1
s_lshl_b32 s{sT0}, s{sT0}, 3
v_or_b32 v{vT0}, s{sT0}, v{vM}
v_xor_b32 v{vT0}, v{vT0}, v{vG}
v_lshlrev_b32 v{vT1}, 8, v{vG}
v_lshl_add_u32 v{vT0}, v{vT0}, 4, v{vT1}
s_mul_i32 s{sT0}, s{sRH}, {2*XB}
v_add_u32 v{vXPE}, s{sT0}, v{vT0}
v_xor_b32 v{vXPO}, {12*16}, v{vXPE}
v_lshlrev_b32 v{vT0}, 2, v{vG}
v_sub_u32 v{vT0}, v{vM}, v{vT0}
v_mov_b32 v{vT3}, {f2u(-1e30)}
s_lshr_b32 s{sT0}, s{sRB}, 1
s_or_b32 s{sT0}, s{sT0}, s{sRH}
s_cmp_eq_u32 s{sT0}, 0
s_cselect_b32 s{sT1}, 0, 8
""")
            for jj in range(4):
                w(f"""
v_subrev_u32 v{vT1}, {jj}, v{vT0}
v_add_u32 v{vT2}, 16, v{vT1}
v_cmp_gt_u32 vcc, 8, v{vT1}
s_nop 1
v_cndmask_b32 v{vMask+4+jj}, v{vT3}, 0, vcc
v_cmp_gt_u32 vcc, 8, v{vT2}
s_nop 1
v_cndmask_b32 v{vMask+jj}, v{vT3}, 0, vcc
v_cmp_gt_u32 vcc, s{sT1}, v{vT2}
s_nop 1
v_cndmask_b32 v{vMask+8+jj}, v{vT3}, 0, vcc
""")
    w("s_setprio 1")
    def a_reads(ks):
        B = BUF[ks % 2]; st = 7 + ks // 2; slot = st % 3; out = []
        xb = vXE if ks % 2 == 0 else vXO
        xp = vXPE if ks % 2 == 0 else vXPO
        out.append((f"ds_read_b128 {vr(B+4,4)}, v{xb} offset:{ks*1024}", f"x{ks}"))
        out.append((f"ds_read_b128 {vr(B+8,4)}, v{xb} offset:{XB + ks*1024}", f"x{ks}"))
        base = vWA2 if slot == 2 else vWA
        for sec in range(3):
            if sec == 1:
                out.append((f"ds_read_b128 {vr(B,4)}, v{xp} offset:{ks*1024}", f"xp{ks}"))
            for db in range(2):
                o = (SLOT if slot == 1 else 0) + (ks % 2) * 32 * 352 + sec * 112 + db * 24
                for u in range(2):
                    out.append((f"ds_read_b64_tr_b16 {vr(B+12+4*(2*sec+db)+2*u,2)}, v{base} offset:{o + u*8*352}", f"w{ks}_{sec}{db}"))
        return out
    def a_mfmas(ks):
        B = BUF[ks % 2]; out = []
        c = "0" if ks == 0 else None
        for db in range(2):
            for qb in range(2):
                out.append((lambda db=db, qb=qb: mfma(w, ACC + (2*db+qb)*4, B + 12 + 4*db, B + 4 + 4*qb, c), [f"x{ks}", f"w{ks}_0{db}"]))
        for db in range(2):
            for kb in range(3):
                out.append((lambda db=db, kb=kb: mfma(w, ACC + 16 + (3*db+kb)*4, B + 20 + 4*db, B + 4*kb, c), [f"xp{ks}", f"w{ks}_1{db}"]))
        for db in range(2):
            for kb in range(3):
                out.append((lambda db=db, kb=kb: mfma(w, ACC + 40 + (3*db+kb)*4, B + 4*kb, B + 28 + 4*db, c), [f"w{ks}_2{db}"]))
        return out
    def a_between(j):
        if j == 7: stamp(w, 4)
        if j == 14: stamp(w, 5)
    g1_phase(w, 7, a_reads, a_mfmas, a_between, lambda j: [f"st{j}"] if j <= 8 else [])
    QP, KP, VP = 200, 208, 220
    SS = 128
    MX = 144; PP = 148; OO = 156; ONES = 180; LL = 184; vZ = 192
    w(f"""v_cmp_ne_u32 vcc, 0, v{vG}
v_mov_b32 v{ONES}, 0x3f803f80
v_mov_b32 v{ONES+1}, 0x3f803f80
v_cndmask_b32 v{vZ}, 0, -1, vcc
v_mov_b32 v{ONES+2}, 0x3f803f80
v_mov_b32 v{ONES+3}, 0x3f803f80""")
    for qb in range(2):
        for db in range(2):
            s0 = ACC + (2*db+qb)*4
            for h in range(2): w(f"v_cvt_pk_bf16_f32 v{QP+4*qb+2*db+h}, v{s0+2*h}, v{s0+2*h+1}")
        for h in range(2): w(f"v_and_b32 v{QP+4*qb+2+h}, v{vZ}, v{QP+4*qb+2+h}")
    for kb in range(3):
        for db in range(2):
            s0 = ACC + 16 + (3*db+kb)*4
            for h in range(2): w(f"v_cvt_pk_bf16_f32 v{KP+4*kb+2*db+h}, v{s0+2*h}, v{s0+2*h+1}")
    w("s_nop 1")
    for qb in range(2):
        for t in range(2):
            m = vMask + 4 if t == 1 else (vMask + 8 if qb == 0 else vMask)
            mfma(w, SS + 8*qb + 4*t, KP + 4*(qb+t), QP + 4*qb, vr(m, 4))
    for db in range(2):
        for kb in range(3):
            s0 = ACC + 40 + (3*db+kb)*4
            for h in range(2): w(f"v_cvt_pk_bf16_f32 v{VP+6*db+2*kb+h}, v{s0+2*h}, v{s0+2*h+1}")
    for qb in range(2):
        s0 = SS + 8*qb
        w(f"v_max3_f32 v{MX+2*qb}, v{s0}, v{s0+1}, v{s0+2}")
    for qb in range(2):
        s0 = SS + 8*qb
        w(f"v_max3_f32 v{MX+2*qb+1}, v{s0+3}, v{s0+4}, v{s0+5}")
    for qb in range(2):
        s0 = SS + 8*qb
        w(f"v_max3_f32 v{MX+2*qb}, v{MX+2*qb}, v{s0+6}, v{s0+7}")
    for qb in range(2): w(f"v_max_f32 v{MX+2*qb}, v{MX+2*qb}, v{MX+2*qb+1}")
    for sw in ("16", "32"):
        for qb in range(2): w(f"v_mov_b32 v{MX+2*qb+1}, v{MX+2*qb}")
        w("s_nop 1")
        for qb in range(2): w(f"v_permlane{sw}_swap_b32 v{MX+2*qb}, v{MX+2*qb+1}")
        w("s_nop 1")
        for qb in range(2): w(f"v_max_f32 v{MX+2*qb}, v{MX+2*qb}, v{MX+2*qb+1}")
    cs = 28 ** -0.5 * math.log2(math.e)
    w(f"s_mov_b32 s{sT0}, {f2u(cs)}")
    for qb in range(2): w(f"v_mul_f32 v{MX+2*qb}, s{sT0}, v{MX+2*qb}")
    for qb in range(2):
        s0 = SS + 8*qb
        for e in range(8): w(f"v_fma_f32 v{s0+e}, v{s0+e}, s{sT0}, -v{MX+2*qb}")
        for e in range(8): w(f"v_exp_f32 v{s0+e}, v{s0+e}")
        w("s_nop 0")
        for q in range(4): w(f"v_cvt_pk_bf16_f32 v{PP+4*qb+q}, v{s0+2*q}, v{s0+2*q+1}")
        w("s_nop 1")
        mfma(w, LL + 4*qb, ONES, PP + 4*qb, "0")
        for db in range(2): mfma(w, OO + 8*qb + 4*db, VP + 6*db + 2*qb, PP + 4*qb, "0")
    w(f"""s_mul_i32 s{sT0}, s{sRH}, {2*9*1024}
s_lshl_b32 s{sT1}, s{sHI}, 10
s_add_u32 s{sT0}, s{sT0}, s{sT1}
v_add_u32 v{vActW}, s{sT0}, v{vL16}""")
    for qb in range(2):
        if qb == 1: w("s_nop 3")
        w(f"v_rcp_f32 v{LL+4*qb}, v{LL+4*qb}\ns_nop 0\nv_and_b32 v{LL+4*qb+1}, v{vZ}, v{LL+4*qb}")
        for db in range(2):
            for e in range(4): w(f"v_mul_f32 v{OO+8*qb+4*db+e}, v{LL+4*qb+db}, v{OO+8*qb+4*db+e}")
        for q in range(4): w(f"v_cvt_pk_bf16_f32 v{PP+4*qb+q}, v{OO+8*qb+2*q}, v{OO+8*qb+2*q+1}")
        w.ds(f"ds_write_b128 v{vActW}, {vr(PP+4*qb,4)} offset:{ACT + (9*qb+7)*1024}", "ow")
    w("s_setprio 0")
    stamp(w, 6)
    g2_phase(w, "A")
    stamp(w, 15)
    w("L_fin:")
    if STAMP:
        w(f"""s_waitcnt vmcnt(0)
s_memrealtime s[96:97]
s_waitcnt lgkmcnt(0)
v_writelane_b32 v250, s96, 16
s_lshl_b32 s{sT0}, s2, 3
s_add_u32 s{sT0}, s{sT0}, s{sW}
s_lshl_b32 s{sT0}, s{sT0}, 8
s_add_u32 s{sT0}, s{sT0}, {WS_STAMP}
v_lshlrev_b32 v{vT0}, 2, v{vL}
buffer_store_dword v250, v{vT0}, s[{SWS}:{SWS+3}], s{sT0} offen
""")
    w("L_end:\ns_endpgm\nL_codeend:")

    r = A()
    r(f"""
s_load_dwordx2 s[4:5], s[0:1], 0
s_load_dwordx4 s[8:11], s[0:1], 56
s_load_dwordx2 s[12:13], s[0:1], 80
s_cmp_ge_u32 s2, 224
s_cbranch_scc1 R_end
; rb = wg / 7 ; c = wg % 7
s_mul_i32 s14, s2, 9363
s_lshr_b32 s14, s14, 16
s_mul_i32 s15, s14, 7
s_sub_u32 s15, s2, s15
s_lshr_b32 s16, s14, 1
s_lshl_b32 s16, s16, 7
s_and_b32 s17, s14, 1
s_add_u32 s16, s16, s17
v_lshlrev_b32 v1, 4, v0
v_and_b32 v2, 15, v0
v_bfe_u32 v3, v0, 6, 1
v_lshl_add_u32 v2, v3, 5, v2
v_lshl_add_u32 v2, v2, 1, s16
v_mul_u32_u24 v2, 896, v2
v_bfe_u32 v3, v0, 4, 2
v_lshrrev_b32 v4, 7, v0
v_lshlrev_b32 v4, 5, v4
v_lshl_add_u32 v3, v3, 3, v4
s_lshl_b32 s18, s15, 7
v_add_u32 v3, s18, v3
v_add_u32 v2, v2, v3
v_add_u32 v4, {32*896}, v2
s_lshl_b32 s19, s2, 16
s_waitcnt lgkmcnt(0)
s_mov_b32 s20, s12
s_and_b32 s21, s13, 0xffff
s_mov_b32 s22, 0x10000000
s_mov_b32 s23, 0x20000
""")
    for p in range(8):
        r(f"buffer_load_dwordx4 v[{16+4*p}:{19+4*p}], v1, s[20:23], s19 offen\ns_add_u32 s19, s19, 8192")
    r(f"""
s_mov_b32 s24, s4
s_and_b32 s25, s5, 0xffff
s_mov_b32 s26, {2048*896}
s_mov_b32 s27, 0x20000
s_mov_b32 s28, s8
s_and_b32 s29, s9, 0xffff
s_mov_b32 s30, 896
s_mov_b32 s31, 0x20000
s_mov_b32 s32, s10
s_and_b32 s33, s11, 0xffff
s_mov_b32 s34, {2048*896}
s_mov_b32 s35, 0x20000
buffer_load_dwordx2 v[48:49], v2, s[24:27], 0 offen
buffer_load_dwordx2 v[50:51], v4, s[24:27], 0 offen
buffer_load_dwordx2 v[52:53], v3, s[28:31], 0 offen
""")
    for p in range(9):
        r(f"s_waitcnt vmcnt({max(10-p,1) if p<8 else 1})")
        for d in range(4):
            src = 16 + 4*p + d
            if p == 0:
                r(f"v_lshlrev_b32 v{56+2*d}, 16, v{src}\nv_and_b32 v{57+2*d}, 0xffff0000, v{src}")
            else:
                r(f"v_lshlrev_b32 v8, 16, v{src}\nv_and_b32 v9, 0xffff0000, v{src}\nv_pk_add_f32 v[{56+2*d}:{57+2*d}], v[{56+2*d}:{57+2*d}], v[8:9]")
    r("s_waitcnt vmcnt(0)")
    for d in range(2):
        r(f"v_lshlrev_b32 v8, 16, v{52+d}\nv_and_b32 v9, 0xffff0000, v{52+d}")
        for pb in range(2):
            q = 56 + 4*pb + 2*d
            r(f"v_pk_add_f32 v[{q}:{q+1}], v[{q}:{q+1}], v[8:9]")
    for d in range(4): r(f"v_cvt_pk_bf16_f32 v{12+d}, v{56+2*d}, v{57+2*d}")
    r(f"""buffer_store_dwordx2 v[12:13], v2, s[32:35], 0 offen {cfg.get('ost','')}
buffer_store_dwordx2 v[14:15], v4, s[32:35], 0 offen {cfg.get('ost','')}
R_end:
s_endpgm""")

    K1, K2 = NAME + "_kernel", "reduce_kernel"
    def kd(n, v):
        return f""".amdhsa_kernel {n}
  .amdhsa_next_free_vgpr {v}
  .amdhsa_next_free_sgpr 102
  .amdhsa_accum_offset {v}
  .amdhsa_group_segment_fixed_size 0
  .amdhsa_kernarg_size 88
  .amdhsa_user_sgpr_count 2
  .amdhsa_user_sgpr_kernarg_segment_ptr 1
  .amdhsa_system_sgpr_workgroup_id_x 1
.end_amdhsa_kernel
"""
    txt = f"""; @launch kernel={K1} grid=(256,1,1) block=(512,1,1) lds={LDS_BYTES}
; @launch kernel={K2} grid=(224,1,1) block=(512,1,1) lds=0
.amdgcn_target "amdgcn-amd-amdhsa--gfx950"
.text
.globl {K1}
.p2align 8
.type {K1},@function
{K1}:
{a.text()}{f.text()}{w.text()}
.globl {K2}
.p2align 8
.type {K2},@function
{K2}:
{r.text()}
.section .rodata,"a"
.p2align 6
{kd(K1, 256)}.p2align 6
{kd(K2, 64)}"""
    return txt

if __name__ == "__main__":
    import json
    cfg = json.loads(sys.argv[2]) if len(sys.argv) > 2 else {}
    open(sys.argv[1], "w").write(gen(cfg))
```

```python
import sys, math, struct
NAME = "parallel_sum__sliding_local_dilated__dense_activation_gelu__prompt"

class A:
    def __init__(self):
        self.L = []; self.vm = []; self.lg = []; self.smem = False; self.pend = []; self.nst = 0
    def __call__(self, s):
        for l in s.strip("\n").split("\n"):
            l = l.strip()
            if l: self.L.append(l if l.endswith(":") else "  " + l)
    def fork(self):
        b = A(); b.vm = list(self.vm); b.lg = list(self.lg); b.smem = self.smem; return b
    def vmem(self, s, tag): self(s); self.vm.append(tag)
    def ds(self, s, tag): self(s); self.lg.append(tag)
    def _cnt(self, q, tags):
        last = -1
        for i, t in enumerate(q):
            if t in tags: last = i
        return None if last < 0 else len(q) - 1 - last
    def need(self, vm=(), lg=(), drain=False):
        parts = []
        n = self._cnt(self.vm, set(vm))
        if n is not None:
            n = min(n, 63); parts.append(f"vmcnt({n})"); self.vm = self.vm[len(self.vm) - n:] if n else []
        n = self._cnt(self.lg, set(lg))
        if drain: n = 0 if (self.lg or self.smem) else None
        if n is not None:
            n = min(n, 15)
            parts.append(f"lgkmcnt({n})"); self.lg = self.lg[len(self.lg) - n:] if n else []
        if parts: self("s_waitcnt " + " ".join(parts))
        if drain:
            self.smem = False
            for sg, idx in self.pend: self(f"v_writelane_b32 v0, s{sg}, {idx}")
            self.pend = []
    def text(self): return "\n".join(self.L) + "\n"

def vr(a, n=1): return f"v{a}" if n == 1 else f"v[{a}:{a+n-1}]"
def f2u(x): return "0x%08x" % struct.unpack("<I", struct.pack("<f", x))[0]

KP = 4608
HALO = 4096
ACT = 0
WOR = 36864
RING = 65536
SLOT = 28672
BIAS = RING + 3 * SLOT
LDS_BYTES = BIAS + 1024
WS_PART = 0
WS_WQ = 0x1000000
WS_F1 = 0x1800000
WS_F2 = 0x1810000
WS_STAMP = 0x8000000
OOB = 0x7ff00000
SX, SWQ, SWO, SW1, SW2, SB1, SWS, SB2, SOUT, SDBG = 28, 32, 36, 40, 44, 48, 52, 56, 60, 64
sW, sS, sRB, sA, sRH, sHI, sROW0, sT0, sT1, sT2, sT3 = 68, 69, 70, 71, 72, 73, 74, 75, 76, 77, 78
sW1o, sWQo, sW2o, sWOo, sM0, sPart, sC2, sCH = 79, 80, 81, 82, 83, 84, 85, 86
sN0, sN1, sCW, sPoll, sM1, sLW = 94, 95, 93, 96, 97, 26

sIN, sLO = 32, 39

def gen(cfg):
    STAMP = cfg.get("stamp", False)
    SOP = cfg.get("stampop", "s_memtime")
    xm = cfg.get("xmap", 1); nsh = 32 // xm
    uid = [0]
    def lab(n): uid[0] += 1; return f"L_{n}{uid[0]}"
    def stamp(b, idx):
        if not STAMP: return
        sg = 4 + 2 * (b.nst % 8); b.nst += 1
        b(f"{SOP} s[{sg}:{sg+1}]"); b.smem = True; b.pend.append((sg, idx))
    def barrier(b, j, vm=()):
        pb0 = cfg.get("prebar")
        if pb0 is not None and pb0 <= j < pb0 + 8: stamp(b, 42 + j - pb0)
        b.need(vm=vm, drain=True)
        if pb0 is not None and pb0 <= j < pb0 + 8: stamp(b, 50 + j - pb0)
        b("s_barrier")
        stamp(b, 10 + j)
    def srd(b, d, p, n):
        b(f"s_mov_b32 s{d}, s{p}\ns_and_b32 s{d+1}, s{p+1}, 0xffff\ns_mov_b32 s{d+2}, {n}\ns_mov_b32 s{d+3}, 0x20000")
    def mfma(b, d, x, y, c=None):
        b(f"v_mfma_f32_16x16x32_bf16 {vr(d,4)}, {vr(x,4)}, {vr(y,4)}, {vr(d,4) if c is None else c}")
    def chunks(b):
        for i in range(7):
            if i == 0: b(f"s_add_u32 s{sCH}, s{sS}, 1")
            else: b(f"s_add_u32 s{sCH+i}, s{sCH+i-1}, 1")
            b(f"s_cmp_ge_u32 s{sCH+i}, 7\ns_cselect_b32 s{sT0}, 7, 0\ns_sub_u32 s{sCH+i}, s{sCH+i}, s{sT0}")

    vL, vL16, vActW, vT0, vT1, vT2, vT3 = 1, 2, 3, 4, 5, 6, 7
    vXE, vXO, vG2W, vG2W2, vG2O0, vG2O2 = 8, 9, 10, 11, 12, 13
    a = A()
    a(f"""
s_load_dwordx16 s[4:19], s[0:1], 0
s_load_dwordx4 s[20:23], s[0:1], 64
s_load_dwordx2 s[24:25], s[0:1], 80
s_cmp_ge_u32 s2, 256
s_cbranch_scc1 L_end
v_lshrrev_b32 v{vT0}, 6, v0
v_and_b32 v{vL}, 63, v0
v_readfirstlane_b32 s{sW}, v{vT0}
""")
    if cfg.get("probe"):
        src, n = cfg["probe"]
        a(f"""s_waitcnt lgkmcnt(0)
s_mov_b32 s40, s{src}
s_and_b32 s41, s{src+1}, 0xffff
s_mov_b32 s42, {2048*896}
s_mov_b32 s43, 0x20000
s_mul_i32 s44, s2, 7168
v_mov_b32 v8, 0""")
        for i in range(n):
            a(f"buffer_load_dword v9, v8, s[40:43], s44 offen\ns_add_u32 s44, s44, 256\ns_waitcnt vmcnt(0)")
    if STAMP: a(f"s_memrealtime s[98:99]\n{SOP} s[100:101]\nv_mov_b32 v0, 0")
    if xm == 1:
        a(f"s_and_b32 s{sS}, s2, 7\ns_lshr_b32 s{sRB}, s2, 3")
    else:
        lb = xm.bit_length() - 1
        a(f"""
s_and_b32 s{sT0}, s2, {8//xm - 1}
s_lshl_b32 s{sT0}, s{sT0}, {lb}
s_lshr_b32 s{sT1}, s2, 3
s_and_b32 s{sT2}, s{sT1}, {xm-1}
s_add_u32 s{sS}, s{sT0}, s{sT2}
s_and_b32 s{sT0}, s2, 7
s_lshr_b32 s{sT0}, s{sT0}, {3-lb}
s_lshl_b32 s{sT0}, s{sT0}, {5-lb}
s_lshr_b32 s{sT1}, s{sT1}, {lb}
s_add_u32 s{sRB}, s{sT0}, s{sT1}
""")
    a(f"""
v_lshlrev_b32 v{vL16}, 4, v{vL}
s_and_b32 s{sA}, s{sW}, 3
s_cmp_lt_u32 s{sW}, 4
s_cbranch_scc1 L_L
""")
    c = a.fork()
    RAW, UNP = 136, 80
    c(f"""
s_lshr_b32 s{sT0}, s{sRB}, 1
s_lshl_b32 s{sT0}, s{sT0}, 7
s_and_b32 s{sT1}, s{sRB}, 1
s_add_u32 s{sROW0}, s{sT0}, s{sT1}
s_sub_u32 s{sCW}, s{sW}, 4
s_and_b32 s{sT0}, s{sS}, {xm-1}
s_mul_i32 s{sT0}, s{sT0}, {(8//xm) if cfg.get("xrot", True) else 0}
s_add_u32 s{sLW}, s{sCW}, s{sT0}
s_and_b32 s{sLW}, s{sLW}, 7
s_lshl_b32 s{sT0}, s{sLW}, 4
s_add_u32 s{sT0}, s{sT0}, s{sROW0}
v_lshrrev_b32 v{vT0}, 3, v{vL}
v_lshl_add_u32 v{vT0}, v{vT0}, 1, s{sT0}
v_mul_u32_u24 v{vT0}, 896, v{vT0}
v_and_b32 v{vT1}, 7, v{vL}
v_lshl_add_u32 v{vT0}, v{vT1}, 4, v{vT0}
s_and_b32 s{sRH}, s{sW}, 1
s_bfe_u32 s{sHI}, s{sW}, 0x10001
s_waitcnt lgkmcnt(0)
""")
    srd(c, SX, 4, 2048 * 896)
    for t in range(7):
        c.vmem(f"buffer_load_dwordx4 {vr(RAW+4*t,4)}, v{vT0}, s[{SX}:{SX+3}], 0 offen offset:{128*t}", f"x{t}")
    srd(c, SB1, 14, 1792 * 2)
    c(f"""s_mul_i32 s{sT0}, s{sS}, 448
s_mul_i32 s{sT1}, s{sHI}, 224
s_add_u32 s{sT0}, s{sT0}, s{sT1}
s_lshl_b32 s{sT2}, s{sA}, 8
s_add_u32 m0, s{sT2}, {BIAS}
s_mov_b64 exec, 0x3fff""")
    c.vmem(f"buffer_load_dwordx4 v{vL16}, s[{SB1}:{SB1+3}], s{sT0} offen lds", "bias")
    c("s_mov_b64 exec, -1")
    if cfg.get("bx", True): c("s_barrier")
    c("s_branch L_C2"); c1text = c.text(); c.L = []; c("L_C2:")
    if STAMP: c("v_writelane_b32 v0, s98, 62\nv_writelane_b32 v0, s100, 0")
    srd(c, SWS, 24, 0x10000000); srd(c, SB2, 18, 896); srd(c, SOUT, 20, 2048 * 896)
    chunks(c)
    c(f"""
v_lshrrev_b32 v{vT2}, 4, v{vL}
v_and_b32 v{vT3}, 15, v{vL}
v_xor_b32 v{vT0}, v{vT3}, v{vT2}
v_lshlrev_b32 v{vT1}, 8, v{vT2}
s_lshl_b32 s{sT0}, s{sRH}, 11
v_lshl_add_u32 v{vXE}, v{vT0}, 4, v{vT1}
v_add_u32 v{vXE}, s{sT0}, v{vXE}
v_xor_b32 v{vXO}, {12*16}, v{vXE}
v_lshrrev_b32 v{vT0}, 2, v{vL}
v_bfe_u32 v{vT1}, v{vL}, 3, 2
s_lshr_b32 s{sT2}, s{sCW}, 1
v_xor_b32 v{vT1}, s{sT2}, v{vT1}
v_lshlrev_b32 v{vT1}, 5, v{vT1}
v_lshl_add_u32 v{vT1}, v{vT0}, 7, v{vT1}
v_and_b32 v{vT0}, 3, v{vL}
v_lshl_add_u32 v{vG2O0}, v{vT0}, 3, v{vT1}
v_xor_b32 v{vG2O2}, 64, v{vG2O0}
v_add_u32 v{vG2W}, {RING}, v{vG2O0}
v_add_u32 v{vG2W2}, {RING+2*SLOT}, v{vG2O0}
v_lshrrev_b32 v{vT1}, 3, v{vL}
s_and_b32 s{sT0}, s{sLW}, 1
s_lshl_b32 s{sT0}, s{sT0}, 3
v_or_b32 v{vT1}, s{sT0}, v{vT1}
v_bfe_u32 v{vT2}, v{vL}, 2, 1
v_mul_u32_u24 v{vT3}, 12, v{vT2}
v_or_b32 v{vT3}, v{vT3}, v{vT0}
v_xor_b32 v{vT1}, v{vT1}, v{vT3}
v_lshlrev_b32 v{vT1}, 4, v{vT1}
v_lshl_add_u32 v{vT1}, v{vT0}, 8, v{vT1}
v_mul_u32_u24 v{vT2}, {KP}, v{vT2}
s_lshr_b32 s{sT2}, s{sLW}, 1
s_lshl_b32 s{sT2}, s{sT2}, 10
v_add3_u32 v{vActW}, v{vT1}, v{vT2}, s{sT2}
s_mul_i32 s{sPart}, s{sRB}, {7*65536}
s_lshl_b32 s{sT2}, s{sCW}, 10
s_add_u32 s{sPart}, s{sPart}, s{sT2}
s_lshl_b32 s{sT2}, s{sS}, 13
s_add_u32 s{sM1}, s{sPart}, s{sT2}
s_lshr_b32 s{sT1}, s{sCW}, 1
s_lshl_b32 s{sT1}, s{sT1}, 5
s_lshl_b32 s{sT2}, s{sS}, 7
s_add_u32 s{sT1}, s{sT1}, s{sT2}
s_lshl_b32 s{sT0}, s{sS}, 16
s_add_u32 s{sT0}, s{sT0}, s{sPart}
s_cmp_eq_u32 s{sS}, 7
s_cselect_b32 s{sM0}, {OOB}, s{sT1}
s_cselect_b32 s{sT0}, {OOB}, s{sT0}
s_add_u32 s{sIN+6}, s{sT0}, {7*8192}
s_movk_i32 s{sLO}, 0x3f80
""")
    for k in range(6):
        c(f"s_lshl_b32 s{sT1}, s{sCH+5-k}, 13\ns_add_u32 s{sIN+k}, s{sT0}, s{sT1}")
    c(f"s_cmp_ge_u32 s{sW}, 8\ns_cbranch_scc1 L_A")

    def ln_core(b, raw, nraw, unp, tags, nl, pk=True):
        S, Q = vT0, vT2
        for d in range(nraw):
            if d % 4 == 0: b.need(vm=[tags[d // 4]])
            u = unp + 2 * d
            b(f"v_lshlrev_b32 v{u}, 16, v{raw+d}\nv_and_b32 v{u+1}, 0xffff0000, v{raw+d}")
            if not pk:
                if d == 0: b(f"v_mov_b32 v{S}, v{u}\nv_mov_b32 v{S+1}, v{u+1}\nv_mul_f32 v{Q}, v{u}, v{u}\nv_mul_f32 v{Q+1}, v{u+1}, v{u+1}")
                else: b(f"v_add_f32 v{S}, v{S}, v{u}\nv_add_f32 v{S+1}, v{S+1}, v{u+1}\nv_fmac_f32 v{Q}, v{u}, v{u}\nv_fmac_f32 v{Q+1}, v{u+1}, v{u+1}")
            elif d == 0: b(f"v_pk_mul_f32 {vr(Q,2)}, {vr(u,2)}, {vr(u,2)}")
            elif d == 1: b(f"v_pk_add_f32 {vr(S,2)}, {vr(u-2,2)}, {vr(u,2)}\nv_pk_fma_f32 {vr(Q,2)}, {vr(u,2)}, {vr(u,2)}, {vr(Q,2)}")
            else: b(f"v_pk_add_f32 {vr(S,2)}, {vr(S,2)}, {vr(u,2)}\nv_pk_fma_f32 {vr(Q,2)}, {vr(u,2)}, {vr(u,2)}, {vr(Q,2)}")
        yield "stats"
        b(f"v_add_f32 v{S}, v{S}, v{S+1}\nv_add_f32 v{Q}, v{Q}, v{Q+1}\ns_nop 0")
        for st in ["quad_perm:[1,0,3,2]", "quad_perm:[2,3,0,1]", "row_half_mirror", "row_mirror"][:min(nl, 4)]:
            b(f"v_add_f32_dpp v{S}, v{S}, v{S} {st} row_mask:0xf bank_mask:0xf\nv_add_f32_dpp v{Q}, v{Q}, v{Q} {st} row_mask:0xf bank_mask:0xf\ns_nop 0")
        if nl >= 5:
            b(f"""v_mov_b32 v{S+1}, v{S}
v_mov_b32 v{Q+1}, v{Q}
s_nop 1
v_permlane16_swap_b32 v{S}, v{S+1}
v_permlane16_swap_b32 v{Q}, v{Q+1}
s_nop 1
v_add_f32 v{S}, v{S}, v{S+1}
v_add_f32 v{Q}, v{Q}, v{Q+1}""")
        b(f"""v_mul_f32 v{S}, {f2u(1/448)}, v{S}
v_mul_f32 v{Q}, {f2u(1/448)}, v{Q}
v_fma_f32 v{Q}, -v{S}, v{S}, v{Q}
v_max_f32 v{Q}, 0, v{Q}
v_add_f32 v{Q}, {f2u(1e-5)}, v{Q}
v_rsq_f32 v{Q}, v{Q}
s_nop 0
v_mul_f32 v{S}, v{S}, v{Q}
.p2align 3""")
        yield "red"
        for d in range(nraw):
            u = unp + 2 * d
            if not pk: b(f"v_fma_f32 v{u}, v{u}, v{Q}, -v{S}\nv_fma_f32 v{u+1}, v{u+1}, v{Q}, -v{S}")
            else: b(f"v_pk_fma_f32 {vr(u,2)}, {vr(u,2)}, {vr(Q,2)}, {vr(S,2)} op_sel_hi:[1,0,0] neg_lo:[0,0,1] neg_hi:[0,0,1]")
            if d >= 1: b(f"v_cvt_pk_bf16_f32 v{raw+d-1}, v{u-2}, v{u-1}")
            yield d - 1
        u = unp + 2 * (nraw - 1)
        b(f"v_cvt_pk_bf16_f32 v{raw+nraw-1}, v{u}, v{u+1}")
        yield nraw - 1
    def ln_main(b, hook=None):
        for d in ln_core(b, RAW, 28, UNP, [f"x{t}" for t in range(7)], 3):
            if d == "stats":
                stamp(b, 2)
                if hook: hook()
            if isinstance(d, int) and d >= 0 and d % 4 == 3:
                t = d // 4
                b.ds(f"ds_write_b128 v{vActW}, {vr(RAW+4*t,4)} offset:{2*KP*t}", "xw")

    def g1_phase(b, st0, reads, mfmas, P, GAP, tail=None):
        M = [m for ks in range(14) for m in mfmas(ks)]
        per = len(M) // 14
        sched = {}
        for j in range(7):
            R0, R1 = reads(2 * j), reads(2 * j + 1)
            b0 = 2 * per * j - P
            span = 2 * per - GAP
            R = R0 + R1
            for i, r in enumerate(R):
                pos = b0 + (i * span) // len(R)
                if i >= len(R0): pos = max(pos, 2 * per * j - 1)
                sched.setdefault(max(pos, -1), []).append(r)
        barrier(b, st0)
        for r in sched.get(-1, []): b.ds(*r)
        for m, (fn, tg) in enumerate(M):
            if (m + P) % (2 * per) == 0: barrier(b, st0 + (m + P) // (2 * per))
            b.need(lg=tg); fn()
            for r in sched.get(m, []): b.ds(*r)
            if tail: tail(m - len(M))

    def g2_phase(b, role):
        XR, PK, AC, WR, INB, ACTR = 14, 20, 28, 44, 68, 96
        NR = 6
        b(f"s_lshl_b32 s{sT0}, s{sRH}, 11\nv_add_u32 v{vActW}, s{sT0}, v{vL16}")
        steps = [(cc, t) for cc in range(7) for t in range(9)]
        N = len(steps)
        def reads(n):
            cc, t = steps[n]; slot = (14 + cc) % 3
            out = []; w = WR + 4 * (n % NR)
            if t < 7:
                base = vG2W if slot < 2 else vG2W2
                o = SLOT if slot == 1 else 0
                for u in range(2):
                    out.append((f"ds_read_b64_tr_b16 {vr(w+2*u,2)}, v{base} offset:{o + (16*t + 112*u)*128}", f"w{n}"))
            else:
                hd = t - 7
                for u in range(2):
                    base = vG2O0 if (14*hd + 6*u) % 4 == 0 else vG2O2
                    out.append((f"ds_read_b64_tr_b16 {vr(w+2*u,2)}, v{base} offset:{WOR + (cc%4)*7168 + (28*hd + 12*u)*128}", f"w{n}"))
            if cc == 0:
                for pb in range(2):
                    out.append((f"ds_read_b128 {vr(ACTR+4*(9*pb+t),4)}, v{vActW} offset:{ACT + t*4096 + pb*1024}", f"w{n}"))
            return out
        def epi(cc):
            ac = AC + 8 * (cc % 2); pk = PK + 4 * (cc % 2)
            b(f"s_lshl_b32 s{sT0}, s{sCH+cc}, 16\ns_add_u32 s{sT0}, s{sT0}, s{sM1}")
            for q in range(4): b(f"v_cvt_pk_bf16_f32 v{pk+q}, v{ac+2*q}, v{ac+2*q+1}")
            if not cfg.get("nopst"): b.vmem(f"buffer_store_dwordx4 {vr(pk,4)}, v{vL16}, s[{SWS}:{SWS+3}], s{sT0} offen sc1", f"p{cc}")
        def inbox_load(i):
            b.vmem(f"buffer_load_dwordx4 {vr(INB+4*i,4)}, v{vL16}, s[{SWS}:{SWS+3}], s{sIN+i} offen sc1", f"in{i}")
        sched = {}; bars = {}
        P2, GAP2 = cfg.get("p2", 8), cfg.get("gap2", 2)
        for cc in range(7):
            R = [r for t in range(9) for r in reads(9 * cc + t)]
            b0 = 18 * cc - P2
            bars[max(b0, -1)] = 15 + cc
            for i, r in enumerate(R):
                sched.setdefault(max(b0 + (i * (18 - GAP2)) // len(R), -1), []).append(r)
        barrier(b, 15)
        for r in sched.get(-1, []): b.ds(*r)
        DI = cfg.get("di", 3)
        for n in range(N):
            cc, t = steps[n]
            ac = AC + 8 * (cc % 2); w = WR + 4 * (n % NR)
            for pb in range(2):
                m = 2 * n + pb
                if m in bars: barrier(b, bars[m])
                b.need(lg=[f"w{n}"])
                mfma(b, ac + 4 * pb, w, ACTR + 4 * (9 * pb + t), "0" if (t == 0 and cc < 6) else None)
                for r in sched.get(m, []): b.ds(*r)
            if t == 2 and cc >= 1: epi(cc - 1)
            if (cc, t) == (1, 5):
                b(f"""v_and_b32 v{vT0}, 15, v{vL}
s_lshl_b32 s{sT0}, s{sRH}, 6
s_add_u32 s{sT0}, s{sT0}, s{sROW0}
v_lshl_add_u32 v{vT0}, v{vT0}, 1, s{sT0}
v_mul_u32_u24 v{vT0}, 896, v{vT0}
v_lshrrev_b32 v{vT1}, 4, v{vL}
v_lshlrev_b32 v{vT1}, 3, v{vT1}
s_add_u32 s{sT2}, s{sM0}, {32*896}
v_add_u32 v{vT2}, v{vT0}, v{vT1}""")
                b.vmem(f"buffer_load_dwordx2 {vr(XR,2)}, v{vT2}, s[{SX}:{SX+3}], s{sM0} offen", "xr")
                b.vmem(f"buffer_load_dwordx2 {vr(XR+2,2)}, v{vT2}, s[{SX}:{SX+3}], s{sT2} offen", "xr")
                b.vmem(f"buffer_load_dwordx2 {vr(XR+4,2)}, v{vT1}, s[{SB2}:{SB2+3}], s{sM0} offen", "xr")
            if (cc, t) == (2, 5):
                b(f"""v_bfe_u32 v{vT1}, v{vL}, 4, 1
v_mul_u32_u24 v{vT1}, {32*896}, v{vT1}
v_lshrrev_b32 v{vT2}, 5, v{vL}
v_lshl_add_u32 v{vT1}, v{vT2}, 4, v{vT1}
v_add_u32 v{vXE}, v{vT0}, v{vT1}
v_mov_b32 v{vXO}, 0x3f800000""")
            if t == 1 and 0 <= cc - DI <= 3: inbox_load(cc - DI)
            if (cc, t) == (5, 5):
                b.need(vm=["xr"])
                for d in range(2):
                    b(f"v_lshlrev_b32 v{vT0}, 16, v{XR+4+d}\nv_and_b32 v{vT1}, 0xffff0000, v{XR+4+d}")
                    for pb in range(2):
                        q = AC + 4 * pb + 2 * d
                        b(f"v_dot2_f32_bf16 v{q}, v{XR+2*pb+d}, s{sLO}, v{vT0}\nv_dot2_f32_bf16 v{q+1}, v{XR+2*pb+d}, v{vXO}, v{vT1}")
            if (cc, t) == (6, cfg.get("inb_t", 7)):
                for i in range(min(7 - DI, 4), 7): inbox_load(i)
        own, done = lab("own"), lab("done")
        if STAMP: b.need(drain=True); b(f"{SOP} s[18:19]")
        b(f"s_cmp_lg_u32 s{sS}, 7\ns_cbranch_scc1 {own}\ns_nop 5")
        sv = list(b.vm); epi(6); b.vm = sv
        b(f"s_branch {done}\n{own}:\ns_mov_b32 s{sPoll}, 0")
        def group(chk, rel):
            top, ok = lab("g"), lab("ok")
            b.need(vm=[f"in{i}" for i in chk])
            b(f"{top}:")
            regs = [INB + 4 * i + d for i in chk for d in range(4)]
            b(f"v_max3_u32 v{vT0}, v{regs[0]}, v{regs[1]}, v{regs[2]}\nv_max3_u32 v{vT1}, v{regs[3]}, v{regs[4]}, v{regs[5]}")
            k = 6
            while k < len(regs):
                tt = vT0 + (k // 2) % 2
                b(f"v_max3_u32 v{tt}, v{tt}, v{regs[k]}, v{regs[k+1]}"); k += 2
            b(f"""v_max_u32 v{vT0}, v{vT0}, v{vT1}
v_cmp_eq_u32 vcc, -1, v{vT0}
s_add_u32 s{sPoll}, s{sPoll}, 1
s_cmp_gt_u32 s{sPoll}, 200000
s_cbranch_vccz {ok}
s_cbranch_scc1 {ok}
s_waitcnt vmcnt(0)""")
            for i in rel:
                r0 = INB + 4 * i
                b(f"""v_max3_u32 v{vT0}, v{r0}, v{r0+1}, v{r0+2}
v_max_u32 v{vT0}, v{vT0}, v{r0+3}
v_cmp_eq_u32 vcc, -1, v{vT0}
s_nop 0
s_mov_b64 exec, vcc
buffer_load_dwordx4 {vr(r0,4)}, v{vL16}, s[{SWS}:{SWS+3}], s{sIN+i} offen sc1
s_mov_b64 exec, -1""")
            b(f"s_waitcnt vmcnt(0)\ns_branch {top}\n{ok}:")
            for i in chk:
                for d in range(4):
                    b(f"v_dot2_f32_bf16 v{AC+2*d}, v{INB+4*i+d}, s{sLO}, v{AC+2*d}\nv_dot2_f32_bf16 v{AC+2*d+1}, v{INB+4*i+d}, v{vXO}, v{AC+2*d+1}")
        group([0, 1, 2, 3], range(7))
        if STAMP: b(f"{SOP} s[14:15]")
        group([4, 5, 6], range(4, 7))
        if STAMP: b(f"{SOP} s[16:17]")
        b("s_nop 1")
        for q in range(4): b(f"v_cvt_pk_bf16_f32 v{PK+q}, v{AC+2*q}, v{AC+2*q+1}")
        b(f"s_nop 1\nv_permlane16_swap_b32 v{PK}, v{PK+2}\nv_permlane16_swap_b32 v{PK+1}, v{PK+3}\ns_nop 0")
        b(f"buffer_store_dwordx4 {vr(PK,4)}, v{vXE}, s[{SOUT}:{SOUT+3}], s{sM0} offen {cfg.get('ost','')}")
        if STAMP: b(f"s_waitcnt lgkmcnt(0)\nv_writelane_b32 v0, s14, 39\nv_writelane_b32 v0, s16, 40\nv_writelane_b32 v0, s{sPoll}, 61")
        b(f"{done}:")
        if STAMP: b(f"s_waitcnt lgkmcnt(0)\nv_writelane_b32 v0, s18, 38")

    f = c.fork()
    vWA, vWB, vWA2, vWB2, vC1 = 14, 15, 16, 17, 18
    FACC = 24; FBUF = (80, 116)
    f(f"""
s_mul_i32 s{sT0}, s{sS}, 448
s_mul_i32 s{sT1}, s{sHI}, 224
s_add_u32 s{sT0}, s{sT0}, s{sT1}
v_lshrrev_b32 v{vT2}, 4, v{vL}
v_lshlrev_b32 v{vT0}, 3, v{vT2}
""")
    f(f"s_lshl_b32 s{sT2}, s{sA}, 8\ns_add_u32 s{sT2}, s{sT2}, {BIAS}\nv_add_u32 v19, s{sT2}, v{vT0}")
    f(f"""
v_bfe_u32 v{vT1}, v{vL}, 2, 2
v_add_u32 v{vT0}, v{vT0}, v{vT1}
v_mul_u32_u24 v{vT0}, 448, v{vT0}
v_and_b32 v{vT1}, 3, v{vL}
v_lshl_add_u32 v{vT0}, v{vT1}, 3, v{vT0}
s_add_u32 s{sT1}, s{sT1}, {RING}
v_add_u32 v{vT0}, s{sT1}, v{vT0}
v_and_b32 v{vT1}, 1, v{vT2}
s_lshl_b32 s{sT2}, s{sHI}, 6
s_sub_u32 s{sT2}, 32, s{sT2}
v_mul_lo_u32 v{vT1}, v{vT1}, s{sT2}
v_add_u32 v{vWA}, v{vT0}, v{vT1}
v_sub_u32 v{vWB}, v{vT0}, v{vT1}
v_add_u32 v{vWA2}, {2*SLOT}, v{vWA}
v_add_u32 v{vWB2}, {2*SLOT}, v{vWB}
v_mov_b32 v{vC1}, {f2u(-2.3022081981)}
s_mov_b32 s{sC2}, {f2u(-2.3022081981*0.044715)}
""")
    stamp(f, 1)
    def bias_reads():
        f.need(vm=["bias"])
        for cb in range(7): f.ds(f"ds_read_b64 {vr(FACC+8*cb+6,2)}, v19 offset:{32*cb}", "bias")
    ln_main(f, bias_reads)
    stamp(f, 3)
    f.need(lg=["bias"])
    for cb in range(7):
        d = FACC + 8 * cb
        f(f"""v_lshlrev_b32 v{d}, 16, v{d+6}
v_and_b32 v{d+1}, 0xffff0000, v{d+6}
v_lshlrev_b32 v{d+2}, 16, v{d+7}
v_and_b32 v{d+3}, 0xffff0000, v{d+7}""")
    f("s_setprio 2")
    def f_reads(ks):
        B = FBUF[ks % 2]; slot = (ks // 2) % 3; out = []
        xb = vXE if ks % 2 == 0 else vXO
        for pb in range(2):
            out.append((f"ds_read_b128 {vr(B+4*pb,4)}, v{xb} offset:{pb*1024 + ks*KP}", f"x{ks}"))
        for cb in range(7):
            base = (vWA if cb % 2 == 0 else vWB) + (2 if slot == 2 else 0)
            o = (SLOT if slot == 1 else 0) + (ks % 2) * 14336 + cb * 32
            for u in range(2):
                out.append((f"ds_read_b64_tr_b16 {vr(B+8+4*cb+2*u,2)}, v{base} offset:{o + u*1792}", f"w{ks}_{cb}"))
        return out
    def f_mfmas(ks):
        B = FBUF[ks % 2]; out = []
        for cb in range(7):
            for pb in ((1, 0) if ks == 0 else (0, 1)):
                cin = vr(FACC + 8*cb, 4) if ks == 0 else None
                out.append((lambda cb=cb, pb=pb, cin=cin: mfma(f, FACC + 8*cb + 4*pb, B + 8 + 4*cb, B + 4*pb, cin), [f"x{ks}", f"w{ks}_{cb}"]))
        return out
    g1_phase(f, 0, f_reads, f_mfmas, cfg.get('pf_', 10), cfg.get('gapf', 4))
    f("s_setprio 0")
    H, GT = 80, 108
    f(f"""s_lshl_b32 s{sT0}, s{sRH}, 11
s_lshl_b32 s{sT1}, s{sHI}, 3
s_add_u32 s{sT0}, s{sT0}, s{sT1}
v_add_u32 v{vActW}, s{sT0}, v{vL16}""")
    def hwrite(cb):
        for pb in range(2):
            f.ds(f"ds_write_b64 v{vActW}, {vr(H+4*cb+2*pb,2)} offset:{ACT + cb*4096 + pb*1024}", "hw")
    ops = []
    for cb in range(7):
        a0 = FACC + 8 * cb; E = range(8) if not cfg.get("nogelu") else range(0)
        for e in E: ops.append((4, f"v_mul_f32 v{GT+e}, v{a0+e}, v{a0+e}"))
        for e in E: ops.append((4, f"v_fma_f32 v{GT+e}, v{GT+e}, s{sC2}, v{vC1}"))
        for e in E: ops.append((4, f"v_mul_f32 v{GT+e}, v{GT+e}, v{a0+e}"))
        for e in E: ops.append((8, f"v_exp_f32 v{GT+e}, v{GT+e}"))
        for e in E: ops.append((4, f"v_add_f32 v{GT+e}, 1.0, v{GT+e}"))
        for e in E: ops.append((8, f"v_rcp_f32 v{GT+e}, v{GT+e}"))
        for e in E: ops.append((4, f"v_mul_f32 v{GT+e}, v{GT+e}, v{a0+e}"))
        for q in range(4): ops.append((4, f"v_cvt_pk_bf16_f32 v{H+4*cb+q}, v{GT+2*q}, v{GT+2*q+1}"))
        ops.append((0, cb))
    budget = cfg.get("gbud", 304); acc = 0; j = 8; held = []
    for cost, op in ops:
        if cost and acc + cost > budget * (j - 7) and j <= 14:
            barrier(f, j); j += 1
            for h in held: hwrite(h)
            held = []
        acc += cost
        if cost: f(op)
        elif j > 14: hwrite(op)
        else: held.append(op)
    while j <= 14:
        barrier(f, j); j += 1
        for h in held: hwrite(h)
        held = []
    g2_phase(f, "F")
    f("s_branch L_fin")

    w = c.fork()
    vXPE, vXPO, vQA, vQA2, vZ, vMask = 14, 15, 16, 17, 18, 20
    AACC = 32; ABUF = (96, 132); vHalo = 32
    w("L_A:")
    stamp(w, 1)
    ln_main(w)
    stamp(w, 3)
    barrier(w, 0)
    w(f"""
v_lshrrev_b32 v{vT0}, 5, v{vL}
s_lshl_b32 s{sT0}, s{sA}, 2
s_add_u32 s{sT0}, s{sT0}, s{sROW0}
s_sub_u32 s{sT0}, s{sT0}, 16
v_lshl_add_u32 v{vT0}, v{vT0}, 1, s{sT0}
s_movk_i32 s{sT1}, 896
v_mul_lo_u32 v{vT0}, v{vT0}, s{sT1}
v_and_b32 v{vT1}, 31, v{vL}
v_lshl_add_u32 v{vT0}, v{vT1}, 4, v{vT0}
v_cmp_gt_u32 vcc, 24, v{vT1}
v_add_u32 v{vT2}, 512, v{vT0}
v_mov_b32 v{vT3}, {OOB}
v_cndmask_b32 v{vT2}, v{vT3}, v{vT2}, vcc
v_min_u32 v{vT0}, v{vT3}, v{vT0}
v_min_u32 v{vT2}, v{vT3}, v{vT2}
""")
    w.vmem(f"buffer_load_dwordx4 {vr(vHalo,4)}, v{vT0}, s[{SX}:{SX+3}], 0 offen", "h0")
    w.vmem(f"buffer_load_dwordx4 {vr(vHalo+4,4)}, v{vT2}, s[{SX}:{SX+3}], 0 offen", "h1")
    barrier(w, 1)
    w(f"""
v_lshrrev_b32 v{vT0}, 5, v{vL}
v_bfe_u32 v{vT1}, v{vL}, 2, 3
v_lshl_add_u32 v{vT0}, v{vT0}, 4, v{vT1}
v_mul_u32_u24 v{vT0}, 352, v{vT0}
v_and_b32 v{vT1}, 3, v{vL}
v_lshl_add_u32 v{vT0}, v{vT1}, 3, v{vT0}
s_mul_i32 s{sT0}, s{sHI}, 56
s_add_u32 s{sT0}, s{sT0}, {RING}
v_add_u32 v{vQA}, s{sT0}, v{vT0}
v_add_u32 v{vQA2}, {2*SLOT}, v{vQA}
v_lshrrev_b32 v{vT2}, 4, v{vL}
v_and_b32 v{vT0}, 7, v{vL}
v_xor_b32 v{vT0}, v{vT0}, v{vT2}
v_lshlrev_b32 v{vT0}, 4, v{vT0}
v_lshl_add_u32 v{vT0}, v{vT2}, 7, v{vT0}
v_add_u32 v{vT0}, {HALO}, v{vT0}
v_subrev_u32 v{vT1}, 1024, v{vXE}
s_cmp_eq_u32 s{sRH}, 0
s_cselect_b64 vcc, -1, 0
s_cselect_b32 s{sT0}, 64, 192
v_cndmask_b32 v{vXPE}, v{vT1}, v{vT0}, vcc
v_xor_b32 v{vXPO}, s{sT0}, v{vXPE}
v_cmp_ne_u32 vcc, 0, v{vT2}
s_nop 1
v_cndmask_b32 v{vZ}, 0, -1, vcc
""")
    barrier(w, 2)
    hl = ln_core(w, vHalo, 8, UNP, ["h0", "h1"], 5, pk=False)
    assert next(hl) == "stats"
    barrier(w, 3)
    assert next(hl) == "red"
    barrier(w, 4)
    for _ in hl: pass
    w(f"""
v_lshrrev_b32 v{vT0}, 5, v{vL}
s_lshl_b32 s{sT0}, s{sA}, 1
v_add_u32 v{vT0}, s{sT0}, v{vT0}
v_and_b32 v{vT1}, 7, v{vL}
v_xor_b32 v{vT0}, v{vT0}, v{vT1}
v_lshlrev_b32 v{vT0}, 4, v{vT0}
v_and_b32 v{vT1}, 3, v{vL}
v_lshl_add_u32 v{vT0}, v{vT1}, 7, v{vT0}
v_bfe_u32 v{vT1}, v{vL}, 2, 3
v_mul_u32_u24 v{vT1}, {KP}, v{vT1}
v_add_u32 v{vT0}, v{vT0}, v{vT1}
""")
    w.ds(f"ds_write_b128 v{vT0}, {vr(vHalo,4)} offset:{HALO}", "xw")
    w("s_mov_b32 exec_lo, 0x00ffffff\ns_mov_b32 exec_hi, 0x00ffffff")
    w.ds(f"ds_write_b128 v{vT0}, {vr(vHalo+4,4)} offset:{HALO + 8*KP}", "xw")
    w("s_mov_b64 exec, -1")
    barrier(w, 5)
    w(f"""
v_and_b32 v{vT0}, 15, v{vL}
v_lshrrev_b32 v{vT2}, 4, v{vL}
v_lshlrev_b32 v{vT2}, 2, v{vT2}
v_sub_u32 v{vT0}, v{vT0}, v{vT2}
v_mov_b32 v{vT3}, {f2u(-1e30)}
s_lshr_b32 s{sT0}, s{sRB}, 1
s_or_b32 s{sT0}, s{sT0}, s{sRH}
s_cmp_eq_u32 s{sT0}, 0
s_cselect_b32 s{sT1}, 0, 8
""")
    for jj in range(4):
        if jj == 2: barrier(w, 6)
        w(f"""
v_subrev_u32 v{vT1}, {jj}, v{vT0}
v_add_u32 v{vT2}, 16, v{vT1}
v_cmp_gt_u32 s[40:41], 8, v{vT1}
v_cmp_gt_u32 s[42:43], 8, v{vT2}
v_cmp_gt_u32 vcc, s{sT1}, v{vT2}
v_cndmask_b32 v{vMask+4+jj}, v{vT3}, 0, s[40:41]
v_cndmask_b32 v{vMask+jj}, v{vT3}, 0, s[42:43]
v_cndmask_b32 v{vMask+8+jj}, v{vT3}, 0, vcc
""")
    w(f"s_setprio {cfg.get('aprio',1)}")
    def a_reads(ks):
        B = ABUF[ks % 2]; slot = (7 + ks // 2) % 3; out = []
        xb = vXE if ks % 2 == 0 else vXO
        xp = vXPE if ks % 2 == 0 else vXPO
        out.append((f"ds_read_b128 {vr(B+4,4)}, v{xb} offset:{ks*KP}", f"x{ks}"))
        out.append((f"ds_read_b128 {vr(B+8,4)}, v{xb} offset:{1024 + ks*KP}", f"x{ks}"))
        base = vQA2 if slot == 2 else vQA
        for sec in range(3):
            if sec == 1: out.append((f"ds_read_b128 {vr(B,4)}, v{xp} offset:{ks*KP}", f"xp{ks}"))
            for db in range(2):
                o = (SLOT if slot == 1 else 0) + (ks % 2) * 32 * 352 + sec * 112 + db * 24
                for u in range(2):
                    out.append((f"ds_read_b64_tr_b16 {vr(B+12+4*(2*sec+db)+2*u,2)}, v{base} offset:{o + u*8*352}", f"w{ks}_{sec}{db}"))
        return out
    def a_mfmas(ks):
        B = ABUF[ks % 2]; out = []
        c0 = "0" if ks == 0 else None
        for db in range(2):
            for qb in range(2):
                out.append((lambda db=db, qb=qb: mfma(w, AACC + (2*db+qb)*4, B + 12 + 4*db, B + 4 + 4*qb, c0), [f"x{ks}", f"w{ks}_0{db}"]))
        for db in range(2):
            for kb in range(3):
                out.append((lambda db=db, kb=kb: mfma(w, AACC + 16 + (3*db+kb)*4, B + 20 + 4*db, B + 4*kb, c0), [f"xp{ks}", f"w{ks}_1{db}"]))
        for db in range(2):
            for kb in range(3):
                out.append((lambda db=db, kb=kb: mfma(w, AACC + 40 + (3*db+kb)*4, B + 4*kb, B + 28 + 4*db, c0), [f"w{ks}_2{db}"]))
        return out
    g1_phase(w, 7, a_reads, a_mfmas, cfg.get('pa_', 10), cfg.get('gapa', 3))
    stamp(w, 5)
    QP, KPk, VP, ONES, SS, MX, PP, LL, OO = 96, 104, 116, 128, 132, 148, 152, 160, 32
    w(".p2align 3")
    for qb in range(2):
        for db in range(2):
            s0 = AACC + (2*db+qb)*4
            for h in range(2): w(f"v_cvt_pk_bf16_f32 v{QP+4*qb+2*db+h}, v{s0+2*h}, v{s0+2*h+1}")
        for h in range(2): w(f"v_and_b32 v{QP+4*qb+2+h}, v{vZ}, v{QP+4*qb+2+h}")
    for kb in range(3):
        for db in range(2):
            s0 = AACC + 16 + (3*db+kb)*4
            for h in range(2): w(f"v_cvt_pk_bf16_f32 v{KPk+4*kb+2*db+h}, v{s0+2*h}, v{s0+2*h+1}")
    for q in range(2): w(f"v_mov_b32 v{ONES+q}, 0x3f803f80")
    for qb in range(2):
        for t in range(2):
            m = vMask + 4 if t == 1 else (vMask + 8 if qb == 0 else vMask)
            mfma(w, SS + 8*qb + 4*t, KPk + 4*(qb+t), QP + 4*qb, vr(m, 4))
    for q in range(2, 4): w(f"v_mov_b32 v{ONES+q}, 0x3f803f80")
    for db in range(2):
        for kb in range(3):
            s0 = AACC + 40 + (3*db+kb)*4
            for h in range(2): w(f"v_cvt_pk_bf16_f32 v{VP+6*db+2*kb+h}, v{s0+2*h}, v{s0+2*h+1}")
    for qb in range(2): w(f"v_max3_f32 v{MX+2*qb}, v{SS+8*qb}, v{SS+8*qb+1}, v{SS+8*qb+2}")
    for qb in range(2): w(f"v_max3_f32 v{MX+2*qb+1}, v{SS+8*qb+3}, v{SS+8*qb+4}, v{SS+8*qb+5}")
    for qb in range(2): w(f"v_max3_f32 v{MX+2*qb}, v{MX+2*qb}, v{SS+8*qb+6}, v{SS+8*qb+7}")
    for qb in range(2): w(f"v_max_f32 v{MX+2*qb}, v{MX+2*qb}, v{MX+2*qb+1}")
    for sw in ("16", "32"):
        for qb in range(2): w(f"v_mov_b32 v{MX+2*qb+1}, v{MX+2*qb}")
        w("s_nop 0")
        for qb in range(2):
            w(f"v_permlane{sw}_swap_b32 v{MX+2*qb}, v{MX+2*qb+1}")
        w("s_nop 0")
        for qb in range(2): w(f"v_max_f32 v{MX+2*qb}, v{MX+2*qb}, v{MX+2*qb+1}")
    cs = 28 ** -0.5 * math.log2(math.e)
    w(f"s_mov_b32 s{sT0}, {f2u(cs)}")
    for qb in range(2): w(f"v_mul_f32 v{MX+2*qb}, s{sT0}, v{MX+2*qb}")
    for qb in range(2):
        s0 = SS + 8*qb
        for e in range(8): w(f"v_fma_f32 v{s0+e}, v{s0+e}, s{sT0}, -v{MX+2*qb}")
        for e in range(8): w(f"v_exp_f32 v{s0+e}, v{s0+e}")
        for q in range(4): w(f"v_cvt_pk_bf16_f32 v{PP+4*qb+q}, v{s0+2*q}, v{s0+2*q+1}")
        w("s_nop 1")
        mfma(w, LL + 4*qb, ONES, PP + 4*qb, "0")
        for db in range(2): mfma(w, OO + 8*qb + 4*db, VP + 6*db + 2*qb, PP + 4*qb, "0")
    w(f"""s_lshl_b32 s{sT0}, s{sRH}, 11
s_lshl_b32 s{sT1}, s{sHI}, 12
s_add_u32 s{sT0}, s{sT0}, s{sT1}
v_add_u32 v{vActW}, s{sT0}, v{vL16}""")
    for qb in range(2):
        w(f"v_rcp_f32 v{LL+4*qb}, v{LL+4*qb}\ns_nop 0\nv_and_b32 v{LL+4*qb+1}, v{vZ}, v{LL+4*qb}")
        for db in range(2):
            for e in range(4): w(f"v_mul_f32 v{OO+8*qb+4*db+e}, v{LL+4*qb+db}, v{OO+8*qb+4*db+e}")
        for q in range(4): w(f"v_cvt_pk_bf16_f32 v{PP+4*qb+q}, v{OO+8*qb+2*q}, v{OO+8*qb+2*q+1}")
        w.ds(f"ds_write_b128 v{vActW}, {vr(PP+4*qb,4)} offset:{ACT + 7*4096 + qb*1024}", "ow")
    w("s_setprio 0")
    stamp(w, 6)
    g2_phase(w, "A")
    w("s_branch L_fin")

    l = a.fork()
    vW1a, vW1b, vW2A, vPF, vR0, vR1, vNon, vRP, vFl, vSent, vP1, vP2, vPv = 8, 9, 10, 11, 12, 13, 14, 16, 24, 28, 32, 33, 34
    vPA = 36
    l("L_L:")
    l(f"s_setprio {cfg.get('lprio',3)}")
    l(f"""
s_getpc_b64 s[26:27]
L_pc:
s_lshr_b32 s{sT0}, s2, 3
s_lshl_b32 s{sT0}, s{sT0}, 2
s_add_u32 s{sT0}, s{sT0}, s{sA}
s_lshl_b32 s{sT0}, s{sT0}, 8
s_sub_u32 s26, s26, L_pc - {NAME}_kernel
s_subb_u32 s27, s27, 0
v_and_b32 v{vT1}, 1, v{vL}
v_lshl_add_u32 v{vT1}, v{vT1}, 7, s{sT0}
v_min_u32 v{vT1}, L_codeend - {NAME}_kernel - 4, v{vT1}
""")
    if cfg.get("codepf", True): l.vmem(f"global_load_dword v{vPF}, v{vT1}, s[26:27]", "pf")
    l(f"""
s_or_b32 s{sT3}, s2, s{sW}
s_cmp_lg_u32 s{sT3}, 0
s_cbranch_scc1 L_nolead0
s_memrealtime s[{sN0}:{sN1}]
L_nolead0:
s_and_b32 s{sHI}, s{sRB}, {nsh-1}
s_lshl_b32 s{sT1}, s{sHI}, 2
s_add_u32 s{sRH}, s{sT1}, s{sA}
s_mul_i32 s{sT1}, s{sRH}, {xm}
v_min_u32 v{vT1}, {4*xm-1}, v{vL}
v_lshrrev_b32 v{vT2}, 2, v{vT1}
v_add_u32 v{vT2}, s{sT1}, v{vT2}
v_and_b32 v{vT1}, 3, v{vT1}
v_mul_u32_u24 v{vT2}, 3584, v{vT2}
v_lshl_add_u32 v{vPA}, v{vT1}, 7, v{vT2}
s_mul_i32 s{sW1o}, s{sS}, 448
s_and_b32 s{sROW0}, s{sW1o}, 0xffffff80
v_cmp_le_u32 vcc, 28, v{vL}
v_xor_b32 v{vW1b}, 32, v{vL16}
v_mov_b32 v{vT3}, {3584-448}
v_cndmask_b32 v{vT0}, 0, v{vT3}, vcc
v_add_u32 v{vW1a}, v{vL16}, v{vT0}
v_add_u32 v{vW1b}, v{vW1b}, v{vT0}
s_mul_i32 s{sT1}, s{sA}, {16*3584}
s_add_u32 s{sW1o}, s{sW1o}, s{sT1}
s_mul_i32 s{sM0}, s{sA}, 7168
s_add_u32 s{sM0}, s{sM0}, {RING}
v_mov_b32 v{vPv}, 0
s_waitcnt lgkmcnt(0)
""")
    srd(l, SW1, 12, 448 * 1792 * 2)
    def op_pfa():
        l.vmem(f"buffer_load_dword v{vPF}, v{vPA}, s[{SW1}:{SW1+3}], s{sROW0} offen", "pf")
    def op_init():
        srd(l, SDBG, 22, 256)
        l(f"""
s_cmp_lg_u32 s{sT3}, 0
s_cbranch_scc1 L_nolead1
s_or_b32 s{sN0}, s{sN0}, 1
v_mov_b32 v{vNon}, s{sN0}
v_mov_b32 v{vNon+1}, s{sN1}
s_mov_b64 exec, 1
buffer_store_dwordx2 {vr(vNon,2)}, v{vPv}, s[{SDBG}:{SDBG+3}], 0 offen sc1
s_mov_b64 exec, -1
L_nolead1:
""")
        srd(l, SWQ, 6, 448 * 1344 * 2); srd(l, SW2, 16, 1792 * 448 * 2); srd(l, SWO, 8, 448 * 448 * 2); srd(l, SWS, 24, 0x10000000)
        if STAMP: l("v_writelane_b32 v0, s98, 62\nv_writelane_b32 v0, s100, 0")
        for i, d in ((0, vR0), (1, vR1)):
            l(f"""
v_add_u32 v{vT0}, {64*i}, v{vL}
v_mul_u32_u24 v{vT2}, 2979, v{vT0}
v_lshrrev_b32 v{vT2}, 16, v{vT2}
v_mul_u32_u24 v{vT3}, 22, v{vT2}
v_sub_u32 v{vT0}, v{vT0}, v{vT3}
v_min_u32 v{vT0}, 20, v{vT0}
v_mul_u32_u24 v{vT3}, 37, v{vT0}
v_lshrrev_b32 v{vT3}, 8, v{vT3}
v_mul_u32_u24 v{vT3}, {896-112}, v{vT3}
v_lshl_add_u32 v{vT0}, v{vT0}, 4, v{vT3}
v_mul_u32_u24 v{vT2}, 2688, v{vT2}
v_add_u32 v{d}, v{vT0}, v{vT2}
""")
    def op_rpl():
        l(f"""
s_and_b32 s{sT2}, s{sA}, 1
s_lshl_b32 s{sT2}, s{sT2}, 3
s_lshr_b32 s{sT1}, s{sA}, 1
s_lshl_b32 s{sT1}, s{sT1}, 2
s_add_u32 s{sT2}, s{sT2}, s{sT1}
s_lshl_b32 s{sT1}, s{sRB}, 4
s_add_u32 s{sT2}, s{sT2}, s{sT1}
s_mul_i32 s{sT2}, s{sT2}, 2688
s_mul_i32 s{sT1}, s{sS}, 112
s_add_u32 s{sT2}, s{sT2}, s{sT1}
""")
        l.vmem(f"buffer_load_dwordx4 {vr(vRP,4)}, v{vR0}, s[{SWQ}:{SWQ+3}], s{sT2} offen", "rp")
        l("s_mov_b64 exec, 0xffffff")
        l.vmem(f"buffer_load_dwordx4 {vr(vRP+4,4)}, v{vR1}, s[{SWQ}:{SWQ+3}], s{sT2} offen", "rp")
        l("s_mov_b64 exec, -1")
    def op_pfb():
        l(f"""
s_mul_i32 s{sT1}, s{sRH}, {10*xm}
s_add_u32 s{sT1}, s{sT1}, 512
v_min_u32 v{vT1}, {10*xm-1}, v{vL}
v_add_u32 v{vT1}, s{sT1}, v{vT1}
v_lshrrev_b32 v{vT2}, 2, v{vT1}
v_and_b32 v{vT1}, 3, v{vT1}
v_mul_u32_u24 v{vT2}, 3584, v{vT2}
v_lshl_add_u32 v{vT1}, v{vT1}, 7, v{vT2}
""")
        l.vmem(f"buffer_load_dword v{vPF}, v{vT1}, s[{SW1}:{SW1+3}], s{sROW0} offen", "pf")
    def dma_w1(st):
        slot = st % 3
        l("s_mov_b32 exec_hi, 0xffffff")
        for i in range(8):
            l(f"s_add_u32 m0, s{sM0}, {slot*SLOT + 896*i}\ns_add_u32 s{sT0}, s{sW1o}, {(st*64 + 2*i)*3584}")
            l.vmem(f"buffer_load_dwordx4 v{vW1a if i < 4 else vW1b}, s[{SW1}:{SW1+3}], s{sT0} offen lds", f"st{st}")
        l("s_mov_b32 exec_hi, -1")
    def dma_wq(st):
        if cfg.get("nodma"): return
        slot = st % 3; q = st - 7
        for i in range(6):
            if i % 4 == 0:
                l(f"s_add_u32 m0, s{sM1}, {slot*SLOT + 1024*i}\ns_add_u32 s{sT0}, s{sWQo}, {q*22528 + 1024*i}")
            if i == 5: l("s_mov_b32 exec_hi, 0")
            l.vmem(f"buffer_load_dwordx4 v{vL16}, s[{SWS}:{SWS+3}], s{sT0} offen offset:{1024*(i%4)} {cfg.get('wqld','')} lds", f"st{st}")
        l("s_mov_b32 exec_hi, -1")
    def dma_w2(st):
        if cfg.get("nodma"): return
        slot = st % 3; cc = st - 14
        l(f"s_lshl_b32 s{sT2}, s{sCH+cc}, 7\ns_add_u32 s{sT0}, s{sT2}, s{sW2o}")
        for i in range(7):
            l(f"s_add_u32 m0, s{sM0}, {slot*SLOT + 1024*i}")
            l(f"s_add_u32 s{sT0}, s{sT0}, {8*896}" if i else "s_nop 0")
            l.vmem(f"buffer_load_dwordx4 v{vW2A}, s[{SW2}:{SW2+3}], s{sT0} offen lds", f"st{st}")
    def dma_wo(cc):
        if cfg.get("nodma"): return
        l(f"s_lshl_b32 s{sT2}, s{sCH+cc}, 7")
        for i in range(2):
            l(f"s_add_u32 m0, s{20+i}, {WOR + (cc%4)*7168}\ns_add_u32 s{sT0}, s{22+i}, s{sT2}")
            l.vmem(f"buffer_load_dwordx4 v{vW2A}, s[{SWO}:{SWO+3}], s{sT0} offen lds", f"wo{cc}")
    def op_pf2():
        per = 49 * xm; pw = (per + 3) // 4
        l(f"""
s_mul_i32 s{sT2}, s{sHI}, {per}
s_mul_i32 s{sT1}, s{sA}, {pw}
v_min_u32 v{vT1}, {pw-1}, v{vL}
v_add_u32 v{vT1}, s{sT1}, v{vT1}
v_min_u32 v{vT1}, {per-1}, v{vT1}
v_add_lshl_u32 v{vT1}, v{vT1}, s{sT2}, 7
s_mul_i32 s{sT1}, s{sS}, {224*896}
""")
        l.vmem(f"buffer_load_dword v{vPF}, v{vT1}, s[{SW2}:{SW2+3}], s{sT1} offen", "pf2")
        per = 13 * xm; pw = (per + 3) // 4
        l(f"""
s_mul_i32 s{sT2}, s{sHI}, {per}
s_mul_i32 s{sT1}, s{sA}, {pw}
v_min_u32 v{vT1}, {pw-1}, v{vL}
v_add_u32 v{vT1}, s{sT1}, v{vT1}
v_min_u32 v{vT1}, {per-1}, v{vT1}
v_add_u32 v{vT1}, s{sT2}, v{vT1}
v_min_u32 v{vT1}, 391, v{vT1}
v_lshlrev_b32 v{vT1}, 7, v{vT1}
s_mul_i32 s{sT1}, s{sS}, {56*896}
""")
        l.vmem(f"buffer_load_dword v{vPF}, v{vT1}, s[{SWO}:{SWO+3}], s{sT1} offen", "pf2")
    def op_rps():
        l(f"""
s_mul_i32 s{sT1}, s{sS}, {448*352}
s_add_u32 s{sT1}, s{sT1}, {WS_WQ}
s_lshl_b32 s{sT0}, s{sRB}, 2
s_add_u32 s{sT0}, s{sT0}, s{sA}
s_mul_i32 s{sT0}, s{sT0}, {4*352}
s_add_u32 s{sT0}, s{sT0}, s{sT1}
s_cmp_ge_u32 s{sRB}, 28
s_cselect_b32 s{sT0}, {OOB}, s{sT0}
""")
        l.need(vm=["rp"])
        l.vmem(f"buffer_store_dwordx4 {vr(vRP,4)}, v{vL16}, s[{SWS}:{SWS+3}], s{sT0} offen sc1", "rps")
        l("s_mov_b64 exec, 0xffffff")
        l.vmem(f"buffer_store_dwordx4 {vr(vRP+4,4)}, v{vL16}, s[{SWS}:{SWS+3}], s{sT0} offen offset:1024 sc1", "rps")
        l("s_mov_b64 exec, -1")
        l.vmem(f"buffer_load_dwordx2 {vr(vNon,2)}, v{vPv}, s[{SDBG}:{SDBG+3}], 0 offen sc1", "non")
    def flag1():
        again, got = lab("na"), lab("ng")
        l.need(vm=["non"])
        l(f"""s_mov_b32 s{sPoll}, 0
{again}:
v_readfirstlane_b32 s{sN0}, v{vNon}
v_readfirstlane_b32 s{sN1}, v{vNon+1}
s_add_u32 s{sPoll}, s{sPoll}, 1
s_cmp_gt_u32 s{sPoll}, 200000
s_cbranch_scc1 {got}
s_cmp_lg_u32 s{sN0}, 0
s_cbranch_scc1 {got}
buffer_load_dwordx2 {vr(vNon,2)}, v{vPv}, s[{SDBG}:{SDBG+3}], 0 offen sc1
s_waitcnt vmcnt(0)
s_branch {again}
{got}:
v_mov_b32 v{vFl}, v{vNon}
v_mov_b32 v{vFl+1}, v{vNon+1}
v_mov_b32 v{vFl+2}, v{vNon}
v_mov_b32 v{vFl+3}, v{vNon+1}
s_lshl_b32 s{sT0}, s{sS}, 5
s_add_u32 s{sT0}, s{sT0}, s{sRB}
s_lshl_b32 s{sT0}, s{sT0}, 2
s_add_u32 s{sT0}, s{sT0}, s{sA}
s_lshl_b32 s{sT0}, s{sT0}, 5
s_add_u32 s{sT0}, s{sT0}, {WS_F1}
s_mov_b64 exec, 3""")
        l.vmem(f"buffer_store_dwordx4 {vr(vFl,4)}, v{vL16}, s[{SWS}:{SWS+3}], s{sT0} offen sc1", "fl")
        l("s_mov_b64 exec, -1")
    def op_tab():
        chunks(l)
        l(f"""
v_lshrrev_b32 v{vT0}, 3, v{vL}
v_lshrrev_b32 v{vT1}, 4, v{vL}
v_lshlrev_b32 v{vT1}, 1, v{vT1}
v_and_b32 v{vT2}, 7, v{vL}
v_xor_b32 v{vT1}, v{vT1}, v{vT2}
v_mul_u32_u24 v{vT0}, 896, v{vT0}
v_lshl_add_u32 v{vW2A}, v{vT1}, 4, v{vT0}
s_mul_i32 s{sW2o}, s{sS}, {224*896}
s_mul_i32 s{sT0}, s{sA}, {56*896}
s_add_u32 s{sW2o}, s{sW2o}, s{sT0}
s_mul_i32 s{sWOo}, s{sS}, {56*896}
s_mul_i32 s{sWQo}, s{sS}, {448*352}
s_add_u32 s{sWQo}, s{sWQo}, {WS_WQ}
s_mul_i32 s{sT0}, s{sA}, {16*352}
s_add_u32 s{sWQo}, s{sWQo}, s{sT0}
s_add_u32 s{sM1}, s{sT0}, {RING}
s_lshl_b32 s{sT0}, s{sA}, 1
s_add_u32 s{sT1}, s{sT0}, 1
s_min_u32 s{sT1}, s{sT1}, 6
s_lshl_b32 s20, s{sT0}, 10
s_lshl_b32 s21, s{sT1}, 10
s_mul_i32 s22, s{sT0}, {8*896}
s_mul_i32 s23, s{sT1}, {8*896}
s_add_u32 s22, s22, s{sWOo}
s_add_u32 s23, s23, s{sWOo}
v_min_u32 v{vP1}, 27, v{vL}
v_lshlrev_b32 v{vP1}, 5, v{vP1}
v_min_u32 v{vP2}, 6, v{vL}
v_lshlrev_b32 v{vP2}, 7, v{vP2}
v_mov_b32 v{vSent}, -1
v_mov_b32 v{vSent+1}, -1
v_mov_b32 v{vSent+2}, -1
v_mov_b32 v{vSent+3}, -1
s_mul_i32 s{sPart}, s{sRB}, {7*65536}
s_lshl_b32 s{sT0}, s{sS}, 16
s_add_u32 s{sPart}, s{sPart}, s{sT0}
s_lshl_b32 s{sT0}, s{sA}, 11
s_add_u32 s{sPart}, s{sPart}, s{sT0}
s_cmp_eq_u32 s{sS}, 7
s_cselect_b32 s{sPart}, {OOB}, s{sPart}
s_lshl_b32 s24, s{sS}, 5
s_mul_i32 s{sT0}, s{sA}, 7
s_add_u32 s24, s24, s{sT0}
s_lshl_b32 s24, s24, 7
s_add_u32 s24, s24, {WS_F1}
s_lshl_b32 s25, s{sRB}, 10
s_lshl_b32 s{sT0}, s{sA}, 5
s_add_u32 s25, s25, s{sT0}
s_add_u32 s25, s25, {WS_F2}
""")
    OPS = dict(pfa=op_pfa, init=op_init, rpl=op_rpl, pfb=op_pfb, pf2=op_pf2, rps=op_rps, fl1=flag1, tab=op_tab,
               s0=lambda: dma_w1(0), s1=lambda: dma_w1(1), s2=lambda: dma_w1(2),
               bx=lambda: l("s_barrier") if cfg.get("bx", True) else None)
    ORDER = cfg.get("order", "pfa init bx s0 rpl pfb s1 tab rps pf2 s2 B0 fl1").split()
    post = {}; cur = None; k = 1
    for o in ORDER:
        if o[0] == "B": cur = int(o[1:]); continue
        if cur is None:
            OPS[o]()
            if o in ("bx", "s0", "s1", "s2", "rps"): stamp(l, k); k += 1
        else: post.setdefault(cur, []).append(o)
    l("s_branch L_L2"); l1text = l.text(); l.L = []; l("L_L2:")
    def poll_issue(vaddr, sbase, tag):
        l.vmem(f"buffer_load_dwordx2 {vr(vPv,2)}, v{vaddr}, s[{SWS}:{SWS+3}], s{sbase} offen sc1", tag)
    def poll_check(vaddr, sbase, tag, idx):
        again, got = lab("pa"), lab("pg")
        l.need(vm=[tag])
        l(f"""s_mov_b32 s{sPoll}, 0
{again}:
v_cmp_ne_u64 vcc, s[{sN0}:{sN1}], {vr(vPv,2)}
s_add_u32 s{sPoll}, s{sPoll}, 1
s_cmp_gt_u32 s{sPoll}, 200000
s_cbranch_scc1 {got}
s_cbranch_vccz {got}
buffer_load_dwordx2 {vr(vPv,2)}, v{vaddr}, s[{SWS}:{SWS+3}], s{sbase} offen sc1
s_waitcnt vmcnt(0)
s_branch {again}
{got}:""")
        if STAMP: l(f"v_writelane_b32 v0, s{sPoll}, {idx}")
    def clear(n):
        if cfg.get("noclr"): return
        pp, i = divmod(n, 2)
        l(f"s_cmp_le_u32 s{sS}, {pp}\ns_cselect_b32 s{sT1}, 8192, 0\ns_add_u32 s{sT1}, s{sT1}, s{sPart}\ns_add_u32 s{sT1}, s{sT1}, {pp*8192}")
        l.vmem(f"buffer_store_dwordx4 {vr(vSent,4)}, v{vL16}, s[{SWS}:{SWS+3}], s{sT1} offen offset:{1024*i} sc1", "clr")
    CLS = cfg.get("cls", [0, 1, 1, 1, 1, 1, 2, 1, 2, 1, 2, 1]); assert sum(CLS) == 14
    ncl = 0
    for j in range(22):
        need = []
        if j <= 13: need = [f"st{j}"]
        elif j >= 15: need = [f"st{j-1}", f"wo{j-15}"]
        if j == 5: poll_check(vP1, 24, "p1", 60)
        if j == 16: poll_check(vP2, 25, "p2", 59)
        barrier(l, j, vm=need)
        if j == 4: poll_issue(vP1, 24, "p1")
        if j == 15: poll_issue(vP2, 25, "p2")
        if 1 <= j <= 4: dma_w1(j + 2)
        elif 5 <= j <= 11: dma_wq(j + 2)
        elif j in (12, 13): dma_w2(j + 2); dma_wo(j - 12)
        elif j == 14: dma_wo(2); dma_w2(16); dma_wo(3)
        elif 16 <= j <= 19:
            dma_w2(j + 1)
            if j <= 18: dma_wo(j - 12)
        for o in post.get(j, []): OPS[o]()
        if j < len(CLS):
            for _ in range(CLS[j]): clear(ncl); ncl += 1
        if j == len(CLS) + cfg.get("f2d", 0):
            l.need(vm=["clr"])
            l(f"s_lshl_b32 s{sT0}, s{sS}, 7\ns_add_u32 s{sT0}, s{sT0}, s25\ns_mov_b64 exec, 3")
            l.vmem(f"buffer_store_dwordx4 {vr(vFl,4)}, v{vL16}, s[{SWS}:{SWS+3}], s{sT0} offen sc1", "fl")
            l("s_mov_b64 exec, -1")
    l.need(drain=True)
    l("L_fin:")
    if STAMP:
        l(f"""s_waitcnt vmcnt(0)
s_memrealtime s[96:97]
{SOP} s[98:99]
s_waitcnt lgkmcnt(0)
v_writelane_b32 v0, s96, 63
v_writelane_b32 v0, s98, 41
s_mul_i32 s{sT0}, s2, 12
s_add_u32 s{sT0}, s{sT0}, s{sW}
s_lshl_b32 s{sT0}, s{sT0}, 8
s_add_u32 s{sT0}, s{sT0}, {WS_STAMP}
v_lshlrev_b32 v{vT0}, 2, v{vL}
buffer_store_dword v0, v{vT0}, s[{SWS}:{SWS+3}], s{sT0} offen
""")
    l("L_end:\ns_endpgm\nL_codeend:")

    K1 = NAME + "_kernel"
    txt = f"""; @launch grid=(256,1,1) block=(768,1,1) lds={LDS_BYTES}
.amdgcn_target "amdgcn-amd-amdhsa--gfx950"
.text
.globl {K1}
.p2align 8
.type {K1},@function
{K1}:
{a.text()}{c1text}{l1text}{c.text()}{f.text()}{w.text()}{l.text()}
.section .rodata,"a"
.p2align 6
.amdhsa_kernel {K1}
  .amdhsa_next_free_vgpr 168
  .amdhsa_next_free_sgpr 102
  .amdhsa_accum_offset 168
  .amdhsa_group_segment_fixed_size 0
  .amdhsa_kernarg_size 88
  .amdhsa_user_sgpr_count 2
  .amdhsa_user_sgpr_kernarg_segment_ptr 1
  .amdhsa_system_sgpr_workgroup_id_x 1
.end_amdhsa_kernel
"""
    return txt

if __name__ == "__main__":
    import json
    cfg = json.loads(sys.argv[2]) if len(sys.argv) > 2 else {}
    open(sys.argv[1], "w").write(gen(cfg))
```

```python
import sys, math, struct
NAME = "parallel_sum__sliding_local_dilated__dense_activation_gelu__prompt"

class A:
    def __init__(self):
        self.L = []; self.vm = []; self.lg = []; self.smem = False; self.pend = []; self.nst = 0
    def __call__(self, s):
        for l in s.strip("\n").split("\n"):
            l = l.strip()
            if l: self.L.append(l if l.endswith(":") else "  " + l)
    def fork(self):
        b = A(); b.vm = list(self.vm); b.lg = list(self.lg); b.smem = self.smem; return b
    def vmem(self, s, tag): self(s); self.vm.append(tag)
    def ds(self, s, tag): self(s); self.lg.append(tag)
    def _cnt(self, q, tags):
        last = -1
        for i, t in enumerate(q):
            if t in tags: last = i
        return None if last < 0 else len(q) - 1 - last
    def need(self, vm=(), lg=(), drain=False):
        parts = []
        n = self._cnt(self.vm, set(vm))
        if n is not None:
            n = min(n, 63); parts.append(f"vmcnt({n})"); self.vm = self.vm[len(self.vm) - n:] if n else []
        n = self._cnt(self.lg, set(lg))
        if drain: n = 0 if (self.lg or self.smem) else None
        if n is not None:
            n = min(n, 15)
            parts.append(f"lgkmcnt({n})"); self.lg = self.lg[len(self.lg) - n:] if n else []
        if parts: self("s_waitcnt " + " ".join(parts))
        if drain:
            self.smem = False
            for sg, idx in self.pend: self(f"v_writelane_b32 v0, s{sg}, {idx}")
            self.pend = []
    def text(self): return "\n".join(self.L) + "\n"

def vr(a, n=1): return f"v{a}" if n == 1 else f"v[{a}:{a+n-1}]"
def f2u(x): return "0x%08x" % struct.unpack("<I", struct.pack("<f", x))[0]

KP = 4608
HALO = 4096
ACT = 0
WOR = 36864
RING = 65536
SLOT = 28672
BIAS = RING + 3 * SLOT
LDS_BYTES = BIAS + 1024
WS_PART = 0
WS_WQ = 0x1000000
WS_F1 = 0x1800000
WS_F2 = 0x1810000
WS_STAMP = 0x8000000
OOB = 0x7ff00000
SX, SWQ, SWO, SW1, SW2, SB1, SWS, SB2, SOUT, SDBG = 28, 32, 36, 40, 44, 48, 52, 56, 60, 64
sW, sS, sRB, sA, sRH, sHI, sROW0, sT0, sT1, sT2, sT3 = 68, 69, 70, 71, 72, 73, 74, 75, 76, 77, 78
sW1o, sWQo, sW2o, sWOo, sM0, sPart, sC2, sCH = 79, 80, 81, 82, 83, 84, 85, 86
sN0, sN1, sCW, sPoll, sM1, sLW = 94, 95, 93, 96, 97, 26

sIN, sLO = 32, 39

def gen(cfg):
    STAMP = cfg.get("stamp", False)
    SOP = cfg.get("stampop", "s_memtime")
    xm = cfg.get("xmap", 1); nsh = 32 // xm
    uid = [0]
    def lab(n): uid[0] += 1; return f"L_{n}{uid[0]}"
    def stamp(b, idx):
        if not STAMP: return
        sg = 4 + 2 * (b.nst % 8); b.nst += 1
        b(f"{SOP} s[{sg}:{sg+1}]"); b.smem = True; b.pend.append((sg, idx))
    def barrier(b, j, vm=()):
        pb0 = cfg.get("prebar")
        if pb0 is not None and pb0 <= j < pb0 + 8: stamp(b, 42 + j - pb0)
        b.need(vm=vm, drain=True)
        if pb0 is not None and pb0 <= j < pb0 + 8: stamp(b, 50 + j - pb0)
        b("s_barrier")
        stamp(b, 10 + j)
    def srd(b, d, p, n):
        b(f"s_mov_b32 s{d}, s{p}\ns_and_b32 s{d+1}, s{p+1}, 0xffff\ns_mov_b32 s{d+2}, {n}\ns_mov_b32 s{d+3}, 0x20000")
    def mfma(b, d, x, y, c=None):
        b(f"v_mfma_f32_16x16x32_bf16 {vr(d,4)}, {vr(x,4)}, {vr(y,4)}, {vr(d,4) if c is None else c}")
    def chunks(b):
        for i in range(7):
            if i == 0: b(f"s_add_u32 s{sCH}, s{sS}, 1")
            else: b(f"s_add_u32 s{sCH+i}, s{sCH+i-1}, 1")
            b(f"s_cmp_ge_u32 s{sCH+i}, 7\ns_cselect_b32 s{sT0}, 7, 0\ns_sub_u32 s{sCH+i}, s{sCH+i}, s{sT0}")

    vL, vL16, vActW, vT0, vT1, vT2, vT3 = 1, 2, 3, 4, 5, 6, 7
    vXE, vXO, vG2W, vG2W2, vG2O0, vG2O2 = 8, 9, 10, 11, 12, 13
    a = A()
    a(f"""
s_load_dwordx16 s[4:19], s[0:1], 0
s_load_dwordx4 s[20:23], s[0:1], 64
s_load_dwordx2 s[24:25], s[0:1], 80
s_cmp_ge_u32 s2, 256
s_cbranch_scc1 L_end
v_lshrrev_b32 v{vT0}, 6, v0
v_and_b32 v{vL}, 63, v0
v_readfirstlane_b32 s{sW}, v{vT0}
""")
    if cfg.get("spin"): a("s_memrealtime s[100:101]")
    if cfg.get("probe"):
        src, n = cfg["probe"]
        a(f"""s_waitcnt lgkmcnt(0)
s_mov_b32 s40, s{src}
s_and_b32 s41, s{src+1}, 0xffff
s_mov_b32 s42, {2048*896}
s_mov_b32 s43, 0x20000
s_mul_i32 s44, s2, 7168
v_mov_b32 v8, 0""")
        for i in range(n):
            a(f"buffer_load_dword v9, v8, s[40:43], s44 offen\ns_add_u32 s44, s44, 256\ns_waitcnt vmcnt(0)")
    if STAMP: a(f"s_memrealtime s[98:99]\n{SOP} s[100:101]\nv_mov_b32 v0, 0")
    if xm == 1:
        a(f"s_and_b32 s{sS}, s2, 7\ns_lshr_b32 s{sRB}, s2, 3")
    else:
        lb = xm.bit_length() - 1
        a(f"""
s_and_b32 s{sT0}, s2, {8//xm - 1}
s_lshl_b32 s{sT0}, s{sT0}, {lb}
s_lshr_b32 s{sT1}, s2, 3
s_and_b32 s{sT2}, s{sT1}, {xm-1}
s_add_u32 s{sS}, s{sT0}, s{sT2}
s_and_b32 s{sT0}, s2, 7
s_lshr_b32 s{sT0}, s{sT0}, {3-lb}
s_lshl_b32 s{sT0}, s{sT0}, {5-lb}
s_lshr_b32 s{sT1}, s{sT1}, {lb}
s_add_u32 s{sRB}, s{sT0}, s{sT1}
""")
    a(f"""
v_lshlrev_b32 v{vL16}, 4, v{vL}
s_and_b32 s{sA}, s{sW}, 3
s_cmp_lt_u32 s{sW}, 4
s_cbranch_scc1 L_L
""")
    c = a.fork()
    RAW, UNP = 136, 80
    c(f"""
s_lshr_b32 s{sT0}, s{sRB}, 1
s_lshl_b32 s{sT0}, s{sT0}, 7
s_and_b32 s{sT1}, s{sRB}, 1
s_add_u32 s{sROW0}, s{sT0}, s{sT1}
s_sub_u32 s{sCW}, s{sW}, 4
s_and_b32 s{sT0}, s{sS}, {xm-1}
s_mul_i32 s{sT0}, s{sT0}, {(8//xm) if cfg.get("xrot", True) else 0}
s_add_u32 s{sLW}, s{sCW}, s{sT0}
s_and_b32 s{sLW}, s{sLW}, 7
s_lshl_b32 s{sT0}, s{sLW}, 4
s_add_u32 s{sT0}, s{sT0}, s{sROW0}
v_lshrrev_b32 v{vT0}, 3, v{vL}
v_lshl_add_u32 v{vT0}, v{vT0}, 1, s{sT0}
v_mul_u32_u24 v{vT0}, 896, v{vT0}
v_and_b32 v{vT1}, 7, v{vL}
v_lshl_add_u32 v{vT0}, v{vT1}, 4, v{vT0}
s_and_b32 s{sRH}, s{sW}, 1
s_bfe_u32 s{sHI}, s{sW}, 0x10001
s_waitcnt lgkmcnt(0)
""")
    srd(c, SX, 4, 2048 * 896)
    for t in range(7):
        c.vmem(f"buffer_load_dwordx4 {vr(RAW+4*t,4)}, v{vT0}, s[{SX}:{SX+3}], 0 offen offset:{128*t}", f"x{t}")
    srd(c, SB1, 14, 1792 * 2)
    c(f"""s_mul_i32 s{sT0}, s{sS}, 448
s_mul_i32 s{sT1}, s{sHI}, 224
s_add_u32 s{sT0}, s{sT0}, s{sT1}
s_lshl_b32 s{sT2}, s{sA}, 8
s_add_u32 m0, s{sT2}, {BIAS}
s_mov_b64 exec, 0x3fff""")
    c.vmem(f"buffer_load_dwordx4 v{vL16}, s[{SB1}:{SB1+3}], s{sT0} offen lds", "bias")
    c("s_mov_b64 exec, -1")
    if cfg.get("bx", True): c("s_barrier")
    c("s_branch L_C2"); c1text = c.text(); c.L = []; c("L_C2:")
    if STAMP: c("v_writelane_b32 v0, s98, 62\nv_writelane_b32 v0, s100, 0")
    srd(c, SWS, 24, 0x10000000); srd(c, SB2, 18, 896); srd(c, SOUT, 20, 2048 * 896)
    chunks(c)
    c(f"""
v_lshrrev_b32 v{vT2}, 4, v{vL}
v_and_b32 v{vT3}, 15, v{vL}
v_xor_b32 v{vT0}, v{vT3}, v{vT2}
v_lshlrev_b32 v{vT1}, 8, v{vT2}
s_lshl_b32 s{sT0}, s{sRH}, 11
v_lshl_add_u32 v{vXE}, v{vT0}, 4, v{vT1}
v_add_u32 v{vXE}, s{sT0}, v{vXE}
v_xor_b32 v{vXO}, {12*16}, v{vXE}
v_lshrrev_b32 v{vT0}, 2, v{vL}
v_bfe_u32 v{vT1}, v{vL}, 3, 2
s_lshr_b32 s{sT2}, s{sCW}, 1
v_xor_b32 v{vT1}, s{sT2}, v{vT1}
v_lshlrev_b32 v{vT1}, 5, v{vT1}
v_lshl_add_u32 v{vT1}, v{vT0}, 7, v{vT1}
v_and_b32 v{vT0}, 3, v{vL}
v_lshl_add_u32 v{vG2O0}, v{vT0}, 3, v{vT1}
v_xor_b32 v{vG2O2}, 64, v{vG2O0}
v_add_u32 v{vG2W}, {RING}, v{vG2O0}
v_add_u32 v{vG2W2}, {RING+2*SLOT}, v{vG2O0}
v_lshrrev_b32 v{vT1}, 3, v{vL}
s_and_b32 s{sT0}, s{sLW}, 1
s_lshl_b32 s{sT0}, s{sT0}, 3
v_or_b32 v{vT1}, s{sT0}, v{vT1}
v_bfe_u32 v{vT2}, v{vL}, 2, 1
v_mul_u32_u24 v{vT3}, 12, v{vT2}
v_or_b32 v{vT3}, v{vT3}, v{vT0}
v_xor_b32 v{vT1}, v{vT1}, v{vT3}
v_lshlrev_b32 v{vT1}, 4, v{vT1}
v_lshl_add_u32 v{vT1}, v{vT0}, 8, v{vT1}
v_mul_u32_u24 v{vT2}, {KP}, v{vT2}
s_lshr_b32 s{sT2}, s{sLW}, 1
s_lshl_b32 s{sT2}, s{sT2}, 10
v_add3_u32 v{vActW}, v{vT1}, v{vT2}, s{sT2}
s_mul_i32 s{sPart}, s{sRB}, {7*65536}
s_lshl_b32 s{sT2}, s{sCW}, 10
s_add_u32 s{sPart}, s{sPart}, s{sT2}
s_lshl_b32 s{sT2}, s{sS}, 13
s_add_u32 s{sM1}, s{sPart}, s{sT2}
s_lshr_b32 s{sT1}, s{sCW}, 1
s_lshl_b32 s{sT1}, s{sT1}, 5
s_lshl_b32 s{sT2}, s{sS}, 7
s_add_u32 s{sT1}, s{sT1}, s{sT2}
s_lshl_b32 s{sT0}, s{sS}, 16
s_add_u32 s{sT0}, s{sT0}, s{sPart}
s_cmp_eq_u32 s{sS}, 7
s_cselect_b32 s{sM0}, {OOB}, s{sT1}
s_cselect_b32 s{sT0}, {OOB}, s{sT0}
s_add_u32 s{sIN+6}, s{sT0}, {7*8192}
s_movk_i32 s{sLO}, 0x3f80
""")
    for k in range(6):
        c(f"s_lshl_b32 s{sT1}, s{sCH+5-k}, 13\ns_add_u32 s{sIN+k}, s{sT0}, s{sT1}")
    c(f"s_cmp_ge_u32 s{sW}, 8\ns_cbranch_scc1 L_A")

    def ln_core(b, raw, nraw, unp, tags, nl, pk=True):
        S, Q = vT0, vT2
        for d in range(nraw):
            if d % 4 == 0: b.need(vm=[tags[d // 4]])
            u = unp + 2 * d
            b(f"v_lshlrev_b32 v{u}, 16, v{raw+d}\nv_and_b32 v{u+1}, 0xffff0000, v{raw+d}")
            if not pk:
                if d == 0: b(f"v_mov_b32 v{S}, v{u}\nv_mov_b32 v{S+1}, v{u+1}\nv_mul_f32 v{Q}, v{u}, v{u}\nv_mul_f32 v{Q+1}, v{u+1}, v{u+1}")
                else: b(f"v_add_f32 v{S}, v{S}, v{u}\nv_add_f32 v{S+1}, v{S+1}, v{u+1}\nv_fmac_f32 v{Q}, v{u}, v{u}\nv_fmac_f32 v{Q+1}, v{u+1}, v{u+1}")
            elif d == 0: b(f"v_pk_mul_f32 {vr(Q,2)}, {vr(u,2)}, {vr(u,2)}")
            elif d == 1: b(f"v_pk_add_f32 {vr(S,2)}, {vr(u-2,2)}, {vr(u,2)}\nv_pk_fma_f32 {vr(Q,2)}, {vr(u,2)}, {vr(u,2)}, {vr(Q,2)}")
            else: b(f"v_pk_add_f32 {vr(S,2)}, {vr(S,2)}, {vr(u,2)}\nv_pk_fma_f32 {vr(Q,2)}, {vr(u,2)}, {vr(u,2)}, {vr(Q,2)}")
        yield "stats"
        b(f"v_add_f32 v{S}, v{S}, v{S+1}\nv_add_f32 v{Q}, v{Q}, v{Q+1}\ns_nop 0")
        for st in ["quad_perm:[1,0,3,2]", "quad_perm:[2,3,0,1]", "row_half_mirror", "row_mirror"][:min(nl, 4)]:
            b(f"v_add_f32_dpp v{S}, v{S}, v{S} {st} row_mask:0xf bank_mask:0xf\nv_add_f32_dpp v{Q}, v{Q}, v{Q} {st} row_mask:0xf bank_mask:0xf\ns_nop 0")
        if nl >= 5:
            b(f"""v_mov_b32 v{S+1}, v{S}
v_mov_b32 v{Q+1}, v{Q}
s_nop 1
v_permlane16_swap_b32 v{S}, v{S+1}
v_permlane16_swap_b32 v{Q}, v{Q+1}
s_nop 1
v_add_f32 v{S}, v{S}, v{S+1}
v_add_f32 v{Q}, v{Q}, v{Q+1}""")
        b(f"""v_mul_f32 v{S}, {f2u(1/448)}, v{S}
v_mul_f32 v{Q}, {f2u(1/448)}, v{Q}
v_fma_f32 v{Q}, -v{S}, v{S}, v{Q}
v_max_f32 v{Q}, 0, v{Q}
v_add_f32 v{Q}, {f2u(1e-5)}, v{Q}
v_rsq_f32 v{Q}, v{Q}
s_nop 0
v_mul_f32 v{S}, v{S}, v{Q}
.p2align 3""")
        yield "red"
        for d in range(nraw):
            u = unp + 2 * d
            if not pk: b(f"v_fma_f32 v{u}, v{u}, v{Q}, -v{S}\nv_fma_f32 v{u+1}, v{u+1}, v{Q}, -v{S}")
            else: b(f"v_pk_fma_f32 {vr(u,2)}, {vr(u,2)}, {vr(Q,2)}, {vr(S,2)} op_sel_hi:[1,0,0] neg_lo:[0,0,1] neg_hi:[0,0,1]")
            if d >= 1: b(f"v_cvt_pk_bf16_f32 v{raw+d-1}, v{u-2}, v{u-1}")
            yield d - 1
        u = unp + 2 * (nraw - 1)
        b(f"v_cvt_pk_bf16_f32 v{raw+nraw-1}, v{u}, v{u+1}")
        yield nraw - 1
    def ln_main(b, hook=None):
        for d in ln_core(b, RAW, 28, UNP, [f"x{t}" for t in range(7)], 3):
            if d == "stats":
                stamp(b, 2)
                if hook: hook()
            if isinstance(d, int) and d >= 0 and d % 4 == 3:
                t = d // 4
                b.ds(f"ds_write_b128 v{vActW}, {vr(RAW+4*t,4)} offset:{2*KP*t}", "xw")

    def g1_phase(b, st0, reads, mfmas, P, GAP, tail=None):
        M = [m for ks in range(14) for m in mfmas(ks)]
        per = len(M) // 14
        sched = {}
        for j in range(7):
            R0, R1 = reads(2 * j), reads(2 * j + 1)
            b0 = 2 * per * j - P
            span = 2 * per - GAP
            R = R0 + R1
            for i, r in enumerate(R):
                pos = b0 + (i * span) // len(R)
                if i >= len(R0): pos = max(pos, 2 * per * j - 1)
                sched.setdefault(max(pos, -1), []).append(r)
        barrier(b, st0)
        for r in sched.get(-1, []): b.ds(*r)
        for m, (fn, tg) in enumerate(M):
            if (m + P) % (2 * per) == 0: barrier(b, st0 + (m + P) // (2 * per))
            b.need(lg=tg); fn()
            for r in sched.get(m, []): b.ds(*r)
            if tail: tail(m - len(M))

    def g2_phase(b, role):
        XR, PK, AC, WR, INB, ACTR = 14, 20, 28, 44, 68, 96
        NR = 6
        b(f"s_lshl_b32 s{sT0}, s{sRH}, 11\nv_add_u32 v{vActW}, s{sT0}, v{vL16}")
        steps = [(cc, t) for cc in range(7) for t in range(9)]
        N = len(steps)
        def reads(n):
            cc, t = steps[n]; slot = (14 + cc) % 3
            out = []; w = WR + 4 * (n % NR)
            if t < 7:
                base = vG2W if slot < 2 else vG2W2
                o = SLOT if slot == 1 else 0
                for u in range(2):
                    out.append((f"ds_read_b64_tr_b16 {vr(w+2*u,2)}, v{base} offset:{o + (16*t + 112*u)*128}", f"w{n}"))
            else:
                hd = t - 7
                for u in range(2):
                    base = vG2O0 if (14*hd + 6*u) % 4 == 0 else vG2O2
                    out.append((f"ds_read_b64_tr_b16 {vr(w+2*u,2)}, v{base} offset:{WOR + (cc%4)*7168 + (28*hd + 12*u)*128}", f"w{n}"))
            if cc == 0:
                for pb in range(2):
                    out.append((f"ds_read_b128 {vr(ACTR+4*(9*pb+t),4)}, v{vActW} offset:{ACT + t*4096 + pb*1024}", f"w{n}"))
            return out
        def epi(cc):
            ac = AC + 8 * (cc % 2); pk = PK + 4 * (cc % 2)
            b(f"s_lshl_b32 s{sT0}, s{sCH+cc}, 16\ns_add_u32 s{sT0}, s{sT0}, s{sM1}")
            for q in range(4): b(f"v_cvt_pk_bf16_f32 v{pk+q}, v{ac+2*q}, v{ac+2*q+1}")
            if not cfg.get("nopst"): b.vmem(f"buffer_store_dwordx4 {vr(pk,4)}, v{vL16}, s[{SWS}:{SWS+3}], s{sT0} offen sc1", f"p{cc}")
        def inbox_load(i):
            b.vmem(f"buffer_load_dwordx4 {vr(INB+4*i,4)}, v{vL16}, s[{SWS}:{SWS+3}], s{sIN+i} offen sc1", f"in{i}")
        sched = {}; bars = {}
        P2, GAP2 = cfg.get("p2", 8), cfg.get("gap2", 2)
        for cc in range(7):
            R = [r for t in range(9) for r in reads(9 * cc + t)]
            b0 = 18 * cc - P2
            bars[max(b0, -1)] = 15 + cc
            for i, r in enumerate(R):
                sched.setdefault(max(b0 + (i * (18 - GAP2)) // len(R), -1), []).append(r)
        barrier(b, 15)
        for r in sched.get(-1, []): b.ds(*r)
        DI = cfg.get("di", 3)
        for n in range(N):
            cc, t = steps[n]
            ac = AC + 8 * (cc % 2); w = WR + 4 * (n % NR)
            for pb in range(2):
                m = 2 * n + pb
                if m in bars: barrier(b, bars[m])
                b.need(lg=[f"w{n}"])
                mfma(b, ac + 4 * pb, w, ACTR + 4 * (9 * pb + t), "0" if (t == 0 and cc < 6) else None)
                for r in sched.get(m, []): b.ds(*r)
            if t == 2 and cc >= 1: epi(cc - 1)
            if (cc, t) == (1, 5):
                b(f"""v_and_b32 v{vT0}, 15, v{vL}
s_lshl_b32 s{sT0}, s{sRH}, 6
s_add_u32 s{sT0}, s{sT0}, s{sROW0}
v_lshl_add_u32 v{vT0}, v{vT0}, 1, s{sT0}
v_mul_u32_u24 v{vT0}, 896, v{vT0}
v_lshrrev_b32 v{vT1}, 4, v{vL}
v_lshlrev_b32 v{vT1}, 3, v{vT1}
s_add_u32 s{sT2}, s{sM0}, {32*896}
v_add_u32 v{vT2}, v{vT0}, v{vT1}""")
                b.vmem(f"buffer_load_dwordx2 {vr(XR,2)}, v{vT2}, s[{SX}:{SX+3}], s{sM0} offen", "xr")
                b.vmem(f"buffer_load_dwordx2 {vr(XR+2,2)}, v{vT2}, s[{SX}:{SX+3}], s{sT2} offen", "xr")
                b.vmem(f"buffer_load_dwordx2 {vr(XR+4,2)}, v{vT1}, s[{SB2}:{SB2+3}], s{sM0} offen", "xr")
            if (cc, t) == (2, 5):
                b(f"""v_bfe_u32 v{vT1}, v{vL}, 4, 1
v_mul_u32_u24 v{vT1}, {32*896}, v{vT1}
v_lshrrev_b32 v{vT2}, 5, v{vL}
v_lshl_add_u32 v{vT1}, v{vT2}, 4, v{vT1}
v_add_u32 v{vXE}, v{vT0}, v{vT1}
v_mov_b32 v{vXO}, 0x3f800000""")
            if t == 1 and 0 <= cc - DI <= 3: inbox_load(cc - DI)
            if (cc, t) == (5, 5):
                b.need(vm=["xr"])
                for d in range(2):
                    b(f"v_lshlrev_b32 v{vT0}, 16, v{XR+4+d}\nv_and_b32 v{vT1}, 0xffff0000, v{XR+4+d}")
                    for pb in range(2):
                        q = AC + 4 * pb + 2 * d
                        b(f"v_dot2_f32_bf16 v{q}, v{XR+2*pb+d}, s{sLO}, v{vT0}\nv_dot2_f32_bf16 v{q+1}, v{XR+2*pb+d}, v{vXO}, v{vT1}")
            if (cc, t) == (6, cfg.get("inb_t", 7)):
                for i in range(min(7 - DI, 4), 7): inbox_load(i)
        own, done = lab("own"), lab("done")
        if STAMP: b.need(drain=True); b(f"{SOP} s[18:19]")
        b(f"s_cmp_lg_u32 s{sS}, 7\ns_cbranch_scc1 {own}\ns_nop 5")
        sv = list(b.vm); epi(6); b.vm = sv
        b(f"s_branch {done}\n{own}:\ns_mov_b32 s{sPoll}, 0")
        def group(chk, rel):
            top, ok = lab("g"), lab("ok")
            b.need(vm=[f"in{i}" for i in chk])
            b(f"{top}:")
            regs = [INB + 4 * i + d for i in chk for d in range(4)]
            b(f"v_max3_u32 v{vT0}, v{regs[0]}, v{regs[1]}, v{regs[2]}\nv_max3_u32 v{vT1}, v{regs[3]}, v{regs[4]}, v{regs[5]}")
            k = 6
            while k < len(regs):
                tt = vT0 + (k // 2) % 2
                b(f"v_max3_u32 v{tt}, v{tt}, v{regs[k]}, v{regs[k+1]}"); k += 2
            b(f"""v_max_u32 v{vT0}, v{vT0}, v{vT1}
v_cmp_eq_u32 vcc, -1, v{vT0}
s_add_u32 s{sPoll}, s{sPoll}, 1
s_cmp_gt_u32 s{sPoll}, 200000
s_cbranch_vccz {ok}
s_cbranch_scc1 {ok}
s_waitcnt vmcnt(0)""")
            for i in rel:
                r0 = INB + 4 * i
                b(f"""v_max3_u32 v{vT0}, v{r0}, v{r0+1}, v{r0+2}
v_max_u32 v{vT0}, v{vT0}, v{r0+3}
v_cmp_eq_u32 vcc, -1, v{vT0}
s_nop 0
s_mov_b64 exec, vcc
buffer_load_dwordx4 {vr(r0,4)}, v{vL16}, s[{SWS}:{SWS+3}], s{sIN+i} offen sc1
s_mov_b64 exec, -1""")
            b(f"s_waitcnt vmcnt(0)\ns_branch {top}\n{ok}:")
            for i in chk:
                for d in range(4):
                    b(f"v_dot2_f32_bf16 v{AC+2*d}, v{INB+4*i+d}, s{sLO}, v{AC+2*d}\nv_dot2_f32_bf16 v{AC+2*d+1}, v{INB+4*i+d}, v{vXO}, v{AC+2*d+1}")
        group([0, 1, 2, 3], range(7))
        if STAMP: b(f"{SOP} s[14:15]")
        group([4, 5, 6], range(4, 7))
        if STAMP: b(f"{SOP} s[16:17]")
        b("s_nop 1")
        for q in range(4): b(f"v_cvt_pk_bf16_f32 v{PK+q}, v{AC+2*q}, v{AC+2*q+1}")
        b(f"s_nop 1\nv_permlane16_swap_b32 v{PK}, v{PK+2}\nv_permlane16_swap_b32 v{PK+1}, v{PK+3}\ns_nop 0")
        b(f"buffer_store_dwordx4 {vr(PK,4)}, v{vXE}, s[{SOUT}:{SOUT+3}], s{sM0} offen {cfg.get('ost','')}")
        if STAMP: b(f"s_waitcnt lgkmcnt(0)\nv_writelane_b32 v0, s14, 39\nv_writelane_b32 v0, s16, 40\nv_writelane_b32 v0, s{sPoll}, 61")
        b(f"{done}:")
        if STAMP: b(f"s_waitcnt lgkmcnt(0)\nv_writelane_b32 v0, s18, 38")

    f = c.fork()
    vWA, vWB, vWA2, vWB2, vC1 = 14, 15, 16, 17, 18
    FACC = 24; FBUF = (80, 116)
    f(f"""
s_mul_i32 s{sT0}, s{sS}, 448
s_mul_i32 s{sT1}, s{sHI}, 224
s_add_u32 s{sT0}, s{sT0}, s{sT1}
v_lshrrev_b32 v{vT2}, 4, v{vL}
v_lshlrev_b32 v{vT0}, 3, v{vT2}
""")
    f(f"s_lshl_b32 s{sT2}, s{sA}, 8\ns_add_u32 s{sT2}, s{sT2}, {BIAS}\nv_add_u32 v19, s{sT2}, v{vT0}")
    f(f"""
v_bfe_u32 v{vT1}, v{vL}, 2, 2
v_add_u32 v{vT0}, v{vT0}, v{vT1}
v_mul_u32_u24 v{vT0}, 448, v{vT0}
v_and_b32 v{vT1}, 3, v{vL}
v_lshl_add_u32 v{vT0}, v{vT1}, 3, v{vT0}
s_add_u32 s{sT1}, s{sT1}, {RING}
v_add_u32 v{vT0}, s{sT1}, v{vT0}
v_and_b32 v{vT1}, 1, v{vT2}
s_lshl_b32 s{sT2}, s{sHI}, 6
s_sub_u32 s{sT2}, 32, s{sT2}
v_mul_lo_u32 v{vT1}, v{vT1}, s{sT2}
v_add_u32 v{vWA}, v{vT0}, v{vT1}
v_sub_u32 v{vWB}, v{vT0}, v{vT1}
v_add_u32 v{vWA2}, {2*SLOT}, v{vWA}
v_add_u32 v{vWB2}, {2*SLOT}, v{vWB}
v_mov_b32 v{vC1}, {f2u(-2.3022081981)}
s_mov_b32 s{sC2}, {f2u(-2.3022081981*0.044715)}
""")
    stamp(f, 1)
    def bias_reads():
        f.need(vm=["bias"])
        for cb in range(7): f.ds(f"ds_read_b64 {vr(FACC+8*cb+6,2)}, v19 offset:{32*cb}", "bias")
    ln_main(f, bias_reads)
    stamp(f, 3)
    f.need(lg=["bias"])
    for cb in range(7):
        d = FACC + 8 * cb
        f(f"""v_lshlrev_b32 v{d}, 16, v{d+6}
v_and_b32 v{d+1}, 0xffff0000, v{d+6}
v_lshlrev_b32 v{d+2}, 16, v{d+7}
v_and_b32 v{d+3}, 0xffff0000, v{d+7}""")
    f("s_setprio 2")
    def f_reads(ks):
        B = FBUF[ks % 2]; slot = (ks // 2) % 3; out = []
        xb = vXE if ks % 2 == 0 else vXO
        for pb in range(2):
            out.append((f"ds_read_b128 {vr(B+4*pb,4)}, v{xb} offset:{pb*1024 + ks*KP}", f"x{ks}"))
        for cb in range(7):
            base = (vWA if cb % 2 == 0 else vWB) + (2 if slot == 2 else 0)
            o = (SLOT if slot == 1 else 0) + (ks % 2) * 14336 + cb * 32
            for u in range(2):
                out.append((f"ds_read_b64_tr_b16 {vr(B+8+4*cb+2*u,2)}, v{base} offset:{o + u*1792}", f"w{ks}_{cb}"))
        return out
    def f_mfmas(ks):
        B = FBUF[ks % 2]; out = []
        for cb in range(7):
            for pb in ((1, 0) if ks == 0 else (0, 1)):
                cin = vr(FACC + 8*cb, 4) if ks == 0 else None
                out.append((lambda cb=cb, pb=pb, cin=cin: mfma(f, FACC + 8*cb + 4*pb, B + 8 + 4*cb, B + 4*pb, cin), [f"x{ks}", f"w{ks}_{cb}"]))
        return out
    g1_phase(f, 0, f_reads, f_mfmas, cfg.get('pf_', 10), cfg.get('gapf', 4))
    f("s_setprio 0")
    H, GT = 80, 108
    f(f"""s_lshl_b32 s{sT0}, s{sRH}, 11
s_lshl_b32 s{sT1}, s{sHI}, 3
s_add_u32 s{sT0}, s{sT0}, s{sT1}
v_add_u32 v{vActW}, s{sT0}, v{vL16}""")
    def hwrite(cb):
        for pb in range(2):
            f.ds(f"ds_write_b64 v{vActW}, {vr(H+4*cb+2*pb,2)} offset:{ACT + cb*4096 + pb*1024}", "hw")
    ops = []
    for cb in range(7):
        a0 = FACC + 8 * cb; E = range(8) if not cfg.get("nogelu") else range(0)
        for e in E: ops.append((4, f"v_mul_f32 v{GT+e}, v{a0+e}, v{a0+e}"))
        for e in E: ops.append((4, f"v_fma_f32 v{GT+e}, v{GT+e}, s{sC2}, v{vC1}"))
        for e in E: ops.append((4, f"v_mul_f32 v{GT+e}, v{GT+e}, v{a0+e}"))
        for e in E: ops.append((8, f"v_exp_f32 v{GT+e}, v{GT+e}"))
        for e in E: ops.append((4, f"v_add_f32 v{GT+e}, 1.0, v{GT+e}"))
        for e in E: ops.append((8, f"v_rcp_f32 v{GT+e}, v{GT+e}"))
        for e in E: ops.append((4, f"v_mul_f32 v{GT+e}, v{GT+e}, v{a0+e}"))
        for q in range(4): ops.append((4, f"v_cvt_pk_bf16_f32 v{H+4*cb+q}, v{GT+2*q}, v{GT+2*q+1}"))
        ops.append((0, cb))
    budget = cfg.get("gbud", 304); acc = 0; j = 8
    for cost, op in ops:
        if cost and acc + cost > budget * (j - 7) and j <= 14:
            barrier(f, j); j += 1
        acc += cost
        if cost: f(op)
    while j <= 14:
        barrier(f, j); j += 1
    f("s_setprio 2")
    for h in range(7): hwrite(h)
    f("s_setprio 0")
    g2_phase(f, "F")
    f("s_branch L_fin")

    w = c.fork()
    vXPE, vXPO, vQA, vQA2, vZ, vMask = 14, 15, 16, 17, 18, 20
    AACC = 32; ABUF = (96, 132); vHalo = 32
    w("L_A:")
    stamp(w, 1)
    ln_main(w)
    stamp(w, 3)
    barrier(w, 0)
    w(f"""
v_lshrrev_b32 v{vT0}, 5, v{vL}
s_lshl_b32 s{sT0}, s{sA}, 2
s_add_u32 s{sT0}, s{sT0}, s{sROW0}
s_sub_u32 s{sT0}, s{sT0}, 16
v_lshl_add_u32 v{vT0}, v{vT0}, 1, s{sT0}
s_movk_i32 s{sT1}, 896
v_mul_lo_u32 v{vT0}, v{vT0}, s{sT1}
v_and_b32 v{vT1}, 31, v{vL}
v_lshl_add_u32 v{vT0}, v{vT1}, 4, v{vT0}
v_cmp_gt_u32 vcc, 24, v{vT1}
v_add_u32 v{vT2}, 512, v{vT0}
v_mov_b32 v{vT3}, {OOB}
v_cndmask_b32 v{vT2}, v{vT3}, v{vT2}, vcc
v_min_u32 v{vT0}, v{vT3}, v{vT0}
v_min_u32 v{vT2}, v{vT3}, v{vT2}
""")
    w.vmem(f"buffer_load_dwordx4 {vr(vHalo,4)}, v{vT0}, s[{SX}:{SX+3}], 0 offen", "h0")
    w.vmem(f"buffer_load_dwordx4 {vr(vHalo+4,4)}, v{vT2}, s[{SX}:{SX+3}], 0 offen", "h1")
    barrier(w, 1)
    w(f"""
v_lshrrev_b32 v{vT0}, 5, v{vL}
v_bfe_u32 v{vT1}, v{vL}, 2, 3
v_lshl_add_u32 v{vT0}, v{vT0}, 4, v{vT1}
v_mul_u32_u24 v{vT0}, 352, v{vT0}
v_and_b32 v{vT1}, 3, v{vL}
v_lshl_add_u32 v{vT0}, v{vT1}, 3, v{vT0}
s_mul_i32 s{sT0}, s{sHI}, 56
s_add_u32 s{sT0}, s{sT0}, {RING}
v_add_u32 v{vQA}, s{sT0}, v{vT0}
v_add_u32 v{vQA2}, {2*SLOT}, v{vQA}
v_lshrrev_b32 v{vT2}, 4, v{vL}
v_and_b32 v{vT0}, 7, v{vL}
v_xor_b32 v{vT0}, v{vT0}, v{vT2}
v_lshlrev_b32 v{vT0}, 4, v{vT0}
v_lshl_add_u32 v{vT0}, v{vT2}, 7, v{vT0}
v_add_u32 v{vT0}, {HALO}, v{vT0}
v_subrev_u32 v{vT1}, 1024, v{vXE}
s_cmp_eq_u32 s{sRH}, 0
s_cselect_b64 vcc, -1, 0
s_cselect_b32 s{sT0}, 64, 192
v_cndmask_b32 v{vXPE}, v{vT1}, v{vT0}, vcc
v_xor_b32 v{vXPO}, s{sT0}, v{vXPE}
v_cmp_ne_u32 vcc, 0, v{vT2}
s_nop 1
v_cndmask_b32 v{vZ}, 0, -1, vcc
""")
    barrier(w, 2)
    hl = ln_core(w, vHalo, 8, UNP, ["h0", "h1"], 5, pk=False)
    assert next(hl) == "stats"
    barrier(w, 3)
    assert next(hl) == "red"
    barrier(w, 4)
    for _ in hl: pass
    w(f"""
v_lshrrev_b32 v{vT0}, 5, v{vL}
s_lshl_b32 s{sT0}, s{sA}, 1
v_add_u32 v{vT0}, s{sT0}, v{vT0}
v_and_b32 v{vT1}, 7, v{vL}
v_xor_b32 v{vT0}, v{vT0}, v{vT1}
v_lshlrev_b32 v{vT0}, 4, v{vT0}
v_and_b32 v{vT1}, 3, v{vL}
v_lshl_add_u32 v{vT0}, v{vT1}, 7, v{vT0}
v_bfe_u32 v{vT1}, v{vL}, 2, 3
v_mul_u32_u24 v{vT1}, {KP}, v{vT1}
v_add_u32 v{vT0}, v{vT0}, v{vT1}
""")
    w.ds(f"ds_write_b128 v{vT0}, {vr(vHalo,4)} offset:{HALO}", "xw")
    w("s_mov_b32 exec_lo, 0x00ffffff\ns_mov_b32 exec_hi, 0x00ffffff")
    w.ds(f"ds_write_b128 v{vT0}, {vr(vHalo+4,4)} offset:{HALO + 8*KP}", "xw")
    w("s_mov_b64 exec, -1")
    barrier(w, 5)
    w(f"""
v_and_b32 v{vT0}, 15, v{vL}
v_lshrrev_b32 v{vT2}, 4, v{vL}
v_lshlrev_b32 v{vT2}, 2, v{vT2}
v_sub_u32 v{vT0}, v{vT0}, v{vT2}
v_mov_b32 v{vT3}, {f2u(-1e30)}
s_lshr_b32 s{sT0}, s{sRB}, 1
s_or_b32 s{sT0}, s{sT0}, s{sRH}
s_cmp_eq_u32 s{sT0}, 0
s_cselect_b32 s{sT1}, 0, 8
""")
    for jj in range(4):
        if jj == 2: barrier(w, 6)
        w(f"""
v_subrev_u32 v{vT1}, {jj}, v{vT0}
v_add_u32 v{vT2}, 16, v{vT1}
v_cmp_gt_u32 s[40:41], 8, v{vT1}
v_cmp_gt_u32 s[42:43], 8, v{vT2}
v_cmp_gt_u32 vcc, s{sT1}, v{vT2}
v_cndmask_b32 v{vMask+4+jj}, v{vT3}, 0, s[40:41]
v_cndmask_b32 v{vMask+jj}, v{vT3}, 0, s[42:43]
v_cndmask_b32 v{vMask+8+jj}, v{vT3}, 0, vcc
""")
    w(f"s_setprio {cfg.get('aprio',1)}")
    def a_reads(ks):
        B = ABUF[ks % 2]; slot = (7 + ks // 2) % 3; out = []
        xb = vXE if ks % 2 == 0 else vXO
        xp = vXPE if ks % 2 == 0 else vXPO
        out.append((f"ds_read_b128 {vr(B+4,4)}, v{xb} offset:{ks*KP}", f"x{ks}"))
        out.append((f"ds_read_b128 {vr(B+8,4)}, v{xb} offset:{1024 + ks*KP}", f"x{ks}"))
        base = vQA2 if slot == 2 else vQA
        for sec in range(3):
            if sec == 1: out.append((f"ds_read_b128 {vr(B,4)}, v{xp} offset:{ks*KP}", f"xp{ks}"))
            for db in range(2):
                o = (SLOT if slot == 1 else 0) + (ks % 2) * 32 * 352 + sec * 112 + db * 24
                for u in range(2):
                    out.append((f"ds_read_b64_tr_b16 {vr(B+12+4*(2*sec+db)+2*u,2)}, v{base} offset:{o + u*8*352}", f"w{ks}_{sec}{db}"))
        return out
    def a_mfmas(ks):
        B = ABUF[ks % 2]; out = []
        c0 = "0" if ks == 0 else None
        for db in range(2):
            for qb in range(2):
                out.append((lambda db=db, qb=qb: mfma(w, AACC + (2*db+qb)*4, B + 12 + 4*db, B + 4 + 4*qb, c0), [f"x{ks}", f"w{ks}_0{db}"]))
        for db in range(2):
            for kb in range(3):
                out.append((lambda db=db, kb=kb: mfma(w, AACC + 16 + (3*db+kb)*4, B + 20 + 4*db, B + 4*kb, c0), [f"xp{ks}", f"w{ks}_1{db}"]))
        for db in range(2):
            for kb in range(3):
                out.append((lambda db=db, kb=kb: mfma(w, AACC + 40 + (3*db+kb)*4, B + 4*kb, B + 28 + 4*db, c0), [f"w{ks}_2{db}"]))
        return out
    g1_phase(w, 7, a_reads, a_mfmas, cfg.get('pa_', 10), cfg.get('gapa', 3))
    stamp(w, 5)
    QP, KPk, VP, ONES, SS, MX, PP, LL, OO = 96, 104, 116, 128, 132, 148, 152, 160, 32
    w(".p2align 3")
    for qb in range(2):
        for db in range(2):
            s0 = AACC + (2*db+qb)*4
            for h in range(2): w(f"v_cvt_pk_bf16_f32 v{QP+4*qb+2*db+h}, v{s0+2*h}, v{s0+2*h+1}")
        for h in range(2): w(f"v_and_b32 v{QP+4*qb+2+h}, v{vZ}, v{QP+4*qb+2+h}")
    for kb in range(3):
        for db in range(2):
            s0 = AACC + 16 + (3*db+kb)*4
            for h in range(2): w(f"v_cvt_pk_bf16_f32 v{KPk+4*kb+2*db+h}, v{s0+2*h}, v{s0+2*h+1}")
    for q in range(2): w(f"v_mov_b32 v{ONES+q}, 0x3f803f80")
    for qb in range(2):
        for t in range(2):
            m = vMask + 4 if t == 1 else (vMask + 8 if qb == 0 else vMask)
            mfma(w, SS + 8*qb + 4*t, KPk + 4*(qb+t), QP + 4*qb, vr(m, 4))
    for q in range(2, 4): w(f"v_mov_b32 v{ONES+q}, 0x3f803f80")
    for db in range(2):
        for kb in range(3):
            s0 = AACC + 40 + (3*db+kb)*4
            for h in range(2): w(f"v_cvt_pk_bf16_f32 v{VP+6*db+2*kb+h}, v{s0+2*h}, v{s0+2*h+1}")
    for qb in range(2): w(f"v_max3_f32 v{MX+2*qb}, v{SS+8*qb}, v{SS+8*qb+1}, v{SS+8*qb+2}")
    for qb in range(2): w(f"v_max3_f32 v{MX+2*qb+1}, v{SS+8*qb+3}, v{SS+8*qb+4}, v{SS+8*qb+5}")
    for qb in range(2): w(f"v_max3_f32 v{MX+2*qb}, v{MX+2*qb}, v{SS+8*qb+6}, v{SS+8*qb+7}")
    for qb in range(2): w(f"v_max_f32 v{MX+2*qb}, v{MX+2*qb}, v{MX+2*qb+1}")
    for sw in ("16", "32"):
        for qb in range(2): w(f"v_mov_b32 v{MX+2*qb+1}, v{MX+2*qb}")
        w("s_nop 0")
        for qb in range(2):
            w(f"v_permlane{sw}_swap_b32 v{MX+2*qb}, v{MX+2*qb+1}")
        w("s_nop 0")
        for qb in range(2): w(f"v_max_f32 v{MX+2*qb}, v{MX+2*qb}, v{MX+2*qb+1}")
    cs = 28 ** -0.5 * math.log2(math.e)
    w(f"s_mov_b32 s{sT0}, {f2u(cs)}")
    for qb in range(2): w(f"v_mul_f32 v{MX+2*qb}, s{sT0}, v{MX+2*qb}")
    for qb in range(2):
        s0 = SS + 8*qb
        for e in range(8): w(f"v_fma_f32 v{s0+e}, v{s0+e}, s{sT0}, -v{MX+2*qb}")
        for e in range(8): w(f"v_exp_f32 v{s0+e}, v{s0+e}")
        for q in range(4): w(f"v_cvt_pk_bf16_f32 v{PP+4*qb+q}, v{s0+2*q}, v{s0+2*q+1}")
        w("s_nop 1")
        mfma(w, LL + 4*qb, ONES, PP + 4*qb, "0")
        for db in range(2): mfma(w, OO + 8*qb + 4*db, VP + 6*db + 2*qb, PP + 4*qb, "0")
    w(f"""s_lshl_b32 s{sT0}, s{sRH}, 11
s_lshl_b32 s{sT1}, s{sHI}, 12
s_add_u32 s{sT0}, s{sT0}, s{sT1}
v_add_u32 v{vActW}, s{sT0}, v{vL16}""")
    for qb in range(2):
        w(f"v_rcp_f32 v{LL+4*qb}, v{LL+4*qb}\ns_nop 0\nv_and_b32 v{LL+4*qb+1}, v{vZ}, v{LL+4*qb}")
        for db in range(2):
            for e in range(4): w(f"v_mul_f32 v{OO+8*qb+4*db+e}, v{LL+4*qb+db}, v{OO+8*qb+4*db+e}")
        for q in range(4): w(f"v_cvt_pk_bf16_f32 v{PP+4*qb+q}, v{OO+8*qb+2*q}, v{OO+8*qb+2*q+1}")
        w.ds(f"ds_write_b128 v{vActW}, {vr(PP+4*qb,4)} offset:{ACT + 7*4096 + qb*1024}", "ow")
    w("s_setprio 0")
    stamp(w, 6)
    g2_phase(w, "A")
    w("s_branch L_fin")

    l = a.fork()
    vW1a, vW1b, vW2A, vPF, vR0, vR1, vNon, vRP, vFl, vSent, vP1, vP2, vPv = 8, 9, 10, 11, 12, 13, 14, 16, 24, 28, 32, 33, 34
    vPA = 36
    l("L_L:")
    l(f"s_setprio {cfg.get('lprio',3)}")
    l(f"""
s_getpc_b64 s[26:27]
L_pc:
s_lshr_b32 s{sT0}, s2, 3
s_lshl_b32 s{sT0}, s{sT0}, 2
s_add_u32 s{sT0}, s{sT0}, s{sA}
s_lshl_b32 s{sT0}, s{sT0}, 8
s_sub_u32 s26, s26, L_pc - {NAME}_kernel
s_subb_u32 s27, s27, 0
v_and_b32 v{vT1}, 1, v{vL}
v_lshl_add_u32 v{vT1}, v{vT1}, 7, s{sT0}
v_min_u32 v{vT1}, L_codeend - {NAME}_kernel - 4, v{vT1}
""")
    if cfg.get("codepf", True): l.vmem(f"global_load_dword v{vPF}, v{vT1}, s[26:27]", "pf")
    l(f"""
s_or_b32 s{sT3}, s2, s{sW}
s_cmp_lg_u32 s{sT3}, 0
s_cbranch_scc1 L_nolead0
s_memrealtime s[{sN0}:{sN1}]
L_nolead0:
s_and_b32 s{sHI}, s{sRB}, {nsh-1}
s_lshl_b32 s{sT1}, s{sHI}, 2
s_add_u32 s{sRH}, s{sT1}, s{sA}
s_mul_i32 s{sT1}, s{sRH}, {xm}
v_min_u32 v{vT1}, {4*xm-1}, v{vL}
v_lshrrev_b32 v{vT2}, 2, v{vT1}
v_add_u32 v{vT2}, s{sT1}, v{vT2}
v_and_b32 v{vT1}, 3, v{vT1}
v_mul_u32_u24 v{vT2}, 3584, v{vT2}
v_lshl_add_u32 v{vPA}, v{vT1}, 7, v{vT2}
s_mul_i32 s{sW1o}, s{sS}, 448
s_and_b32 s{sROW0}, s{sW1o}, 0xffffff80
v_cmp_le_u32 vcc, 28, v{vL}
v_xor_b32 v{vW1b}, 32, v{vL16}
v_mov_b32 v{vT3}, {3584-448}
v_cndmask_b32 v{vT0}, 0, v{vT3}, vcc
v_add_u32 v{vW1a}, v{vL16}, v{vT0}
v_add_u32 v{vW1b}, v{vW1b}, v{vT0}
s_mul_i32 s{sT1}, s{sA}, {16*3584}
s_add_u32 s{sW1o}, s{sW1o}, s{sT1}
s_mul_i32 s{sM0}, s{sA}, 7168
s_add_u32 s{sM0}, s{sM0}, {RING}
v_mov_b32 v{vPv}, 0
s_waitcnt lgkmcnt(0)
""")
    srd(l, SW1, 12, 448 * 1792 * 2)
    def op_pfa():
        l.vmem(f"buffer_load_dword v{vPF}, v{vPA}, s[{SW1}:{SW1+3}], s{sROW0} offen", "pf")
    def op_init():
        srd(l, SDBG, 22, 256)
        l(f"""
s_cmp_lg_u32 s{sT3}, 0
s_cbranch_scc1 L_nolead1
s_or_b32 s{sN0}, s{sN0}, 1
v_mov_b32 v{vNon}, s{sN0}
v_mov_b32 v{vNon+1}, s{sN1}
s_mov_b64 exec, 1
buffer_store_dwordx2 {vr(vNon,2)}, v{vPv}, s[{SDBG}:{SDBG+3}], 0 offen sc1
s_mov_b64 exec, -1
L_nolead1:
""")
        srd(l, SWQ, 6, 448 * 1344 * 2); srd(l, SW2, 16, 1792 * 448 * 2); srd(l, SWO, 8, 448 * 448 * 2); srd(l, SWS, 24, 0x10000000)
        if STAMP: l("v_writelane_b32 v0, s98, 62\nv_writelane_b32 v0, s100, 0")
        for i, d in ((0, vR0), (1, vR1)):
            l(f"""
v_add_u32 v{vT0}, {64*i}, v{vL}
v_mul_u32_u24 v{vT2}, 2979, v{vT0}
v_lshrrev_b32 v{vT2}, 16, v{vT2}
v_mul_u32_u24 v{vT3}, 22, v{vT2}
v_sub_u32 v{vT0}, v{vT0}, v{vT3}
v_min_u32 v{vT0}, 20, v{vT0}
v_mul_u32_u24 v{vT3}, 37, v{vT0}
v_lshrrev_b32 v{vT3}, 8, v{vT3}
v_mul_u32_u24 v{vT3}, {896-112}, v{vT3}
v_lshl_add_u32 v{vT0}, v{vT0}, 4, v{vT3}
v_mul_u32_u24 v{vT2}, 2688, v{vT2}
v_add_u32 v{d}, v{vT0}, v{vT2}
""")
    def op_rpl():
        l(f"""
s_and_b32 s{sT2}, s{sA}, 1
s_lshl_b32 s{sT2}, s{sT2}, 3
s_lshr_b32 s{sT1}, s{sA}, 1
s_lshl_b32 s{sT1}, s{sT1}, 2
s_add_u32 s{sT2}, s{sT2}, s{sT1}
s_lshl_b32 s{sT1}, s{sRB}, 4
s_add_u32 s{sT2}, s{sT2}, s{sT1}
s_mul_i32 s{sT2}, s{sT2}, 2688
s_mul_i32 s{sT1}, s{sS}, 112
s_add_u32 s{sT2}, s{sT2}, s{sT1}
""")
        l.vmem(f"buffer_load_dwordx4 {vr(vRP,4)}, v{vR0}, s[{SWQ}:{SWQ+3}], s{sT2} offen", "rp")
        l("s_mov_b64 exec, 0xffffff")
        l.vmem(f"buffer_load_dwordx4 {vr(vRP+4,4)}, v{vR1}, s[{SWQ}:{SWQ+3}], s{sT2} offen", "rp")
        l("s_mov_b64 exec, -1")
    def op_pfb():
        l(f"""
s_mul_i32 s{sT1}, s{sRH}, {10*xm}
s_add_u32 s{sT1}, s{sT1}, 512
v_min_u32 v{vT1}, {10*xm-1}, v{vL}
v_add_u32 v{vT1}, s{sT1}, v{vT1}
v_lshrrev_b32 v{vT2}, 2, v{vT1}
v_and_b32 v{vT1}, 3, v{vT1}
v_mul_u32_u24 v{vT2}, 3584, v{vT2}
v_lshl_add_u32 v{vT1}, v{vT1}, 7, v{vT2}
""")
        l.vmem(f"buffer_load_dword v{vPF}, v{vT1}, s[{SW1}:{SW1+3}], s{sROW0} offen", "pf")
    def dma_w1(st):
        slot = st % 3
        l("s_mov_b32 exec_hi, 0xffffff")
        for i in range(8):
            l(f"s_add_u32 m0, s{sM0}, {slot*SLOT + 896*i}\ns_add_u32 s{sT0}, s{sW1o}, {(st*64 + 2*i)*3584}")
            l.vmem(f"buffer_load_dwordx4 v{vW1a if i < 4 else vW1b}, s[{SW1}:{SW1+3}], s{sT0} offen lds", f"st{st}")
        l("s_mov_b32 exec_hi, -1")
    def dma_wq(st):
        if cfg.get("nodma"): return
        slot = st % 3; q = st - 7
        for i in range(6):
            if i % 4 == 0:
                l(f"s_add_u32 m0, s{sM1}, {slot*SLOT + 1024*i}\ns_add_u32 s{sT0}, s{sWQo}, {q*22528 + 1024*i}")
            if i == 5: l("s_mov_b32 exec_hi, 0")
            l.vmem(f"buffer_load_dwordx4 v{vL16}, s[{SWS}:{SWS+3}], s{sT0} offen offset:{1024*(i%4)} {cfg.get('wqld','')} lds", f"st{st}")
        l("s_mov_b32 exec_hi, -1")
    def dma_w2(st):
        if cfg.get("nodma"): return
        slot = st % 3; cc = st - 14
        l(f"s_lshl_b32 s{sT2}, s{sCH+cc}, 7\ns_add_u32 s{sT0}, s{sT2}, s{sW2o}")
        for i in range(7):
            l(f"s_add_u32 m0, s{sM0}, {slot*SLOT + 1024*i}")
            l(f"s_add_u32 s{sT0}, s{sT0}, {8*896}" if i else "s_nop 0")
            l.vmem(f"buffer_load_dwordx4 v{vW2A}, s[{SW2}:{SW2+3}], s{sT0} offen lds", f"st{st}")
    def dma_wo(cc):
        if cfg.get("nodma"): return
        l(f"s_lshl_b32 s{sT2}, s{sCH+cc}, 7")
        for i in range(2):
            l(f"s_add_u32 m0, s{20+i}, {WOR + (cc%4)*7168}\ns_add_u32 s{sT0}, s{22+i}, s{sT2}")
            l.vmem(f"buffer_load_dwordx4 v{vW2A}, s[{SWO}:{SWO+3}], s{sT0} offen lds", f"wo{cc}")
    def op_pf2():
        per = 49 * xm; pw = (per + 3) // 4
        l(f"""
s_mul_i32 s{sT2}, s{sHI}, {per}
s_mul_i32 s{sT1}, s{sA}, {pw}
v_min_u32 v{vT1}, {pw-1}, v{vL}
v_add_u32 v{vT1}, s{sT1}, v{vT1}
v_min_u32 v{vT1}, {per-1}, v{vT1}
v_add_lshl_u32 v{vT1}, v{vT1}, s{sT2}, 7
s_mul_i32 s{sT1}, s{sS}, {224*896}
""")
        l.vmem(f"buffer_load_dword v{vPF}, v{vT1}, s[{SW2}:{SW2+3}], s{sT1} offen", "pf2")
        per = 13 * xm; pw = (per + 3) // 4
        l(f"""
s_mul_i32 s{sT2}, s{sHI}, {per}
s_mul_i32 s{sT1}, s{sA}, {pw}
v_min_u32 v{vT1}, {pw-1}, v{vL}
v_add_u32 v{vT1}, s{sT1}, v{vT1}
v_min_u32 v{vT1}, {per-1}, v{vT1}
v_add_u32 v{vT1}, s{sT2}, v{vT1}
v_min_u32 v{vT1}, 391, v{vT1}
v_lshlrev_b32 v{vT1}, 7, v{vT1}
s_mul_i32 s{sT1}, s{sS}, {56*896}
""")
        l.vmem(f"buffer_load_dword v{vPF}, v{vT1}, s[{SWO}:{SWO+3}], s{sT1} offen", "pf2")
    def op_rps():
        l(f"""
s_mul_i32 s{sT1}, s{sS}, {448*352}
s_add_u32 s{sT1}, s{sT1}, {WS_WQ}
s_lshl_b32 s{sT0}, s{sRB}, 2
s_add_u32 s{sT0}, s{sT0}, s{sA}
s_mul_i32 s{sT0}, s{sT0}, {4*352}
s_add_u32 s{sT0}, s{sT0}, s{sT1}
s_cmp_ge_u32 s{sRB}, 28
s_cselect_b32 s{sT0}, {OOB}, s{sT0}
""")
        l.need(vm=["rp"])
        l.vmem(f"buffer_store_dwordx4 {vr(vRP,4)}, v{vL16}, s[{SWS}:{SWS+3}], s{sT0} offen sc1", "rps")
        l("s_mov_b64 exec, 0xffffff")
        l.vmem(f"buffer_store_dwordx4 {vr(vRP+4,4)}, v{vL16}, s[{SWS}:{SWS+3}], s{sT0} offen offset:1024 sc1", "rps")
        l("s_mov_b64 exec, -1")
        l.vmem(f"buffer_load_dwordx2 {vr(vNon,2)}, v{vPv}, s[{SDBG}:{SDBG+3}], 0 offen sc1", "non")
    def flag1():
        again, got = lab("na"), lab("ng")
        l.need(vm=["non"])
        l(f"""s_mov_b32 s{sPoll}, 0
{again}:
v_readfirstlane_b32 s{sN0}, v{vNon}
v_readfirstlane_b32 s{sN1}, v{vNon+1}
s_add_u32 s{sPoll}, s{sPoll}, 1
s_cmp_gt_u32 s{sPoll}, 200000
s_cbranch_scc1 {got}
s_cmp_lg_u32 s{sN0}, 0
s_cbranch_scc1 {got}
buffer_load_dwordx2 {vr(vNon,2)}, v{vPv}, s[{SDBG}:{SDBG+3}], 0 offen sc1
s_waitcnt vmcnt(0)
s_branch {again}
{got}:
v_mov_b32 v{vFl}, v{vNon}
v_mov_b32 v{vFl+1}, v{vNon+1}
v_mov_b32 v{vFl+2}, v{vNon}
v_mov_b32 v{vFl+3}, v{vNon+1}
s_lshl_b32 s{sT0}, s{sS}, 5
s_add_u32 s{sT0}, s{sT0}, s{sRB}
s_lshl_b32 s{sT0}, s{sT0}, 2
s_add_u32 s{sT0}, s{sT0}, s{sA}
s_lshl_b32 s{sT0}, s{sT0}, 5
s_add_u32 s{sT0}, s{sT0}, {WS_F1}
s_mov_b64 exec, 3""")
        l.vmem(f"buffer_store_dwordx4 {vr(vFl,4)}, v{vL16}, s[{SWS}:{SWS+3}], s{sT0} offen sc1", "fl")
        l("s_mov_b64 exec, -1")
    def op_tab():
        chunks(l)
        l(f"""
v_lshrrev_b32 v{vT0}, 3, v{vL}
v_lshrrev_b32 v{vT1}, 4, v{vL}
v_lshlrev_b32 v{vT1}, 1, v{vT1}
v_and_b32 v{vT2}, 7, v{vL}
v_xor_b32 v{vT1}, v{vT1}, v{vT2}
v_mul_u32_u24 v{vT0}, 896, v{vT0}
v_lshl_add_u32 v{vW2A}, v{vT1}, 4, v{vT0}
s_mul_i32 s{sW2o}, s{sS}, {224*896}
s_mul_i32 s{sT0}, s{sA}, {56*896}
s_add_u32 s{sW2o}, s{sW2o}, s{sT0}
s_mul_i32 s{sWOo}, s{sS}, {56*896}
s_mul_i32 s{sWQo}, s{sS}, {448*352}
s_add_u32 s{sWQo}, s{sWQo}, {WS_WQ}
s_mul_i32 s{sT0}, s{sA}, {16*352}
s_add_u32 s{sWQo}, s{sWQo}, s{sT0}
s_add_u32 s{sM1}, s{sT0}, {RING}
s_lshl_b32 s{sT0}, s{sA}, 1
s_add_u32 s{sT1}, s{sT0}, 1
s_min_u32 s{sT1}, s{sT1}, 6
s_lshl_b32 s20, s{sT0}, 10
s_lshl_b32 s21, s{sT1}, 10
s_mul_i32 s22, s{sT0}, {8*896}
s_mul_i32 s23, s{sT1}, {8*896}
s_add_u32 s22, s22, s{sWOo}
s_add_u32 s23, s23, s{sWOo}
v_min_u32 v{vP1}, 27, v{vL}
v_lshlrev_b32 v{vP1}, 5, v{vP1}
v_min_u32 v{vP2}, 6, v{vL}
v_lshlrev_b32 v{vP2}, 7, v{vP2}
v_mov_b32 v{vSent}, -1
v_mov_b32 v{vSent+1}, -1
v_mov_b32 v{vSent+2}, -1
v_mov_b32 v{vSent+3}, -1
s_mul_i32 s{sPart}, s{sRB}, {7*65536}
s_lshl_b32 s{sT0}, s{sS}, 16
s_add_u32 s{sPart}, s{sPart}, s{sT0}
s_lshl_b32 s{sT0}, s{sA}, 11
s_add_u32 s{sPart}, s{sPart}, s{sT0}
s_cmp_eq_u32 s{sS}, 7
s_cselect_b32 s{sPart}, {OOB}, s{sPart}
s_lshl_b32 s24, s{sS}, 5
s_mul_i32 s{sT0}, s{sA}, 7
s_add_u32 s24, s24, s{sT0}
s_lshl_b32 s24, s24, 7
s_add_u32 s24, s24, {WS_F1}
s_lshl_b32 s25, s{sRB}, 10
s_lshl_b32 s{sT0}, s{sA}, 5
s_add_u32 s25, s25, s{sT0}
s_add_u32 s25, s25, {WS_F2}
""")
    OPS = dict(pfa=op_pfa, init=op_init, rpl=op_rpl, pfb=op_pfb, pf2=op_pf2, rps=op_rps, fl1=flag1, tab=op_tab,
               s0=lambda: dma_w1(0), s1=lambda: dma_w1(1), s2=lambda: dma_w1(2),
               bx=lambda: l("s_barrier") if cfg.get("bx", True) else None)
    ORDER = cfg.get("order", "pfa init bx s0 rpl pfb s1 tab rps pf2 s2 B0 fl1").split()
    post = {}; cur = None; k = 1
    for o in ORDER:
        if o[0] == "B": cur = int(o[1:]); continue
        if cur is None:
            OPS[o]()
            if o in ("bx", "s0", "s1", "s2", "rps"): stamp(l, k); k += 1
        else: post.setdefault(cur, []).append(o)
    l("s_branch L_L2"); l1text = l.text(); l.L = []; l("L_L2:")
    def poll_issue(vaddr, sbase, tag):
        l.vmem(f"buffer_load_dwordx2 {vr(vPv,2)}, v{vaddr}, s[{SWS}:{SWS+3}], s{sbase} offen sc1", tag)
    def poll_check(vaddr, sbase, tag, idx):
        again, got = lab("pa"), lab("pg")
        l.need(vm=[tag])
        l(f"""s_mov_b32 s{sPoll}, 0
{again}:
v_cmp_ne_u64 vcc, s[{sN0}:{sN1}], {vr(vPv,2)}
s_add_u32 s{sPoll}, s{sPoll}, 1
s_cmp_gt_u32 s{sPoll}, 200000
s_cbranch_scc1 {got}
s_cbranch_vccz {got}
buffer_load_dwordx2 {vr(vPv,2)}, v{vaddr}, s[{SWS}:{SWS+3}], s{sbase} offen sc1
s_waitcnt vmcnt(0)
s_branch {again}
{got}:""")
        if STAMP: l(f"v_writelane_b32 v0, s{sPoll}, {idx}")
    def clear(n):
        if cfg.get("noclr"): return
        pp, i = divmod(n, 2)
        l(f"s_cmp_le_u32 s{sS}, {pp}\ns_cselect_b32 s{sT1}, 8192, 0\ns_add_u32 s{sT1}, s{sT1}, s{sPart}\ns_add_u32 s{sT1}, s{sT1}, {pp*8192}")
        l.vmem(f"buffer_store_dwordx4 {vr(vSent,4)}, v{vL16}, s[{SWS}:{SWS+3}], s{sT1} offen offset:{1024*i} sc1", "clr")
    CLS = cfg.get("cls", [0, 1, 1, 1, 1, 1, 2, 1, 2, 1, 2, 1]); assert sum(CLS) == 14
    ncl = 0
    for j in range(22):
        need = []
        if j <= 13: need = [f"st{j}"]
        elif j >= 15: need = [f"st{j-1}", f"wo{j-15}"]
        if j == 5: poll_check(vP1, 24, "p1", 60)
        if j == 16: poll_check(vP2, 25, "p2", 59)
        barrier(l, j, vm=need)
        if j == 4: poll_issue(vP1, 24, "p1")
        if j == 15: poll_issue(vP2, 25, "p2")
        if 1 <= j <= 4: dma_w1(j + 2)
        elif 5 <= j <= 11: dma_wq(j + 2)
        elif j in (12, 13): dma_w2(j + 2); dma_wo(j - 12)
        elif j == 14: dma_wo(2); dma_w2(16); dma_wo(3)
        elif 16 <= j <= 19:
            dma_w2(j + 1)
            if j <= 18: dma_wo(j - 12)
        for o in post.get(j, []): OPS[o]()
        if j < len(CLS):
            for _ in range(CLS[j]): clear(ncl); ncl += 1
        if j == len(CLS) + cfg.get("f2d", 0):
            l.need(vm=["clr"])
            l(f"s_lshl_b32 s{sT0}, s{sS}, 7\ns_add_u32 s{sT0}, s{sT0}, s25\ns_mov_b64 exec, 3")
            l.vmem(f"buffer_store_dwordx4 {vr(vFl,4)}, v{vL16}, s[{SWS}:{SWS+3}], s{sT0} offen sc1", "fl")
            l("s_mov_b64 exec, -1")
    l.need(drain=True)
    if cfg.get("spin"):
        mode, T = cfg["spin"]
        l(f"""s_add_u32 s40, {'s94' if mode == 'lead' else 's100'}, {T}
L_spin:
s_sleep 2
s_memrealtime s[42:43]
s_waitcnt lgkmcnt(0)
s_sub_u32 s44, s42, s40
s_cmp_lt_i32 s44, 0
s_cbranch_scc1 L_spin""")
    l("L_fin:")
    if STAMP:
        l(f"""s_waitcnt vmcnt(0)
s_memrealtime s[96:97]
{SOP} s[98:99]
s_waitcnt lgkmcnt(0)
v_writelane_b32 v0, s96, 63
v_writelane_b32 v0, s98, 41
s_mul_i32 s{sT0}, s2, 12
s_add_u32 s{sT0}, s{sT0}, s{sW}
s_lshl_b32 s{sT0}, s{sT0}, 8
s_add_u32 s{sT0}, s{sT0}, {WS_STAMP}
v_lshlrev_b32 v{vT0}, 2, v{vL}
buffer_store_dword v0, v{vT0}, s[{SWS}:{SWS+3}], s{sT0} offen
""")
    l("L_end:\ns_endpgm\nL_codeend:")

    K1 = NAME + "_kernel"
    txt = f"""; @launch grid=(256,1,1) block=(768,1,1) lds={LDS_BYTES}
.amdgcn_target "amdgcn-amd-amdhsa--gfx950"
.text
.globl {K1}
.p2align 8
.type {K1},@function
{K1}:
{a.text()}{c1text}{l1text}{c.text()}{f.text()}{w.text()}{l.text()}
.section .rodata,"a"
.p2align 6
.amdhsa_kernel {K1}
  .amdhsa_next_free_vgpr 168
  .amdhsa_next_free_sgpr 102
  .amdhsa_accum_offset 168
  .amdhsa_group_segment_fixed_size 0
  .amdhsa_kernarg_size 88
  .amdhsa_user_sgpr_count 2
  .amdhsa_user_sgpr_kernarg_segment_ptr 1
  .amdhsa_system_sgpr_workgroup_id_x 1
.end_amdhsa_kernel
"""
    return txt

if __name__ == "__main__":
    import json
    cfg = json.loads(sys.argv[2]) if len(sys.argv) > 2 else {}
    open(sys.argv[1], "w").write(gen(cfg))
```

```python
import sys, math, struct
NAME = "parallel_sum__sliding_local_dilated__dense_activation_gelu__prompt"

class Asm:
    def __init__(self):
        self.L = []; self.vm = []; self.lg = []; self.smem = False; self.pend = []; self.nst = 0
    def __call__(self, s):
        for l in s.strip("\n").split("\n"):
            l = l.strip()
            if l: self.L.append(l if l.endswith(":") else "  " + l)
    def fork(self):
        b = Asm(); b.vm = list(self.vm); b.lg = list(self.lg); b.smem = self.smem; return b
    def cut(self):
        t = "\n".join(self.L) + "\n"; self.L = []; return t
    def vmem(self, s, tag): self(s); self.vm.append(tag)
    def ds(self, s, tag): self(s); self.lg.append(tag)
    def _cnt(self, q, tags):
        last = -1
        for i, t in enumerate(q):
            if t in tags: last = i
        return None if last < 0 else len(q) - 1 - last
    def need(self, vm=(), lg=(), drain=False):
        parts = []
        n = self._cnt(self.vm, set(vm))
        if n is not None:
            n = min(n, 62); parts.append(f"vmcnt({n})"); self.vm = self.vm[len(self.vm) - n:] if n else []
        n = self._cnt(self.lg, set(lg))
        if drain: n = 0 if (self.lg or self.smem) else None
        if n is not None:
            n = min(n, 14)
            parts.append(f"lgkmcnt({n})"); self.lg = self.lg[len(self.lg) - n:] if n else []
        if parts: self("s_waitcnt " + " ".join(parts))
        if drain:
            self.smem = False
            for sg, idx in self.pend: self(f"v_writelane_b32 v0, s{sg}, {idx}")
            self.pend = []

def vr(a, n=1): return f"v{a}" if n == 1 else f"v[{a}:{a+n-1}]"
def sq(a): return f"s[{a}:{a+3}]"
def f2u(x): return "0x%08x" % struct.unpack("<I", struct.pack("<f", x))[0]

KP = 4608
HALO = 4096
ACT = 57344
WOR = 28672
def actoff(t): return (t - 7) * 4096 if t >= 7 else 8192 + t * 4096
RING = 65536
SLOT = 28672
BIAS = RING + 3 * SLOT
XRES = BIAS + 1024
LDS_BYTES = XRES + 8192 + 256
W2LOC = [0, RING + 2 * SLOT, RING + SLOT, 0, RING, RING + 2 * SLOT, RING + SLOT]
WOLOC = [WOR, WOR + 7168, WOR + 2 * 7168, WOR + 3 * 7168, WOR, ACT, WOR + 7168]
WS_WQ = 0x1000000
WS_F1 = 0x1800000
WS_F2 = 0x1810000
WS_FE = 0x1820000
WS_STAMP = 0x8000000
OOB = 0x7ff00000
SPIN = 200000
SX, SWS, SOUT, SW1, SB1, SWQ, SDBG, SW2, SWO, SB2 = 28, 32, 36, 36, 40, 40, 44, 48, 52, 56
sIN, sLO, sFE, sDum = 48, 55, 3, 63
sW, sS, sRB, sA, sRH, sHI, sROW0, sT0, sT1, sT2, sT3 = 68, 69, 70, 71, 72, 73, 74, 75, 76, 77, 78
sW1o, sWQo, sW2o, sJJ, sM0, sPart, sC2, sCH = 79, 80, 81, 82, 83, 84, 85, 86
sCW, sN0, sN1, sPoll, sM1, sLW = 93, 94, 95, 96, 97, 26

def gen(cfg):
    G = cfg.get
    STAMP = G("stamp", False); SOP = G("stampop", "s_memtime")
    xm = G("xmap", 4); nsh = 32 // xm
    uid = [0]
    def lab(n): uid[0] += 1; return f"L_{n}{uid[0]}"
    def stamp(b, idx):
        if not STAMP or (G("lite") and idx not in (3, 10, 17, 24, 25, 26, 31)) or getattr(b, "nostamp", False): return
        sg = (64, 66, 98, 100)[b.nst % 4]; b.nst += 1
        assert len(b.pend) < 4
        b(f"{SOP} s[{sg}:{sg+1}]"); b.smem = True; b.pend.append((sg, idx))
    def mark(b, name):
        if G("spin") and G("spin")[0] == name: b("s_memrealtime s[100:101]"); b.smem = True
    def barrier(b, j, vm=()):
        pb0 = G("prebar")
        if pb0 is not None and pb0 <= j < pb0 + 8: stamp(b, 42 + j - pb0)
        b.need(vm=vm, drain=True)
        if pb0 is not None and pb0 <= j < pb0 + 8: stamp(b, 50 + j - pb0)
        b("s_barrier")
        stamp(b, 10 + j)
    BH = 22
    def srd(b, d, p, n):
        b(f"s_mov_b32 s{d}, s{p}\ns_and_b32 s{d+1}, s{p+1}, 0xffff\ns_mov_b32 s{d+2}, {n}\ns_mov_b32 s{d+3}, 0x20000")
    def mfma(b, d, x, y, c=None):
        b(f"v_mfma_f32_16x16x32_bf16 {vr(d,4)}, {vr(x,4)}, {vr(y,4)}, {vr(d,4) if c is None else c}")
    def chunks(b):
        for i in range(7):
            b(f"s_add_u32 s{sCH+i}, s{sS if i == 0 else sCH+i-1}, 1")
            b(f"s_cmp_ge_u32 s{sCH+i}, 7\ns_cselect_b32 s{sT0}, 7, 0\ns_sub_u32 s{sCH+i}, s{sCH+i}, s{sT0}")
    SLOW = []
    def get_nonce(b, vt, cp):
        again, got = lab("na"), lab("ng")
        b(f"s_buffer_load_dword s{sN0}, {sq(SDBG)}, {64*cp}"); b.smem = True
        yield
        b.need(drain=True)
        b(f"s_mov_b32 s{sPoll}, 0\ns_cmp_eq_u32 s{sN0}, 0\ns_cbranch_scc1 {again}\n{got}:\ns_mov_b32 s{sN1}, s{sN0}")
        if STAMP: b(f"v_writelane_b32 v0, s{sPoll}, 58")
        x = Asm()
        x(f"""{again}:
v_mov_b32 v{vt}, 0
s_add_u32 s{sPoll}, s{sPoll}, 1
buffer_load_dword v{vt}, v{vt}, {sq(SDBG)}, 0 offen sc1
s_cmp_gt_u32 s{sPoll}, {SPIN}
s_waitcnt vmcnt(0)
v_readfirstlane_b32 s{sN0}, v{vt}
s_cbranch_scc1 {got}
s_cmp_eq_u32 s{sN0}, 0
s_cbranch_scc1 {again}
s_branch {got}""")
        SLOW.append(x.cut())
        yield
    def slow_poll(retry, got, vt, addr, sbase):
        x = Asm()
        x(f"""{retry}:
{addr}
s_add_u32 s{sPoll}, s{sPoll}, 1
buffer_load_dword v{vt}, v{vt}, {sq(SWS)}, s{sbase} offen sc1
s_cmp_gt_u32 s{sPoll}, {SPIN}
s_waitcnt vmcnt(0)
v_cmp_ne_u32 vcc, s{sN0}, v{vt}
s_cbranch_scc1 {got}
s_nop 1
s_cbranch_vccnz {retry}
s_branch {got}""")
        SLOW.append(x.cut())
    def first_stamps(b):
        if STAMP: b("v_writelane_b32 v0, s98, 62\nv_writelane_b32 v0, s100, 0")

    vL, vL16, vActW, vT0, vT1, vT2, vT3 = 1, 2, 3, 4, 5, 6, 7
    vXE, vXO, vG2W, vG2W2, vG2O0, vG2O2 = 8, 9, 10, 11, 12, 13
    a = Asm()
    RAW, UNP = 136, 80
    lb = xm.bit_length() - 1
    a(f"""
s_load_dwordx16 s[4:19], s[0:1], 0
s_load_dwordx8 s[20:27], s[0:1], 56
s_cmpk_ge_u32 s2, 256
s_cbranch_scc1 L_end
s_getpc_b64 s[28:29]
L_pc:
s_lshr_b32 s3, s2, 3
v_lshrrev_b32 v{vT0}, 6, v0
v_mad_u32_u24 v{vT1}, s3, 12, v{vT0}
v_readfirstlane_b32 s{sW}, v{vT0}
v_lshlrev_b32 v{vT1}, 7, v{vT1}
v_min_u32 v{vT1}, L_codeend - L_pc - 4, v{vT1}
""")
    if G("codepf", True): a.vmem(f"global_load_dword v23, v{vT1}, s[28:29]", "pf")
    mark(a, "own")
    if STAMP: a(f"s_memrealtime s[98:99]\n{SOP} s[100:101]")
    if xm == 1: a(f"s_mov_b32 s{sRB}, s3")
    else: a(f"s_bfe_u32 s{sT0}, s2, {(lb << 16) | (3 - lb)}\ns_lshl_b32 s{sT0}, s{sT0}, {5-lb}\ns_lshr_b32 s{sT1}, s3, {lb}\ns_add_u32 s{sRB}, s{sT0}, s{sT1}")
    a(f"""
s_lshr_b32 s{sT0}, s{sRB}, 1
s_lshl_b32 s{sT0}, s{sT0}, 7
s_and_b32 s{sT1}, s{sRB}, 1
s_add_u32 s{sROW0}, s{sT0}, s{sT1}
s_cmp_lt_u32 s{sW}, 4
s_cbranch_scc1 L_L
""")
    T_entry = a.cut()
    def common2(b):
        b(f"""
v_and_b32 v{vL}, 63, v0
v_lshlrev_b32 v{vL16}, 4, v{vL}
s_and_b32 s{sA}, s{sW}, 3
""")
        if xm == 1: b(f"s_and_b32 s{sS}, s2, 7")
        else: b(f"s_and_b32 s{sT0}, s2, {8//xm - 1}\ns_lshl_b32 s{sT0}, s{sT0}, {lb}\ns_and_b32 s{sT2}, s3, {xm-1}\ns_add_u32 s{sS}, s{sT0}, s{sT2}")
        if STAMP: b("v_mov_b32 v0, 0")
    c = a.fork()
    c(f"v_lshrrev_b32 v{vT2}, 3, v0")
    if xm > 1 and G("xrot", True):
        c(f"s_lshl_b32 s{sT2}, s3, {6-lb}\ns_add_u32 s{sT2}, s{sT2}, 32\nv_add_u32 v{vT2}, s{sT2}, v{vT2}")
    else: c(f"v_add_u32 v{vT2}, 32, v{vT2}")
    c(f"""
v_and_b32 v{vT2}, 63, v{vT2}
v_lshl_add_u32 v{vT0}, v{vT2}, 1, s{sROW0}
v_mul_u32_u24 v{vT0}, 896, v{vT0}
v_and_b32 v{vT1}, 7, v0
v_lshl_add_u32 v{vXO}, v{vT1}, 4, v{vT0}
s_setprio {G('cprio', 1)}
s_waitcnt lgkmcnt(0)
""")
    for t in range(7):
        c.vmem(f"global_load_dwordx4 {vr(RAW+4*t,4)}, v{vXO}, s[4:5] offset:{128*t} {G('ntx','')}", f"x{t}")
    c("L_x256:")
    common2(c)
    first_stamps(c)
    c(f"""
s_sub_u32 s{sCW}, s{sW}, 4
s_and_b32 s{sRH}, s{sW}, 1
s_bfe_u32 s{sHI}, s{sW}, 0x10001
""")
    if G("spf", True):
        c(f"""s_lshl_b32 s{sT0}, s{sCW}, 5
s_add_u32 s{sT0}, s{sT0}, s{sRB}
s_mul_i32 s{sT0}, s{sT0}, 3584
s_mul_i32 s{sT1}, s{sS}, 448
s_add_u32 s{sT0}, s{sT0}, s{sT1}""")
        for i in range(7): c(f"s_load_dword s{sDum}, s[12:13], s{sT0} offset:{64*i}")
        c(f"""s_min_u32 s{sT2}, s{sCW}, 6
s_lshl_b32 s{sT2}, s{sT2}, 6
s_add_u32 s{sT1}, s{sT1}, s{sT2}
s_load_dword s{sDum}, s[14:15], s{sT1}
s_cmp_lt_u32 s{sCW}, 6
s_cselect_b32 s{sT2}, {256*3584}, 0
s_add_u32 s{sT0}, s{sT0}, s{sT2}""")
        for i in range(7): c(f"s_load_dword s{sDum}, s[12:13], s{sT0} offset:{64*i}")
    c(f"""
v_lshrrev_b32 v{vXE}, 4, v{vT2}
v_and_b32 v{vT1}, 15, v{vT2}
v_and_b32 v{vT0}, 3, v{vL}
v_bfe_u32 v{vT2}, v{vL}, 2, 1
v_mul_u32_u24 v{vActW}, 12, v{vT2}
v_or_b32 v{vActW}, v{vActW}, v{vT0}
v_xor_b32 v{vT1}, v{vT1}, v{vActW}
v_lshlrev_b32 v{vT1}, 4, v{vT1}
v_lshl_add_u32 v{vT1}, v{vT0}, 8, v{vT1}
v_mul_u32_u24 v{vT2}, {KP}, v{vT2}
v_lshl_add_u32 v{vT1}, v{vXE}, 10, v{vT1}
v_add_u32 v{vActW}, v{vT1}, v{vT2}
""")
    c(f"s_cmp_ge_u32 s{sW}, 8\ns_cbranch_scc1 L_A2")
    T_c1 = c.cut()

    def halo_loads(b, HR):
        b(f"""
v_lshrrev_b32 v{vT0}, 5, v{vL}
s_lshl_b32 s{sT0}, s{sA}, 2
s_add_u32 s{sT0}, s{sT0}, s{sROW0}
s_sub_u32 s{sT0}, s{sT0}, 16
v_lshl_add_u32 v{vT0}, v{vT0}, 1, s{sT0}
s_movk_i32 s{sT3}, 896
v_mul_lo_u32 v{vT0}, v{vT0}, s{sT3}
v_and_b32 v{vT1}, 31, v{vL}
v_lshl_add_u32 v{vT0}, v{vT1}, 4, v{vT0}
v_cmp_gt_u32 vcc, 24, v{vT1}
v_add_u32 v{vT2}, 512, v{vT0}
v_mov_b32 v{vT3}, {OOB}
v_cndmask_b32 v{vT2}, v{vT3}, v{vT2}, vcc
v_min_u32 v{vT0}, v{vT3}, v{vT0}
v_min_u32 v{vT2}, v{vT3}, v{vT2}
""")
        b.vmem(f"buffer_load_dwordx4 {vr(HR[0],4)}, v{vT0}, {sq(SX)}, 0 offen", "h0")
        b.vmem(f"buffer_load_dwordx4 {vr(HR[1],4)}, v{vT2}, {sq(SX)}, 0 offen", "h1")
    def xbases(b):
        b(f"""
v_lshrrev_b32 v{vT2}, 4, v{vL}
v_and_b32 v{vT3}, 15, v{vL}
v_xor_b32 v{vT0}, v{vT3}, v{vT2}
v_lshlrev_b32 v{vT1}, 8, v{vT2}
s_lshl_b32 s{sT0}, s{sRH}, 11
v_lshl_add_u32 v{vXE}, v{vT0}, 4, v{vT1}
v_add_u32 v{vXE}, s{sT0}, v{vXE}
v_xor_b32 v{vXO}, {12*16}, v{vXE}
""")
    def setup_s(b):
        srd(b, SWS, 26, 0x10000000); srd(b, SOUT, 22, 2048 * 896)
        chunks(b)
        b(f"""
s_mul_i32 s{sPart}, s{sRB}, {7*65536}
s_lshl_b32 s{sT2}, s{sCW}, 10
s_add_u32 s{sPart}, s{sPart}, s{sT2}
s_lshl_b32 s{sT2}, s{sS}, 13
s_add_u32 s{sM1}, s{sPart}, s{sT2}
s_lshr_b32 s{sT1}, s{sCW}, 1
s_lshl_b32 s{sT1}, s{sT1}, 5
s_lshl_b32 s{sT2}, s{sS}, 7
s_add_u32 s{sM0}, s{sT1}, s{sT2}
s_lshl_b32 s{sT0}, s{sS}, 16
s_add_u32 s{sT0}, s{sT0}, s{sPart}
s_cmp_eq_u32 s{sS}, 7
s_cselect_b32 s{sT0}, {OOB}, s{sT0}
s_add_u32 s{sIN+6}, s{sT0}, {7*8192}
s_movk_i32 s{sLO}, 0x3f80
s_lshl_b32 s{sFE}, s{sRB}, 3
s_add_u32 s{sFE}, s{sFE}, s{sCW}
s_lshl_b32 s{sFE}, s{sFE}, 7
s_add_u32 s{sFE}, s{sFE}, {WS_FE}
""")
        for k in range(6):
            b(f"s_lshl_b32 s{sT1}, s{sCH+5-k}, 13\ns_add_u32 s{sIN+k}, s{sT0}, s{sT1}")
    def setup_v1(b):
        b(f"""
v_lshrrev_b32 v{vT0}, 2, v{vL}
v_bfe_u32 v{vT1}, v{vL}, 3, 2
s_lshr_b32 s{sT2}, s{sCW}, 1
v_xor_b32 v{vT1}, s{sT2}, v{vT1}
v_lshlrev_b32 v{vT1}, 5, v{vT1}
v_lshl_add_u32 v{vT1}, v{vT0}, 7, v{vT1}
v_and_b32 v{vT0}, 3, v{vL}
v_lshl_add_u32 v{vG2O0}, v{vT0}, 3, v{vT1}
v_add_u32 v{vG2W}, {RING}, v{vG2O0}
""")
    def act_base(b):
        b(f"s_lshl_b32 s{sT0}, s{sRH}, 11\ns_add_u32 s{sT0}, s{sT0}, {ACT}\nv_add_u32 v{vActW}, s{sT0}, v{vL16}")
    def setup_v2(b):
        b(f"v_add_u32 v{vG2W2}, {RING+2*SLOT}, v{vG2O0}\nv_xor_b32 v{vG2O2}, 64, v{vG2O0}")

    def ln_core(b, raw, nraw, unp, tags, nl, pk=True):
        S, Q = vT0, vT2
        rw = (lambda d: raw + d) if isinstance(raw, int) else (lambda d: raw[d // 4] + d % 4)
        for d in range(nraw):
            if d % 4 == 0: b.need(vm=[tags[d // 4]])
            u = unp + 2 * d
            b(f"v_lshlrev_b32 v{u}, 16, v{rw(d)}\nv_and_b32 v{u+1}, 0xffff0000, v{rw(d)}")
            if not pk:
                if d == 0: b(f"v_mov_b32 v{S}, v{u}\nv_mov_b32 v{S+1}, v{u+1}\nv_mul_f32 v{Q}, v{u}, v{u}\nv_mul_f32 v{Q+1}, v{u+1}, v{u+1}")
                else: b(f"v_add_f32 v{S}, v{S}, v{u}\nv_add_f32 v{S+1}, v{S+1}, v{u+1}\nv_fmac_f32 v{Q}, v{u}, v{u}\nv_fmac_f32 v{Q+1}, v{u+1}, v{u+1}")
            elif d == 0: b(f"v_pk_mul_f32 {vr(Q,2)}, {vr(u,2)}, {vr(u,2)}")
            elif d == 1: b(f"v_pk_add_f32 {vr(S,2)}, {vr(u-2,2)}, {vr(u,2)}\nv_pk_fma_f32 {vr(Q,2)}, {vr(u,2)}, {vr(u,2)}, {vr(Q,2)}")
            else: b(f"v_pk_add_f32 {vr(S,2)}, {vr(S,2)}, {vr(u,2)}\nv_pk_fma_f32 {vr(Q,2)}, {vr(u,2)}, {vr(u,2)}, {vr(Q,2)}")
        yield "stats"
        b(f"v_add_f32 v{S}, v{S}, v{S+1}\nv_add_f32 v{Q}, v{Q}, v{Q+1}\ns_nop 0")
        for st in ["quad_perm:[1,0,3,2]", "quad_perm:[2,3,0,1]", "row_half_mirror", "row_mirror"][:min(nl, 4)]:
            b(f"v_add_f32_dpp v{S}, v{S}, v{S} {st} row_mask:0xf bank_mask:0xf\nv_add_f32_dpp v{Q}, v{Q}, v{Q} {st} row_mask:0xf bank_mask:0xf\ns_nop 0")
        if nl >= 5:
            b(f"""v_mov_b32 v{S+1}, v{S}
v_mov_b32 v{Q+1}, v{Q}
s_nop 1
v_permlane16_swap_b32 v{S}, v{S+1}
v_permlane16_swap_b32 v{Q}, v{Q+1}
s_nop 1
v_add_f32 v{S}, v{S}, v{S+1}
v_add_f32 v{Q}, v{Q}, v{Q+1}""")
        b(f"""v_mul_f32 v{S}, {f2u(1/448)}, v{S}
v_mul_f32 v{Q}, {f2u(1/448)}, v{Q}
v_fma_f32 v{Q}, -v{S}, v{S}, v{Q}
v_max_f32 v{Q}, 0, v{Q}
v_add_f32 v{Q}, {f2u(1e-5)}, v{Q}
v_rsq_f32 v{Q}, v{Q}
s_nop 0
v_mul_f32 v{S}, v{S}, v{Q}
.p2align 3""")
        yield "red"
        for d in range(nraw):
            u = unp + 2 * d
            if not pk: b(f"v_fma_f32 v{u}, v{u}, v{Q}, -v{S}\nv_fma_f32 v{u+1}, v{u+1}, v{Q}, -v{S}")
            else: b(f"v_pk_fma_f32 {vr(u,2)}, {vr(u,2)}, {vr(Q,2)}, {vr(S,2)} op_sel_hi:[1,0,0] neg_lo:[0,0,1] neg_hi:[0,0,1]")
            if d >= 1: b(f"v_cvt_pk_bf16_f32 v{rw(d-1)}, v{u-2}, v{u-1}")
            yield d - 1
        u = unp + 2 * (nraw - 1)
        b(f"v_cvt_pk_bf16_f32 v{rw(nraw-1)}, v{u}, v{u+1}")
        yield nraw - 1
    def ln_main(b, hook=None):
        for d in ln_core(b, RAW, 28, UNP, [f"x{t}" for t in range(7)], 3):
            if d == "stats":
                stamp(b, 2)
                if hook: hook()
            if not G("lnbatch") and isinstance(d, int) and d >= 0 and d % 4 == 3:
                b.ds(f"ds_write_b128 v{vActW}, {vr(RAW+d-3,4)} offset:{2*KP*(d//4)}", "xw")
        if G("lnbatch"):
            for t in range(7): b.ds(f"ds_write_b128 v{vActW}, {vr(RAW+4*t,4)} offset:{2*KP*t}", "xw")

    def g1_phase(b, st0, reads, mfmas, P, GAP, tail=None):
        M = [m for ks in range(14) for m in mfmas(ks)]
        per = len(M) // 14
        sched = {}
        for j in range(7):
            R0, R1 = reads(2 * j), reads(2 * j + 1)
            b0 = 2 * per * j - P; span = 2 * per - GAP; R = R0 + R1
            for i, r in enumerate(R):
                pos = b0 + (i * span) // len(R)
                if i >= len(R0): pos = max(pos, 2 * per * j - 1)
                sched.setdefault(max(pos, -1), []).append(r)
        barrier(b, st0)
        for r in sched.get(-1, []): b.ds(*r)
        for m, (fn, tg) in enumerate(M):
            if (m + P) % (2 * per) == 0: barrier(b, st0 + (m + P) // (2 * per))
            b.need(lg=tg); fn()
            for r in sched.get(m, []): b.ds(*r)
            if tail: tail(m - len(M))

    RA = G("runahead", 2)
    ES = G("es", [[0, 3, "4,6", "6,0", "6,5"]])
    NE = ES[-1][1] if ES else 0
    def g2_phase(b, role):
        XR, PK, AC, WR, INB, ACTR = 14, 20, 28, 44, 68, 96
        NR = 6
        P2, GAP2, LEAD = G("p2", 8), G("gap2", 2), G("lead2", 8)
        ra = RA if role == "F" else 0
        steps = [(cc, t) for cc in range(ra) for t in range(7)] + [(cc, t) for cc in range(ra) for t in (7, 8)] + \
                [(cc, t) for cc in range(ra, 7) for t in range(9)]
        N = len(steps); at = {s: n for n, s in enumerate(steps)}
        bpos = {}
        if role == "F":
            bpos[BH] = -1
            bpos[15] = 14 * ra - G("hold15", 6) if ra else 0
        else: bpos[15] = -1
        for cc in range(1, 7):
            if ra == 2 and cc <= 2: bpos[15 + cc] = 2 * at[(2, 0)]
            else: bpos[15 + cc] = max(2 * at[(cc, 0)] - (P2 if cc > ra or ra == 0 else 2), bpos[14 + cc] + 1)
        R = []
        for n, (cc, t) in enumerate(steps):
            w = WR + 4 * (n % NR)
            en = bpos[BH] if (cc < ra and t < 7) else (bpos[15] if cc < ra else bpos[15 + cc])
            war = 2 * (n - NR) + 1
            rel = bpos.get(16 + cc, 10 ** 6) - GAP2
            if cc == 0:
                ena = bpos[BH] if (role == "F" and t < 7) else bpos[15]
                for pb in range(2):
                    R.append((f"ds_read_b128 {vr(ACTR+4*(9*pb+t),4)}, v{vActW} offset:{actoff(t) + pb*1024}", f"w{n}", ena, min(2 * n - LEAD, rel)))
            for u in range(2):
                if t < 7:
                    loc = W2LOC[cc]
                    base, o = (vG2O0, 0) if loc == 0 else ((vG2W2, 0) if loc == RING + 2 * SLOT else (vG2W, loc - RING))
                    o += (96 + 112 * u if t == 6 else 112 * (t // 3) + 32 * (t % 3) + 16 * u) * 128
                else:
                    hd = t - 7
                    base = vG2O0 if (14*hd + 6*u) % 4 == 0 else vG2O2
                    o = WOLOC[cc] + (28*hd + 12*u) * 128
                R.append((f"ds_read_b64_tr_b16 {vr(w+2*u,2)}, v{base} offset:{o}", f"w{n}", max(en, war), min(2 * n - LEAD, rel)))
        pos = [0] * len(R); nxt = 10 ** 6
        for i in reversed(range(len(R))):
            nxt = max(min(R[i][3], nxt - 1), R[i][2], -1); pos[i] = nxt
        sched = {}; prev = -1
        for i, r in enumerate(R):
            p = max(pos[i], r[2], prev, -1)
            n = int(r[1][1:])
            burst = ra == 2 and p == bpos[16] and n < at[(2, 0)] + 4
            while not burst and len(sched.get(p, [])) >= (2 if p >= 0 else G("init2", 10)) and p + 1 < 2 * n - 1 and p + 1 < bpos.get(16 + steps[n][0], 10 ** 6): p += 1
            assert p < 2 * n or p == bpos[15] or burst, (r, p)
            sched.setdefault(p, []).append(r); prev = p
        bars = {}
        for j, p in bpos.items(): bars.setdefault(p, []).append(j)
        def epi(cc):
            ac = AC + 8 * (cc % 2); pk = PK + 4 * (cc % 2)
            b(f"s_lshl_b32 s{sT0}, s{sCH+cc}, 16\ns_add_u32 s{sT0}, s{sT0}, s{sM1}")
            for q in range(4): b(f"v_cvt_pk_bf16_f32 v{pk+q}, v{ac+2*q}, v{ac+2*q+1}")
            if not G("nopst"): b.vmem(f"buffer_store_dwordx4 {vr(pk,4)}, v{vL16}, {sq(SWS)}, s{sT0} offen sc1", f"p{cc}")
        def inbox_load(i):
            if not G("noinb"): b.vmem(f"buffer_load_dwordx4 {vr(INB+4*i,4)}, v{vL16}, {sq(SWS)}, s{sIN+i} offen sc1", f"in{i}")
        def flag_store(st):
            hi = ES[st][1]
            b.need(vm=[f"p{hi-1}"])
            b(f"v_mov_b32 v{vT3}, s{sN0}\ns_lshl_b32 s{sT0}, s{sS}, 2\ns_add_u32 s{sT0}, s{sT0}, s{sFE}\ns_add_u32 s{sT0}, s{sT0}, {st*0x8000}\ns_mov_b64 exec, 1")
            b.vmem(f"buffer_store_dword v{vT3}, v{vL16}, {sq(SWS)}, s{sT0} offen sc1", "fe")
            b("s_mov_b64 exec, -1")
        def flag_poll(st):
            b(f"s_buffer_load_dwordx8 s[{4+8*st}:{11+8*st}], {sq(SWS)}, s{sFE} offset:{st*0x8000}")
        def flag_check(st):
            again, got = lab("ea"), lab("eg")
            q = 4 + 8 * st
            b.smem = True; b.need(drain=True)
            b(f"s_mov_b32 s{sPoll}, 0\ns_add_u32 s{sT3}, s{sFE}, {st*0x8000}")
            for i in range(0, 6, 2): b(f"s_cmp_eq_u64 s[{q+i}:{q+i+1}], s[{sN0}:{sN1}]\ns_cbranch_scc0 {again}")
            b(f"s_cmp_eq_u32 s{q+6}, s{sN0}\ns_cbranch_scc0 {again}\n{got}:")
            if STAMP: b(f"v_writelane_b32 v0, s{sPoll}, 59")
            slow_poll(again, got, vT3, f"v_min_u32 v{vT3}, 6, v{vL}\nv_lshlrev_b32 v{vT3}, 2, v{vT3}", sT3)
            for i in range(*ES[st][:2]): inbox_load(i)
        EV = {}
        for st, (lo, hi, fa, pa, ca) in enumerate(ES):
            EV.setdefault(fa, []).append(lambda st=st: flag_store(st))
            EV.setdefault(pa, []).append(lambda st=st: flag_poll(st))
            EV.setdefault(ca, []).append(lambda st=st: flag_check(st))
        for k, v in G("ins", {"end": list(range(NE, 7))}).items():
            EV.setdefault(k, []).append(lambda v=v: [inbox_load(i) for i in v])
        if role == "A": act_base(b)
        for j in bars.get(-1, []): barrier(b, j)
        for r in sched.get(-1, []): b.ds(*r[:2])
        epi_at = {}
        for cc in range(2 if ra == 2 else 0, 6):
            n = at[(cc, 8)] + 3
            if cc + 2 < 7: n = min(n, at[(cc + 2, 0)] - 1)
            epi_at.setdefault(n, []).append((cc, n - at[(cc, 8)]))
        for n in range(N):
            cc, t = steps[n]
            ac = AC + 8 * (cc % 2); w = WR + 4 * (n % NR)
            for pb in range(2):
                m = 2 * n + pb
                early = []
                for j in bars.get(m, []):
                    barrier(b, j)
                    if ra == 2 and j == 16:
                        early = list(sched.get(m, []))
                        for r in early: b.ds(*r[:2])
                        epi(0); epi(1)
                    elif not early:
                        early = [r for r in sched.get(m, []) if int(r[1][1:]) == n]
                        for r in early: b.ds(*r[:2])
                b.need(lg=[f"w{n}"])
                mfma(b, ac + 4 * pb, w, ACTR + 4 * (9 * pb + t), "0" if (t == 0 and cc < 6) else None)
                for r in sched.get(m, []):
                    if r not in early: b.ds(*r[:2])
            for e, dist in epi_at.get(n, []):
                if dist < 3: b(f"s_nop {5 - 2 * dist}")
                epi(e)
            if (cc, t) == (3, 4):
                b(f"""v_and_b32 v{vT0}, 15, v{vL}
v_bfe_u32 v{vT1}, v{vL}, 1, 2
s_lshr_b32 s{sT1}, s{sCW}, 1
v_xor_b32 v{vT1}, s{sT1}, v{vT1}
v_lshlrev_b32 v{vT1}, 5, v{vT1}
v_lshl_add_u32 v{vT1}, v{vT0}, 7, v{vT1}
v_lshrrev_b32 v{vT2}, 4, v{vL}
s_lshl_b32 s{sT0}, s{sRH}, 12
s_add_u32 s{sT0}, s{sT0}, {XRES}
v_lshlrev_b32 v{vT2}, 3, v{vT2}
v_add3_u32 v{vT1}, v{vT1}, v{vT2}, s{sT0}
s_lshl_b32 s{sT1}, s{sT1}, 5
s_add_u32 s{sT1}, s{sT1}, {XRES + 8192}
v_add_u32 v{vT2}, s{sT1}, v{vT2}""")
                b.ds(f"ds_read_b64 {vr(XR,2)}, v{vT1}", "xr")
                b.ds(f"ds_read_b64 {vr(XR+2,2)}, v{vT1} offset:2048", "xr")
                b.ds(f"ds_read_b64 {vr(XR+4,2)}, v{vT2}", "xr")
            if (cc, t) == (4, 4):
                b(f"""s_lshl_b32 s{sT0}, s{sRH}, 6
s_add_u32 s{sT0}, s{sT0}, s{sROW0}
v_lshl_add_u32 v{vT0}, v{vT0}, 1, s{sT0}
v_bfe_u32 v{vT1}, v{vL}, 4, 1
v_lshl_add_u32 v{vT0}, v{vT1}, 5, v{vT0}
v_mul_u32_u24 v{vT0}, 896, v{vT0}
v_lshrrev_b32 v{vT2}, 5, v{vL}
v_lshl_add_u32 v{vXE}, v{vT2}, 4, v{vT0}
v_mov_b32 v{vXO}, 0x3f800000""")
            if not G("noinb"):
                for fn in EV.get(f"{cc},{t}", []): fn()
            if (cc, t) == (5, 5):
                b.need(lg=["xr"])
                for d in range(2):
                    b(f"v_lshlrev_b32 v{vT0}, 16, v{XR+4+d}\nv_and_b32 v{vT1}, 0xffff0000, v{XR+4+d}")
                    for pb in range(2):
                        q = AC + 4 * pb + 2 * d
                        b(f"v_dot2_f32_bf16 v{q}, v{XR+2*pb+d}, s{sLO}, v{vT0}\nv_dot2_f32_bf16 v{q+1}, v{XR+2*pb+d}, v{vXO}, v{vT1}")
        own, done = lab("own"), lab("done")
        if STAMP: b.need(drain=True); b(f"{SOP} s[64:65]")
        b(f"s_cmp_lg_u32 s{sS}, 7\ns_cbranch_scc1 {own}\ns_nop 5")
        sv = list(b.vm); epi(6); b.vm = sv
        b(f"s_branch {done}\n{own}:")
        if not G("noinb"):
            for fn in EV.get("pre", []) + EV.get("end", []): fn()
        b(f"s_mov_b32 s{sPoll}, 0")
        def accum(slots):
            for i in slots:
                b.need(vm=[f"in{i}"])
                for d in range(4):
                    b(f"v_dot2_f32_bf16 v{AC+2*d}, v{INB+4*i+d}, s{sLO}, v{AC+2*d}\nv_dot2_f32_bf16 v{AC+2*d+1}, v{INB+4*i+d}, v{vXO}, v{AC+2*d+1}")
        def group(chk, rel):
            top, ok = lab("g"), lab("ok")
            b.need(vm=[f"in{i}" for i in chk])
            b(f"{top}:")
            regs = [INB + 4 * i + d for i in chk for d in range(4)]
            b(f"v_max3_u32 v{vT0}, v{regs[0]}, v{regs[1]}, v{regs[2]}\nv_max3_u32 v{vT1}, v{regs[3]}, v{regs[4]}, v{regs[5]}")
            k = 6
            while k < len(regs):
                tt = vT0 + (k // 2) % 2
                b(f"v_max3_u32 v{tt}, v{tt}, v{regs[k]}, v{regs[k+1]}"); k += 2
            b(f"""v_max_u32 v{vT0}, v{vT0}, v{vT1}
v_cmp_eq_u32 vcc, -1, v{vT0}
s_add_u32 s{sPoll}, s{sPoll}, 1
s_cmp_gt_u32 s{sPoll}, {SPIN}
s_cbranch_vccz {ok}
s_cbranch_scc1 {ok}
s_waitcnt vmcnt(0)""")
            for i in rel:
                r0 = INB + 4 * i
                b(f"""v_max3_u32 v{vT0}, v{r0}, v{r0+1}, v{r0+2}
v_max_u32 v{vT0}, v{vT0}, v{r0+3}
v_cmp_eq_u32 vcc, -1, v{vT0}
s_nop 0
s_mov_b64 exec, vcc
buffer_load_dwordx4 {vr(r0,4)}, v{vL16}, {sq(SWS)}, s{sIN+i} offen sc1
s_mov_b64 exec, -1""")
            b(f"s_waitcnt vmcnt(0)\ns_branch {top}\n{ok}:")
            accum(chk)
        if not G("noinb"):
            b("s_nop 4")
            accum(range(NE))
            if STAMP: b(f"{SOP} s[66:67]")
            group(list(range(NE, 7)), range(NE, 7))
        if STAMP: b(f"{SOP} s[98:99]")
        b("s_nop 7" if G("noinb") else "s_nop 1")
        for q in range(4): b(f"v_cvt_pk_bf16_f32 v{PK+q}, v{AC+2*q}, v{AC+2*q+1}")
        b(f"s_nop 1\nv_permlane16_swap_b32 v{PK}, v{PK+2}\nv_permlane16_swap_b32 v{PK+1}, v{PK+3}\ns_nop 0")
        b(f"buffer_store_dwordx4 {vr(PK,4)}, v{vXE}, {sq(SOUT)}, s{sM0} offen {G('ost','')}")
        if STAMP: b(f"s_waitcnt lgkmcnt(0)\nv_writelane_b32 v0, s66, 39\nv_writelane_b32 v0, s98, 40\nv_writelane_b32 v0, s{sPoll}, 61")
        b(f"{done}:")
        if STAMP: b(f"s_waitcnt lgkmcnt(0)\nv_writelane_b32 v0, s64, 38\ns_branch L_fin")
        else: b("s_endpgm")

    f = c.fork()
    vWA, vWB, vWA2, vWB2, vC1, vBi = 14, 15, 16, 17, 18, 19
    FACC = 24; FBUF = (80, 116)
    srd(f, SB1, 14, 1792 * 2); srd(f, SDBG, 24, 256)
    setup_s(f); setup_v1(f); setup_v2(f)
    f(f"""s_mul_i32 s{sT3}, s{sS}, 448
s_mul_i32 s{sT1}, s{sHI}, 224
s_add_u32 s{sT3}, s{sT3}, s{sT1}
s_lshl_b32 s{sT2}, s{sA}, 8
s_add_u32 s{sT2}, s{sT2}, {BIAS}
s_mov_b32 m0, s{sT2}""")
    f(f"""
v_lshrrev_b32 v{vT2}, 4, v{vL}
v_lshlrev_b32 v{vT0}, 3, v{vT2}
v_add_u32 v{vBi}, s{sT2}, v{vT0}
v_bfe_u32 v{vT1}, v{vL}, 2, 2
v_add_u32 v{vT0}, v{vT0}, v{vT1}
v_mul_u32_u24 v{vT0}, 448, v{vT0}
v_and_b32 v{vT1}, 3, v{vL}
v_lshl_add_u32 v{vT0}, v{vT1}, 3, v{vT0}
s_add_u32 s{sT1}, s{sT1}, {RING}
v_add_u32 v{vT0}, s{sT1}, v{vT0}
v_and_b32 v{vT1}, 1, v{vT2}
s_lshl_b32 s{sT2}, s{sHI}, 6
s_sub_u32 s{sT2}, 32, s{sT2}
v_mul_lo_u32 v{vT1}, v{vT1}, s{sT2}
v_add_u32 v{vWA}, v{vT0}, v{vT1}
v_sub_u32 v{vWB}, v{vT0}, v{vT1}
v_add_u32 v{vWA2}, {2*SLOT}, v{vWA}
v_add_u32 v{vWB2}, {2*SLOT}, v{vWB}
v_mov_b32 v{vC1}, {f2u(-2.3022081981)}
s_mov_b32 s{sC2}, {f2u(-2.3022081981*0.044715)}
""")
    xbases(f)
    stamp(f, 1)
    def bias_dma():
        f("s_mov_b64 exec, 0x3fff")
        f.vmem(f"buffer_load_dwordx4 v{vL16}, {sq(SB1)}, s{sT3} offen lds", "bias")
        f("s_mov_b64 exec, -1")
    ln_main(f, bias_dma)
    stamp(f, 3)
    f("s_setprio 0")
    f.need(vm=["bias"])
    for cb in range(7): f.ds(f"ds_read_b64 {vr(FACC+8*cb+6,2)}, v{vBi} offset:{32*cb}", "bias")
    act_base(f)
    f.smem = True; f.need(drain=True)
    for cb in range(7):
        d = FACC + 8 * cb
        f(f"""v_lshlrev_b32 v{d}, 16, v{d+6}
v_and_b32 v{d+1}, 0xffff0000, v{d+6}
v_lshlrev_b32 v{d+2}, 16, v{d+7}
v_and_b32 v{d+3}, 0xffff0000, v{d+7}""")
    f("s_setprio 2")
    def f_reads(ks):
        B = FBUF[ks % 2]; slot = (ks // 2) % 3; out = []
        xb = vXE if ks % 2 == 0 else vXO
        for pb in range(2):
            out.append((f"ds_read_b128 {vr(B+4*pb,4)}, v{xb} offset:{pb*1024 + ks*KP}", f"x{ks}"))
        for cb in range(7):
            base = (vWA if cb % 2 == 0 else vWB) + (2 if slot == 2 else 0)
            o = (SLOT if slot == 1 else 0) + (ks % 2) * 14336 + cb * 32
            for u in range(2):
                out.append((f"ds_read_b64_tr_b16 {vr(B+8+4*cb+2*u,2)}, v{base} offset:{o + u*1792}", f"w{ks}_{cb}"))
        return out
    def f_mfmas(ks):
        B = FBUF[ks % 2]; out = []
        for cb in range(7):
            for pb in ((1, 0) if ks == 0 else (0, 1)):
                cin = vr(FACC + 8*cb, 4) if ks == 0 else None
                out.append((lambda cb=cb, pb=pb, cin=cin: mfma(f, FACC + 8*cb + 4*pb, B + 8 + 4*cb, B + 4*pb, cin), [f"x{ks}", f"w{ks}_{cb}"]))
        return out
    g1_phase(f, 0, f_reads, f_mfmas, G("pF", 10), G("gapF", 4))
    f(f"s_setprio {G('gprio', 0)}")
    H, GT = 80, 108
    f(f"""s_lshl_b32 s{sT1}, s{sHI}, 3
s_mul_i32 s{sT2}, s{sHI}, {3*4096}
v_add_u32 v{vWA}, s{sT1}, v{vActW}
v_add_u32 v{vWB}, s{sT2}, v{vActW}""")
    ops = []
    for cb in range(7):
        a0 = FACC + 8 * cb; E = range(8) if not G("nogelu") else range(0)
        for e in E: ops.append((4, f"v_mul_f32 v{GT+e}, v{a0+e}, v{a0+e}"))
        for e in E: ops.append((4, f"v_fma_f32 v{GT+e}, v{GT+e}, s{sC2}, v{vC1}"))
        for e in E: ops.append((4, f"v_mul_f32 v{GT+e}, v{GT+e}, v{a0+e}"))
        for e in E: ops.append((8, f"v_exp_f32 v{GT+e}, v{GT+e}"))
        for e in E: ops.append((4, f"v_add_f32 v{GT+e}, 1.0, v{GT+e}"))
        for e in E: ops.append((8, f"v_rcp_f32 v{GT+e}, v{GT+e}"))
        for e in E: ops.append((4, f"v_mul_f32 v{GT+e}, v{GT+e}, v{a0+e}"))
        for q in range(4):
            d = H + 24 + q if cb == 6 else H + 8 * (cb // 2) + 4 * (q // 2) + 2 * (cb % 2) + q % 2
            ops.append((4, f"v_cvt_pk_bf16_f32 v{d}, v{GT+2*q}, v{GT+2*q+1}"))
    sl = []; gf = get_nonce(f, vT0, 2)
    bud = G("gbud", [230, 316, 316, 316, 316, 317, 317]); acc = 0; j = 8; lim = bud[0]
    for k, (cost, op) in enumerate(ops):
        if acc + cost > lim and j <= 14:
            barrier(f, j); j += 1
            if j in (10, 11): next(gf)
            lim += bud[j - 8] if j <= 14 else 10 ** 6
        acc += cost; f(op)
        if sl and k % 4 == 3: f(sl.pop(0))
    while j <= 14:
        barrier(f, j); j += 1
    f("s_setprio 3")
    for p in range(3):
        for pb in range(2): f.ds(f"ds_write_b128 v{vWB}, {vr(H+8*p+4*pb,4)} offset:{actoff(p) + pb*1024}", "hw")
    f.ds(f"ds_write2st64_b64 v{vWA}, {vr(H+24,2)}, {vr(H+26,2)} offset0:{actoff(6)//512} offset1:{(actoff(6) + 1024)//512}", "hw")
    f(f"s_setprio {G('f2prio', 1)}")
    g2_phase(f, "F")
    T_f2 = f.cut()

    w = c.fork()
    vXPE, vXPO, vQA, vQA2, vZ, vMask, vPM = 14, 15, 16, 17, 18, 20, (11, 13)
    AACC = 32; ABUF = (96, 132); vHalo = 32
    w("L_A2:")
    srd(w, SX, 4, 2048 * 896)
    stamp(w, 1)
    ln_main(w)
    stamp(w, 3)
    HR = (vHalo, vHalo + 4)
    halo_loads(w, HR)
    w("s_setprio 0")
    barrier(w, 0)
    srd(w, SDBG, 24, 256)
    setup_s(w)
    barrier(w, 1)
    hl = ln_core(w, HR, 8, UNP, ["h0", "h1"], 5, pk=False)
    assert next(hl) == "stats"
    barrier(w, 2)
    gn = get_nonce(w, 19, 1); next(gn)
    for _ in hl: pass
    barrier(w, 3)
    next(gn)
    w(f"""
s_lshl_b32 s{sT3}, s{sS}, 5
s_mul_i32 s{sT0}, s{sA}, 7
s_add_u32 s{sT3}, s{sT3}, s{sT0}
s_lshl_b32 s{sT3}, s{sT3}, 7
s_add_u32 s{sT3}, s{sT3}, {WS_F1}
""")
    PQ = [4, 8, 12, 16, 20, 24, 56]
    def p1_issue():
        for i, q in enumerate(PQ): w(f"s_buffer_load_dwordx4 {sq(q)}, {sq(SWS)}, s{sT3} offset:{128*i}")
    w(f"""v_lshrrev_b32 v{vT0}, 5, v{vL}
s_lshl_b32 s{sT0}, s{sA}, 1
v_add_u32 v{vT0}, s{sT0}, v{vT0}
v_and_b32 v{vT1}, 7, v{vL}
v_xor_b32 v{vT0}, v{vT0}, v{vT1}
v_lshlrev_b32 v{vT0}, 4, v{vT0}
v_and_b32 v{vT1}, 3, v{vL}
v_lshl_add_u32 v{vT0}, v{vT1}, 7, v{vT0}
v_bfe_u32 v{vT1}, v{vL}, 2, 3
v_mul_u32_u24 v{vT1}, {KP}, v{vT1}
v_add_u32 v{vActW}, v{vT0}, v{vT1}
""")
    w(f"s_setprio {G('hwprio', 0)}")
    w(f"ds_write_b128 v{vActW}, {vr(HR[0],4)} offset:{HALO}")
    w("s_mov_b32 exec_lo, 0x00ffffff\ns_mov_b32 exec_hi, 0x00ffffff")
    w(f"ds_write_b128 v{vActW}, {vr(HR[1],4)} offset:{HALO + 8*KP}")
    w("s_mov_b64 exec, -1\ns_setprio 0")
    if not G("p1late"): p1_issue()
    barrier(w, 4)
    if G("p1late"): p1_issue()
    xbases(w)
    w.smem = True
    chk, retry, got = lab("pc"), lab("pr"), lab("pg")
    w.need(drain=True)
    w(f"s_mov_b32 s{sPoll}, 0\n{chk}:")
    for q in PQ:
        for h in (0, 2): w(f"s_cmp_eq_u64 s[{q+h}:{q+h+1}], s[{sN0}:{sN1}]\ns_cbranch_scc0 {retry}")
    w(f"{got}:")
    if STAMP: w(f"v_writelane_b32 v0, s{sPoll}, 60")
    slow_poll(retry, got, 19, f"v_min_u32 v19, 27, v{vL}\nv_lshrrev_b32 v18, 2, v19\nv_and_b32 v19, 3, v19\nv_lshlrev_b32 v19, 2, v19\nv_lshl_add_u32 v19, v18, 7, v19", sT3)
    barrier(w, 5)
    w(f"""
v_lshrrev_b32 v{vT0}, 5, v{vL}
v_bfe_u32 v{vT1}, v{vL}, 2, 3
v_lshl_add_u32 v{vT0}, v{vT0}, 4, v{vT1}
v_mul_u32_u24 v{vT0}, 352, v{vT0}
v_and_b32 v{vT1}, 3, v{vL}
v_lshl_add_u32 v{vT0}, v{vT1}, 3, v{vT0}
s_mul_i32 s{sT0}, s{sHI}, 56
s_add_u32 s{sT0}, s{sT0}, {RING}
v_add_u32 v{vQA}, s{sT0}, v{vT0}
v_add_u32 v{vQA2}, {2*SLOT}, v{vQA}
v_lshrrev_b32 v{vT2}, 4, v{vL}
v_and_b32 v{vT0}, 7, v{vL}
v_xor_b32 v{vT0}, v{vT0}, v{vT2}
v_lshlrev_b32 v{vT0}, 4, v{vT0}
v_lshl_add_u32 v{vT0}, v{vT2}, 7, v{vT0}
v_add_u32 v{vT0}, {HALO}, v{vT0}
v_subrev_u32 v{vT1}, 1024, v{vXE}
s_cmp_eq_u32 s{sRH}, 0
s_cselect_b64 vcc, -1, 0
s_cselect_b32 s{sT0}, 64, 192
v_cndmask_b32 v{vXPE}, v{vT1}, v{vT0}, vcc
v_xor_b32 v{vXPO}, s{sT0}, v{vXPE}
v_cmp_ne_u32 vcc, 0, v{vT2}
s_lshl_b32 s{sT0}, s{sRH}, 11
s_lshl_b32 s{sT1}, s{sHI}, 12
v_cndmask_b32 v{vZ}, 0, -1, vcc
s_add_u32 s{sT0}, s{sT0}, s{sT1}
v_add_u32 v{vActW}, s{sT0}, v{vL16}
""")
    setup_v1(w)
    barrier(w, 6)
    w(f"""
v_and_b32 v{vT0}, 15, v{vL}
v_lshrrev_b32 v{vT2}, 4, v{vL}
v_lshlrev_b32 v{vT2}, 2, v{vT2}
v_sub_u32 v{vT0}, v{vT0}, v{vT2}
v_mov_b32 v{vT3}, {f2u(-1e30)}
v_mov_b32 v19, 0xffff
s_lshr_b32 s{sT0}, s{sRB}, 1
s_or_b32 s{sT0}, s{sT0}, s{sRH}
s_cmp_eq_u32 s{sT0}, 0
s_cselect_b32 s{sT1}, 0, 8
s_mov_b32 s{sC2}, {f2u(28 ** -0.5 * math.log2(math.e))}
""")
    for jj in range(4):
        w(f"""
v_subrev_u32 v{vT1}, {jj}, v{vT0}
v_add_u32 v{vT2}, 16, v{vT1}
v_cmp_gt_u32 s[4:5], 8, v{vT1}
v_cmp_gt_u32 s[6:7], 8, v{vT2}
v_cmp_gt_u32 vcc, s{sT1}, v{vT2}
v_cndmask_b32 v{vMask+4+jj}, v{vT3}, 0, s[4:5]
v_cndmask_b32 v{vMask+jj}, v{vT3}, 0, s[6:7]
v_cndmask_b32 v{vMask+8+jj}, v{vT3}, 0, vcc
""")
        if jj % 2 == 0: w(f"v_cndmask_b32 v{vPM[jj//2]}, 0, v19, s[4:5]")
        else: w(f"v_cndmask_b32 v{vT1}, 0, v19, s[4:5]\nv_lshl_or_b32 v{vPM[jj//2]}, v{vT1}, 16, v{vPM[jj//2]}")
    w(f"s_setprio {G('aprio',2)}")
    def a_reads(ks):
        B = ABUF[ks % 2]; slot = (7 + ks // 2) % 3; out = []
        xb = vXE if ks % 2 == 0 else vXO
        xp = vXPE if ks % 2 == 0 else vXPO
        out.append((f"ds_read_b128 {vr(B+4,4)}, v{xb} offset:{ks*KP}", f"x{ks}"))
        out.append((f"ds_read_b128 {vr(B+8,4)}, v{xb} offset:{1024 + ks*KP}", f"x{ks}"))
        base = vQA2 if slot == 2 else vQA
        for sec in range(3):
            if sec == 1: out.append((f"ds_read_b128 {vr(B,4)}, v{xp} offset:{ks*KP}", f"xp{ks}"))
            for db in range(2):
                o = (SLOT if slot == 1 else 0) + (ks % 2) * 32 * 352 + sec * 112 + db * 24
                for u in range(2):
                    out.append((f"ds_read_b64_tr_b16 {vr(B+12+4*(2*sec+db)+2*u,2)}, v{base} offset:{o + u*8*352}", f"w{ks}_{sec}{db}"))
        return out
    def a_mfmas(ks):
        B = ABUF[ks % 2]; out = []
        c0 = "0" if ks == 0 else None
        for db in range(2):
            for qb in range(2):
                out.append((lambda db=db, qb=qb: mfma(w, AACC + (2*db+qb)*4, B + 12 + 4*db, B + 4 + 4*qb, c0), [f"x{ks}", f"w{ks}_0{db}"]))
        for db in range(2):
            for kb in range(3):
                out.append((lambda db=db, kb=kb: mfma(w, AACC + 16 + (3*db+kb)*4, B + 20 + 4*db, B + 4*kb, c0), [f"xp{ks}", f"w{ks}_1{db}"]))
        for db in range(2):
            for kb in range(3):
                out.append((lambda db=db, kb=kb: mfma(w, AACC + 40 + (3*db+kb)*4, B + 4*kb, B + 28 + 4*db, c0), [f"w{ks}_2{db}"]))
        return out
    QP, KPk, VP, ONES, SS, MM, PP, LL, OO = 96, 104, 116, 128, 132, 148, 48, 160, 32
    tl = []
    for q in range(4): tl.append(f"v_mov_b32 v{ONES+q}, 0x3f803f80")
    for db in range(2):
        for qb in range(2):
            s0 = AACC + (2*db+qb)*4
            for h in range(2): tl.append(f"v_cvt_pk_bf16_f32 v{QP+4*qb+2*db+h}, v{s0+2*h}, v{s0+2*h+1}")
    for db in range(2):
        for kb in range(3):
            s0 = AACC + 16 + (3*db+kb)*4
            for h in range(2): tl.append(f"v_cvt_pk_bf16_f32 v{KPk+4*kb+2*db+h}, v{s0+2*h}, v{s0+2*h+1}")
    for qb in range(2):
        for h in range(2): tl.append(f"v_and_b32 v{QP+4*qb+2+h}, v{vZ}, v{QP+4*qb+2+h}")
    def a_tail(m):
        if m >= -10:
            for _ in range(2): w(tl.pop(0))
    g1_phase(w, 7, a_reads, a_mfmas, G("pA", 10), G("gapA", 3), a_tail)
    stamp(w, 5)
    for x in tl: w(x)
    vc = []
    for db in range(2):
        for kb in range(3):
            s0 = AACC + 40 + (3*db+kb)*4
            for h in range(2): vc.append(f"v_cvt_pk_bf16_f32 v{VP+6*db+2*kb+h}, v{s0+2*h}, v{s0+2*h+1}")
    def fill(n):
        for _ in range(n): w(vc.pop(0) if vc else "s_nop 0")
    for qb in range(2):
        for t in range(2):
            m = vMask + 4 if t == 1 else (vMask + 8 if qb == 0 else vMask)
            mfma(w, SS + 8*qb + 4*t, KPk + 4*(qb+t), QP + 4*qb, vr(m, 4))
    if G("bhpos", 1) == 0: barrier(w, BH)
    fill(4); w("s_nop 1")
    T, U = vT0, vT1
    for qb in range(2):
        for e in range(4): w(f"v_max_f32 v{MM+4*qb+e}, v{SS+8*qb+e}, v{SS+8*qb+4+e}")
    for qb in range(2): w(f"v_max3_f32 v{T+qb}, v{MM+4*qb}, v{MM+4*qb+1}, v{MM+4*qb+2}")
    for qb in range(2): w(f"v_max_f32 v{T+qb}, v{T+qb}, v{MM+4*qb+3}")
    fill(2); w(f"v_permlane32_swap_b32 v{T}, v{U}"); fill(1)
    w(f"v_max_f32 v{T}, v{T}, v{U}\nv_mov_b32 v{U}, v{T}")
    fill(2); w(f"v_permlane16_swap_b32 v{T}, v{U}"); fill(1)
    w(f"v_max_f32 v{T}, v{T}, v{U}\nv_mul_f32 v{U}, s{sC2}, v{T}\nv_mul_f32 v{T}, s{sC2}, v{T}")
    fill(2); w(f"v_permlane32_swap_b32 v{T}, v{U}"); fill(1)
    assert not vc
    if G("bhpos", 1) == 1: barrier(w, BH)
    for qb in range(2):
        m0 = MM + 4*qb
        for e in range(4): w(f"v_fma_f32 v{m0+e}, v{m0+e}, s{sC2}, -v{T+qb}")
        for e in range(4): w(f"v_exp_f32 v{m0+e}, v{m0+e}")
        w(f"v_cvt_pk_bf16_f32 v{m0}, v{m0}, v{m0+1}\nv_cvt_pk_bf16_f32 v{m0+2}, v{m0+2}, v{m0+3}")
        for h in range(2): w(f"v_bfi_b32 v{PP+4*qb+h}, v{vPM[h]}, 0, v{m0+2*h}")
        for h in range(2): w(f"v_and_b32 v{PP+4*qb+2+h}, v{vPM[h]}, v{m0+2*h}")
        if qb == 0: w("s_nop 1")
        else: setup_v2(w)
        mfma(w, LL + 4*qb, ONES, PP + 4*qb, "0")
        for db in range(2): mfma(w, OO + 8*qb + 4*db, VP + 6*db + 2*qb, PP + 4*qb, "0")
    for qb in range(2):
        w(f"v_rcp_f32 v{LL+4*qb}, v{LL+4*qb}\ns_nop 0\nv_and_b32 v{LL+4*qb+1}, v{vZ}, v{LL+4*qb}")
        for db in range(2):
            for e in range(4): w(f"v_mul_f32 v{OO+8*qb+4*db+e}, v{LL+4*qb+db}, v{OO+8*qb+4*db+e}")
        for q in range(4): w(f"v_cvt_pk_bf16_f32 v{PP+8+4*qb+q}, v{OO+8*qb+2*q}, v{OO+8*qb+2*q+1}")
    for qb in range(2):
        w.ds(f"ds_write_b128 v{vActW}, {vr(PP+8+4*qb,4)} offset:{ACT + qb*1024}", "ow")
    w(f"s_setprio {G('a2prio', 1)}")
    stamp(w, 6)
    g2_phase(w, "A")
    T_a2 = w.cut()

    l = a.fork(); l.nostamp = G('lite') or G('nol')
    xp = 1 if G('pfg', 1) else xm
    vW1a, vW1b, vW2A, vPF, vR0, vR1, vNon, vZero, vRP, vSent, vPA, vXR = 8, 9, 10, 11, 12, 13, 14, 15, 16, 24, 28, 29
    l("L_L:")
    l(f"s_setprio {G('lprio0',3)}")
    common2(l)
    l(f"""
s_or_b32 s{sT3}, s2, s{sW}
s_cmp_lg_u32 s{sT3}, 0
s_cbranch_scc1 L_nolead0
s_memrealtime s[{sN0}:{sN1}]
L_nolead0:
""")
    for i, d in ((0, vR0), (1, vR1)):
        l(f"""
v_add_u32 v{vT0}, {64*i}, v{vL}
v_mul_u32_u24 v{vT2}, 2979, v{vT0}
v_lshrrev_b32 v{vT2}, 16, v{vT2}
v_mul_u32_u24 v{vT3}, 22, v{vT2}
v_sub_u32 v{vT0}, v{vT0}, v{vT3}
v_min_u32 v{vT0}, 20, v{vT0}
v_mul_u32_u24 v{vT3}, 37, v{vT0}
v_lshrrev_b32 v{vT3}, 8, v{vT3}
v_mul_u32_u24 v{vT3}, {896-112}, v{vT3}
v_lshl_add_u32 v{vT0}, v{vT0}, 4, v{vT3}
v_mul_u32_u24 v{vT2}, 2688, v{vT2}
v_add_u32 v{d}, v{vT0}, v{vT2}
""")
    l(f"""
s_and_b32 s{sT2}, s{sA}, 1
s_lshl_b32 s{sT2}, s{sT2}, 3
s_lshr_b32 s{sT1}, s{sA}, 1
s_lshl_b32 s{sT1}, s{sT1}, 2
s_add_u32 s{sT2}, s{sT2}, s{sT1}
s_lshl_b32 s{sT1}, s{sRB}, 4
s_add_u32 s{sT2}, s{sT2}, s{sT1}
s_mul_i32 s{sT2}, s{sT2}, 2688
s_mul_i32 s{sT1}, s{sS}, 112
s_add_u32 s{sC2}, s{sT2}, s{sT1}
s_and_b32 s{sJJ}, s{sRB}, {32//xp-1}
s_lshl_b32 s{sT1}, s{sJJ}, 2
s_add_u32 s{sRH}, s{sT1}, s{sA}
s_mul_i32 s{sT1}, s{sRH}, {xp}
v_min_u32 v{vT1}, {4*xp-1}, v{vL}
v_lshrrev_b32 v{vT2}, 2, v{vT1}
v_add_u32 v{vT2}, s{sT1}, v{vT2}
v_and_b32 v{vT1}, 3, v{vT1}
v_mul_u32_u24 v{vT2}, 3584, v{vT2}
v_lshl_add_u32 v{vPA}, v{vT1}, 7, v{vT2}
s_mul_i32 s{sW1o}, s{sS}, 448
s_and_b32 s{sHI}, s{sW1o}, 0xffffff80
v_mov_b32 v{vZero}, 0
s_waitcnt lgkmcnt(0)
""")
    mark(l, "ka")
    srd(l, SWQ, 6, 448 * 1344 * 2); srd(l, SW1, 12, 448 * 1792 * 2)
    def op_pfa():
        l.vmem(f"buffer_load_dword v{vPF}, v{vPA}, {sq(SW1)}, s{sHI} offen {G('ntw','')}", "pf")
    def op_rpl():
        l.vmem(f"buffer_load_dwordx4 {vr(vRP,4)}, v{vR0}, {sq(SWQ)}, s{sC2} offen {G('ntr','')}", "rp")
        l("s_mov_b64 exec, 0xffffff")
        l.vmem(f"buffer_load_dwordx4 {vr(vRP+4,4)}, v{vR1}, {sq(SWQ)}, s{sC2} offen {G('ntr','')}", "rp")
        l("s_mov_b64 exec, -1")
    def op_init():
        srd(l, SDBG, 24, 256)
        l(f"""
s_cmp_lg_u32 s{sT3}, 0
s_cbranch_scc1 L_nolead1
s_or_b32 s{sN0}, s{sN0}, 1
v_mov_b32 v{vNon}, s{sN0}
v_lshlrev_b32 v{vT0}, 6, v{vL}
s_mov_b64 exec, 7
buffer_store_dword v{vNon}, v{vT0}, {sq(SDBG)}, 0 offen sc1
s_mov_b64 exec, -1
L_nolead1:
""")
        srd(l, SWS, 26, 0x10000000); srd(l, SW2, 16, 1792 * 448 * 2); srd(l, SWO, 8, 448 * 448 * 2)
        srd(l, SX, 4, 2048 * 896); srd(l, SB2, 18, 896)
        first_stamps(l)
        l(f"""
v_cmp_le_u32 vcc, 28, v{vL}
v_xor_b32 v{vW1b}, 32, v{vL16}
v_mov_b32 v{vT3}, {3584-448}
v_cndmask_b32 v{vT0}, 0, v{vT3}, vcc
v_add_u32 v{vW1a}, v{vL16}, v{vT0}
v_add_u32 v{vW1b}, v{vW1b}, v{vT0}
s_mul_i32 s{sT1}, s{sA}, {16*3584}
s_add_u32 s{sW1o}, s{sW1o}, s{sT1}
s_mul_i32 s{sM0}, s{sA}, 7168
""")
    def op_pfb():
        l(f"""
s_mul_i32 s{sT1}, s{sRH}, {10*xp}
s_add_u32 s{sT1}, s{sT1}, 512
v_min_u32 v{vT1}, {10*xp-1}, v{vL}
v_add_u32 v{vT1}, s{sT1}, v{vT1}
v_lshrrev_b32 v{vT2}, 2, v{vT1}
v_and_b32 v{vT1}, 3, v{vT1}
v_mul_u32_u24 v{vT2}, 3584, v{vT2}
v_lshl_add_u32 v{vT1}, v{vT1}, 7, v{vT2}
""")
        l.vmem(f"buffer_load_dword v{vPF}, v{vT1}, {sq(SW1)}, s{sHI} offen {G('ntw','')}", "pf")
    def op_pf2():
        per = 49 * xp; pw = (per + 3) // 4
        l(f"""
s_mul_i32 s{sT2}, s{sJJ}, {per}
s_mul_i32 s{sT1}, s{sA}, {pw}
v_min_u32 v{vT1}, {pw-1}, v{vL}
v_add_u32 v{vT1}, s{sT1}, v{vT1}
v_min_u32 v{vT1}, {per-1}, v{vT1}
v_add_lshl_u32 v{vT1}, v{vT1}, s{sT2}, 7
s_mul_i32 s{sT1}, s{sS}, {224*896}
""")
        l.vmem(f"buffer_load_dword v{vPF}, v{vT1}, {sq(SW2)}, s{sT1} offen {G('nt2','')}", "pf2")
        per = 13 * xp; pw = (per + 3) // 4
        l(f"""
s_mul_i32 s{sT2}, s{sJJ}, {per}
s_mul_i32 s{sT1}, s{sA}, {pw}
v_min_u32 v{vT1}, {pw-1}, v{vL}
v_add_u32 v{vT1}, s{sT1}, v{vT1}
v_min_u32 v{vT1}, {per-1}, v{vT1}
v_add_u32 v{vT1}, s{sT2}, v{vT1}
v_min_u32 v{vT1}, 391, v{vT1}
v_lshlrev_b32 v{vT1}, 7, v{vT1}
s_mul_i32 s{sT1}, s{sS}, {56*896}
""")
        l.vmem(f"buffer_load_dword v{vPF}, v{vT1}, {sq(SWO)}, s{sT1} offen {G('nt2','')}", "pf2")
    def op_g(k):
        if k < 3:
            l(f"""
s_mul_i32 s{sT2}, s{sRB}, 49
s_mul_i32 s{sT1}, s{sA}, 5
s_add_u32 s{sT1}, s{sT1}, {17*k}
v_min_u32 v{vT1}, 4, v{vL}
v_add_u32 v{vT1}, s{sT1}, v{vT1}
v_min_u32 v{vT1}, {min(17*k+16, 48)}, v{vT1}
v_add_lshl_u32 v{vT1}, v{vT1}, s{sT2}, 7
s_mul_i32 s{sT1}, s{sS}, {224*896}
""")
            l.vmem(f"buffer_load_dword v{vPF}, v{vT1}, {sq(SW2)}, s{sT1} offen {G('nt2','')}", "pf2")
        else:
            l(f"""
s_mul_i32 s{sT2}, s{sRB}, 13
s_lshl_b32 s{sT1}, s{sA}, 2
v_min_u32 v{vT1}, 3, v{vL}
v_add_u32 v{vT1}, s{sT1}, v{vT1}
v_min_u32 v{vT1}, 12, v{vT1}
v_add_u32 v{vT1}, s{sT2}, v{vT1}
v_min_u32 v{vT1}, 391, v{vT1}
v_lshlrev_b32 v{vT1}, 7, v{vT1}
s_mul_i32 s{sT1}, s{sS}, {56*896}
""")
            l.vmem(f"buffer_load_dword v{vPF}, v{vT1}, {sq(SWO)}, s{sT1} offen {G('nt2','')}", "pf2")
    def op_tlb():
        l(f"s_mul_i32 s{sT0}, s{sRB}, {7*65536}")
        l.vmem(f"buffer_load_dword v{vPF}, v{vZero}, {sq(SWS)}, s{sT0} offen nt", "pf2")
        l.vmem(f"global_load_dword v{vPF}, v{vZero}, s[22:23] nt", "pf2")
    def op_b2():
        l(f"""s_lshl_b32 s{sT1}, s{sS}, 7
s_mov_b32 m0, {XRES + 8192}
s_mov_b64 exec, 0xff""")
        l.vmem(f"buffer_load_dwordx4 v{vL16}, {sq(SB2)}, s{sT1} offen lds", "xr")
        l("s_mov_b64 exec, -1")
    spl = []
    def op_spi():
        l(f"""s_mul_i32 s60, s{sS}, {224*896}
s_mul_i32 s{sT0}, s{sRB}, {7*896}
s_add_u32 s60, s60, s{sT0}
s_mul_i32 s{sT0}, s{sA}, {25*64}
s_add_u32 s60, s60, s{sT0}
s_mul_i32 s61, s{sS}, {56*896}
s_mul_i32 s{sT0}, s{sRB}, {28*64}
s_add_u32 s61, s61, s{sT0}
s_mul_i32 s{sT0}, s{sA}, {7*64}
s_add_u32 s61, s61, s{sT0}
s_cmp_ge_u32 s{sRB}, 28
s_cselect_b32 s61, {OOB}, s61
s_xor_b32 s62, s{sRB}, 16
s_lshl_b32 s62, s62, 3
s_add_u32 s62, s62, s{sS}
s_lshl_b32 s62, s62, 7
s_lshl_b32 s{sT1}, s{sA}, 15
s_add_u32 s62, s62, s{sT1}
s_add_u32 s62, s62, {WS_F2}
s_lshl_b32 s26, s{sS}, 7""")
        spl.extend([f"s_buffer_load_dword s{sDum}, {sq(SW2)}, s60 offset:{64*i}" for i in range(25)])
        spl.extend([f"s_buffer_load_dword s{sDum}, {sq(SWO)}, s61 offset:{64*i}" for i in range(7)])
        spl.extend([f"s_buffer_load_dword s{sDum}, {sq(SWS)}, s62", f"s_buffer_load_dword s{sDum}, {sq(SB2)}, s26", f"s_buffer_load_dword s{sDum}, {sq(SB2)}, s26 offset:64"])
    def op_sp():
        for _ in range(G("spn", 5)):
            if spl: l(spl.pop(0))
    def op_xr():
        l(f"""
s_lshl_b32 s{sT0}, s{sA}, 5
s_add_u32 s{sT0}, s{sT0}, s{sROW0}
s_mul_i32 s{sT0}, s{sT0}, 896
s_lshl_b32 s{sT1}, s{sS}, 7
s_cmp_eq_u32 s{sS}, 7
s_cselect_b32 s{sT1}, {OOB}, s{sT1}
s_add_u32 s{sT0}, s{sT0}, s{sT1}
s_lshl_b32 s{sT2}, s{sA}, 11""")
        for i in range(2):
            l(f"s_add_u32 m0, s{sT2}, {XRES + 1024*i}\ns_add_u32 s{sT0}, s{sT0}, {16*896*i}")
            l.vmem(f"buffer_load_dwordx4 v{vXR}, {sq(SX)}, s{sT0} offen lds", "xr")
    def op_rps():
        l(f"""
s_mul_i32 s{sT1}, s{sS}, {448*352}
s_add_u32 s{sT1}, s{sT1}, {WS_WQ}
s_lshl_b32 s{sT0}, s{sRB}, 2
s_add_u32 s{sT0}, s{sT0}, s{sA}
s_mul_i32 s{sT0}, s{sT0}, {4*352}
s_add_u32 s{sT0}, s{sT0}, s{sT1}
s_cmp_ge_u32 s{sRB}, 28
s_cselect_b32 s{sT0}, {OOB}, s{sT0}
""")
        l.need(vm=["rp"])
        l.vmem(f"buffer_store_dwordx4 {vr(vRP,4)}, v{vL16}, {sq(SWS)}, s{sT0} offen sc1", "rps")
        l("s_mov_b64 exec, 0xffffff")
        l.vmem(f"buffer_store_dwordx4 {vr(vRP+4,4)}, v{vL16}, {sq(SWS)}, s{sT0} offen offset:1024 sc1", "rps")
        l("s_mov_b64 exec, -1")
    def flag(tag, soff):
        l.need(vm=[tag])
        l("s_mov_b64 exec, 1")
        l.vmem(f"buffer_store_dword v{vNon}, v{vZero}, {sq(SWS)}, s{soff} offen sc1", "fl")
        l("s_mov_b64 exec, -1")
    gl = get_nonce(l, vT0, 0)
    def op_noi(): next(gl)
    def op_non():
        next(gl)
        l(f"v_mov_b32 v{vNon}, s{sN0}")
    def op_fl1():
        l(f"""s_lshl_b32 s{sT0}, s{sS}, 5
s_add_u32 s{sT0}, s{sT0}, s{sRB}
s_lshl_b32 s{sT0}, s{sT0}, 5
s_add_u32 s{sT0}, s{sT0}, s{sA}
s_lshl_b32 s{sT0}, s{sT0}, 2
s_add_u32 s{sT0}, s{sT0}, {WS_F1}""")
        flag("rps", sT0)
    def op_tab():
        chunks(l)
        l(f"""
v_lshrrev_b32 v{vT0}, 3, v{vL}
v_lshrrev_b32 v{vT1}, 4, v{vL}
v_lshlrev_b32 v{vT1}, 1, v{vT1}
v_and_b32 v{vT2}, 7, v{vL}
v_xor_b32 v{vT1}, v{vT1}, v{vT2}
v_mul_u32_u24 v{vT0}, 896, v{vT0}
v_lshl_add_u32 v{vW2A}, v{vT1}, 4, v{vT0}
v_add_u32 v{vXR}, v{vW2A}, v{vT0}
s_mul_i32 s{sW2o}, s{sS}, {224*896}
s_mul_i32 s{sT0}, s{sA}, {56*896}
s_add_u32 s{sW2o}, s{sW2o}, s{sT0}
s_mul_i32 s{sWQo}, s{sS}, {448*352}
s_add_u32 s{sWQo}, s{sWQo}, {WS_WQ}
s_mul_i32 s{sM1}, s{sA}, {16*352}
s_add_u32 s{sWQo}, s{sWQo}, s{sM1}
s_mul_i32 s{sT2}, s{sS}, {56*896}
s_lshl_b32 s{sT0}, s{sA}, 1
s_add_u32 s{sT1}, s{sT0}, 1
s_min_u32 s{sT1}, s{sT1}, 6
s_lshl_b32 s20, s{sT0}, 10
s_lshl_b32 s21, s{sT1}, 10
s_mul_i32 s22, s{sT0}, {8*896}
s_mul_i32 s23, s{sT1}, {8*896}
s_add_u32 s22, s22, s{sT2}
s_add_u32 s23, s23, s{sT2}
v_mov_b32 v{vSent}, -1
v_mov_b32 v{vSent+1}, -1
v_mov_b32 v{vSent+2}, -1
v_mov_b32 v{vSent+3}, -1
s_mul_i32 s{sPart}, s{sRB}, {7*65536}
s_lshl_b32 s{sT0}, s{sS}, 16
s_add_u32 s{sPart}, s{sPart}, s{sT0}
s_lshl_b32 s{sT0}, s{sA}, 11
s_add_u32 s{sPart}, s{sPart}, s{sT0}
s_cmp_eq_u32 s{sS}, 7
s_cselect_b32 s{sPart}, {OOB}, s{sPart}
s_lshl_b32 s25, s{sRB}, 10
s_lshl_b32 s{sT0}, s{sA}, 2
s_add_u32 s25, s25, s{sT0}
s_add_u32 s25, s25, {WS_F2}
s_lshl_b32 s{sT0}, s{sS}, 7
s_add_u32 s24, s25, s{sT0}
""")
    def dma_w1(st):
        l("s_mov_b32 exec_hi, 0xffffff")
        for i in range(8):
            l(f"s_add_u32 m0, s{sM0}, {RING + (st%3)*SLOT + 896*i}\ns_add_u32 s{sT0}, s{sW1o}, {(st*64 + 2*i)*3584}")
            l.vmem(f"buffer_load_dwordx4 v{vW1a if i < 4 else vW1b}, {sq(SW1)}, s{sT0} offen lds", f"st{st}")
        l("s_mov_b32 exec_hi, -1")
    def dma_wq(st):
        if G("nodma"): return
        q = st - 7
        for i in range(6):
            if i % 4 == 0:
                l(f"s_add_u32 m0, s{sM1}, {RING + (st%3)*SLOT + 1024*i}\ns_add_u32 s{sT0}, s{sWQo}, {q*22528 + 1024*i}")
            if i == 5: l("s_mov_b32 exec_hi, 0")
            l.vmem(f"buffer_load_dwordx4 v{vL16}, {sq(SWS)}, s{sT0} offen offset:{1024*(i%4)} lds", f"st{st}")
        l("s_mov_b32 exec_hi, -1")
    def dma_w2(cc):
        if G("nodma"): return
        l(f"s_lshl_b32 s{sT2}, s{sCH+cc}, 7\ns_add_u32 s{sT0}, s{sT2}, s{sW2o}")
        for i in range(7):
            l(f"s_add_u32 m0, s{sM0}, {W2LOC[cc] + 1024*i}")
            l(f"s_add_u32 s{sT0}, s{sT0}, {8*896}" if i else "s_nop 0")
            l.vmem(f"buffer_load_dwordx4 v{vW2A}, {sq(SW2)}, s{sT0} offen lds", f"w2{cc}")
    def dma_wo(cc):
        if G("nodma"): return
        l(f"s_lshl_b32 s{sT2}, s{sCH+cc}, 7")
        for i in range(2):
            l(f"s_add_u32 m0, s{20+i}, {WOLOC[cc]}\ns_add_u32 s{sT0}, s{22+i}, s{sT2}")
            l.vmem(f"buffer_load_dwordx4 v{vW2A}, {sq(SWO)}, s{sT0} offen lds", f"wo{cc}")
    ncl = [2 * NE]
    def op_cl1():
        if ncl[0] >= 14: return
        k, i = divmod(ncl[0], 2); ncl[0] += 1
        if G("noclr"): return
        if k < 6: l(f"s_lshl_b32 s{sT1}, s{sCH+5-k}, 13\ns_add_u32 s{sT1}, s{sT1}, s{sPart}")
        else: l(f"s_add_u32 s{sT1}, s{sPart}, {7*8192}")
        l.vmem(f"buffer_store_dwordx4 {vr(vSent,4)}, v{vL16}, {sq(SWS)}, s{sT1} offen offset:{1024*i} sc1", "clr")
    def op_clr(): op_cl1(); op_cl1()
    def op_fl2():
        assert ncl[0] == 14
        flag("clr", 24)
    def op_pff():
        l(f"""s_lshl_b32 s{sT0}, s{sRB}, 3
s_add_u32 s{sT0}, s{sT0}, s{sS}
s_lshl_b32 s{sT0}, s{sT0}, 7
s_lshl_b32 s{sT1}, s{sA}, 15
s_add_u32 s{sT0}, s{sT0}, s{sT1}
s_add_u32 s{sT0}, s{sT0}, {WS_F2}""")
        l.vmem(f"buffer_load_dword v{vPF}, v{vZero}, {sq(SWS)}, s{sT0} offen", "pf2")
    def op_p2i():
        for i in range(7): l(f"s_buffer_load_dword s{4+i}, {sq(SWS)}, s25 offset:{128*i}")
    def op_p2():
        again, got = lab("qa"), lab("qg")
        l.smem = True
        l.need(drain=True)
        l(f"s_mov_b32 s{sPoll}, 0")
        for i in range(0, 6, 2): l(f"s_cmp_eq_u64 s[{4+i}:{5+i}], s[{sN0}:{sN1}]\ns_cbranch_scc0 {again}")
        l(f"s_cmp_eq_u32 s10, s{sN0}\ns_cbranch_scc0 {again}\n{got}:")
        if STAMP: l(f"v_writelane_b32 v0, s{sPoll}, 59")
        slow_poll(again, got, vT0, f"v_min_u32 v{vT0}, 6, v{vL}\nv_lshlrev_b32 v{vT0}, 7, v{vT0}", 25)
    OPS = dict(pfa=op_pfa, init=op_init, rpl=op_rpl, pfb=op_pfb, pf2=op_pf2, rps=op_rps, fl1=op_fl1, tab=op_tab, non=op_non,
               xr=op_xr, tlb=op_tlb, spi=op_spi, sp=op_sp, b2=op_b2, clr=op_clr, cl1=op_cl1, pff=op_pff, noi=op_noi, p2i=op_p2i, fl2=op_fl2, p2=op_p2, bx=lambda: l("s_barrier"), lo=lambda: l("s_setprio 0"), hi=lambda: l(f"s_setprio {G('lprio',3)}"), b00=lambda: l("s_barrier"))
    for k in range(7):
        OPS[f"s{k}"] = lambda k=k: dma_w1(k); OPS[f"q{k}"] = lambda k=k: dma_wq(7 + k)
        OPS[f"g{k}"] = lambda k=k: op_g(k)
        OPS[f"w{k}"] = lambda k=k: dma_w2(k); OPS[f"o{k}"] = lambda k=k: dma_wo(k)
    PRO = G("pro", "rpl init tab rps lo pf2 b2 pff noi s0 non fl1 s1")
    MID = G("mid0", "B0 hi s2 B1 s3 B2 s4 B3 s5 B4 s6") + " " + \
          G("mid1", "B5 q0 cl1 B6 q1 cl1 B7 q2 cl1 B8 q3 cl1 B9 q4 cl1 cl1 B10 q5 cl1 cl1") + " " + \
          G("mid2", "B11 q6 w0 B12 fl2 w1 o0 o1 B13 o2 xr B14 B22 p2i w2 B15 lo o3 p2 B16 w3 B17 o4 w4 o5 B18 w5 o6 B19 w6 B20 B21")
    k = 1
    for o in PRO.split():
        OPS[o](); mark(l, o)
        if o in ("bx", "rps", "s0", "s1", "s2"):
            if len(l.pend) >= 3: l.need(drain=True)
            stamp(l, k); k += 1
    T_l1 = l.cut(); l("L_L2:")
    for o in MID.split():
        if o[0] == "B":
            j = int(o[1:]); need = []
            if j <= 13: need = [f"st{j}"]
            elif j == BH: need = [f"w2{i}" for i in range(RA)]
            elif j == 15: need = ["w20", "xr"] + [f"wo{i}" for i in range(max(RA, 1))]
            elif j > 15: need = [f"w2{j-15}", f"wo{j-15}"] + (["w22", "wo2"] if RA == 2 else [])
            barrier(l, j, vm=need); mark(l, o)
        else: OPS[o]()
    l.need(drain=True)
    if G("spin"):
        l(f"""s_add_u32 s40, s100, {G("spin")[1]}
L_spin:
s_sleep 2
s_memrealtime s[42:43]
s_waitcnt lgkmcnt(0)
s_sub_u32 s44, s42, s40
s_cmp_lt_i32 s44, 0
s_cbranch_scc1 L_spin""")
    l("L_fin:")
    if STAMP:
        l(f"""s_waitcnt vmcnt(0)
s_memrealtime s[96:97]
{SOP} s[98:99]
s_waitcnt lgkmcnt(0)
v_writelane_b32 v0, s96, 63
v_writelane_b32 v0, s98, 41
s_mul_i32 s{sT0}, s2, 12
s_add_u32 s{sT0}, s{sT0}, s{sW}
s_lshl_b32 s{sT0}, s{sT0}, 8
s_add_u32 s{sT0}, s{sT0}, {WS_STAMP}
v_lshlrev_b32 v{vT0}, 2, v{vL}
buffer_store_dword v0, v{vT0}, {sq(SWS)}, s{sT0} offen
""")
    l("L_end:\ns_endpgm")
    T_l2 = l.cut()

    K1 = NAME + "_kernel"
    return f"""; @launch grid=(256,1,1) block=(768,1,1) lds={LDS_BYTES}
.amdgcn_target "amdgcn-amd-amdhsa--gfx950"
.text
.globl {K1}
.p2align 8
.type {K1},@function
{K1}:
{T_entry}{T_c1}{T_f2}{T_a2}{T_l1}{T_l2}{''.join(SLOW)}L_codeend:
.section .rodata,"a"
.p2align 6
.amdhsa_kernel {K1}
  .amdhsa_next_free_vgpr 168
  .amdhsa_next_free_sgpr 102
  .amdhsa_accum_offset 168
  .amdhsa_group_segment_fixed_size 0
  .amdhsa_kernarg_size 88
  .amdhsa_user_sgpr_count 2
  .amdhsa_user_sgpr_kernarg_segment_ptr 1
  .amdhsa_system_sgpr_workgroup_id_x 1
.end_amdhsa_kernel
"""

if __name__ == "__main__":
    import json
    cfg = json.loads(sys.argv[2]) if len(sys.argv) > 2 else {}
    open(sys.argv[1], "w").write(gen(cfg))
```

```python
import sys, math, struct
NAME = "parallel_sum__sliding_local_dilated__dense_activation_gelu__prompt"

class Asm:
    def __init__(self):
        self.L = []; self.vm = []; self.lg = []; self.smem = False; self.pend = []; self.nst = 0
    def __call__(self, s):
        for l in s.strip("\n").split("\n"):
            l = l.strip()
            if l: self.L.append(l if l.endswith(":") else "  " + l)
    def fork(self):
        b = Asm(); b.vm = list(self.vm); b.lg = list(self.lg); b.smem = self.smem; return b
    def cut(self):
        t = "\n".join(self.L) + "\n"; self.L = []; return t
    def vmem(self, s, tag): self(s); self.vm.append(tag)
    def ds(self, s, tag): self(s); self.lg.append(tag)
    def _cnt(self, q, tags):
        last = -1
        for i, t in enumerate(q):
            if t in tags: last = i
        return None if last < 0 else len(q) - 1 - last
    def need(self, vm=(), lg=(), drain=False):
        parts = []
        n = self._cnt(self.vm, set(vm))
        if n is not None:
            n = min(n, 62); parts.append(f"vmcnt({n})"); self.vm = self.vm[len(self.vm) - n:] if n else []
        n = self._cnt(self.lg, set(lg))
        if drain: n = 0 if (self.lg or self.smem) else None
        if n is not None:
            n = min(n, 14)
            parts.append(f"lgkmcnt({n})"); self.lg = self.lg[len(self.lg) - n:] if n else []
        if parts: self("s_waitcnt " + " ".join(parts))
        if drain:
            self.smem = False
            for sg, idx in self.pend: self(f"v_writelane_b32 v0, s{sg}, {idx}")
            self.pend = []

def vr(a, n=1): return f"v{a}" if n == 1 else f"v[{a}:{a+n-1}]"
def sq(a): return f"s[{a}:{a+3}]"
def f2u(x): return "0x%08x" % struct.unpack("<I", struct.pack("<f", x))[0]

KP = 4608
HALO = 4096
ACT = 57344
WOR = 28672
def actoff(t): return (t - 7) * 4096 if t >= 7 else 8192 + t * 4096
RING = 65536
SLOT = 28672
BIAS = RING + 3 * SLOT
XRES = BIAS + 1024
LDS_BYTES = XRES + 8192 + 256
W2LOC = [0, RING + 2 * SLOT, RING + SLOT, 0, RING, RING + 2 * SLOT, RING + SLOT]
WOLOC = [WOR, WOR + 7168, WOR + 2 * 7168, WOR + 3 * 7168, WOR, ACT, WOR + 7168]
WS_WQ = 0x1000000
WS_F1 = 0x1800000
WS_F2 = 0x1810000
WS_FE = 0x1820000
WS_STAMP = 0x8000000
OOB = 0x7ff00000
SPIN = 200000
SX, SWS, SOUT, SW1, SB1, SWQ, SDBG, SW2, SWO, SB2 = 28, 32, 36, 36, 40, 40, 44, 48, 52, 56
sIN, sLO, sFE, sDum = 48, 55, 3, 63
sW, sS, sRB, sA, sRH, sHI, sROW0, sT0, sT1, sT2, sT3 = 68, 69, 70, 71, 72, 73, 74, 75, 76, 77, 78
sW1o, sWQo, sW2o, sJJ, sM0, sPart, sC2, sCH = 79, 80, 81, 82, 83, 84, 85, 86
sCW, sN0, sN1, sPoll, sM1, sLW = 93, 94, 95, 96, 97, 26

def gen(cfg):
    G = cfg.get
    STAMP = G("stamp", False); SOP = G("stampop", "s_memtime")
    xm = G("xmap", 4); nsh = 32 // xm
    uid = [0]
    def lab(n): uid[0] += 1; return f"L_{n}{uid[0]}"
    def stamp(b, idx):
        if not STAMP or (G("lite") and idx not in (3, 10, 17, 24, 25, 26, 31)) or getattr(b, "nostamp", False): return
        sg = (64, 66, 98, 100)[b.nst % 4]; b.nst += 1
        assert len(b.pend) < 4
        b(f"{SOP} s[{sg}:{sg+1}]"); b.smem = True; b.pend.append((sg, idx))
    def mark(b, name):
        if G("spin") and G("spin")[0] == name: b("s_memrealtime s[100:101]"); b.smem = True
    def barrier(b, j, vm=()):
        pb0 = G("prebar")
        if pb0 is not None and pb0 <= j < pb0 + 8: stamp(b, 42 + j - pb0)
        b.need(vm=vm, drain=True)
        if pb0 is not None and pb0 <= j < pb0 + 8: stamp(b, 50 + j - pb0)
        b("s_barrier")
        stamp(b, 10 + j)
    BH = 22
    def srd(b, d, p, n):
        b(f"s_mov_b32 s{d}, s{p}\ns_and_b32 s{d+1}, s{p+1}, 0xffff\ns_mov_b32 s{d+2}, {n}\ns_mov_b32 s{d+3}, 0x20000")
    def mfma(b, d, x, y, c=None):
        b(f"v_mfma_f32_16x16x32_bf16 {vr(d,4)}, {vr(x,4)}, {vr(y,4)}, {vr(d,4) if c is None else c}")
    def chunks(b):
        for i in range(7):
            b(f"s_add_u32 s{sCH+i}, s{sS if i == 0 else sCH+i-1}, 1")
            b(f"s_cmp_ge_u32 s{sCH+i}, 7\ns_cselect_b32 s{sT0}, 7, 0\ns_sub_u32 s{sCH+i}, s{sCH+i}, s{sT0}")
    SLOW = []
    def get_nonce(b, vt, cp):
        again, got = lab("na"), lab("ng")
        b(f"s_buffer_load_dword s{sN0}, {sq(SDBG)}, {64*cp}"); b.smem = True
        yield
        b.need(drain=True)
        b(f"s_mov_b32 s{sPoll}, 0\ns_cmp_eq_u32 s{sN0}, 0\ns_cbranch_scc1 {again}\n{got}:\ns_mov_b32 s{sN1}, s{sN0}")
        if STAMP: b(f"v_writelane_b32 v0, s{sPoll}, 58")
        x = Asm()
        x(f"""{again}:
v_mov_b32 v{vt}, 0
s_add_u32 s{sPoll}, s{sPoll}, 1
buffer_load_dword v{vt}, v{vt}, {sq(SDBG)}, 0 offen sc1
s_cmp_gt_u32 s{sPoll}, {SPIN}
s_waitcnt vmcnt(0)
v_readfirstlane_b32 s{sN0}, v{vt}
s_cbranch_scc1 {got}
s_cmp_eq_u32 s{sN0}, 0
s_cbranch_scc1 {again}
s_branch {got}""")
        SLOW.append(x.cut())
        yield
    def slow_poll(retry, got, vt, addr, sbase):
        x = Asm()
        x(f"""{retry}:
{addr}
s_add_u32 s{sPoll}, s{sPoll}, 1
buffer_load_dword v{vt}, v{vt}, {sq(SWS)}, s{sbase} offen sc1
s_cmp_gt_u32 s{sPoll}, {SPIN}
s_waitcnt vmcnt(0)
v_cmp_ne_u32 vcc, s{sN0}, v{vt}
s_cbranch_scc1 {got}
s_nop 1
s_cbranch_vccnz {retry}
s_branch {got}""")
        SLOW.append(x.cut())
    def first_stamps(b):
        if STAMP: b("v_writelane_b32 v0, s98, 62\nv_writelane_b32 v0, s100, 0")

    vL, vL16, vActW, vT0, vT1, vT2, vT3 = 1, 2, 3, 4, 5, 6, 7
    vXE, vXO, vG2W, vG2W2, vG2O0, vG2O2 = 8, 9, 10, 11, 12, 13
    a = Asm()
    RAW, UNP = 136, 80
    lb = xm.bit_length() - 1
    a(f"""
s_load_dwordx16 s[4:19], s[0:1], 0
s_load_dwordx8 s[20:27], s[0:1], 56
s_cmpk_ge_u32 s2, 256
s_cbranch_scc1 L_end
s_getpc_b64 s[28:29]
L_pc:
s_lshr_b32 s3, s2, 3
v_lshrrev_b32 v{vT0}, 6, v0
v_mad_u32_u24 v{vT1}, s3, 12, v{vT0}
v_readfirstlane_b32 s{sW}, v{vT0}
v_lshlrev_b32 v{vT1}, 7, v{vT1}
v_min_u32 v{vT1}, L_codeend - L_pc - 4, v{vT1}
""")
    if G("codepf", True): a.vmem(f"global_load_dword v23, v{vT1}, s[28:29]", "pf")
    if G("bwprobe"):
        off, aux = G("bwprobe")
        a(f"""s_waitcnt lgkmcnt(0)
s_mov_b32 s40, s26
s_and_b32 s41, s27, 0xffff
s_mov_b32 s42, 0x10000000
s_mov_b32 s43, 0x20000
s_mul_i32 s44, s2, {12*12*1024}
s_add_u32 s44, s44, {off}
v_lshlrev_b32 v8, 4, v0""")
        for i in range(12):
            a(f"buffer_load_dwordx4 v[{32+4*i}:{35+4*i}], v8, s[40:43], s44 offen {aux}\ns_add_u32 s44, s44, {12*1024}")
        a("s_waitcnt vmcnt(0)\ns_barrier"); a.vm = []
    mark(a, "own")
    if STAMP: a(f"s_memrealtime s[98:99]\n{SOP} s[100:101]")
    if xm == 1: a(f"s_mov_b32 s{sRB}, s3")
    else: a(f"s_bfe_u32 s{sT0}, s2, {(lb << 16) | (3 - lb)}\ns_lshl_b32 s{sT0}, s{sT0}, {5-lb}\ns_lshr_b32 s{sT1}, s3, {lb}\ns_add_u32 s{sRB}, s{sT0}, s{sT1}")
    a(f"""
s_lshr_b32 s{sT0}, s{sRB}, 1
s_lshl_b32 s{sT0}, s{sT0}, 7
s_and_b32 s{sT1}, s{sRB}, 1
s_add_u32 s{sROW0}, s{sT0}, s{sT1}
s_cmp_lt_u32 s{sW}, 4
s_cbranch_scc1 L_L
""")
    T_entry = a.cut()
    def common2(b):
        b(f"""
v_and_b32 v{vL}, 63, v0
v_lshlrev_b32 v{vL16}, 4, v{vL}
s_and_b32 s{sA}, s{sW}, 3
""")
        if xm == 1: b(f"s_and_b32 s{sS}, s2, 7")
        else: b(f"s_and_b32 s{sT0}, s2, {8//xm - 1}\ns_lshl_b32 s{sT0}, s{sT0}, {lb}\ns_and_b32 s{sT2}, s3, {xm-1}\ns_add_u32 s{sS}, s{sT0}, s{sT2}")
        if STAMP: b("v_mov_b32 v0, 0")
    c = a.fork()
    c(f"v_lshrrev_b32 v{vT2}, 3, v0")
    if xm > 1 and G("xrot", True):
        c(f"s_lshl_b32 s{sT2}, s3, {6-lb}\ns_add_u32 s{sT2}, s{sT2}, 32\nv_add_u32 v{vT2}, s{sT2}, v{vT2}")
    else: c(f"v_add_u32 v{vT2}, 32, v{vT2}")
    c(f"""
v_and_b32 v{vT2}, 63, v{vT2}
v_lshl_add_u32 v{vT0}, v{vT2}, 1, s{sROW0}
v_mul_u32_u24 v{vT0}, 896, v{vT0}
v_and_b32 v{vT1}, 7, v0
v_lshl_add_u32 v{vXO}, v{vT1}, 4, v{vT0}
s_setprio {G('cprio', 1)}
s_waitcnt lgkmcnt(0)
""")
    for t in range(7):
        c.vmem(f"global_load_dwordx4 {vr(RAW+4*t,4)}, v{vXO}, s[4:5] offset:{128*t} {G('ntx','')}", f"x{t}")
    c("L_x256:")
    common2(c)
    first_stamps(c)
    c(f"""
s_sub_u32 s{sCW}, s{sW}, 4
s_and_b32 s{sRH}, s{sW}, 1
s_bfe_u32 s{sHI}, s{sW}, 0x10001
""")
    if G("spf", True):
        c(f"""s_lshl_b32 s{sT0}, s{sCW}, 5
s_add_u32 s{sT0}, s{sT0}, s{sRB}
s_mul_i32 s{sT0}, s{sT0}, 3584
s_mul_i32 s{sT1}, s{sS}, 448
s_add_u32 s{sT0}, s{sT0}, s{sT1}""")
        for i in range(7): c(f"s_load_dword s{sDum}, s[12:13], s{sT0} offset:{64*i}")
        c(f"""s_min_u32 s{sT2}, s{sCW}, 6
s_lshl_b32 s{sT2}, s{sT2}, 6
s_add_u32 s{sT1}, s{sT1}, s{sT2}
s_load_dword s{sDum}, s[14:15], s{sT1}
s_cmp_lt_u32 s{sCW}, 6
s_cselect_b32 s{sT2}, {256*3584}, 0
s_add_u32 s{sT0}, s{sT0}, s{sT2}""")
        for i in range(7): c(f"s_load_dword s{sDum}, s[12:13], s{sT0} offset:{64*i}")
    c(f"""
v_lshrrev_b32 v{vXE}, 4, v{vT2}
v_and_b32 v{vT1}, 15, v{vT2}
v_and_b32 v{vT0}, 3, v{vL}
v_bfe_u32 v{vT2}, v{vL}, 2, 1
v_mul_u32_u24 v{vActW}, 12, v{vT2}
v_or_b32 v{vActW}, v{vActW}, v{vT0}
v_xor_b32 v{vT1}, v{vT1}, v{vActW}
v_lshlrev_b32 v{vT1}, 4, v{vT1}
v_lshl_add_u32 v{vT1}, v{vT0}, 8, v{vT1}
v_mul_u32_u24 v{vT2}, {KP}, v{vT2}
v_lshl_add_u32 v{vT1}, v{vXE}, 10, v{vT1}
v_add_u32 v{vActW}, v{vT1}, v{vT2}
""")
    c(f"s_cmp_ge_u32 s{sW}, 8\ns_cbranch_scc1 L_A2")
    T_c1 = c.cut()

    def halo_loads(b, HR):
        b(f"""
v_lshrrev_b32 v{vT0}, 5, v{vL}
s_lshl_b32 s{sT0}, s{sA}, 2
s_add_u32 s{sT0}, s{sT0}, s{sROW0}
s_sub_u32 s{sT0}, s{sT0}, 16
v_lshl_add_u32 v{vT0}, v{vT0}, 1, s{sT0}
s_movk_i32 s{sT3}, 896
v_mul_lo_u32 v{vT0}, v{vT0}, s{sT3}
v_and_b32 v{vT1}, 31, v{vL}
v_lshl_add_u32 v{vT0}, v{vT1}, 4, v{vT0}
v_cmp_gt_u32 vcc, 24, v{vT1}
v_add_u32 v{vT2}, 512, v{vT0}
v_mov_b32 v{vT3}, {OOB}
v_cndmask_b32 v{vT2}, v{vT3}, v{vT2}, vcc
v_min_u32 v{vT0}, v{vT3}, v{vT0}
v_min_u32 v{vT2}, v{vT3}, v{vT2}
""")
        b.vmem(f"buffer_load_dwordx4 {vr(HR[0],4)}, v{vT0}, {sq(SX)}, 0 offen", "h0")
        b.vmem(f"buffer_load_dwordx4 {vr(HR[1],4)}, v{vT2}, {sq(SX)}, 0 offen", "h1")
    def xbases(b):
        b(f"""
v_lshrrev_b32 v{vT2}, 4, v{vL}
v_and_b32 v{vT3}, 15, v{vL}
v_xor_b32 v{vT0}, v{vT3}, v{vT2}
v_lshlrev_b32 v{vT1}, 8, v{vT2}
s_lshl_b32 s{sT0}, s{sRH}, 11
v_lshl_add_u32 v{vXE}, v{vT0}, 4, v{vT1}
v_add_u32 v{vXE}, s{sT0}, v{vXE}
v_xor_b32 v{vXO}, {12*16}, v{vXE}
""")
    def setup_s(b):
        srd(b, SWS, 26, 0x10000000); srd(b, SOUT, 22, 2048 * 896)
        chunks(b)
        b(f"""
s_mul_i32 s{sPart}, s{sRB}, {7*65536}
s_lshl_b32 s{sT2}, s{sCW}, 10
s_add_u32 s{sPart}, s{sPart}, s{sT2}
s_lshl_b32 s{sT2}, s{sS}, 13
s_add_u32 s{sM1}, s{sPart}, s{sT2}
s_lshr_b32 s{sT1}, s{sCW}, 1
s_lshl_b32 s{sT1}, s{sT1}, 5
s_lshl_b32 s{sT2}, s{sS}, 7
s_add_u32 s{sM0}, s{sT1}, s{sT2}
s_lshl_b32 s{sT0}, s{sS}, 16
s_add_u32 s{sT0}, s{sT0}, s{sPart}
s_cmp_eq_u32 s{sS}, 7
s_cselect_b32 s{sT0}, {OOB}, s{sT0}
s_add_u32 s{sIN+6}, s{sT0}, {7*8192}
s_movk_i32 s{sLO}, 0x3f80
s_lshl_b32 s{sFE}, s{sRB}, 3
s_add_u32 s{sFE}, s{sFE}, s{sCW}
s_lshl_b32 s{sFE}, s{sFE}, 7
s_add_u32 s{sFE}, s{sFE}, {WS_FE}
""")
        for k in range(6):
            b(f"s_lshl_b32 s{sT1}, s{sCH+5-k}, 13\ns_add_u32 s{sIN+k}, s{sT0}, s{sT1}")
    def setup_v1(b):
        b(f"""
v_lshrrev_b32 v{vT0}, 2, v{vL}
v_bfe_u32 v{vT1}, v{vL}, 3, 2
s_lshr_b32 s{sT2}, s{sCW}, 1
v_xor_b32 v{vT1}, s{sT2}, v{vT1}
v_lshlrev_b32 v{vT1}, 5, v{vT1}
v_lshl_add_u32 v{vT1}, v{vT0}, 7, v{vT1}
v_and_b32 v{vT0}, 3, v{vL}
v_lshl_add_u32 v{vG2O0}, v{vT0}, 3, v{vT1}
v_add_u32 v{vG2W}, {RING}, v{vG2O0}
""")
    def act_base(b):
        b(f"s_lshl_b32 s{sT0}, s{sRH}, 11\ns_add_u32 s{sT0}, s{sT0}, {ACT}\nv_add_u32 v{vActW}, s{sT0}, v{vL16}")
    def setup_v2(b):
        b(f"v_add_u32 v{vG2W2}, {RING+2*SLOT}, v{vG2O0}\nv_xor_b32 v{vG2O2}, 64, v{vG2O0}")

    def ln_core(b, raw, nraw, unp, tags, nl, pk=True):
        S, Q = vT0, vT2
        rw = (lambda d: raw + d) if isinstance(raw, int) else (lambda d: raw[d // 4] + d % 4)
        for d in range(nraw):
            if d % 4 == 0: b.need(vm=[tags[d // 4]])
            u = unp + 2 * d
            b(f"v_lshlrev_b32 v{u}, 16, v{rw(d)}\nv_and_b32 v{u+1}, 0xffff0000, v{rw(d)}")
            if not pk:
                if d == 0: b(f"v_mov_b32 v{S}, v{u}\nv_mov_b32 v{S+1}, v{u+1}\nv_mul_f32 v{Q}, v{u}, v{u}\nv_mul_f32 v{Q+1}, v{u+1}, v{u+1}")
                else: b(f"v_add_f32 v{S}, v{S}, v{u}\nv_add_f32 v{S+1}, v{S+1}, v{u+1}\nv_fmac_f32 v{Q}, v{u}, v{u}\nv_fmac_f32 v{Q+1}, v{u+1}, v{u+1}")
            elif d == 0: b(f"v_pk_mul_f32 {vr(Q,2)}, {vr(u,2)}, {vr(u,2)}")
            elif d == 1: b(f"v_pk_add_f32 {vr(S,2)}, {vr(u-2,2)}, {vr(u,2)}\nv_pk_fma_f32 {vr(Q,2)}, {vr(u,2)}, {vr(u,2)}, {vr(Q,2)}")
            else: b(f"v_pk_add_f32 {vr(S,2)}, {vr(S,2)}, {vr(u,2)}\nv_pk_fma_f32 {vr(Q,2)}, {vr(u,2)}, {vr(u,2)}, {vr(Q,2)}")
        yield "stats"
        b(f"v_add_f32 v{S}, v{S}, v{S+1}\nv_add_f32 v{Q}, v{Q}, v{Q+1}\ns_nop 0")
        for st in ["quad_perm:[1,0,3,2]", "quad_perm:[2,3,0,1]", "row_half_mirror", "row_mirror"][:min(nl, 4)]:
            b(f"v_add_f32_dpp v{S}, v{S}, v{S} {st} row_mask:0xf bank_mask:0xf\nv_add_f32_dpp v{Q}, v{Q}, v{Q} {st} row_mask:0xf bank_mask:0xf\ns_nop 0")
        if nl >= 5:
            b(f"""v_mov_b32 v{S+1}, v{S}
v_mov_b32 v{Q+1}, v{Q}
s_nop 1
v_permlane16_swap_b32 v{S}, v{S+1}
v_permlane16_swap_b32 v{Q}, v{Q+1}
s_nop 1
v_add_f32 v{S}, v{S}, v{S+1}
v_add_f32 v{Q}, v{Q}, v{Q+1}""")
        b(f"""v_mul_f32 v{S}, {f2u(1/448)}, v{S}
v_mul_f32 v{Q}, {f2u(1/448)}, v{Q}
v_fma_f32 v{Q}, -v{S}, v{S}, v{Q}
v_max_f32 v{Q}, 0, v{Q}
v_add_f32 v{Q}, {f2u(1e-5)}, v{Q}
v_rsq_f32 v{Q}, v{Q}
s_nop 0
v_mul_f32 v{S}, v{S}, v{Q}
.p2align 3""")
        yield "red"
        for d in range(nraw):
            u = unp + 2 * d
            if not pk: b(f"v_fma_f32 v{u}, v{u}, v{Q}, -v{S}\nv_fma_f32 v{u+1}, v{u+1}, v{Q}, -v{S}")
            else: b(f"v_pk_fma_f32 {vr(u,2)}, {vr(u,2)}, {vr(Q,2)}, {vr(S,2)} op_sel_hi:[1,0,0] neg_lo:[0,0,1] neg_hi:[0,0,1]")
            if d >= 1: b(f"v_cvt_pk_bf16_f32 v{rw(d-1)}, v{u-2}, v{u-1}")
            yield d - 1
        u = unp + 2 * (nraw - 1)
        b(f"v_cvt_pk_bf16_f32 v{rw(nraw-1)}, v{u}, v{u+1}")
        yield nraw - 1
    def ln_main(b, hook=None):
        for d in ln_core(b, RAW, 28, UNP, [f"x{t}" for t in range(7)], 3):
            if d == "stats":
                stamp(b, 2)
                if hook: hook()
            if not G("lnbatch") and isinstance(d, int) and d >= 0 and d % 4 == 3:
                b.ds(f"ds_write_b128 v{vActW}, {vr(RAW+d-3,4)} offset:{2*KP*(d//4)}", "xw")
        if G("lnbatch"):
            for t in range(7): b.ds(f"ds_write_b128 v{vActW}, {vr(RAW+4*t,4)} offset:{2*KP*t}", "xw")

    def g1_phase(b, st0, reads, mfmas, P, GAP, tail=None):
        M = [m for ks in range(14) for m in mfmas(ks)]
        per = len(M) // 14
        sched = {}
        for j in range(7):
            R0, R1 = reads(2 * j), reads(2 * j + 1)
            b0 = 2 * per * j - P; span = 2 * per - GAP; R = R0 + R1
            for i, r in enumerate(R):
                pos = b0 + (i * span) // len(R)
                if i >= len(R0): pos = max(pos, 2 * per * j - 1)
                sched.setdefault(max(pos, -1), []).append(r)
        barrier(b, st0)
        for r in sched.get(-1, []): b.ds(*r)
        for m, (fn, tg) in enumerate(M):
            if (m + P) % (2 * per) == 0: barrier(b, st0 + (m + P) // (2 * per))
            b.need(lg=tg); fn()
            for r in sched.get(m, []): b.ds(*r)
            if tail: tail(m - len(M))

    RA = G("runahead", 2)
    ES = G("es", [[0, 3, "4,6", "6,0", "6,5"]])
    NE = ES[-1][1] if ES else 0
    def g2_phase(b, role):
        XR, PK, AC, WR, INB, ACTR = 14, 20, 28, 44, 68, 96
        NR = 6
        P2, GAP2, LEAD = G("p2", 8), G("gap2", 2), G("lead2", 8)
        ra = RA if role == "F" else 0
        steps = [(cc, t) for cc in range(ra) for t in range(7)] + [(cc, t) for cc in range(ra) for t in (7, 8)] + \
                [(cc, t) for cc in range(ra, 7) for t in range(9)]
        N = len(steps); at = {s: n for n, s in enumerate(steps)}
        bpos = {}
        if role == "F":
            bpos[BH] = -1
            bpos[15] = 14 * ra - G("hold15", 6) if ra else 0
        else: bpos[15] = -1
        for cc in range(1, 7):
            if ra == 2 and cc <= 2: bpos[15 + cc] = 2 * at[(2, 0)]
            else: bpos[15 + cc] = max(2 * at[(cc, 0)] - (P2 if cc > ra or ra == 0 else 2), bpos[14 + cc] + 1)
        R = []
        for n, (cc, t) in enumerate(steps):
            w = WR + 4 * (n % NR)
            en = bpos[BH] if (cc < ra and t < 7) else (bpos[15] if cc < ra else bpos[15 + cc])
            war = 2 * (n - NR) + 1
            rel = bpos.get(16 + cc, 10 ** 6) - GAP2
            if cc == 0:
                ena = bpos[BH] if (role == "F" and t < 7) else bpos[15]
                for pb in range(2):
                    R.append((f"ds_read_b128 {vr(ACTR+4*(9*pb+t),4)}, v{vActW} offset:{actoff(t) + pb*1024}", f"w{n}", ena, min(2 * n - LEAD, rel)))
            for u in range(2):
                if t < 7:
                    loc = W2LOC[cc]
                    base, o = (vG2O0, 0) if loc == 0 else ((vG2W2, 0) if loc == RING + 2 * SLOT else (vG2W, loc - RING))
                    o += (96 + 112 * u if t == 6 else 112 * (t // 3) + 32 * (t % 3) + 16 * u) * 128
                else:
                    hd = t - 7
                    base = vG2O0 if (14*hd + 6*u) % 4 == 0 else vG2O2
                    o = WOLOC[cc] + (28*hd + 12*u) * 128
                R.append((f"ds_read_b64_tr_b16 {vr(w+2*u,2)}, v{base} offset:{o}", f"w{n}", max(en, war), min(2 * n - LEAD, rel)))
        pos = [0] * len(R); nxt = 10 ** 6
        for i in reversed(range(len(R))):
            nxt = max(min(R[i][3], nxt - 1), R[i][2], -1); pos[i] = nxt
        sched = {}; prev = -1
        for i, r in enumerate(R):
            p = max(pos[i], r[2], prev, -1)
            n = int(r[1][1:])
            burst = ra == 2 and p == bpos[16] and n < at[(2, 0)] + 4
            while not burst and len(sched.get(p, [])) >= (2 if p >= 0 else G("init2", 10)) and p + 1 < 2 * n - 1 and p + 1 < bpos.get(16 + steps[n][0], 10 ** 6): p += 1
            assert p < 2 * n or p == bpos[15] or burst, (r, p)
            sched.setdefault(p, []).append(r); prev = p
        bars = {}
        for j, p in bpos.items(): bars.setdefault(p, []).append(j)
        def epi(cc):
            ac = AC + 8 * (cc % 2); pk = PK + 4 * (cc % 2)
            b(f"s_lshl_b32 s{sT0}, s{sCH+cc}, 16\ns_add_u32 s{sT0}, s{sT0}, s{sM1}")
            for q in range(4): b(f"v_cvt_pk_bf16_f32 v{pk+q}, v{ac+2*q}, v{ac+2*q+1}")
            if not G("nopst"): b.vmem(f"buffer_store_dwordx4 {vr(pk,4)}, v{vL16}, {sq(SWS)}, s{sT0} offen sc1", f"p{cc}")
        def inbox_load(i):
            if not G("noinb"): b.vmem(f"buffer_load_dwordx4 {vr(INB+4*i,4)}, v{vL16}, {sq(SWS)}, s{sIN+i} offen sc1", f"in{i}")
        def flag_store(st):
            hi = ES[st][1]
            b.need(vm=[f"p{hi-1}"])
            b(f"v_mov_b32 v{vT3}, s{sN0}\ns_lshl_b32 s{sT0}, s{sS}, 2\ns_add_u32 s{sT0}, s{sT0}, s{sFE}\ns_add_u32 s{sT0}, s{sT0}, {st*0x8000}\ns_mov_b64 exec, 1")
            b.vmem(f"buffer_store_dword v{vT3}, v{vL16}, {sq(SWS)}, s{sT0} offen sc1", "fe")
            b("s_mov_b64 exec, -1")
        def flag_poll(st):
            b(f"s_buffer_load_dwordx8 s[{4+8*st}:{11+8*st}], {sq(SWS)}, s{sFE} offset:{st*0x8000}")
        def flag_check(st):
            again, got = lab("ea"), lab("eg")
            q = 4 + 8 * st
            b.smem = True; b.need(drain=True)
            b(f"s_mov_b32 s{sPoll}, 0\ns_add_u32 s{sT3}, s{sFE}, {st*0x8000}")
            for i in range(0, 6, 2): b(f"s_cmp_eq_u64 s[{q+i}:{q+i+1}], s[{sN0}:{sN1}]\ns_cbranch_scc0 {again}")
            b(f"s_cmp_eq_u32 s{q+6}, s{sN0}\ns_cbranch_scc0 {again}\n{got}:")
            if STAMP: b(f"v_writelane_b32 v0, s{sPoll}, 59")
            slow_poll(again, got, vT3, f"v_min_u32 v{vT3}, 6, v{vL}\nv_lshlrev_b32 v{vT3}, 2, v{vT3}", sT3)
            for i in range(*ES[st][:2]): inbox_load(i)
        EV = {}
        for st, (lo, hi, fa, pa, ca) in enumerate(ES):
            EV.setdefault(fa, []).append(lambda st=st: flag_store(st))
            EV.setdefault(pa, []).append(lambda st=st: flag_poll(st))
            EV.setdefault(ca, []).append(lambda st=st: flag_check(st))
        for k, v in G("ins", {"end": list(range(NE, 7))}).items():
            EV.setdefault(k, []).append(lambda v=v: [inbox_load(i) for i in v])
        if role == "A": act_base(b)
        for j in bars.get(-1, []): barrier(b, j)
        for r in sched.get(-1, []): b.ds(*r[:2])
        epi_at = {}
        for cc in range(2 if ra == 2 else 0, 6):
            n = at[(cc, 8)] + 3
            if cc + 2 < 7: n = min(n, at[(cc + 2, 0)] - 1)
            epi_at.setdefault(n, []).append((cc, n - at[(cc, 8)]))
        for n in range(N):
            cc, t = steps[n]
            ac = AC + 8 * (cc % 2); w = WR + 4 * (n % NR)
            for pb in range(2):
                m = 2 * n + pb
                early = []
                for j in bars.get(m, []):
                    barrier(b, j)
                    if ra == 2 and j == 16:
                        early = list(sched.get(m, []))
                        for r in early: b.ds(*r[:2])
                        epi(0); epi(1)
                    elif not early:
                        early = [r for r in sched.get(m, []) if int(r[1][1:]) == n]
                        for r in early: b.ds(*r[:2])
                b.need(lg=[f"w{n}"])
                mfma(b, ac + 4 * pb, w, ACTR + 4 * (9 * pb + t), "0" if (t == 0 and cc < 6) else None)
                for r in sched.get(m, []):
                    if r not in early: b.ds(*r[:2])
            for e, dist in epi_at.get(n, []):
                if dist < 3: b(f"s_nop {5 - 2 * dist}")
                epi(e)
            if (cc, t) == (3, 4):
                b(f"""v_and_b32 v{vT0}, 15, v{vL}
v_bfe_u32 v{vT1}, v{vL}, 1, 2
s_lshr_b32 s{sT1}, s{sCW}, 1
v_xor_b32 v{vT1}, s{sT1}, v{vT1}
v_lshlrev_b32 v{vT1}, 5, v{vT1}
v_lshl_add_u32 v{vT1}, v{vT0}, 7, v{vT1}
v_lshrrev_b32 v{vT2}, 4, v{vL}
s_lshl_b32 s{sT0}, s{sRH}, 12
s_add_u32 s{sT0}, s{sT0}, {XRES}
v_lshlrev_b32 v{vT2}, 3, v{vT2}
v_add3_u32 v{vT1}, v{vT1}, v{vT2}, s{sT0}
s_lshl_b32 s{sT1}, s{sT1}, 5
s_add_u32 s{sT1}, s{sT1}, {XRES + 8192}
v_add_u32 v{vT2}, s{sT1}, v{vT2}""")
                b.ds(f"ds_read_b64 {vr(XR,2)}, v{vT1}", "xr")
                b.ds(f"ds_read_b64 {vr(XR+2,2)}, v{vT1} offset:2048", "xr")
                b.ds(f"ds_read_b64 {vr(XR+4,2)}, v{vT2}", "xr")
            if (cc, t) == (4, 4):
                b(f"""s_lshl_b32 s{sT0}, s{sRH}, 6
s_add_u32 s{sT0}, s{sT0}, s{sROW0}
v_lshl_add_u32 v{vT0}, v{vT0}, 1, s{sT0}
v_bfe_u32 v{vT1}, v{vL}, 4, 1
v_lshl_add_u32 v{vT0}, v{vT1}, 5, v{vT0}
v_mul_u32_u24 v{vT0}, 896, v{vT0}
v_lshrrev_b32 v{vT2}, 5, v{vL}
v_lshl_add_u32 v{vXE}, v{vT2}, 4, v{vT0}
v_mov_b32 v{vXO}, 0x3f800000""")
            if not G("noinb"):
                for fn in EV.get(f"{cc},{t}", []): fn()
            if (cc, t) == (5, 5):
                b.need(lg=["xr"])
                for d in range(2):
                    b(f"v_lshlrev_b32 v{vT0}, 16, v{XR+4+d}\nv_and_b32 v{vT1}, 0xffff0000, v{XR+4+d}")
                    for pb in range(2):
                        q = AC + 4 * pb + 2 * d
                        b(f"v_dot2_f32_bf16 v{q}, v{XR+2*pb+d}, s{sLO}, v{vT0}\nv_dot2_f32_bf16 v{q+1}, v{XR+2*pb+d}, v{vXO}, v{vT1}")
        own, done = lab("own"), lab("done")
        if STAMP: b.need(drain=True); b(f"{SOP} s[64:65]")
        b(f"s_cmp_lg_u32 s{sS}, 7\ns_cbranch_scc1 {own}\ns_nop 5")
        sv = list(b.vm); epi(6); b.vm = sv
        b(f"s_branch {done}\n{own}:")
        if not G("noinb"):
            for fn in EV.get("pre", []) + EV.get("end", []): fn()
        b(f"s_mov_b32 s{sPoll}, 0")
        def accum(slots):
            for i in slots:
                b.need(vm=[f"in{i}"])
                for d in range(4):
                    b(f"v_dot2_f32_bf16 v{AC+2*d}, v{INB+4*i+d}, s{sLO}, v{AC+2*d}\nv_dot2_f32_bf16 v{AC+2*d+1}, v{INB+4*i+d}, v{vXO}, v{AC+2*d+1}")
        def group(chk, rel):
            top, ok = lab("g"), lab("ok")
            b.need(vm=[f"in{i}" for i in chk])
            b(f"{top}:")
            regs = [INB + 4 * i + d for i in chk for d in range(4)]
            b(f"v_max3_u32 v{vT0}, v{regs[0]}, v{regs[1]}, v{regs[2]}\nv_max3_u32 v{vT1}, v{regs[3]}, v{regs[4]}, v{regs[5]}")
            k = 6
            while k < len(regs):
                tt = vT0 + (k // 2) % 2
                b(f"v_max3_u32 v{tt}, v{tt}, v{regs[k]}, v{regs[k+1]}"); k += 2
            b(f"""v_max_u32 v{vT0}, v{vT0}, v{vT1}
v_cmp_eq_u32 vcc, -1, v{vT0}
s_add_u32 s{sPoll}, s{sPoll}, 1
s_cmp_gt_u32 s{sPoll}, {SPIN}
s_cbranch_vccz {ok}
s_cbranch_scc1 {ok}
s_waitcnt vmcnt(0)""")
            for i in rel:
                r0 = INB + 4 * i
                b(f"""v_max3_u32 v{vT0}, v{r0}, v{r0+1}, v{r0+2}
v_max_u32 v{vT0}, v{vT0}, v{r0+3}
v_cmp_eq_u32 vcc, -1, v{vT0}
s_nop 0
s_mov_b64 exec, vcc
buffer_load_dwordx4 {vr(r0,4)}, v{vL16}, {sq(SWS)}, s{sIN+i} offen sc1
s_mov_b64 exec, -1""")
            b(f"s_waitcnt vmcnt(0)\ns_branch {top}\n{ok}:")
            accum(chk)
        if not G("noinb"):
            b("s_nop 4")
            accum(range(NE))
            if STAMP: b(f"{SOP} s[66:67]")
            group(list(range(NE, 7)), range(NE, 7))
        if STAMP: b(f"{SOP} s[98:99]")
        b("s_nop 7" if G("noinb") else "s_nop 1")
        for q in range(4): b(f"v_cvt_pk_bf16_f32 v{PK+q}, v{AC+2*q}, v{AC+2*q+1}")
        b(f"s_nop 1\nv_permlane16_swap_b32 v{PK}, v{PK+2}\nv_permlane16_swap_b32 v{PK+1}, v{PK+3}\ns_nop 0")
        b(f"buffer_store_dwordx4 {vr(PK,4)}, v{vXE}, {sq(SOUT)}, s{sM0} offen {G('ost','')}")
        if STAMP: b(f"s_waitcnt lgkmcnt(0)\nv_writelane_b32 v0, s66, 39\nv_writelane_b32 v0, s98, 40\nv_writelane_b32 v0, s{sPoll}, 61")
        b(f"{done}:")
        if STAMP: b(f"s_waitcnt lgkmcnt(0)\nv_writelane_b32 v0, s64, 38\ns_branch L_fin")
        else: b("s_endpgm")

    f = c.fork()
    vWA, vWB, vWA2, vWB2, vC1, vBi = 14, 15, 16, 17, 18, 19
    FACC = 24; FBUF = (80, 116)
    srd(f, SB1, 14, 1792 * 2); srd(f, SDBG, 24, 256)
    setup_s(f); setup_v1(f); setup_v2(f)
    f(f"""s_mul_i32 s{sT3}, s{sS}, 448
s_mul_i32 s{sT1}, s{sHI}, 224
s_add_u32 s{sT3}, s{sT3}, s{sT1}
s_lshl_b32 s{sT2}, s{sA}, 8
s_add_u32 s{sT2}, s{sT2}, {BIAS}
s_mov_b32 m0, s{sT2}""")
    f(f"""
v_lshrrev_b32 v{vT2}, 4, v{vL}
v_lshlrev_b32 v{vT0}, 3, v{vT2}
v_add_u32 v{vBi}, s{sT2}, v{vT0}
v_bfe_u32 v{vT1}, v{vL}, 2, 2
v_add_u32 v{vT0}, v{vT0}, v{vT1}
v_mul_u32_u24 v{vT0}, 448, v{vT0}
v_and_b32 v{vT1}, 3, v{vL}
v_lshl_add_u32 v{vT0}, v{vT1}, 3, v{vT0}
s_add_u32 s{sT1}, s{sT1}, {RING}
v_add_u32 v{vT0}, s{sT1}, v{vT0}
v_and_b32 v{vT1}, 1, v{vT2}
s_lshl_b32 s{sT2}, s{sHI}, 6
s_sub_u32 s{sT2}, 32, s{sT2}
v_mul_lo_u32 v{vT1}, v{vT1}, s{sT2}
v_add_u32 v{vWA}, v{vT0}, v{vT1}
v_sub_u32 v{vWB}, v{vT0}, v{vT1}
v_add_u32 v{vWA2}, {2*SLOT}, v{vWA}
v_add_u32 v{vWB2}, {2*SLOT}, v{vWB}
v_mov_b32 v{vC1}, {f2u(-2.3022081981)}
s_mov_b32 s{sC2}, {f2u(-2.3022081981*0.044715)}
""")
    xbases(f)
    stamp(f, 1)
    def bias_dma():
        f("s_mov_b64 exec, 0x3fff")
        f.vmem(f"buffer_load_dwordx4 v{vL16}, {sq(SB1)}, s{sT3} offen lds", "bias")
        f("s_mov_b64 exec, -1")
    ln_main(f, bias_dma)
    stamp(f, 3)
    f("s_setprio 0")
    f.need(vm=["bias"])
    for cb in range(7): f.ds(f"ds_read_b64 {vr(FACC+8*cb+6,2)}, v{vBi} offset:{32*cb}", "bias")
    act_base(f)
    f.smem = True; f.need(drain=True)
    for cb in range(7):
        d = FACC + 8 * cb
        f(f"""v_lshlrev_b32 v{d}, 16, v{d+6}
v_and_b32 v{d+1}, 0xffff0000, v{d+6}
v_lshlrev_b32 v{d+2}, 16, v{d+7}
v_and_b32 v{d+3}, 0xffff0000, v{d+7}""")
    f("s_setprio 2")
    def f_reads(ks):
        B = FBUF[ks % 2]; slot = (ks // 2) % 3; out = []
        xb = vXE if ks % 2 == 0 else vXO
        for pb in range(2):
            out.append((f"ds_read_b128 {vr(B+4*pb,4)}, v{xb} offset:{pb*1024 + ks*KP}", f"x{ks}"))
        for cb in range(7):
            base = (vWA if cb % 2 == 0 else vWB) + (2 if slot == 2 else 0)
            o = (SLOT if slot == 1 else 0) + (ks % 2) * 14336 + cb * 32
            for u in range(2):
                out.append((f"ds_read_b64_tr_b16 {vr(B+8+4*cb+2*u,2)}, v{base} offset:{o + u*1792}", f"w{ks}_{cb}"))
        return out
    def f_mfmas(ks):
        B = FBUF[ks % 2]; out = []
        for cb in range(7):
            for pb in ((1, 0) if ks == 0 else (0, 1)):
                cin = vr(FACC + 8*cb, 4) if ks == 0 else None
                out.append((lambda cb=cb, pb=pb, cin=cin: mfma(f, FACC + 8*cb + 4*pb, B + 8 + 4*cb, B + 4*pb, cin), [f"x{ks}", f"w{ks}_{cb}"]))
        return out
    g1_phase(f, 0, f_reads, f_mfmas, G("pF", 10), G("gapF", 4))
    f(f"s_setprio {G('gprio', 0)}")
    H, GT = 80, 108
    f(f"""s_lshl_b32 s{sT1}, s{sHI}, 3
s_mul_i32 s{sT2}, s{sHI}, {3*4096}
v_add_u32 v{vWA}, s{sT1}, v{vActW}
v_add_u32 v{vWB}, s{sT2}, v{vActW}""")
    ops = []
    for cb in range(7):
        a0 = FACC + 8 * cb; E = range(8) if not G("nogelu") else range(0)
        for e in E: ops.append((4, f"v_mul_f32 v{GT+e}, v{a0+e}, v{a0+e}"))
        for e in E: ops.append((4, f"v_fma_f32 v{GT+e}, v{GT+e}, s{sC2}, v{vC1}"))
        for e in E: ops.append((4, f"v_mul_f32 v{GT+e}, v{GT+e}, v{a0+e}"))
        for e in E: ops.append((8, f"v_exp_f32 v{GT+e}, v{GT+e}"))
        for e in E: ops.append((4, f"v_add_f32 v{GT+e}, 1.0, v{GT+e}"))
        for e in E: ops.append((8, f"v_rcp_f32 v{GT+e}, v{GT+e}"))
        for e in E: ops.append((4, f"v_mul_f32 v{GT+e}, v{GT+e}, v{a0+e}"))
        for q in range(4):
            d = H + 24 + q if cb == 6 else H + 8 * (cb // 2) + 4 * (q // 2) + 2 * (cb % 2) + q % 2
            ops.append((4, f"v_cvt_pk_bf16_f32 v{d}, v{GT+2*q}, v{GT+2*q+1}"))
    sl = []; gf = get_nonce(f, vT0, 2)
    bud = G("gbud", [230, 316, 316, 316, 316, 317, 317]); acc = 0; j = 8; lim = bud[0]
    for k, (cost, op) in enumerate(ops):
        if acc + cost > lim and j <= 14:
            barrier(f, j); j += 1
            if j in (10, 11): next(gf)
            lim += bud[j - 8] if j <= 14 else 10 ** 6
        acc += cost; f(op)
        if sl and k % 4 == 3: f(sl.pop(0))
    while j <= 14:
        barrier(f, j); j += 1
    f("s_setprio 3")
    for p in range(3):
        for pb in range(2): f.ds(f"ds_write_b128 v{vWB}, {vr(H+8*p+4*pb,4)} offset:{actoff(p) + pb*1024}", "hw")
    f.ds(f"ds_write2st64_b64 v{vWA}, {vr(H+24,2)}, {vr(H+26,2)} offset0:{actoff(6)//512} offset1:{(actoff(6) + 1024)//512}", "hw")
    f(f"s_setprio {G('f2prio', 1)}")
    g2_phase(f, "F")
    T_f2 = f.cut()

    w = c.fork()
    vXPE, vXPO, vQA, vQA2, vZ, vMask, vPM = 14, 15, 16, 17, 18, 20, (11, 13)
    AACC = 32; ABUF = (96, 132); vHalo = 32
    w("L_A2:")
    srd(w, SX, 4, 2048 * 896)
    stamp(w, 1)
    ln_main(w)
    stamp(w, 3)
    HR = (vHalo, vHalo + 4)
    halo_loads(w, HR)
    w("s_setprio 0")
    barrier(w, 0)
    srd(w, SDBG, 24, 256)
    setup_s(w)
    barrier(w, 1)
    hl = ln_core(w, HR, 8, UNP, ["h0", "h1"], 5, pk=False)
    assert next(hl) == "stats"
    barrier(w, 2)
    gn = get_nonce(w, 19, 1); next(gn)
    for _ in hl: pass
    barrier(w, 3)
    next(gn)
    w(f"""
s_lshl_b32 s{sT3}, s{sS}, 5
s_mul_i32 s{sT0}, s{sA}, 7
s_add_u32 s{sT3}, s{sT3}, s{sT0}
s_lshl_b32 s{sT3}, s{sT3}, 7
s_add_u32 s{sT3}, s{sT3}, {WS_F1}
""")
    PQ = [4, 8, 12, 16, 20, 24, 56]
    def p1_issue():
        for i, q in enumerate(PQ): w(f"s_buffer_load_dwordx4 {sq(q)}, {sq(SWS)}, s{sT3} offset:{128*i}")
    w(f"""v_lshrrev_b32 v{vT0}, 5, v{vL}
s_lshl_b32 s{sT0}, s{sA}, 1
v_add_u32 v{vT0}, s{sT0}, v{vT0}
v_and_b32 v{vT1}, 7, v{vL}
v_xor_b32 v{vT0}, v{vT0}, v{vT1}
v_lshlrev_b32 v{vT0}, 4, v{vT0}
v_and_b32 v{vT1}, 3, v{vL}
v_lshl_add_u32 v{vT0}, v{vT1}, 7, v{vT0}
v_bfe_u32 v{vT1}, v{vL}, 2, 3
v_mul_u32_u24 v{vT1}, {KP}, v{vT1}
v_add_u32 v{vActW}, v{vT0}, v{vT1}
""")
    w(f"s_setprio {G('hwprio', 0)}")
    w(f"ds_write_b128 v{vActW}, {vr(HR[0],4)} offset:{HALO}")
    w("s_mov_b32 exec_lo, 0x00ffffff\ns_mov_b32 exec_hi, 0x00ffffff")
    w(f"ds_write_b128 v{vActW}, {vr(HR[1],4)} offset:{HALO + 8*KP}")
    w("s_mov_b64 exec, -1\ns_setprio 0")
    if not G("p1late"): p1_issue()
    barrier(w, 4)
    if G("p1late"): p1_issue()
    xbases(w)
    w.smem = True
    chk, retry, got = lab("pc"), lab("pr"), lab("pg")
    w.need(drain=True)
    w(f"s_mov_b32 s{sPoll}, 0\n{chk}:")
    for q in PQ:
        for h in (0, 2): w(f"s_cmp_eq_u64 s[{q+h}:{q+h+1}], s[{sN0}:{sN1}]\ns_cbranch_scc0 {retry}")
    w(f"{got}:")
    if STAMP: w(f"v_writelane_b32 v0, s{sPoll}, 60")
    slow_poll(retry, got, 19, f"v_min_u32 v19, 27, v{vL}\nv_lshrrev_b32 v18, 2, v19\nv_and_b32 v19, 3, v19\nv_lshlrev_b32 v19, 2, v19\nv_lshl_add_u32 v19, v18, 7, v19", sT3)
    barrier(w, 5)
    w(f"""
v_lshrrev_b32 v{vT0}, 5, v{vL}
v_bfe_u32 v{vT1}, v{vL}, 2, 3
v_lshl_add_u32 v{vT0}, v{vT0}, 4, v{vT1}
v_mul_u32_u24 v{vT0}, 352, v{vT0}
v_and_b32 v{vT1}, 3, v{vL}
v_lshl_add_u32 v{vT0}, v{vT1}, 3, v{vT0}
s_mul_i32 s{sT0}, s{sHI}, 56
s_add_u32 s{sT0}, s{sT0}, {RING}
v_add_u32 v{vQA}, s{sT0}, v{vT0}
v_add_u32 v{vQA2}, {2*SLOT}, v{vQA}
v_lshrrev_b32 v{vT2}, 4, v{vL}
v_and_b32 v{vT0}, 7, v{vL}
v_xor_b32 v{vT0}, v{vT0}, v{vT2}
v_lshlrev_b32 v{vT0}, 4, v{vT0}
v_lshl_add_u32 v{vT0}, v{vT2}, 7, v{vT0}
v_add_u32 v{vT0}, {HALO}, v{vT0}
v_subrev_u32 v{vT1}, 1024, v{vXE}
s_cmp_eq_u32 s{sRH}, 0
s_cselect_b64 vcc, -1, 0
s_cselect_b32 s{sT0}, 64, 192
v_cndmask_b32 v{vXPE}, v{vT1}, v{vT0}, vcc
v_xor_b32 v{vXPO}, s{sT0}, v{vXPE}
v_cmp_ne_u32 vcc, 0, v{vT2}
s_lshl_b32 s{sT0}, s{sRH}, 11
s_lshl_b32 s{sT1}, s{sHI}, 12
v_cndmask_b32 v{vZ}, 0, -1, vcc
s_add_u32 s{sT0}, s{sT0}, s{sT1}
v_add_u32 v{vActW}, s{sT0}, v{vL16}
""")
    setup_v1(w)
    barrier(w, 6)
    w(f"""
v_and_b32 v{vT0}, 15, v{vL}
v_lshrrev_b32 v{vT2}, 4, v{vL}
v_lshlrev_b32 v{vT2}, 2, v{vT2}
v_sub_u32 v{vT0}, v{vT0}, v{vT2}
v_mov_b32 v{vT3}, {f2u(-1e30)}
v_mov_b32 v19, 0xffff
s_lshr_b32 s{sT0}, s{sRB}, 1
s_or_b32 s{sT0}, s{sT0}, s{sRH}
s_cmp_eq_u32 s{sT0}, 0
s_cselect_b32 s{sT1}, 0, 8
s_mov_b32 s{sC2}, {f2u(28 ** -0.5 * math.log2(math.e))}
""")
    for jj in range(4):
        w(f"""
v_subrev_u32 v{vT1}, {jj}, v{vT0}
v_add_u32 v{vT2}, 16, v{vT1}
v_cmp_gt_u32 s[4:5], 8, v{vT1}
v_cmp_gt_u32 s[6:7], 8, v{vT2}
v_cmp_gt_u32 vcc, s{sT1}, v{vT2}
v_cndmask_b32 v{vMask+4+jj}, v{vT3}, 0, s[4:5]
v_cndmask_b32 v{vMask+jj}, v{vT3}, 0, s[6:7]
v_cndmask_b32 v{vMask+8+jj}, v{vT3}, 0, vcc
""")
        if jj % 2 == 0: w(f"v_cndmask_b32 v{vPM[jj//2]}, 0, v19, s[4:5]")
        else: w(f"v_cndmask_b32 v{vT1}, 0, v19, s[4:5]\nv_lshl_or_b32 v{vPM[jj//2]}, v{vT1}, 16, v{vPM[jj//2]}")
    w(f"s_setprio {G('aprio',2)}")
    def a_reads(ks):
        B = ABUF[ks % 2]; slot = (7 + ks // 2) % 3; out = []
        xb = vXE if ks % 2 == 0 else vXO
        xp = vXPE if ks % 2 == 0 else vXPO
        out.append((f"ds_read_b128 {vr(B+4,4)}, v{xb} offset:{ks*KP}", f"x{ks}"))
        out.append((f"ds_read_b128 {vr(B+8,4)}, v{xb} offset:{1024 + ks*KP}", f"x{ks}"))
        base = vQA2 if slot == 2 else vQA
        for sec in range(3):
            if sec == 1: out.append((f"ds_read_b128 {vr(B,4)}, v{xp} offset:{ks*KP}", f"xp{ks}"))
            for db in range(2):
                o = (SLOT if slot == 1 else 0) + (ks % 2) * 32 * 352 + sec * 112 + db * 24
                for u in range(2):
                    out.append((f"ds_read_b64_tr_b16 {vr(B+12+4*(2*sec+db)+2*u,2)}, v{base} offset:{o + u*8*352}", f"w{ks}_{sec}{db}"))
        return out
    def a_mfmas(ks):
        B = ABUF[ks % 2]; out = []
        c0 = "0" if ks == 0 else None
        for db in range(2):
            for qb in range(2):
                out.append((lambda db=db, qb=qb: mfma(w, AACC + (2*db+qb)*4, B + 12 + 4*db, B + 4 + 4*qb, c0), [f"x{ks}", f"w{ks}_0{db}"]))
        for db in range(2):
            for kb in range(3):
                out.append((lambda db=db, kb=kb: mfma(w, AACC + 16 + (3*db+kb)*4, B + 20 + 4*db, B + 4*kb, c0), [f"xp{ks}", f"w{ks}_1{db}"]))
        for db in range(2):
            for kb in range(3):
                out.append((lambda db=db, kb=kb: mfma(w, AACC + 40 + (3*db+kb)*4, B + 4*kb, B + 28 + 4*db, c0), [f"w{ks}_2{db}"]))
        return out
    QP, KPk, VP, ONES, SS, MM, PP, LL, OO = 96, 104, 116, 128, 132, 148, 48, 160, 32
    tl = []
    for q in range(4): tl.append(f"v_mov_b32 v{ONES+q}, 0x3f803f80")
    for db in range(2):
        for qb in range(2):
            s0 = AACC + (2*db+qb)*4
            for h in range(2): tl.append(f"v_cvt_pk_bf16_f32 v{QP+4*qb+2*db+h}, v{s0+2*h}, v{s0+2*h+1}")
    for db in range(2):
        for kb in range(3):
            s0 = AACC + 16 + (3*db+kb)*4
            for h in range(2): tl.append(f"v_cvt_pk_bf16_f32 v{KPk+4*kb+2*db+h}, v{s0+2*h}, v{s0+2*h+1}")
    for qb in range(2):
        for h in range(2): tl.append(f"v_and_b32 v{QP+4*qb+2+h}, v{vZ}, v{QP+4*qb+2+h}")
    def a_tail(m):
        if m >= -10:
            for _ in range(2): w(tl.pop(0))
    g1_phase(w, 7, a_reads, a_mfmas, G("pA", 10), G("gapA", 3), a_tail)
    stamp(w, 5)
    for x in tl: w(x)
    vc = []
    for db in range(2):
        for kb in range(3):
            s0 = AACC + 40 + (3*db+kb)*4
            for h in range(2): vc.append(f"v_cvt_pk_bf16_f32 v{VP+6*db+2*kb+h}, v{s0+2*h}, v{s0+2*h+1}")
    def fill(n):
        for _ in range(n): w(vc.pop(0) if vc else "s_nop 0")
    for qb in range(2):
        for t in range(2):
            m = vMask + 4 if t == 1 else (vMask + 8 if qb == 0 else vMask)
            mfma(w, SS + 8*qb + 4*t, KPk + 4*(qb+t), QP + 4*qb, vr(m, 4))
    if G("bhpos", 1) == 0: barrier(w, BH)
    fill(4); w("s_nop 1")
    T, U = vT0, vT1
    for qb in range(2):
        for e in range(4): w(f"v_max_f32 v{MM+4*qb+e}, v{SS+8*qb+e}, v{SS+8*qb+4+e}")
    for qb in range(2): w(f"v_max3_f32 v{T+qb}, v{MM+4*qb}, v{MM+4*qb+1}, v{MM+4*qb+2}")
    for qb in range(2): w(f"v_max_f32 v{T+qb}, v{T+qb}, v{MM+4*qb+3}")
    fill(2); w(f"v_permlane32_swap_b32 v{T}, v{U}"); fill(1)
    w(f"v_max_f32 v{T}, v{T}, v{U}\nv_mov_b32 v{U}, v{T}")
    fill(2); w(f"v_permlane16_swap_b32 v{T}, v{U}"); fill(1)
    w(f"v_max_f32 v{T}, v{T}, v{U}\nv_mul_f32 v{U}, s{sC2}, v{T}\nv_mul_f32 v{T}, s{sC2}, v{T}")
    fill(2); w(f"v_permlane32_swap_b32 v{T}, v{U}"); fill(1)
    assert not vc
    if G("bhpos", 1) == 1: barrier(w, BH)
    for qb in range(2):
        m0 = MM + 4*qb
        for e in range(4): w(f"v_fma_f32 v{m0+e}, v{m0+e}, s{sC2}, -v{T+qb}")
        for e in range(4): w(f"v_exp_f32 v{m0+e}, v{m0+e}")
        w(f"v_cvt_pk_bf16_f32 v{m0}, v{m0}, v{m0+1}\nv_cvt_pk_bf16_f32 v{m0+2}, v{m0+2}, v{m0+3}")
        for h in range(2): w(f"v_bfi_b32 v{PP+4*qb+h}, v{vPM[h]}, 0, v{m0+2*h}")
        for h in range(2): w(f"v_and_b32 v{PP+4*qb+2+h}, v{vPM[h]}, v{m0+2*h}")
        if qb == 0: w("s_nop 1")
        else: setup_v2(w)
        mfma(w, LL + 4*qb, ONES, PP + 4*qb, "0")
        for db in range(2): mfma(w, OO + 8*qb + 4*db, VP + 6*db + 2*qb, PP + 4*qb, "0")
    for qb in range(2):
        w(f"v_rcp_f32 v{LL+4*qb}, v{LL+4*qb}\ns_nop 0\nv_and_b32 v{LL+4*qb+1}, v{vZ}, v{LL+4*qb}")
        for db in range(2):
            for e in range(4): w(f"v_mul_f32 v{OO+8*qb+4*db+e}, v{LL+4*qb+db}, v{OO+8*qb+4*db+e}")
        for q in range(4): w(f"v_cvt_pk_bf16_f32 v{PP+8+4*qb+q}, v{OO+8*qb+2*q}, v{OO+8*qb+2*q+1}")
    for qb in range(2):
        w.ds(f"ds_write_b128 v{vActW}, {vr(PP+8+4*qb,4)} offset:{ACT + qb*1024}", "ow")
    w(f"s_setprio {G('a2prio', 1)}")
    stamp(w, 6)
    g2_phase(w, "A")
    T_a2 = w.cut()

    l = a.fork(); l.nostamp = G('lite') or G('nol')
    xp = 1 if G('pfg', 1) else xm
    vW1a, vW1b, vW2A, vPF, vR0, vR1, vNon, vZero, vRP, vSent, vPA, vXR = 8, 9, 10, 11, 12, 13, 14, 15, 16, 24, 28, 29
    l("L_L:")
    l(f"s_setprio {G('lprio0',3)}")
    common2(l)
    l(f"""
s_or_b32 s{sT3}, s2, s{sW}
s_cmp_lg_u32 s{sT3}, 0
s_cbranch_scc1 L_nolead0
s_memrealtime s[{sN0}:{sN1}]
L_nolead0:
""")
    for i, d in ((0, vR0), (1, vR1)):
        l(f"""
v_add_u32 v{vT0}, {64*i}, v{vL}
v_mul_u32_u24 v{vT2}, 2979, v{vT0}
v_lshrrev_b32 v{vT2}, 16, v{vT2}
v_mul_u32_u24 v{vT3}, 22, v{vT2}
v_sub_u32 v{vT0}, v{vT0}, v{vT3}
v_min_u32 v{vT0}, 20, v{vT0}
v_mul_u32_u24 v{vT3}, 37, v{vT0}
v_lshrrev_b32 v{vT3}, 8, v{vT3}
v_mul_u32_u24 v{vT3}, {896-112}, v{vT3}
v_lshl_add_u32 v{vT0}, v{vT0}, 4, v{vT3}
v_mul_u32_u24 v{vT2}, 2688, v{vT2}
v_add_u32 v{d}, v{vT0}, v{vT2}
""")
    l(f"""
s_and_b32 s{sT2}, s{sA}, 1
s_lshl_b32 s{sT2}, s{sT2}, 3
s_lshr_b32 s{sT1}, s{sA}, 1
s_lshl_b32 s{sT1}, s{sT1}, 2
s_add_u32 s{sT2}, s{sT2}, s{sT1}
s_lshl_b32 s{sT1}, s{sRB}, 4
s_add_u32 s{sT2}, s{sT2}, s{sT1}
s_mul_i32 s{sT2}, s{sT2}, 2688
s_mul_i32 s{sT1}, s{sS}, 112
s_add_u32 s{sC2}, s{sT2}, s{sT1}
s_and_b32 s{sJJ}, s{sRB}, {32//xp-1}
s_lshl_b32 s{sT1}, s{sJJ}, 2
s_add_u32 s{sRH}, s{sT1}, s{sA}
s_mul_i32 s{sT1}, s{sRH}, {xp}
v_min_u32 v{vT1}, {4*xp-1}, v{vL}
v_lshrrev_b32 v{vT2}, 2, v{vT1}
v_add_u32 v{vT2}, s{sT1}, v{vT2}
v_and_b32 v{vT1}, 3, v{vT1}
v_mul_u32_u24 v{vT2}, 3584, v{vT2}
v_lshl_add_u32 v{vPA}, v{vT1}, 7, v{vT2}
s_mul_i32 s{sW1o}, s{sS}, 448
s_and_b32 s{sHI}, s{sW1o}, 0xffffff80
v_mov_b32 v{vZero}, 0
s_waitcnt lgkmcnt(0)
""")
    mark(l, "ka")
    srd(l, SWQ, 6, 448 * 1344 * 2); srd(l, SW1, 12, 448 * 1792 * 2)
    def op_pfa():
        l.vmem(f"buffer_load_dword v{vPF}, v{vPA}, {sq(SW1)}, s{sHI} offen {G('ntw','')}", "pf")
    def op_rpl():
        l.vmem(f"buffer_load_dwordx4 {vr(vRP,4)}, v{vR0}, {sq(SWQ)}, s{sC2} offen {G('ntr','')}", "rp")
        l("s_mov_b64 exec, 0xffffff")
        l.vmem(f"buffer_load_dwordx4 {vr(vRP+4,4)}, v{vR1}, {sq(SWQ)}, s{sC2} offen {G('ntr','')}", "rp")
        l("s_mov_b64 exec, -1")
    def op_init():
        srd(l, SDBG, 24, 256)
        l(f"""
s_cmp_lg_u32 s{sT3}, 0
s_cbranch_scc1 L_nolead1
s_or_b32 s{sN0}, s{sN0}, 1
v_mov_b32 v{vNon}, s{sN0}
v_lshlrev_b32 v{vT0}, 6, v{vL}
s_mov_b64 exec, 7
buffer_store_dword v{vNon}, v{vT0}, {sq(SDBG)}, 0 offen sc1
s_mov_b64 exec, -1
L_nolead1:
""")
        srd(l, SWS, 26, 0x10000000); srd(l, SW2, 16, 1792 * 448 * 2); srd(l, SWO, 8, 448 * 448 * 2)
        srd(l, SX, 4, 2048 * 896); srd(l, SB2, 18, 896)
        first_stamps(l)
        l(f"""
v_cmp_le_u32 vcc, 28, v{vL}
v_xor_b32 v{vW1b}, 32, v{vL16}
v_mov_b32 v{vT3}, {3584-448}
v_cndmask_b32 v{vT0}, 0, v{vT3}, vcc
v_add_u32 v{vW1a}, v{vL16}, v{vT0}
v_add_u32 v{vW1b}, v{vW1b}, v{vT0}
s_mul_i32 s{sT1}, s{sA}, {16*3584}
s_add_u32 s{sW1o}, s{sW1o}, s{sT1}
s_mul_i32 s{sM0}, s{sA}, 7168
""")
    def op_pfb():
        l(f"""
s_mul_i32 s{sT1}, s{sRH}, {10*xp}
s_add_u32 s{sT1}, s{sT1}, 512
v_min_u32 v{vT1}, {10*xp-1}, v{vL}
v_add_u32 v{vT1}, s{sT1}, v{vT1}
v_lshrrev_b32 v{vT2}, 2, v{vT1}
v_and_b32 v{vT1}, 3, v{vT1}
v_mul_u32_u24 v{vT2}, 3584, v{vT2}
v_lshl_add_u32 v{vT1}, v{vT1}, 7, v{vT2}
""")
        l.vmem(f"buffer_load_dword v{vPF}, v{vT1}, {sq(SW1)}, s{sHI} offen {G('ntw','')}", "pf")
    def op_pf2():
        per = 49 * xp; pw = (per + 3) // 4
        l(f"""
s_mul_i32 s{sT2}, s{sJJ}, {per}
s_mul_i32 s{sT1}, s{sA}, {pw}
v_min_u32 v{vT1}, {pw-1}, v{vL}
v_add_u32 v{vT1}, s{sT1}, v{vT1}
v_min_u32 v{vT1}, {per-1}, v{vT1}
v_add_lshl_u32 v{vT1}, v{vT1}, s{sT2}, 7
s_mul_i32 s{sT1}, s{sS}, {224*896}
""")
        l.vmem(f"buffer_load_dword v{vPF}, v{vT1}, {sq(SW2)}, s{sT1} offen {G('nt2','')}", "pf2")
        per = 13 * xp; pw = (per + 3) // 4
        l(f"""
s_mul_i32 s{sT2}, s{sJJ}, {per}
s_mul_i32 s{sT1}, s{sA}, {pw}
v_min_u32 v{vT1}, {pw-1}, v{vL}
v_add_u32 v{vT1}, s{sT1}, v{vT1}
v_min_u32 v{vT1}, {per-1}, v{vT1}
v_add_u32 v{vT1}, s{sT2}, v{vT1}
v_min_u32 v{vT1}, 391, v{vT1}
v_lshlrev_b32 v{vT1}, 7, v{vT1}
s_mul_i32 s{sT1}, s{sS}, {56*896}
""")
        l.vmem(f"buffer_load_dword v{vPF}, v{vT1}, {sq(SWO)}, s{sT1} offen {G('nt2','')}", "pf2")
    def op_g(k):
        if k < 3:
            l(f"""
s_mul_i32 s{sT2}, s{sRB}, 49
s_mul_i32 s{sT1}, s{sA}, 5
s_add_u32 s{sT1}, s{sT1}, {17*k}
v_min_u32 v{vT1}, 4, v{vL}
v_add_u32 v{vT1}, s{sT1}, v{vT1}
v_min_u32 v{vT1}, {min(17*k+16, 48)}, v{vT1}
v_add_lshl_u32 v{vT1}, v{vT1}, s{sT2}, 7
s_mul_i32 s{sT1}, s{sS}, {224*896}
""")
            l.vmem(f"buffer_load_dword v{vPF}, v{vT1}, {sq(SW2)}, s{sT1} offen {G('nt2','')}", "pf2")
        else:
            l(f"""
s_mul_i32 s{sT2}, s{sRB}, 13
s_lshl_b32 s{sT1}, s{sA}, 2
v_min_u32 v{vT1}, 3, v{vL}
v_add_u32 v{vT1}, s{sT1}, v{vT1}
v_min_u32 v{vT1}, 12, v{vT1}
v_add_u32 v{vT1}, s{sT2}, v{vT1}
v_min_u32 v{vT1}, 391, v{vT1}
v_lshlrev_b32 v{vT1}, 7, v{vT1}
s_mul_i32 s{sT1}, s{sS}, {56*896}
""")
            l.vmem(f"buffer_load_dword v{vPF}, v{vT1}, {sq(SWO)}, s{sT1} offen {G('nt2','')}", "pf2")
    def op_tlb():
        l(f"s_mul_i32 s{sT0}, s{sRB}, {7*65536}")
        l.vmem(f"buffer_load_dword v{vPF}, v{vZero}, {sq(SWS)}, s{sT0} offen nt", "pf2")
        l.vmem(f"global_load_dword v{vPF}, v{vZero}, s[22:23] nt", "pf2")
    def op_b2():
        l(f"""s_lshl_b32 s{sT1}, s{sS}, 7
s_mov_b32 m0, {XRES + 8192}
s_mov_b64 exec, 0xff""")
        l.vmem(f"buffer_load_dwordx4 v{vL16}, {sq(SB2)}, s{sT1} offen lds", "xr")
        l("s_mov_b64 exec, -1")
    spl = []
    def op_spi():
        l(f"""s_mul_i32 s60, s{sS}, {224*896}
s_mul_i32 s{sT0}, s{sRB}, {7*896}
s_add_u32 s60, s60, s{sT0}
s_mul_i32 s{sT0}, s{sA}, {25*64}
s_add_u32 s60, s60, s{sT0}
s_mul_i32 s61, s{sS}, {56*896}
s_mul_i32 s{sT0}, s{sRB}, {28*64}
s_add_u32 s61, s61, s{sT0}
s_mul_i32 s{sT0}, s{sA}, {7*64}
s_add_u32 s61, s61, s{sT0}
s_cmp_ge_u32 s{sRB}, 28
s_cselect_b32 s61, {OOB}, s61
s_xor_b32 s62, s{sRB}, 16
s_lshl_b32 s62, s62, 3
s_add_u32 s62, s62, s{sS}
s_lshl_b32 s62, s62, 7
s_lshl_b32 s{sT1}, s{sA}, 15
s_add_u32 s62, s62, s{sT1}
s_add_u32 s62, s62, {WS_F2}
s_lshl_b32 s26, s{sS}, 7""")
        spl.extend([f"s_buffer_load_dword s{sDum}, {sq(SW2)}, s60 offset:{64*i}" for i in range(25)])
        spl.extend([f"s_buffer_load_dword s{sDum}, {sq(SWO)}, s61 offset:{64*i}" for i in range(7)])
        spl.extend([f"s_buffer_load_dword s{sDum}, {sq(SWS)}, s62", f"s_buffer_load_dword s{sDum}, {sq(SB2)}, s26", f"s_buffer_load_dword s{sDum}, {sq(SB2)}, s26 offset:64"])
    def op_sp():
        for _ in range(G("spn", 5)):
            if spl: l(spl.pop(0))
    def op_xr():
        l(f"""
s_lshl_b32 s{sT0}, s{sA}, 5
s_add_u32 s{sT0}, s{sT0}, s{sROW0}
s_mul_i32 s{sT0}, s{sT0}, 896
s_lshl_b32 s{sT1}, s{sS}, 7
s_cmp_eq_u32 s{sS}, 7
s_cselect_b32 s{sT1}, {OOB}, s{sT1}
s_add_u32 s{sT0}, s{sT0}, s{sT1}
s_lshl_b32 s{sT2}, s{sA}, 11""")
        for i in range(2):
            l(f"s_add_u32 m0, s{sT2}, {XRES + 1024*i}\ns_add_u32 s{sT0}, s{sT0}, {16*896*i}")
            l.vmem(f"buffer_load_dwordx4 v{vXR}, {sq(SX)}, s{sT0} offen lds", "xr")
    def op_rps():
        l(f"""
s_mul_i32 s{sT1}, s{sS}, {448*352}
s_add_u32 s{sT1}, s{sT1}, {WS_WQ}
s_lshl_b32 s{sT0}, s{sRB}, 2
s_add_u32 s{sT0}, s{sT0}, s{sA}
s_mul_i32 s{sT0}, s{sT0}, {4*352}
s_add_u32 s{sT0}, s{sT0}, s{sT1}
s_cmp_ge_u32 s{sRB}, 28
s_cselect_b32 s{sT0}, {OOB}, s{sT0}
""")
        l.need(vm=["rp"])
        l.vmem(f"buffer_store_dwordx4 {vr(vRP,4)}, v{vL16}, {sq(SWS)}, s{sT0} offen sc1", "rps")
        l("s_mov_b64 exec, 0xffffff")
        l.vmem(f"buffer_store_dwordx4 {vr(vRP+4,4)}, v{vL16}, {sq(SWS)}, s{sT0} offen offset:1024 sc1", "rps")
        l("s_mov_b64 exec, -1")
    def flag(tag, soff):
        l.need(vm=[tag])
        l("s_mov_b64 exec, 1")
        l.vmem(f"buffer_store_dword v{vNon}, v{vZero}, {sq(SWS)}, s{soff} offen sc1", "fl")
        l("s_mov_b64 exec, -1")
    gl = get_nonce(l, vT0, 0)
    def op_noi(): next(gl)
    def op_non():
        next(gl)
        l(f"v_mov_b32 v{vNon}, s{sN0}")
    def op_fl1():
        l(f"""s_lshl_b32 s{sT0}, s{sS}, 5
s_add_u32 s{sT0}, s{sT0}, s{sRB}
s_lshl_b32 s{sT0}, s{sT0}, 5
s_add_u32 s{sT0}, s{sT0}, s{sA}
s_lshl_b32 s{sT0}, s{sT0}, 2
s_add_u32 s{sT0}, s{sT0}, {WS_F1}""")
        flag("rps", sT0)
    def op_tab():
        chunks(l)
        l(f"""
v_lshrrev_b32 v{vT0}, 3, v{vL}
v_lshrrev_b32 v{vT1}, 4, v{vL}
v_lshlrev_b32 v{vT1}, 1, v{vT1}
v_and_b32 v{vT2}, 7, v{vL}
v_xor_b32 v{vT1}, v{vT1}, v{vT2}
v_mul_u32_u24 v{vT0}, 896, v{vT0}
v_lshl_add_u32 v{vW2A}, v{vT1}, 4, v{vT0}
v_add_u32 v{vXR}, v{vW2A}, v{vT0}
s_mul_i32 s{sW2o}, s{sS}, {224*896}
s_mul_i32 s{sT0}, s{sA}, {56*896}
s_add_u32 s{sW2o}, s{sW2o}, s{sT0}
s_mul_i32 s{sWQo}, s{sS}, {448*352}
s_add_u32 s{sWQo}, s{sWQo}, {WS_WQ}
s_mul_i32 s{sM1}, s{sA}, {16*352}
s_add_u32 s{sWQo}, s{sWQo}, s{sM1}
s_mul_i32 s{sT2}, s{sS}, {56*896}
s_lshl_b32 s{sT0}, s{sA}, 1
s_add_u32 s{sT1}, s{sT0}, 1
s_min_u32 s{sT1}, s{sT1}, 6
s_lshl_b32 s20, s{sT0}, 10
s_lshl_b32 s21, s{sT1}, 10
s_mul_i32 s22, s{sT0}, {8*896}
s_mul_i32 s23, s{sT1}, {8*896}
s_add_u32 s22, s22, s{sT2}
s_add_u32 s23, s23, s{sT2}
v_mov_b32 v{vSent}, -1
v_mov_b32 v{vSent+1}, -1
v_mov_b32 v{vSent+2}, -1
v_mov_b32 v{vSent+3}, -1
s_mul_i32 s{sPart}, s{sRB}, {7*65536}
s_lshl_b32 s{sT0}, s{sS}, 16
s_add_u32 s{sPart}, s{sPart}, s{sT0}
s_lshl_b32 s{sT0}, s{sA}, 11
s_add_u32 s{sPart}, s{sPart}, s{sT0}
s_cmp_eq_u32 s{sS}, 7
s_cselect_b32 s{sPart}, {OOB}, s{sPart}
s_lshl_b32 s25, s{sRB}, 10
s_lshl_b32 s{sT0}, s{sA}, 2
s_add_u32 s25, s25, s{sT0}
s_add_u32 s25, s25, {WS_F2}
s_lshl_b32 s{sT0}, s{sS}, 7
s_add_u32 s24, s25, s{sT0}
""")
    def dma_w1(st):
        l("s_mov_b32 exec_hi, 0xffffff")
        for i in range(8):
            l(f"s_add_u32 m0, s{sM0}, {RING + (st%3)*SLOT + 896*i}\ns_add_u32 s{sT0}, s{sW1o}, {(st*64 + 2*i)*3584}")
            l.vmem(f"buffer_load_dwordx4 v{vW1a if i < 4 else vW1b}, {sq(SW1)}, s{sT0} offen lds", f"st{st}")
        l("s_mov_b32 exec_hi, -1")
    def dma_wq(st):
        if G("nodma"): return
        q = st - 7
        for i in range(6):
            if i % 4 == 0:
                l(f"s_add_u32 m0, s{sM1}, {RING + (st%3)*SLOT + 1024*i}\ns_add_u32 s{sT0}, s{sWQo}, {q*22528 + 1024*i}")
            if i == 5: l("s_mov_b32 exec_hi, 0")
            l.vmem(f"buffer_load_dwordx4 v{vL16}, {sq(SWS)}, s{sT0} offen offset:{1024*(i%4)} lds", f"st{st}")
        l("s_mov_b32 exec_hi, -1")
    def dma_w2(cc):
        if G("nodma"): return
        l(f"s_lshl_b32 s{sT2}, s{sCH+cc}, 7\ns_add_u32 s{sT0}, s{sT2}, s{sW2o}")
        for i in range(7):
            l(f"s_add_u32 m0, s{sM0}, {W2LOC[cc] + 1024*i}")
            l(f"s_add_u32 s{sT0}, s{sT0}, {8*896}" if i else "s_nop 0")
            l.vmem(f"buffer_load_dwordx4 v{vW2A}, {sq(SW2)}, s{sT0} offen lds", f"w2{cc}")
    def dma_wo(cc):
        if G("nodma"): return
        l(f"s_lshl_b32 s{sT2}, s{sCH+cc}, 7")
        for i in range(2):
            l(f"s_add_u32 m0, s{20+i}, {WOLOC[cc]}\ns_add_u32 s{sT0}, s{22+i}, s{sT2}")
            l.vmem(f"buffer_load_dwordx4 v{vW2A}, {sq(SWO)}, s{sT0} offen lds", f"wo{cc}")
    ncl = [2 * NE]
    def op_cl1():
        if ncl[0] >= 14: return
        k, i = divmod(ncl[0], 2); ncl[0] += 1
        if G("noclr"): return
        if k < 6: l(f"s_lshl_b32 s{sT1}, s{sCH+5-k}, 13\ns_add_u32 s{sT1}, s{sT1}, s{sPart}")
        else: l(f"s_add_u32 s{sT1}, s{sPart}, {7*8192}")
        l.vmem(f"buffer_store_dwordx4 {vr(vSent,4)}, v{vL16}, {sq(SWS)}, s{sT1} offen offset:{1024*i} sc1", "clr")
    def op_clr(): op_cl1(); op_cl1()
    def op_fl2():
        assert ncl[0] == 14
        flag("clr", 24)
    def op_pff():
        l(f"""s_lshl_b32 s{sT0}, s{sRB}, 3
s_add_u32 s{sT0}, s{sT0}, s{sS}
s_lshl_b32 s{sT0}, s{sT0}, 7
s_lshl_b32 s{sT1}, s{sA}, 15
s_add_u32 s{sT0}, s{sT0}, s{sT1}
s_add_u32 s{sT0}, s{sT0}, {WS_F2}""")
        l.vmem(f"buffer_load_dword v{vPF}, v{vZero}, {sq(SWS)}, s{sT0} offen", "pf2")
    def op_p2i():
        for i in range(7): l(f"s_buffer_load_dword s{4+i}, {sq(SWS)}, s25 offset:{128*i}")
    def op_p2():
        again, got = lab("qa"), lab("qg")
        l.smem = True
        l.need(drain=True)
        l(f"s_mov_b32 s{sPoll}, 0")
        for i in range(0, 6, 2): l(f"s_cmp_eq_u64 s[{4+i}:{5+i}], s[{sN0}:{sN1}]\ns_cbranch_scc0 {again}")
        l(f"s_cmp_eq_u32 s10, s{sN0}\ns_cbranch_scc0 {again}\n{got}:")
        if STAMP: l(f"v_writelane_b32 v0, s{sPoll}, 59")
        slow_poll(again, got, vT0, f"v_min_u32 v{vT0}, 6, v{vL}\nv_lshlrev_b32 v{vT0}, 7, v{vT0}", 25)
    OPS = dict(pfa=op_pfa, init=op_init, rpl=op_rpl, pfb=op_pfb, pf2=op_pf2, rps=op_rps, fl1=op_fl1, tab=op_tab, non=op_non,
               xr=op_xr, tlb=op_tlb, spi=op_spi, sp=op_sp, b2=op_b2, clr=op_clr, cl1=op_cl1, pff=op_pff, noi=op_noi, p2i=op_p2i, fl2=op_fl2, p2=op_p2, bx=lambda: l("s_barrier"), lo=lambda: l("s_setprio 0"), hi=lambda: l(f"s_setprio {G('lprio',3)}"), b00=lambda: l("s_barrier"))
    for k in range(7):
        OPS[f"s{k}"] = lambda k=k: dma_w1(k); OPS[f"q{k}"] = lambda k=k: dma_wq(7 + k)
        OPS[f"g{k}"] = lambda k=k: op_g(k)
        OPS[f"w{k}"] = lambda k=k: dma_w2(k); OPS[f"o{k}"] = lambda k=k: dma_wo(k)
    PRO = G("pro", "rpl init tab rps lo noi s0 non s1 fl1 pf2 b2 pff")
    MID = G("mid0", "B0 hi s2 B1 s3 B2 s4 B3 s5 B4 s6") + " " + \
          G("mid1", "B5 q0 cl1 B6 q1 cl1 B7 q2 cl1 B8 q3 cl1 B9 q4 cl1 cl1 B10 q5 cl1 cl1") + " " + \
          G("mid2", "B11 q6 w0 B12 fl2 w1 o0 o1 B13 o2 xr B14 B22 p2i w2 B15 lo o3 p2 B16 w3 B17 o4 w4 o5 B18 w5 o6 B19 w6 B20 B21")
    k = 1
    for o in PRO.split():
        OPS[o](); mark(l, o)
        if o in ("bx", "rps", "s0", "s1", "s2"):
            if len(l.pend) >= 3: l.need(drain=True)
            stamp(l, k); k += 1
    T_l1 = l.cut(); l("L_L2:")
    for o in MID.split():
        if o[0] == "B":
            j = int(o[1:]); need = []
            if j <= 13: need = [f"st{j}"]
            elif j == BH: need = [f"w2{i}" for i in range(RA)]
            elif j == 15: need = ["w20", "xr"] + [f"wo{i}" for i in range(max(RA, 1))]
            elif j > 15: need = [f"w2{j-15}", f"wo{j-15}"] + (["w22", "wo2"] if RA == 2 else [])
            barrier(l, j, vm=need); mark(l, o)
        else: OPS[o]()
    l.need(drain=True)
    if G("spin"):
        l(f"""s_add_u32 s40, s100, {G("spin")[1]}
L_spin:
s_sleep 2
s_memrealtime s[42:43]
s_waitcnt lgkmcnt(0)
s_sub_u32 s44, s42, s40
s_cmp_lt_i32 s44, 0
s_cbranch_scc1 L_spin""")
    l("L_fin:")
    if STAMP:
        l(f"""s_waitcnt vmcnt(0)
s_memrealtime s[96:97]
{SOP} s[98:99]
s_waitcnt lgkmcnt(0)
v_writelane_b32 v0, s96, 63
v_writelane_b32 v0, s98, 41
s_mul_i32 s{sT0}, s2, 12
s_add_u32 s{sT0}, s{sT0}, s{sW}
s_lshl_b32 s{sT0}, s{sT0}, 8
s_add_u32 s{sT0}, s{sT0}, {WS_STAMP}
v_lshlrev_b32 v{vT0}, 2, v{vL}
buffer_store_dword v0, v{vT0}, {sq(SWS)}, s{sT0} offen
""")
    l("L_end:\ns_endpgm")
    T_l2 = l.cut()

    K1 = NAME + "_kernel"
    return f"""; @launch grid=(256,1,1) block=(768,1,1) lds={LDS_BYTES}
.amdgcn_target "amdgcn-amd-amdhsa--gfx950"
.text
.globl {K1}
.p2align 8
.type {K1},@function
{K1}:
{T_entry}{T_c1}{T_f2}{T_a2}{T_l1}{T_l2}{''.join(SLOW)}L_codeend:
.section .rodata,"a"
.p2align 6
.amdhsa_kernel {K1}
  .amdhsa_next_free_vgpr 168
  .amdhsa_next_free_sgpr 102
  .amdhsa_accum_offset 168
  .amdhsa_group_segment_fixed_size 0
  .amdhsa_kernarg_size 88
  .amdhsa_user_sgpr_count 2
  .amdhsa_user_sgpr_kernarg_segment_ptr 1
  .amdhsa_system_sgpr_workgroup_id_x 1
.end_amdhsa_kernel
"""

if __name__ == "__main__":
    import json
    cfg = json.loads(sys.argv[2]) if len(sys.argv) > 2 else {}
    open(sys.argv[1], "w").write(gen(cfg))
```

```python
import sys, math, struct
NAME = "parallel_sum__sliding_local_dilated__dense_activation_gelu__prompt"

class Asm:
    def __init__(self):
        self.L = []; self.vm = []; self.lg = []; self.smem = False; self.pend = []; self.nst = 0
    def __call__(self, s):
        for l in s.strip("\n").split("\n"):
            l = l.strip()
            if l: self.L.append(l if l.endswith(":") else "  " + l)
    def fork(self):
        b = Asm(); b.vm = list(self.vm); b.lg = list(self.lg); b.smem = self.smem; return b
    def cut(self):
        t = "\n".join(self.L) + "\n"; self.L = []; return t
    def vmem(self, s, tag): self(s); self.vm.append(tag)
    def ds(self, s, tag): self(s); self.lg.append(tag)
    def _cnt(self, q, tags):
        last = -1
        for i, t in enumerate(q):
            if t in tags: last = i
        return None if last < 0 else len(q) - 1 - last
    def need(self, vm=(), lg=(), drain=False):
        parts = []
        n = self._cnt(self.vm, set(vm))
        if n is not None:
            n = min(n, 62); parts.append(f"vmcnt({n})"); self.vm = self.vm[len(self.vm) - n:] if n else []
        n = self._cnt(self.lg, set(lg))
        if drain: n = 0 if (self.lg or self.smem) else None
        if n is not None:
            n = min(n, 14)
            parts.append(f"lgkmcnt({n})"); self.lg = self.lg[len(self.lg) - n:] if n else []
        if parts: self("s_waitcnt " + " ".join(parts))
        if drain:
            self.smem = False
            for sg, idx in self.pend: self(f"v_writelane_b32 v0, s{sg}, {idx}")
            self.pend = []

def vr(a, n=1): return f"v{a}" if n == 1 else f"v[{a}:{a+n-1}]"
def sq(a): return f"s[{a}:{a+3}]"
def f2u(x): return "0x%08x" % struct.unpack("<I", struct.pack("<f", x))[0]

KP = 4608
HALO = 4096
ACT = 57344
WOR = 28672
def actoff(t): return (t - 7) * 4096 if t >= 7 else 8192 + t * 4096
RING = 65536
SLOT = 28672
BIAS = RING + 3 * SLOT
XRES = BIAS + 1024
CNT = XRES + 8192 + 128
LDS_BYTES = XRES + 8192 + 256
INLOC = [0, 8192, 16384, RING, RING + 8192, RING + 16384, WOR + 2 * 7168]
W2LOC = [0, RING + 2 * SLOT, RING + SLOT, 0, RING, RING + 2 * SLOT, RING + SLOT]
WOLOC = [WOR, WOR + 7168, WOR + 2 * 7168, WOR + 3 * 7168, WOR, ACT, WOR + 7168]
WS_WQ = 0x1000000
WS_F1 = 0x1800000
WS_FE = 0x1810000
WS_STAMP = 0x8000000
OOB = 0x7ff00000
SPIN = 200000
SX, SWS, SOUT, SW1, SB1, SWQ, SDBG, SW2, SWO, SB2 = 28, 32, 36, 36, 40, 40, 44, 48, 52, 56
sIN, sLO, sFE, sDum = 48, 55, 3, 63
sW, sS, sRB, sA, sRH, sHI, sROW0, sT0, sT1, sT2, sT3 = 68, 69, 70, 71, 72, 73, 74, 75, 76, 77, 78
sW1o, sWQo, sW2o, sJJ, sM0, sPart, sC2, sCH = 79, 80, 81, 82, 83, 84, 85, 86
sCW, sN0, sN1, sPoll, sM1, sLW = 93, 94, 95, 96, 97, 26

def gen(cfg):
    G = cfg.get
    STAMP = G("stamp", False); SOP = G("stampop", "s_memtime")
    xm = G("xmap", 4); nsh = 32 // xm
    uid = [0]
    FR, FP = G('fr', 0x4100), G('fp', 4)
    def lab(n): uid[0] += 1; return f"L_{n}{uid[0]}"
    def stamp(b, idx):
        if not STAMP or (G("lite") and idx not in (3, 10, 17, 24, 25, 26, 30, 31, 37)) or getattr(b, "nostamp", False): return
        sg = (64, 66, 98, 100)[b.nst % 4]; b.nst += 1
        assert len(b.pend) < 4
        b(f"{SOP} s[{sg}:{sg+1}]"); b.smem = True; b.pend.append((sg, idx))
    def mark(b, name):
        if G("spin") and G("spin")[0] == name: b("s_memrealtime s[100:101]"); b.smem = True
    def barrier(b, j, vm=()):
        pb0 = G("prebar")
        if pb0 is not None and pb0 <= j < pb0 + 8: stamp(b, 42 + j - pb0)
        b.need(vm=vm, drain=True)
        if pb0 is not None and pb0 <= j < pb0 + 8: stamp(b, 50 + j - pb0)
        b("s_barrier")
        stamp(b, 10 + j)
    BH = 22
    def srd(b, d, p, n):
        b(f"s_mov_b32 s{d}, s{p}\ns_and_b32 s{d+1}, s{p+1}, 0xffff\ns_mov_b32 s{d+2}, {n}\ns_mov_b32 s{d+3}, 0x20000")
    def mfma(b, d, x, y, c=None):
        b(f"v_mfma_f32_16x16x32_bf16 {vr(d,4)}, {vr(x,4)}, {vr(y,4)}, {vr(d,4) if c is None else c}")
    def chunks(b):
        for i in range(7):
            b(f"s_add_u32 s{sCH+i}, s{sS if i == 0 else sCH+i-1}, 1")
            b(f"s_cmp_ge_u32 s{sCH+i}, 7\ns_cselect_b32 s{sT0}, 7, 0\ns_sub_u32 s{sCH+i}, s{sCH+i}, s{sT0}")
    SLOW = []
    def get_nonce(b, vt, cp):
        again, got = lab("na"), lab("ng")
        b(f"s_buffer_load_dword s{sN0}, {sq(SDBG)}, {64*cp}"); b.smem = True
        yield
        b.need(drain=True)
        b(f"s_mov_b32 s{sPoll}, 0\ns_cmp_eq_u32 s{sN0}, 0\ns_cbranch_scc1 {again}\n{got}:\ns_mov_b32 s{sN1}, s{sN0}")
        if STAMP: b(f"v_writelane_b32 v0, s{sPoll}, 58")
        x = Asm()
        x(f"""{again}:
v_mov_b32 v{vt}, 0
s_add_u32 s{sPoll}, s{sPoll}, 1
buffer_load_dword v{vt}, v{vt}, {sq(SDBG)}, 0 offen sc1
s_cmp_gt_u32 s{sPoll}, {SPIN}
s_waitcnt vmcnt(0)
v_readfirstlane_b32 s{sN0}, v{vt}
s_cbranch_scc1 {got}
s_cmp_eq_u32 s{sN0}, 0
s_cbranch_scc1 {again}
s_branch {got}""")
        SLOW.append(x.cut())
        yield
    def slow_poll(retry, got, vt, addr, sbase):
        x = Asm()
        x(f"""{retry}:
{addr}
s_add_u32 s{sPoll}, s{sPoll}, 1
buffer_load_dword v{vt}, v{vt}, {sq(SWS)}, s{sbase} offen sc1
s_cmp_gt_u32 s{sPoll}, {SPIN}
s_waitcnt vmcnt(0)
v_cmp_ne_u32 vcc, s{sN0}, v{vt}
s_cbranch_scc1 {got}
s_nop 1
s_cbranch_vccnz {retry}
s_branch {got}""")
        SLOW.append(x.cut())
    def first_stamps(b):
        if STAMP: b("v_writelane_b32 v0, s98, 62\nv_writelane_b32 v0, s100, 0")

    vL, vL16, vActW, vT0, vT1, vT2, vT3 = 1, 2, 3, 4, 5, 6, 7
    vXE, vXO, vG2W, vG2W2, vG2O0, vG2O2 = 8, 9, 10, 11, 12, 13
    a = Asm()
    RAW, UNP = 136, 80
    lb = xm.bit_length() - 1
    a(f"""
s_load_dwordx16 s[4:19], s[0:1], 0
s_load_dwordx8 s[20:27], s[0:1], 56
s_cmpk_ge_u32 s2, 256
s_cbranch_scc1 L_end
s_getpc_b64 s[28:29]
L_pc:
s_lshr_b32 s3, s2, 3
v_lshrrev_b32 v{vT0}, 6, v0
v_mad_u32_u24 v{vT1}, s3, 12, v{vT0}
v_readfirstlane_b32 s{sW}, v{vT0}
v_lshlrev_b32 v{vT1}, 7, v{vT1}
v_min_u32 v{vT1}, L_codeend - L_pc - 4, v{vT1}
""")
    if G("codepf", True): a.vmem(f"global_load_dword v23, v{vT1}, s[28:29]", "pf")
    if G("bwprobe"):
        off, aux = G("bwprobe")
        a(f"""s_waitcnt lgkmcnt(0)
s_mov_b32 s40, s26
s_and_b32 s41, s27, 0xffff
s_mov_b32 s42, 0x10000000
s_mov_b32 s43, 0x20000
s_mul_i32 s44, s2, {12*12*1024}
s_add_u32 s44, s44, {off}
v_lshlrev_b32 v8, 4, v0""")
        for i in range(12):
            a(f"buffer_load_dwordx4 v[{32+4*i}:{35+4*i}], v8, s[40:43], s44 offen {aux}\ns_add_u32 s44, s44, {12*1024}")
        a("s_waitcnt vmcnt(0)\ns_barrier"); a.vm = []
    mark(a, "own")
    if STAMP: a(f"s_memrealtime s[98:99]\n{SOP} s[100:101]")
    if xm == 1: a(f"s_mov_b32 s{sRB}, s3")
    else: a(f"s_bfe_u32 s{sT0}, s2, {(lb << 16) | (3 - lb)}\ns_lshl_b32 s{sT0}, s{sT0}, {5-lb}\ns_lshr_b32 s{sT1}, s3, {lb}\ns_add_u32 s{sRB}, s{sT0}, s{sT1}")
    a(f"""
s_lshr_b32 s{sT0}, s{sRB}, 1
s_lshl_b32 s{sT0}, s{sT0}, 7
s_and_b32 s{sT1}, s{sRB}, 1
s_add_u32 s{sROW0}, s{sT0}, s{sT1}
s_cmp_lt_u32 s{sW}, 4
s_cbranch_scc1 L_L
""")
    T_entry = a.cut()
    def common2(b):
        b(f"""
v_and_b32 v{vL}, 63, v0
v_lshlrev_b32 v{vL16}, 4, v{vL}
s_and_b32 s{sA}, s{sW}, 3
""")
        if xm == 1: b(f"s_and_b32 s{sS}, s2, 7")
        else: b(f"s_and_b32 s{sT0}, s2, {8//xm - 1}\ns_lshl_b32 s{sT0}, s{sT0}, {lb}\ns_and_b32 s{sT2}, s3, {xm-1}\ns_add_u32 s{sS}, s{sT0}, s{sT2}")
        if STAMP: b("v_mov_b32 v0, 0")
    c = a.fork()
    c(f"v_lshrrev_b32 v{vT2}, 3, v0")
    if xm > 1 and G("xrot", True):
        c(f"s_lshl_b32 s{sT2}, s3, {6-lb}\ns_add_u32 s{sT2}, s{sT2}, 32\nv_add_u32 v{vT2}, s{sT2}, v{vT2}")
    else: c(f"v_add_u32 v{vT2}, 32, v{vT2}")
    c(f"""
v_and_b32 v{vT2}, 63, v{vT2}
v_lshl_add_u32 v{vT0}, v{vT2}, 1, s{sROW0}
v_mul_u32_u24 v{vT0}, 896, v{vT0}
v_and_b32 v{vT1}, 7, v0
v_lshl_add_u32 v{vXO}, v{vT1}, 4, v{vT0}
s_setprio {G('cprio', 1)}
s_waitcnt lgkmcnt(0)
""")
    for t in range(7):
        c.vmem(f"global_load_dwordx4 {vr(RAW+4*t,4)}, v{vXO}, s[4:5] offset:{128*t} {G('ntx','')}", f"x{t}")
    c("L_x256:")
    common2(c)
    first_stamps(c)
    c(f"""
s_sub_u32 s{sCW}, s{sW}, 4
s_and_b32 s{sRH}, s{sW}, 1
s_bfe_u32 s{sHI}, s{sW}, 0x10001
""")
    if G("spf", True):
        c(f"""s_lshl_b32 s{sT0}, s{sCW}, 5
s_add_u32 s{sT0}, s{sT0}, s{sRB}
s_mul_i32 s{sT0}, s{sT0}, 3584
s_mul_i32 s{sT1}, s{sS}, 448
s_add_u32 s{sT0}, s{sT0}, s{sT1}""")
        for i in range(7): c(f"s_load_dword s{sDum}, s[12:13], s{sT0} offset:{64*i}")
        c(f"""s_min_u32 s{sT2}, s{sCW}, 6
s_lshl_b32 s{sT2}, s{sT2}, 6
s_add_u32 s{sT1}, s{sT1}, s{sT2}
s_load_dword s{sDum}, s[14:15], s{sT1}
s_cmp_lt_u32 s{sCW}, 6
s_cselect_b32 s{sT2}, {256*3584}, 0
s_add_u32 s{sT0}, s{sT0}, s{sT2}""")
        for i in range(7): c(f"s_load_dword s{sDum}, s[12:13], s{sT0} offset:{64*i}")
    c(f"""
v_lshrrev_b32 v{vXE}, 4, v{vT2}
v_and_b32 v{vT1}, 15, v{vT2}
v_and_b32 v{vT0}, 3, v{vL}
v_bfe_u32 v{vT2}, v{vL}, 2, 1
v_mul_u32_u24 v{vActW}, 12, v{vT2}
v_or_b32 v{vActW}, v{vActW}, v{vT0}
v_xor_b32 v{vT1}, v{vT1}, v{vActW}
v_lshlrev_b32 v{vT1}, 4, v{vT1}
v_lshl_add_u32 v{vT1}, v{vT0}, 8, v{vT1}
v_mul_u32_u24 v{vT2}, {KP}, v{vT2}
v_lshl_add_u32 v{vT1}, v{vXE}, 10, v{vT1}
v_add_u32 v{vActW}, v{vT1}, v{vT2}
""")
    c(f"s_cmp_ge_u32 s{sW}, 8\ns_cbranch_scc1 L_A2")
    T_c1 = c.cut()

    def halo_loads(b, HR):
        b(f"""
v_lshrrev_b32 v{vT0}, 5, v{vL}
s_lshl_b32 s{sT0}, s{sA}, 2
s_add_u32 s{sT0}, s{sT0}, s{sROW0}
s_sub_u32 s{sT0}, s{sT0}, 16
v_lshl_add_u32 v{vT0}, v{vT0}, 1, s{sT0}
s_movk_i32 s{sT3}, 896
v_mul_lo_u32 v{vT0}, v{vT0}, s{sT3}
v_and_b32 v{vT1}, 31, v{vL}
v_lshl_add_u32 v{vT0}, v{vT1}, 4, v{vT0}
v_cmp_gt_u32 vcc, 24, v{vT1}
v_add_u32 v{vT2}, 512, v{vT0}
v_mov_b32 v{vT3}, {OOB}
v_cndmask_b32 v{vT2}, v{vT3}, v{vT2}, vcc
v_min_u32 v20, v{vT3}, v{vT0}
v_min_u32 v21, v{vT3}, v{vT2}
""")
        if HR: halo_issue(b, HR)
    def halo_issue(b, HR):
        b.vmem(f"buffer_load_dwordx4 {vr(HR[0],4)}, v20, {sq(SX)}, 0 offen", "h0")
        b.vmem(f"buffer_load_dwordx4 {vr(HR[1],4)}, v21, {sq(SX)}, 0 offen", "h1")
    HF = G("halof", True)
    def halo_write(b, HR):
        b(f"""v_lshrrev_b32 v{vT0}, 5, v{vL}
s_lshl_b32 s{sT0}, s{sA}, 1
v_add_u32 v{vT0}, s{sT0}, v{vT0}
v_and_b32 v{vT1}, 7, v{vL}
v_xor_b32 v{vT0}, v{vT0}, v{vT1}
v_lshlrev_b32 v{vT0}, 4, v{vT0}
v_and_b32 v{vT1}, 3, v{vL}
v_lshl_add_u32 v{vT0}, v{vT1}, 7, v{vT0}
v_bfe_u32 v{vT1}, v{vL}, 2, 3
v_mul_u32_u24 v{vT1}, {KP}, v{vT1}
v_add_u32 v{vT2}, v{vT0}, v{vT1}
ds_write_b128 v{vT2}, {vr(HR[0],4)} offset:{HALO}
s_mov_b32 exec_lo, 0x00ffffff
s_mov_b32 exec_hi, 0x00ffffff
ds_write_b128 v{vT2}, {vr(HR[1],4)} offset:{HALO + 8*KP}
s_mov_b64 exec, 1
v_mov_b32 v{vT0}, {CNT}
v_mov_b32 v{vT1}, 0
ds_write_b32 v{vT0}, v{vT1}
s_mov_b64 exec, -1""")
    def xbases(b):
        b(f"""
v_lshrrev_b32 v{vT2}, 4, v{vL}
v_and_b32 v{vT3}, 15, v{vL}
v_xor_b32 v{vT0}, v{vT3}, v{vT2}
v_lshlrev_b32 v{vT1}, 8, v{vT2}
s_lshl_b32 s{sT0}, s{sRH}, 11
v_lshl_add_u32 v{vXE}, v{vT0}, 4, v{vT1}
v_add_u32 v{vXE}, s{sT0}, v{vXE}
v_xor_b32 v{vXO}, {12*16}, v{vXE}
""")
    def setup_s(b):
        srd(b, SWS, 26, 0x10000000); srd(b, SOUT, 22, 2048 * 896)
        b(f"""
s_mul_i32 s{sPart}, s{sRB}, {7*65536}
s_lshl_b32 s{sT2}, s{sCW}, 10
s_add_u32 s{sPart}, s{sPart}, s{sT2}
s_mul_i32 s{sM1}, s{sS}, {65536 + 8192}
s_add_u32 s{sM1}, s{sM1}, s{sPart}
s_add_u32 s{sPart}, s{sPart}, {7*65536}
s_mul_i32 s{sFE}, s{sRB}, {FR}
s_add_u32 s{sFE}, s{sFE}, {WS_FE}
""")
    def setup_v1(b):
        b(f"""
v_lshrrev_b32 v{vT0}, 2, v{vL}
v_bfe_u32 v{vT1}, v{vL}, 3, 2
s_lshr_b32 s{sT2}, s{sCW}, 1
v_xor_b32 v{vT1}, s{sT2}, v{vT1}
v_lshlrev_b32 v{vT1}, 5, v{vT1}
v_lshl_add_u32 v{vT1}, v{vT0}, 7, v{vT1}
v_and_b32 v{vT0}, 3, v{vL}
v_lshl_add_u32 v{vG2O0}, v{vT0}, 3, v{vT1}
v_add_u32 v{vG2W}, {RING}, v{vG2O0}
""")
    def act_base(b):
        b(f"s_lshl_b32 s{sT0}, s{sRH}, 11\ns_add_u32 s{sT0}, s{sT0}, {ACT}\nv_add_u32 v{vActW}, s{sT0}, v{vL16}")
    def setup_v2(b):
        b(f"v_add_u32 v{vG2W2}, {RING+2*SLOT}, v{vG2O0}\nv_xor_b32 v{vG2O2}, 64, v{vG2O0}")

    def ln_core(b, raw, nraw, unp, tags, nl, pk=True):
        S, Q = vT0, vT2
        rw = (lambda d: raw + d) if isinstance(raw, int) else (lambda d: raw[d // 4] + d % 4)
        for d in range(nraw):
            if d % 4 == 0: b.need(vm=[tags[d // 4]])
            u = unp + 2 * d
            b(f"v_lshlrev_b32 v{u}, 16, v{rw(d)}\nv_and_b32 v{u+1}, 0xffff0000, v{rw(d)}")
            if not pk:
                if d == 0: b(f"v_mov_b32 v{S}, v{u}\nv_mov_b32 v{S+1}, v{u+1}\nv_mul_f32 v{Q}, v{u}, v{u}\nv_mul_f32 v{Q+1}, v{u+1}, v{u+1}")
                else: b(f"v_add_f32 v{S}, v{S}, v{u}\nv_add_f32 v{S+1}, v{S+1}, v{u+1}\nv_fmac_f32 v{Q}, v{u}, v{u}\nv_fmac_f32 v{Q+1}, v{u+1}, v{u+1}")
            elif d == 0: b(f"v_pk_mul_f32 {vr(Q,2)}, {vr(u,2)}, {vr(u,2)}")
            elif d == 1: b(f"v_pk_add_f32 {vr(S,2)}, {vr(u-2,2)}, {vr(u,2)}\nv_pk_fma_f32 {vr(Q,2)}, {vr(u,2)}, {vr(u,2)}, {vr(Q,2)}")
            else: b(f"v_pk_add_f32 {vr(S,2)}, {vr(S,2)}, {vr(u,2)}\nv_pk_fma_f32 {vr(Q,2)}, {vr(u,2)}, {vr(u,2)}, {vr(Q,2)}")
        yield "stats"
        b(f"v_add_f32 v{S}, v{S}, v{S+1}\nv_add_f32 v{Q}, v{Q}, v{Q+1}\ns_nop 0")
        for st in ["quad_perm:[1,0,3,2]", "quad_perm:[2,3,0,1]", "row_half_mirror", "row_mirror"][:min(nl, 4)]:
            b(f"v_add_f32_dpp v{S}, v{S}, v{S} {st} row_mask:0xf bank_mask:0xf\nv_add_f32_dpp v{Q}, v{Q}, v{Q} {st} row_mask:0xf bank_mask:0xf\ns_nop 0")
        if nl >= 5:
            b(f"""v_mov_b32 v{S+1}, v{S}
v_mov_b32 v{Q+1}, v{Q}
s_nop 1
v_permlane16_swap_b32 v{S}, v{S+1}
v_permlane16_swap_b32 v{Q}, v{Q+1}
s_nop 1
v_add_f32 v{S}, v{S}, v{S+1}
v_add_f32 v{Q}, v{Q}, v{Q+1}""")
        b(f"""v_mul_f32 v{S}, {f2u(1/448)}, v{S}
v_mul_f32 v{Q}, {f2u(1/448)}, v{Q}
v_fma_f32 v{Q}, -v{S}, v{S}, v{Q}
v_max_f32 v{Q}, 0, v{Q}
v_add_f32 v{Q}, {f2u(1e-5)}, v{Q}
v_rsq_f32 v{Q}, v{Q}
s_nop 0
v_mul_f32 v{S}, v{S}, v{Q}
.p2align 3""")
        yield "red"
        for d in range(nraw):
            u = unp + 2 * d
            if not pk: b(f"v_fma_f32 v{u}, v{u}, v{Q}, -v{S}\nv_fma_f32 v{u+1}, v{u+1}, v{Q}, -v{S}")
            else: b(f"v_pk_fma_f32 {vr(u,2)}, {vr(u,2)}, {vr(Q,2)}, {vr(S,2)} op_sel_hi:[1,0,0] neg_lo:[0,0,1] neg_hi:[0,0,1]")
            if d >= 1: b(f"v_cvt_pk_bf16_f32 v{rw(d-1)}, v{u-2}, v{u-1}")
            yield d - 1
        u = unp + 2 * (nraw - 1)
        b(f"v_cvt_pk_bf16_f32 v{rw(nraw-1)}, v{u}, v{u+1}")
        yield nraw - 1
    def ln_main(b, hook=None):
        for d in ln_core(b, RAW, 28, UNP, [f"x{t}" for t in range(7)], 3):
            if d == "stats":
                stamp(b, 2)
                if hook: hook()
            if not G("lnbatch") and isinstance(d, int) and d >= 0 and d % 4 == 3:
                b.ds(f"ds_write_b128 v{vActW}, {vr(RAW+d-3,4)} offset:{2*KP*(d//4)}", "xw")
        if G("lnbatch"):
            for t in range(7): b.ds(f"ds_write_b128 v{vActW}, {vr(RAW+4*t,4)} offset:{2*KP*t}", "xw")

    def g1_phase(b, st0, reads, mfmas, P, GAP, tail=None, head=None):
        M = [m for ks in range(14) for m in mfmas(ks)]
        per = len(M) // 14
        sched = {}
        for j in range(7):
            R0, R1 = reads(2 * j), reads(2 * j + 1)
            b0 = 2 * per * j - P; span = 2 * per - GAP; R = R0 + R1
            for i, r in enumerate(R):
                pos = b0 + (i * span) // len(R)
                if i >= len(R0): pos = max(pos, 2 * per * j - 1)
                sched.setdefault(max(pos, -1), []).append(r)
        barrier(b, st0)
        for r in sched.get(-1, []): b.ds(*r)
        if head: head()
        for m, (fn, tg) in enumerate(M):
            if (m + P) % (2 * per) == 0: barrier(b, st0 + (m + P) // (2 * per))
            b.need(lg=tg); fn()
            for r in sched.get(m, []): b.ds(*r)
            if tail: tail(m - len(M))

    RA = G("runahead", 2)
    PROG = G("prog", {"19": 2, "20": 3})
    NE = G('ne', 3)
    def g2_phase(b, role):
        XR, PK, AC, WR, INB, ACTR = 14, 20, 28, 44, 68, 96
        NR = 6
        P2, GAP2, LEAD = G("p2" + role, 8), G("gap2" + role, 2), G("lead2", 8)
        ET = G("et" + role, 4)
        XT = G("xt" + role, 4)
        ra = RA if role == "F" else 0
        steps = [(cc, t) for cc in range(ra) for t in range(7)] + [(cc, t) for cc in range(ra) for t in (7, 8)] + \
                [(cc, t) for cc in range(ra, 7) for t in range(9)]
        N = len(steps); at = {s: n for n, s in enumerate(steps)}
        bpos = {}
        if role == "F":
            bpos[BH] = -1
            bpos[15] = 14 * ra - G("hold15", 14) if ra else 0
        else: bpos[15] = -1
        for cc in range(1, 7):
            if ra == 2 and cc <= 2: bpos[15 + cc] = 2 * at[(2, 0)]
            elif cc == 6: bpos[21] = 2 * at[(6, 0)]
            else: bpos[15 + cc] = max(2 * at[(cc, 0)] - (P2 if cc > ra or ra == 0 else 2), bpos[14 + cc] + 1)
        R = []
        for n, (cc, t) in enumerate(steps):
            w = WR + 4 * (n % NR)
            en = bpos[BH] if (cc < ra and t < 7) else (bpos[15] if cc < ra else bpos[15 + cc])
            war = 2 * (n - NR) + 1
            rel = bpos.get(16 + cc, 10 ** 6) - GAP2
            if cc == 0:
                ena = bpos[BH] if (role == "F" and t < 7) else bpos[15]
                for pb in range(2):
                    R.append((f"ds_read_b128 {vr(ACTR+4*(9*pb+t),4)}, v{vActW} offset:{actoff(t) + pb*1024}", f"w{n}", ena, min(2 * n - LEAD, rel)))
            for u in range(2):
                if t < 7:
                    loc = W2LOC[cc]
                    base, o = (vG2O0, 0) if loc == 0 else ((vG2W2, 0) if loc == RING + 2 * SLOT else (vG2W, loc - RING))
                    o += (96 + 112 * u if t == 6 else 112 * (t // 3) + 32 * (t % 3) + 16 * u) * 128
                else:
                    hd = t - 7
                    base = vG2O0 if (14*hd + 6*u) % 4 == 0 else vG2O2
                    o = WOLOC[cc] + (28*hd + 12*u) * 128
                R.append((f"ds_read_b64_tr_b16 {vr(w+2*u,2)}, v{base} offset:{o}", f"w{n}", max(en, war), min(2 * n - LEAD, rel)))
        pos = [0] * len(R); nxt = 10 ** 6
        for i in reversed(range(len(R))):
            nxt = max(min(R[i][3], nxt - 1), R[i][2], -1); pos[i] = nxt
        sched = {}; prev = -1
        for i, r in enumerate(R):
            p = max(pos[i], r[2], prev, -1)
            n = int(r[1][1:])
            burst = (ra == 2 and p == bpos[16] and n < at[(2, 0)] + 4) or (p == bpos[21] and n < at[(6, 0)] + 3)
            while not burst and len(sched.get(p, [])) >= (2 if p >= 0 else G("init2", 10)) and p + 1 < 2 * n - 1 and p + 1 < bpos.get(16 + steps[n][0], 10 ** 6): p += 1
            assert p < 2 * n or p == bpos[15] or burst, (r, p)
            sched.setdefault(p, []).append(r); prev = p
        bars = {}
        for j, p in bpos.items(): bars.setdefault(p, []).append(j)
        STA = G("sta" + role, {})
        nst = [0]
        def store(cc):
            assert nst[0] == cc; nst[0] += 1
            b(f"s_add_u32 s{sM1}, s{sM1}, 65536\ns_cmp_ge_u32 s{sM1}, s{sPart}\ns_cselect_b32 s{sT0}, {7*65536}, 0\ns_sub_u32 s{sM1}, s{sM1}, s{sT0}")
            if not G("nopst"): b.vmem(f"buffer_store_dwordx4 {vr(INB+4*cc,4)}, v{vL16}, {sq(SWS)}, s{sM1} offen sc1", f"p{cc}")
        def epi(cc):
            ac = AC + 8 * (cc % 2)
            for q in range(4): b(f"v_cvt_pk_bf16_f32 v{INB+4*cc+q}, v{ac+2*q}, v{ac+2*q+1}")
            if str(cc) not in STA: store(cc)
        def signal():
            nf = lab("nf")
            b(f"""v_mov_b32 v{vT0}, {CNT}
v_mov_b32 v{vT1}, 1
s_lshl_b32 s{sT1}, s{sS}, 2
s_lshl_b32 s{sT1}, 8, s{sT1}
s_mov_b64 exec, 1
s_waitcnt vmcnt(0)
ds_add_rtn_u32 v{vT1}, v{vT0}, v{vT1}
s_waitcnt lgkmcnt(0)
v_cmp_eq_u32 vcc, 7, v{vT1}
s_mov_b64 exec, -1
s_nop 0
s_cbranch_vccz {nf}
s_atomic_add s{sT1}, s[{SWS}:{SWS+1}], s{sFE}
{nf}:""")
        def before_own():
            b(f"""v_and_b32 v{vT0}, 15, v{vL}
v_bfe_u32 v{vT1}, v{vL}, 1, 2
s_lshr_b32 s{sT1}, s{sCW}, 1
v_xor_b32 v{vT1}, s{sT1}, v{vT1}
v_lshlrev_b32 v{vT1}, 5, v{vT1}
v_lshl_add_u32 v{vT1}, v{vT0}, 7, v{vT1}
v_lshrrev_b32 v{vT2}, 4, v{vL}
v_lshlrev_b32 v{vT2}, 3, v{vT2}""")
            epi(5)
            b(f"""s_lshl_b32 s{sT0}, s{sRH}, 12
s_add_u32 s{sT0}, s{sT0}, {XRES}
v_add3_u32 v{vT1}, v{vT1}, v{vT2}, s{sT0}
s_lshl_b32 s{sT1}, s{sT1}, 5
s_lshl_b32 s{sM0}, s{sS}, 7
s_add_u32 s{sM0}, s{sM0}, s{sT1}
s_movk_i32 s{sLO}, 0x3f80
s_add_u32 s{sT1}, s{sT1}, {XRES + 8192}
v_add_u32 v{vT2}, s{sT1}, v{vT2}""")
            b.ds(f"ds_read_b64 {vr(XR,2)}, v{vT1}", "xr")
            b.ds(f"ds_read_b64 {vr(XR+2,2)}, v{vT1} offset:2048", "xr")
            b.ds(f"ds_read_b64 {vr(XR+4,2)}, v{vT2}", "xr")
            b(f"""s_lshl_b32 s{sT0}, s{sRH}, 6
s_add_u32 s{sT0}, s{sT0}, s{sROW0}
v_lshl_add_u32 v{vT0}, v{vT0}, 1, s{sT0}
v_bfe_u32 v{vT1}, v{vL}, 4, 1
v_lshl_add_u32 v{vT0}, v{vT1}, 5, v{vT0}
v_mul_u32_u24 v{vT0}, 896, v{vT0}
v_lshrrev_b32 v{vT2}, 5, v{vL}
v_lshl_add_u32 v{vXE}, v{vT2}, 4, v{vT0}
v_mov_b32 v{vXO}, 0x3f800000""")
            b.need(lg=["xr"])
            for d in range(2):
                b(f"v_lshlrev_b32 v{vT0}, 16, v{XR+4+d}\nv_and_b32 v{vT1}, 0xffff0000, v{XR+4+d}")
                for pb in range(2):
                    q = AC + 4 * pb + 2 * d
                    b(f"v_dot2_f32_bf16 v{q}, v{XR+2*pb+d}, s{sLO}, v{vT0}\nv_dot2_f32_bf16 v{q+1}, v{XR+2*pb+d}, v{vXO}, v{vT1}")
            ns = lab("ns")
            stamp(b, 37)
            b(f"s_cmp_eq_u32 s{sS}, 7\ns_cbranch_scc1 {ns}")
            signal()
            b(f"{ns}:")
        if role == "A": act_base(b)
        for j in bars.get(-1, []): barrier(b, j)
        for r in sched.get(-1, []): b.ds(*r[:2])
        epi_at = {}
        for cc in range(2 if ra == 2 else 0, 5):
            n = at[(cc, 8)] + ET
            if cc + 2 < 7: n = min(n, at[(cc + 2, 0)] - 1)
            epi_at.setdefault(n, []).append((cc, n - at[(cc, 8)]))
        for n in range(N):
            cc, t = steps[n]
            ac = AC + 8 * (cc % 2); w = WR + 4 * (n % NR)
            for pb in range(2):
                m = 2 * n + pb
                early = []
                for j in bars.get(m, []):
                    if j == 21: before_own()
                    barrier(b, j, vm=[f"p{k}" for k in range(PROG.get(str(j), 0))])
                    if ra == 2 and j == 16:
                        early = list(sched.get(m, []))
                        for r in early: b.ds(*r[:2])
                        epi(0); epi(1)
                    elif j == 21:
                        early = list(sched.get(m, []))
                        for r in early: b.ds(*r[:2])
                    elif not early:
                        early = [r for r in sched.get(m, []) if int(r[1][1:]) == n]
                        for r in early: b.ds(*r[:2])
                b.need(lg=[f"w{n}"])
                mfma(b, ac + 4 * pb, w, ACTR + 4 * (9 * pb + t), "0" if (t == 0 and cc < 6) else None)
                for r in sched.get(m, []):
                    if r not in early: b.ds(*r[:2])
            for e, dist in epi_at.get(n, []):
                if dist < 4: b(f"s_nop {7 - 2 * dist}")
                epi(e)
            for k, v in STA.items():
                if v == f"{cc},{t}": store(int(k))
        own, done = lab("own"), lab("done")
        if STAMP: b.need(drain=True); b(f"{SOP} s[64:65]")
        b(f"s_cmp_lg_u32 s{sS}, 7\ns_cbranch_scc1 {own}\ns_nop 5")
        epi(6); signal()
        b(f"""s_branch {done}
{own}:
s_lshl_b32 s{sT0}, s{sCW}, 10
v_add_u32 v{vT0}, s{sT0}, v{vL16}
v_add_u32 v{vT1}, {RING}, v{vT0}
s_nop 1""")
        b.vm = []
        def take(slots):
            for i in slots:
                base, o = (vT1, INLOC[i] - RING) if INLOC[i] >= RING else (vT0, INLOC[i])
                b.ds(f"ds_read_b128 {vr(INB+4*i,4)}, v{base} offset:{o}", f"in{i}")
            for i in slots:
                b.need(lg=[f"in{i}"])
                for d in range(4):
                    b(f"v_dot2_f32_bf16 v{AC+2*d}, v{INB+4*i+d}, s{sLO}, v{AC+2*d}\nv_dot2_f32_bf16 v{AC+2*d+1}, v{INB+4*i+d}, v{vXO}, v{AC+2*d+1}")
        take(range(NE))
        if STAMP: b(f"{SOP} s[66:67]")
        b("s_barrier")
        if STAMP: b(f"{SOP} s[98:99]")
        take(range(NE, 7))
        b("s_nop 1")
        for q in range(4): b(f"v_cvt_pk_bf16_f32 v{PK+q}, v{AC+2*q}, v{AC+2*q+1}")
        b(f"s_nop 1\nv_permlane16_swap_b32 v{PK}, v{PK+2}\nv_permlane16_swap_b32 v{PK+1}, v{PK+3}\ns_nop 0")
        b(f"buffer_store_dwordx4 {vr(PK,4)}, v{vXE}, {sq(SOUT)}, s{sM0} offen {G('ost','')}")
        if STAMP: b(f"s_waitcnt lgkmcnt(0)\nv_writelane_b32 v0, s66, 39\nv_writelane_b32 v0, s98, 40")
        b(f"{done}:")
        if STAMP: b(f"s_waitcnt lgkmcnt(0)\nv_writelane_b32 v0, s64, 38\ns_branch L_fin")
        else: b("s_endpgm")

    f = c.fork(); f.nostamp = G('nof')
    vWA, vWB, vWA2, vWB2, vC1, vBi = 14, 15, 16, 17, 18, 19
    FACC = 24; FBUF = (80, 116)
    srd(f, SB1, 14, 1792 * 2)
    FH = (FACC, FACC + 8)
    if HF: srd(f, SX, 4, 2048 * 896); halo_loads(f, None)
    f(f"""s_mul_i32 s{sT3}, s{sS}, 448
s_mul_i32 s{sT1}, s{sHI}, 224
s_add_u32 s{sT3}, s{sT3}, s{sT1}
s_lshl_b32 s{sT2}, s{sA}, 8
s_add_u32 s{sT2}, s{sT2}, {BIAS}
s_mov_b32 m0, s{sT2}""")
    def bias_dma():
        f("s_mov_b64 exec, 0x3fff")
        f.vmem(f"buffer_load_dwordx4 v{vL16}, {sq(SB1)}, s{sT3} offen lds", "bias")
        f("s_mov_b64 exec, -1")
        if HF: halo_issue(f, FH)
    def wbases():
        f(f"""v_lshrrev_b32 v{vT2}, 4, v{vL}
v_lshlrev_b32 v{vT0}, 3, v{vT2}
v_add_u32 v{vBi}, s{sT2}, v{vT0}
v_bfe_u32 v{vT1}, v{vL}, 2, 2
v_add_u32 v{vT0}, v{vT0}, v{vT1}
v_mul_u32_u24 v{vT0}, 448, v{vT0}
v_and_b32 v{vT1}, 3, v{vL}
v_lshl_add_u32 v{vT0}, v{vT1}, 3, v{vT0}
s_add_u32 s{sT1}, s{sT1}, {RING}
v_add_u32 v{vT0}, s{sT1}, v{vT0}
v_and_b32 v{vT1}, 1, v{vT2}
s_lshl_b32 s{sT2}, s{sHI}, 6
s_sub_u32 s{sT2}, 32, s{sT2}
v_mul_lo_u32 v{vT1}, v{vT1}, s{sT2}
v_add_u32 v{vWA}, v{vT0}, v{vT1}
v_sub_u32 v{vWB}, v{vT0}, v{vT1}
v_add_u32 v{vWA2}, {2*SLOT}, v{vWA}
v_add_u32 v{vWB2}, {2*SLOT}, v{vWB}
v_mov_b32 v{vC1}, {f2u(-2.3022081981)}
s_mov_b32 s{sC2}, {f2u(-2.3022081981*0.044715)}
""")
        xbases(f)
    FE = G("fearly", 1)
    if FE == 1: bias_dma()
    wbases(); setup_s(f); setup_v1(f); setup_v2(f)
    if FE == 2: bias_dma()
    stamp(f, 1)
    ln_main(f, None if FE else bias_dma)
    stamp(f, 3)
    f(f"s_setprio {G('fprio0', 0)}")
    f.need(vm=["bias"])
    for cb in range(7): f.ds(f"ds_read_b64 {vr(FACC+8*cb+6,2)}, v{vBi} offset:{32*cb}", "bias")
    for _ in ln_core(f, FH, 8, UNP, ["h0", "h1"], 5): pass
    halo_write(f, FH)
    def bias_unpack(cbs=range(7)):
        for cb in cbs:
            d = FACC + 8 * cb
            f(f"""v_lshlrev_b32 v{d}, 16, v{d+6}
v_and_b32 v{d+1}, 0xffff0000, v{d+6}
v_lshlrev_b32 v{d+2}, 16, v{d+7}
v_and_b32 v{d+3}, 0xffff0000, v{d+7}""")
    act_base(f)
    BU = G("bu", "pre")
    if BU == "pre":
        f.need(lg=["bias"]); bias_unpack(range(2, 7)); f.smem = True; f.need(drain=True); bias_unpack(range(2))
    f.smem = True
    def bu_gap(m):
        m += 196
        if BU == "gap" and m < 12 and m % 2 == 0: bias_unpack([m // 2 + 1])
    f("s_setprio 2")
    def f_reads(ks):
        B = FBUF[ks % 2]; slot = (ks // 2) % 3; out = []
        xb = vXE if ks % 2 == 0 else vXO
        for pb in range(2):
            out.append((f"ds_read_b128 {vr(B+4*pb,4)}, v{xb} offset:{pb*1024 + ks*KP}", f"x{ks}"))
        for cb in range(7):
            base = (vWA if cb % 2 == 0 else vWB) + (2 if slot == 2 else 0)
            o = (SLOT if slot == 1 else 0) + (ks % 2) * 14336 + cb * 32
            for u in range(2):
                out.append((f"ds_read_b64_tr_b16 {vr(B+8+4*cb+2*u,2)}, v{base} offset:{o + u*1792}", f"w{ks}_{cb}"))
        return out
    def f_mfmas(ks):
        B = FBUF[ks % 2]; out = []
        for cb in range(7):
            for pb in ((1, 0) if ks == 0 else (0, 1)):
                cin = vr(FACC + 8*cb, 4) if ks == 0 else None
                out.append((lambda cb=cb, pb=pb, cin=cin: mfma(f, FACC + 8*cb + 4*pb, B + 8 + 4*cb, B + 4*pb, cin), [f"x{ks}", f"w{ks}_{cb}"]))
        return out
    g1_phase(f, 0, f_reads, f_mfmas, G("pF", 10), G("gapF", 4), tail=bu_gap, head={'pre': None, 'head': bias_unpack, 'gap': lambda: (bias_unpack([0]), f('s_nop 0'))}[BU])
    f(f"s_setprio {G('gprio', 0)}")
    H, GT = 80, 108
    f(f"""s_lshl_b32 s{sT1}, s{sHI}, 3
s_mul_i32 s{sT2}, s{sHI}, {3*4096}
v_add_u32 v{vWA}, s{sT1}, v{vActW}
v_add_u32 v{vWB}, s{sT2}, v{vActW}""")
    ops = []
    for cb in range(7):
        a0 = FACC + 8 * cb; E = range(8) if not G("nogelu") else range(0)
        for e in E: ops.append((4, f"v_mul_f32 v{GT+e}, v{a0+e}, v{a0+e}"))
        for e in E: ops.append((4, f"v_fma_f32 v{GT+e}, v{GT+e}, s{sC2}, v{vC1}"))
        for e in E: ops.append((4, f"v_mul_f32 v{GT+e}, v{GT+e}, v{a0+e}"))
        for e in E: ops.append((8, f"v_exp_f32 v{GT+e}, v{GT+e}"))
        for e in E: ops.append((4, f"v_add_f32 v{GT+e}, 1.0, v{GT+e}"))
        for e in E: ops.append((8, f"v_rcp_f32 v{GT+e}, v{GT+e}"))
        for e in E: ops.append((4, f"v_mul_f32 v{GT+e}, v{GT+e}, v{a0+e}"))
        for q in range(4):
            d = H + 24 + q if cb == 6 else H + 8 * (cb // 2) + 4 * (q // 2) + 2 * (cb % 2) + q % 2
            ops.append((4, f"v_cvt_pk_bf16_f32 v{d}, v{GT+2*q}, v{GT+2*q+1}"))
    sl = []
    bud = G("gbud", [230, 316, 316, 316, 316, 317, 317]); acc = 0; j = 8; lim = bud[0]
    for k, (cost, op) in enumerate(ops):
        if acc + cost > lim and j <= 14:
            barrier(f, j); j += 1
            lim += bud[j - 8] if j <= 14 else 10 ** 6
        acc += cost; f(op)
        if sl and k % 4 == 3: f(sl.pop(0))
    while j <= 14:
        barrier(f, j); j += 1
    f("s_setprio 3")
    for p in range(3):
        for pb in range(2): f.ds(f"ds_write_b128 v{vWB}, {vr(H+8*p+4*pb,4)} offset:{actoff(p) + pb*1024}", "hw")
    f.ds(f"ds_write2st64_b64 v{vWA}, {vr(H+24,2)}, {vr(H+26,2)} offset0:{actoff(6)//512} offset1:{(actoff(6) + 1024)//512}", "hw")
    f(f"s_setprio {G('f2prio', 1)}")
    g2_phase(f, "F")
    T_f2 = f.cut()

    w = c.fork(); w.nostamp = G('noa')
    vXPE, vXPO, vQA, vQA2, vZ, vMask, vPM = 14, 15, 16, 17, 18, 20, (11, 13)
    AACC = 32; ABUF = (96, 132); vHalo = 32
    w("L_A2:")
    stamp(w, 1)
    ln_main(w)
    stamp(w, 3)
    w("s_setprio 0")
    barrier(w, 0)
    srd(w, SDBG, 24, 256)
    setup_s(w); xbases(w)
    barrier(w, 1)
    gn = get_nonce(w, vT0, 1); next(gn)
    w(f"""
v_lshrrev_b32 v{vT0}, 5, v{vL}
v_bfe_u32 v{vT1}, v{vL}, 2, 3
v_lshl_add_u32 v{vT0}, v{vT0}, 4, v{vT1}
v_mul_u32_u24 v{vT0}, 352, v{vT0}
v_and_b32 v{vT1}, 3, v{vL}
v_lshl_add_u32 v{vT0}, v{vT1}, 3, v{vT0}
s_mul_i32 s{sT0}, s{sHI}, 56
s_add_u32 s{sT0}, s{sT0}, {RING}
v_add_u32 v{vQA}, s{sT0}, v{vT0}
v_add_u32 v{vQA2}, {2*SLOT}, v{vQA}
; previous key block base
v_lshrrev_b32 v{vT2}, 4, v{vL}
v_and_b32 v{vT0}, 7, v{vL}
v_xor_b32 v{vT0}, v{vT0}, v{vT2}
v_lshlrev_b32 v{vT0}, 4, v{vT0}
v_lshl_add_u32 v{vT0}, v{vT2}, 7, v{vT0}
v_add_u32 v{vT0}, {HALO}, v{vT0}
v_subrev_u32 v{vT1}, 1024, v{vXE}
s_cmp_eq_u32 s{sRH}, 0
s_cselect_b64 vcc, -1, 0
s_cselect_b32 s{sT0}, 64, 192
v_cndmask_b32 v{vXPE}, v{vT1}, v{vT0}, vcc
v_xor_b32 v{vXPO}, s{sT0}, v{vXPE}
v_cmp_ne_u32 vcc, 0, v{vT2}
s_lshl_b32 s{sT0}, s{sRH}, 11
s_lshl_b32 s{sT1}, s{sHI}, 12
v_cndmask_b32 v{vZ}, 0, -1, vcc
s_add_u32 s{sT0}, s{sT0}, s{sT1}
v_add_u32 v{vActW}, s{sT0}, v{vL16}
""")
    w.smem = bool(w.pend)
    barrier(w, 2)
    setup_v1(w)
    w.smem = True; next(gn)
    w(f"""
s_lshl_b32 s{sT3}, s{sS}, 5
s_mul_i32 s{sT0}, s{sA}, 7
s_add_u32 s{sT3}, s{sT3}, s{sT0}
s_lshl_b32 s{sT3}, s{sT3}, 7
s_add_u32 s{sT3}, s{sT3}, {WS_F1}
""")
    w(f"""
v_and_b32 v{vT0}, 15, v{vL}
v_lshrrev_b32 v{vT2}, 4, v{vL}
v_lshlrev_b32 v{vT2}, 2, v{vT2}
v_sub_u32 v{vT0}, v{vT0}, v{vT2}
v_mov_b32 v{vT3}, {f2u(-1e30)}
v_mov_b32 v19, 0xffff
s_lshr_b32 s{sT0}, s{sRB}, 1
s_or_b32 s{sT0}, s{sT0}, s{sRH}
s_cmp_eq_u32 s{sT0}, 0
s_cselect_b32 s{sT1}, 0, 8
s_mov_b32 s{sC2}, {f2u(28 ** -0.5 * math.log2(math.e))}
""")
    def mask(jj):
        w(f"""
v_subrev_u32 v{vT1}, {jj}, v{vT0}
v_add_u32 v{vT2}, 16, v{vT1}
v_cmp_gt_u32 s[60:61], 8, v{vT1}
v_cmp_gt_u32 s[62:63], 8, v{vT2}
v_cmp_gt_u32 vcc, s{sT1}, v{vT2}
v_cndmask_b32 v{vMask+4+jj}, v{vT3}, 0, s[60:61]
v_cndmask_b32 v{vMask+jj}, v{vT3}, 0, s[62:63]
v_cndmask_b32 v{vMask+8+jj}, v{vT3}, 0, vcc
""")
        if jj % 2 == 0: w(f"v_cndmask_b32 v{vPM[jj//2]}, 0, v19, s[60:61]")
        else: w(f"v_cndmask_b32 v{vT1}, 0, v19, s[60:61]\nv_lshl_or_b32 v{vPM[jj//2]}, v{vT1}, 16, v{vPM[jj//2]}")
    PQ = [4, 8, 12, 16, 20, 24, 56]
    def p1_issue():
        for i, q in enumerate(PQ): w(f"s_buffer_load_dwordx4 {sq(q)}, {sq(SWS)}, s{sT3} offset:{128*i}")
    barrier(w, 3)
    mask(0); mask(1)
    if not G("p1late"): p1_issue()
    barrier(w, 4)
    if G("p1late"): p1_issue()
    w.smem = True
    chk, retry, got = lab("pc"), lab("pr"), lab("pg")
    w.need(drain=True)
    w(f"s_mov_b32 s{sPoll}, 0\n{chk}:")
    for q in PQ:
        for h in (0, 2): w(f"s_cmp_eq_u64 s[{q+h}:{q+h+1}], s[{sN0}:{sN1}]\ns_cbranch_scc0 {retry}")
    w(f"{got}:")
    if STAMP: w(f"v_writelane_b32 v0, s{sPoll}, 60")
    slow_poll(retry, got, vT1, f"v_min_u32 v{vT1}, 27, v{vL}\nv_lshrrev_b32 v{vT2}, 2, v{vT1}\nv_and_b32 v{vT1}, 3, v{vT1}\nv_lshlrev_b32 v{vT1}, 2, v{vT1}\nv_lshl_add_u32 v{vT1}, v{vT2}, 7, v{vT1}", sT3)
    barrier(w, 5)
    mask(2); mask(3)
    barrier(w, 6)
    w(f"s_setprio {G('aprio',2)}")
    def a_reads(ks):
        B = ABUF[ks % 2]; slot = (7 + ks // 2) % 3; out = []
        xb = vXE if ks % 2 == 0 else vXO
        xp = vXPE if ks % 2 == 0 else vXPO
        out.append((f"ds_read_b128 {vr(B+4,4)}, v{xb} offset:{ks*KP}", f"x{ks}"))
        out.append((f"ds_read_b128 {vr(B+8,4)}, v{xb} offset:{1024 + ks*KP}", f"x{ks}"))
        base = vQA2 if slot == 2 else vQA
        for sec in range(3):
            if sec == 1: out.append((f"ds_read_b128 {vr(B,4)}, v{xp} offset:{ks*KP}", f"xp{ks}"))
            for db in range(2):
                o = (SLOT if slot == 1 else 0) + (ks % 2) * 32 * 352 + sec * 112 + db * 24
                for u in range(2):
                    out.append((f"ds_read_b64_tr_b16 {vr(B+12+4*(2*sec+db)+2*u,2)}, v{base} offset:{o + u*8*352}", f"w{ks}_{sec}{db}"))
        return out
    def a_mfmas(ks):
        B = ABUF[ks % 2]; out = []
        c0 = "0" if ks == 0 else None
        for db in range(2):
            for qb in range(2):
                out.append((lambda db=db, qb=qb: mfma(w, AACC + (2*db+qb)*4, B + 12 + 4*db, B + 4 + 4*qb, c0), [f"x{ks}", f"w{ks}_0{db}"]))
        for db in range(2):
            for kb in range(3):
                out.append((lambda db=db, kb=kb: mfma(w, AACC + 16 + (3*db+kb)*4, B + 20 + 4*db, B + 4*kb, c0), [f"xp{ks}", f"w{ks}_1{db}"]))
        for db in range(2):
            for kb in range(3):
                out.append((lambda db=db, kb=kb: mfma(w, AACC + 40 + (3*db+kb)*4, B + 4*kb, B + 28 + 4*db, c0), [f"w{ks}_2{db}"]))
        return out
    QP, KPk, VP, ONES, SS, MM, PP, LL, OO = 96, 104, 116, 128, 132, 148, 48, 160, 32
    tl = []
    for q in range(4): tl.append(f"v_mov_b32 v{ONES+q}, 0x3f803f80")
    for db in range(2):
        for qb in range(2):
            s0 = AACC + (2*db+qb)*4
            for h in range(2): tl.append(f"v_cvt_pk_bf16_f32 v{QP+4*qb+2*db+h}, v{s0+2*h}, v{s0+2*h+1}")
    for db in range(2):
        for kb in range(3):
            s0 = AACC + 16 + (3*db+kb)*4
            for h in range(2): tl.append(f"v_cvt_pk_bf16_f32 v{KPk+4*kb+2*db+h}, v{s0+2*h}, v{s0+2*h+1}")
    for qb in range(2):
        for h in range(2): tl.append(f"v_and_b32 v{QP+4*qb+2+h}, v{vZ}, v{QP+4*qb+2+h}")
    def a_tail(m):
        if m >= -10:
            for _ in range(2): w(tl.pop(0))
    g1_phase(w, 7, a_reads, a_mfmas, G("pA", 10), G("gapA", 3), a_tail)
    stamp(w, 5)
    for x in tl: w(x)
    vc = []
    for db in range(2):
        for kb in range(3):
            s0 = AACC + 40 + (3*db+kb)*4
            for h in range(2): vc.append(f"v_cvt_pk_bf16_f32 v{VP+6*db+2*kb+h}, v{s0+2*h}, v{s0+2*h+1}")
    def fill(n):
        for _ in range(n): w(vc.pop(0) if vc else "s_nop 0")
    for qb in range(2):
        for t in range(2):
            m = vMask + 4 if t == 1 else (vMask + 8 if qb == 0 else vMask)
            mfma(w, SS + 8*qb + 4*t, KPk + 4*(qb+t), QP + 4*qb, vr(m, 4))
    if G("bhpos", 3) == 0: barrier(w, BH)
    fill(4); w("s_nop 1")
    T, U = vT0, vT1
    for qb in range(2):
        for e in range(4): w(f"v_max_f32 v{MM+4*qb+e}, v{SS+8*qb+e}, v{SS+8*qb+4+e}")
    for qb in range(2): w(f"v_max3_f32 v{T+qb}, v{MM+4*qb}, v{MM+4*qb+1}, v{MM+4*qb+2}")
    for qb in range(2): w(f"v_max_f32 v{T+qb}, v{T+qb}, v{MM+4*qb+3}")
    fill(2); w(f"v_permlane32_swap_b32 v{T}, v{U}"); fill(1)
    w(f"v_max_f32 v{T}, v{T}, v{U}\nv_mov_b32 v{U}, v{T}")
    fill(2); w(f"v_permlane16_swap_b32 v{T}, v{U}"); fill(1)
    w(f"v_max_f32 v{T}, v{T}, v{U}\nv_mul_f32 v{U}, s{sC2}, v{T}\nv_mul_f32 v{T}, s{sC2}, v{T}")
    fill(2); w(f"v_permlane32_swap_b32 v{T}, v{U}"); fill(1)
    assert not vc
    if G("bhpos", 3) == 1: barrier(w, BH)
    for qb in range(2):
        m0 = MM + 4*qb
        for e in range(4): w(f"v_fma_f32 v{m0+e}, v{m0+e}, s{sC2}, -v{T+qb}")
        for e in range(4): w(f"v_exp_f32 v{m0+e}, v{m0+e}")
        w(f"v_cvt_pk_bf16_f32 v{m0}, v{m0}, v{m0+1}\nv_cvt_pk_bf16_f32 v{m0+2}, v{m0+2}, v{m0+3}")
        for h in range(2): w(f"v_bfi_b32 v{PP+4*qb+h}, v{vPM[h]}, 0, v{m0+2*h}")
        for h in range(2): w(f"v_and_b32 v{PP+4*qb+2+h}, v{vPM[h]}, v{m0+2*h}")
        if qb == 0: w("s_nop 1")
        else: setup_v2(w)
        mfma(w, LL + 4*qb, ONES, PP + 4*qb, "0")
        for db in range(2): mfma(w, OO + 8*qb + 4*db, VP + 6*db + 2*qb, PP + 4*qb, "0")
        if G("bhpos", 3) == 2 + qb: barrier(w, BH)
    for qb in range(2):
        w(f"v_rcp_f32 v{LL+4*qb}, v{LL+4*qb}\ns_nop 0\nv_and_b32 v{LL+4*qb+1}, v{vZ}, v{LL+4*qb}")
        for db in range(2):
            for e in range(4): w(f"v_mul_f32 v{OO+8*qb+4*db+e}, v{LL+4*qb+db}, v{OO+8*qb+4*db+e}")
        for q in range(4): w(f"v_cvt_pk_bf16_f32 v{PP+8+4*qb+q}, v{OO+8*qb+2*q}, v{OO+8*qb+2*q+1}")
    for qb in range(2):
        w.ds(f"ds_write_b128 v{vActW}, {vr(PP+8+4*qb,4)} offset:{ACT + qb*1024}", "ow")
    w(f"s_setprio {G('a2prio', 2)}")
    stamp(w, 6)
    g2_phase(w, "A")
    T_a2 = w.cut()

    l = a.fork(); l.nostamp = G('lite') or G('nol')
    xp = 1 if G('pfg', 1) else xm
    vW1a, vW1b, vW2A, vPF, vR0, vR1, vNon, vZero, vRP, vSent, vPA, vXR = 8, 9, 10, 11, 12, 13, 14, 15, 16, 24, 28, 29
    vNeed, vRng, vPoll, vPv, vPg = 24, 25, 26, 27, 30
    vW1 = 32
    l("L_L:")
    l(f"s_setprio {G('lprio0',3)}")
    common2(l)
    l(f"""
s_or_b32 s{sT3}, s2, s{sW}
s_cmp_lg_u32 s{sT3}, 0
s_cbranch_scc1 L_nolead0
s_memrealtime s[{sN0}:{sN1}]
L_nolead0:
""")
    for i, d in ((0, vR0), (1, vR1)):
        l(f"""
v_add_u32 v{vT0}, {64*i}, v{vL}
v_mul_u32_u24 v{vT2}, 2979, v{vT0}
v_lshrrev_b32 v{vT2}, 16, v{vT2}
v_mul_u32_u24 v{vT3}, 22, v{vT2}
v_sub_u32 v{vT0}, v{vT0}, v{vT3}
v_min_u32 v{vT0}, 20, v{vT0}
v_mul_u32_u24 v{vT3}, 37, v{vT0}
v_lshrrev_b32 v{vT3}, 8, v{vT3}
v_mul_u32_u24 v{vT3}, {896-112}, v{vT3}
v_lshl_add_u32 v{vT0}, v{vT0}, 4, v{vT3}
v_mul_u32_u24 v{vT2}, 2688, v{vT2}
v_add_u32 v{d}, v{vT0}, v{vT2}
""")
    l(f"""
s_and_b32 s{sT2}, s{sA}, 1
s_lshl_b32 s{sT2}, s{sT2}, 3
s_lshr_b32 s{sT1}, s{sA}, 1
s_lshl_b32 s{sT1}, s{sT1}, 2
s_add_u32 s{sT2}, s{sT2}, s{sT1}
s_lshl_b32 s{sT1}, s{sRB}, 4
s_add_u32 s{sT2}, s{sT2}, s{sT1}
s_mul_i32 s{sT2}, s{sT2}, 2688
s_mul_i32 s{sT1}, s{sS}, 112
s_add_u32 s{sC2}, s{sT2}, s{sT1}
; W1 prefetch offsets (rows 0..127)
s_and_b32 s{sJJ}, s{sRB}, {32//xp-1}
s_lshl_b32 s{sT1}, s{sJJ}, 2
s_add_u32 s{sRH}, s{sT1}, s{sA}
s_mul_i32 s{sT1}, s{sRH}, {xp}
v_min_u32 v{vT1}, {4*xp-1}, v{vL}
v_lshrrev_b32 v{vT2}, 2, v{vT1}
v_add_u32 v{vT2}, s{sT1}, v{vT2}
v_and_b32 v{vT1}, 3, v{vT1}
v_mul_u32_u24 v{vT2}, 3584, v{vT2}
v_lshl_add_u32 v{vPA}, v{vT1}, 7, v{vT2}
s_mul_i32 s{sW1o}, s{sS}, 448
s_and_b32 s{sHI}, s{sW1o}, 0xffffff80
v_mov_b32 v{vZero}, 0
s_waitcnt lgkmcnt(0)
""")
    mark(l, "ka")
    srd(l, SWQ, 6, 448 * 1344 * 2); srd(l, SW1, 12, 448 * 1792 * 2)
    def op_pfa():
        l.vmem(f"buffer_load_dword v{vPF}, v{vPA}, {sq(SW1)}, s{sHI} offen {G('ntw','')}", "pf")
    def op_rpl():
        l.vmem(f"buffer_load_dwordx4 {vr(vRP,4)}, v{vR0}, {sq(SWQ)}, s{sC2} offen {G('ntr','')}", "rp")
        l("s_mov_b64 exec, 0xffffff")
        l.vmem(f"buffer_load_dwordx4 {vr(vRP+4,4)}, v{vR1}, {sq(SWQ)}, s{sC2} offen {G('ntr','')}", "rp")
        l("s_mov_b64 exec, -1")
    def op_init():
        srd(l, SDBG, 24, 256)
        l(f"""
s_cmp_lg_u32 s{sT3}, 0
s_cbranch_scc1 L_nolead1
s_and_b32 s{sN0}, s{sN0}, -16
s_or_b32 s62, s{sN0}, 16
s_atomic_swap s62, s[{SDBG}:{SDBG+1}], 0
s_atomic_swap s62, s[{SDBG}:{SDBG+1}], 64
L_nolead1:
""")
        srd(l, SWS, 26, 0x10000000); srd(l, SW2, 16, 1792 * 448 * 2); srd(l, SWO, 8, 448 * 448 * 2)
        srd(l, SX, 4, 2048 * 896); srd(l, SB2, 18, 896)
        first_stamps(l)
        l(f"""
v_mul_u32_u24 v{vT0}, 2341, v{vL}
v_xor_b32 v{vT1}, 32, v{vL16}
v_and_b32 v{vT2}, 32, v{vL}
v_xor_b32 v{vT2}, v{vT2}, v{vL16}
s_movk_i32 s{sT1}, {3584-448}
""")
        for i in range(7):
            l(f"v_add_u32 v{vT3}, {64*i*2341}, v{vT0}\nv_lshrrev_b32 v{vT3}, 16, v{vT3}\nv_mad_u32_u24 v{vW1+i}, v{vT3}, s{sT1}, v{vL16 if i < 3 else (vT2 if i == 3 else vT1)}")
        l(f"""
s_mul_i32 s{sT1}, s{sA}, {16*3584}
s_add_u32 s{sW1o}, s{sW1o}, s{sT1}
s_mul_i32 s{sM0}, s{sA}, 7168
""")
    def op_pfb():
        l(f"""
s_mul_i32 s{sT1}, s{sRH}, {10*xp}
s_add_u32 s{sT1}, s{sT1}, 512
v_min_u32 v{vT1}, {10*xp-1}, v{vL}
v_add_u32 v{vT1}, s{sT1}, v{vT1}
v_lshrrev_b32 v{vT2}, 2, v{vT1}
v_and_b32 v{vT1}, 3, v{vT1}
v_mul_u32_u24 v{vT2}, 3584, v{vT2}
v_lshl_add_u32 v{vT1}, v{vT1}, 7, v{vT2}
""")
        l.vmem(f"buffer_load_dword v{vPF}, v{vT1}, {sq(SW1)}, s{sHI} offen {G('ntw','')}", "pf")
    def op_pf2():
        per = 49 * xp; pw = (per + 3) // 4
        l(f"""
s_mul_i32 s{sT2}, s{sJJ}, {per}
s_mul_i32 s{sT1}, s{sA}, {pw}
v_min_u32 v{vT1}, {pw-1}, v{vL}
v_add_u32 v{vT1}, s{sT1}, v{vT1}
v_min_u32 v{vT1}, {per-1}, v{vT1}
v_add_lshl_u32 v{vT1}, v{vT1}, s{sT2}, 7
s_mul_i32 s{sT1}, s{sS}, {224*896}
""")
        l.vmem(f"buffer_load_dword v{vPF}, v{vT1}, {sq(SW2)}, s{sT1} offen {G('nt2','')}", "pf2")
        per = 13 * xp; pw = (per + 3) // 4
        l(f"""
s_mul_i32 s{sT2}, s{sJJ}, {per}
s_mul_i32 s{sT1}, s{sA}, {pw}
v_min_u32 v{vT1}, {pw-1}, v{vL}
v_add_u32 v{vT1}, s{sT1}, v{vT1}
v_min_u32 v{vT1}, {per-1}, v{vT1}
v_add_u32 v{vT1}, s{sT2}, v{vT1}
v_min_u32 v{vT1}, 391, v{vT1}
v_lshlrev_b32 v{vT1}, 7, v{vT1}
s_mul_i32 s{sT1}, s{sS}, {56*896}
""")
        l.vmem(f"buffer_load_dword v{vPF}, v{vT1}, {sq(SWO)}, s{sT1} offen {G('nt2','')}", "pf2")
    def op_g(k):
        if k < 3:
            l(f"""
s_mul_i32 s{sT2}, s{sRB}, 49
s_mul_i32 s{sT1}, s{sA}, 5
s_add_u32 s{sT1}, s{sT1}, {17*k}
v_min_u32 v{vT1}, 4, v{vL}
v_add_u32 v{vT1}, s{sT1}, v{vT1}
v_min_u32 v{vT1}, {min(17*k+16, 48)}, v{vT1}
v_add_lshl_u32 v{vT1}, v{vT1}, s{sT2}, 7
s_mul_i32 s{sT1}, s{sS}, {224*896}
""")
            l.vmem(f"buffer_load_dword v{vPF}, v{vT1}, {sq(SW2)}, s{sT1} offen {G('nt2','')}", "pf2")
        else:
            l(f"""
s_mul_i32 s{sT2}, s{sRB}, 13
s_lshl_b32 s{sT1}, s{sA}, 2
v_min_u32 v{vT1}, 3, v{vL}
v_add_u32 v{vT1}, s{sT1}, v{vT1}
v_min_u32 v{vT1}, 12, v{vT1}
v_add_u32 v{vT1}, s{sT2}, v{vT1}
v_min_u32 v{vT1}, 391, v{vT1}
v_lshlrev_b32 v{vT1}, 7, v{vT1}
s_mul_i32 s{sT1}, s{sS}, {56*896}
""")
            l.vmem(f"buffer_load_dword v{vPF}, v{vT1}, {sq(SWO)}, s{sT1} offen {G('nt2','')}", "pf2")
    def op_tlb():
        l(f"s_mul_i32 s{sT0}, s{sRB}, {7*65536}")
        l.vmem(f"buffer_load_dword v{vPF}, v{vZero}, {sq(SWS)}, s{sT0} offen nt", "pf2")
        l.vmem(f"global_load_dword v{vPF}, v{vZero}, s[22:23] nt", "pf2")
    def op_b2():
        l(f"""s_lshl_b32 s{sT1}, s{sS}, 7
s_mov_b32 m0, {XRES + 8192}
s_mov_b64 exec, 0xff""")
        l.vmem(f"buffer_load_dwordx4 v{vL16}, {sq(SB2)}, s{sT1} offen lds", "xr")
        l("s_mov_b64 exec, -1")
    def op_xr():
        l(f"""
s_lshl_b32 s{sT0}, s{sA}, 5
s_add_u32 s{sT0}, s{sT0}, s{sROW0}
s_mul_i32 s{sT0}, s{sT0}, 896
s_lshl_b32 s{sT1}, s{sS}, 7
s_cmp_eq_u32 s{sS}, 7
s_cselect_b32 s{sT1}, {OOB}, s{sT1}
s_add_u32 s{sT0}, s{sT0}, s{sT1}
s_lshl_b32 s{sT2}, s{sA}, 11""")
        for i in range(2):
            l(f"s_add_u32 m0, s{sT2}, {XRES + 1024*i}\ns_add_u32 s{sT0}, s{sT0}, {16*896*i}")
            l.vmem(f"buffer_load_dwordx4 v{vXR}, {sq(SX)}, s{sT0} offen lds", "xr")
    def op_rps():
        l(f"""
s_mul_i32 s{sT1}, s{sS}, {448*352}
s_add_u32 s{sT1}, s{sT1}, {WS_WQ}
s_lshl_b32 s{sT0}, s{sRB}, 2
s_add_u32 s{sT0}, s{sT0}, s{sA}
s_mul_i32 s{sT0}, s{sT0}, {4*352}
s_add_u32 s{sT0}, s{sT0}, s{sT1}
s_cmp_ge_u32 s{sRB}, 28
s_cselect_b32 s{sT0}, {OOB}, s{sT0}
""")
        l.need(vm=["rp"])
        l.vmem(f"buffer_store_dwordx4 {vr(vRP,4)}, v{vL16}, {sq(SWS)}, s{sT0} offen sc1", "rps")
        l("s_mov_b64 exec, 0xffffff")
        l.vmem(f"buffer_store_dwordx4 {vr(vRP+4,4)}, v{vL16}, {sq(SWS)}, s{sT0} offen offset:1024 sc1", "rps")
        l("s_mov_b64 exec, -1")
    gl = get_nonce(l, vT0, 0)
    def op_noi(): next(gl)
    def op_non():
        next(gl)
    def op_fl1():
        l(f"""s_mul_i32 s25, s{sRB}, {FR}
s_add_u32 s25, s25, {WS_FE}
s_lshl_b32 s{sT0}, s{sS}, 5
s_add_u32 s{sT0}, s{sT0}, s{sRB}
s_lshl_b32 s{sT0}, s{sT0}, 5
s_add_u32 s{sT0}, s{sT0}, s{sA}
s_lshl_b32 s{sT0}, s{sT0}, 2
s_add_u32 s{sT0}, s{sT0}, {WS_F1}""")
        l.need(vm=["rps"])
        ni = lab("ni")
        l(f"""s_atomic_swap s{sN0}, s[{SWS}:{SWS+1}], s{sT0}
s_or_b32 s{sT0}, s{sS}, s{sA}
s_cbranch_scc1 {ni}
s_mov_b32 s62, 0
s_mov_b32 s63, s{sN0}
s_atomic_swap_x2 s[62:63], s[{SWS}:{SWS+1}], s25
{ni}:""")
    def op_tab():
        chunks(l)
        l(f"""
v_lshrrev_b32 v{vT0}, 3, v{vL}
v_lshrrev_b32 v{vT1}, 4, v{vL}
v_lshlrev_b32 v{vT1}, 1, v{vT1}
v_and_b32 v{vT2}, 7, v{vL}
v_xor_b32 v{vT1}, v{vT1}, v{vT2}
v_mul_u32_u24 v{vT0}, 896, v{vT0}
v_lshl_add_u32 v{vW2A}, v{vT1}, 4, v{vT0}
v_add_u32 v{vXR}, v{vW2A}, v{vT0}
s_mul_i32 s{sW2o}, s{sS}, {224*896}
s_mul_i32 s{sT0}, s{sA}, {8*896}
s_add_u32 s{sW2o}, s{sW2o}, s{sT0}
s_lshl_b32 s27, s{sA}, 10
s_mul_i32 s{sWQo}, s{sS}, {448*352}
s_add_u32 s{sWQo}, s{sWQo}, {WS_WQ}
s_mul_i32 s{sM1}, s{sA}, {16*352}
s_add_u32 s{sWQo}, s{sWQo}, s{sM1}
s_mul_i32 s{sT2}, s{sS}, {56*896}
s_lshl_b32 s{sT0}, s{sA}, 1
s_add_u32 s{sT1}, s{sT0}, 1
s_min_u32 s{sT1}, s{sT1}, 6
s_lshl_b32 s20, s{sT0}, 10
s_lshl_b32 s21, s{sT1}, 10
s_mul_i32 s22, s{sT0}, {8*896}
s_mul_i32 s23, s{sT1}, {8*896}
s_add_u32 s22, s22, s{sT2}
s_add_u32 s23, s23, s{sT2}
; inbox: source offsets per slot (s4..s10), poll address / need per lane
s_mul_i32 s{sPart}, s{sRB}, {7*65536}
s_lshl_b32 s{sT0}, s{sS}, 16
s_add_u32 s{sPart}, s{sPart}, s{sT0}
s_add_u32 s10, s{sPart}, {7*8192}
s_lshl_b32 s24, s{sS}, 2
s_add_u32 s11, s{sCH+5}, 1
s_mov_b32 s12, 0
""")
        for k in range(6): l(f"s_lshl_b32 s{sT1}, s{sCH+5-k}, 13\ns_add_u32 s{4+k}, s{sPart}, s{sT1}")
    def dma_w1(st):
        for i in range(7):
            if i % 4 == 0: l(f"s_add_u32 m0, s{sM0}, {RING + (st%3)*SLOT + 1024*i}\ns_add_u32 s{sT0}, s{sW1o}, {st*64*3584 + 1024*i}")
            l.vmem(f"buffer_load_dwordx4 v{vW1+i}, {sq(SW1)}, s{sT0} offen offset:{1024*(i%4)} lds", f"st{st}")
    def dma_wq(st):
        if G("nodma"): return
        q = st - 7
        for i in range(6):
            if i % 4 == 0:
                l(f"s_add_u32 m0, s{sM1}, {RING + (st%3)*SLOT + 1024*i}\ns_add_u32 s{sT0}, s{sWQo}, {q*22528 + 1024*i}")
            if i == 5: l("s_mov_b32 exec_hi, 0")
            l.vmem(f"buffer_load_dwordx4 v{vL16}, {sq(SWS)}, s{sT0} offen offset:{1024*(i%4)} lds", f"st{st}")
        l("s_mov_b32 exec_hi, -1")
    def dma_w2(cc, i0=0, i1=7):
        if G("nodma"): return
        l(f"s_lshl_b32 s{sT2}, s{sCH+cc}, 7\ns_add_u32 s{sT2}, s{sT2}, s{sW2o}")
        for i in range(i0, i1):
            l(f"s_add_u32 m0, s27, {W2LOC[cc] + 4096*i}\ns_add_u32 s{sT0}, s{sT2}, {32*896*i}")
            l.vmem(f"buffer_load_dwordx4 v{vW2A}, {sq(SW2)}, s{sT0} offen lds", f"w2{cc}")
    def dma_wo(cc):
        if G("nodma"): return
        l(f"s_lshl_b32 s{sT2}, s{sCH+cc}, 7")
        for i in range(2):
            l(f"s_add_u32 m0, s{20+i}, {WOLOC[cc]}\ns_add_u32 s{sT0}, s{22+i}, s{sT2}")
            l.vmem(f"buffer_load_dwordx4 v{vW2A}, {sq(SWO)}, s{sT0} offen lds", f"wo{cc}")
    vD0, vD1, vD2, vE0, vE1 = 8, 9, 12, 13, 14
    def pace():
        if G("pace"): l(G("pace"))
    def op_stg():
        l(f"""v_add_u32 v{vD0}, s27, v{vL16}
v_add_u32 v{vD1}, {RING}, v{vD0}
v_add_u32 v{vD2}, {RING + 2*SLOT}, v{vD0}
v_add_u32 v{vE0}, s20, v{vL16}
v_add_u32 v{vE1}, s21, v{vL16}""")
    def stg_w2(cc, i0=0, i1=7):
        l(f"s_lshl_b32 s{sT2}, s{sCH+cc}, 7\ns_add_u32 s{sT2}, s{sT2}, s{sW2o}")
        for i in range(i0, i1):
            l(f"s_add_u32 s{sT0}, s{sT2}, {32*896*i}")
            l.vmem(f"buffer_load_dwordx4 {vr(32 + 28*(cc-3) + 4*i, 4)}, v{vW2A}, {sq(SW2)}, s{sT0} offen", f"v{cc}{i}")
    def stg_wo(cc):
        l(f"s_lshl_b32 s{sT2}, s{sCH+cc}, 7")
        for i in range(2):
            l(f"s_add_u32 s{sT0}, s{22+i}, s{sT2}")
            l.vmem(f"buffer_load_dwordx4 {vr(144 + 8*(cc-4) + 4*i, 4)}, v{vW2A}, {sq(SWO)}, s{sT0} offen", f"u{cc}")
    def put_w2(cc, i0=0, i1=7):
        loc = W2LOC[cc]; base, o = (vD0, 0) if loc == 0 else ((vD2, 0) if loc == RING + 2 * SLOT else (vD1, loc - RING))
        for i in range(i0, i1):
            l.need(vm=[f"v{cc}{i}"])
            l.ds(f"ds_write_b128 v{base}, {vr(32 + 28*(cc-3) + 4*i, 4)} offset:{o + 4096*i}", "put"); pace()
    def put_wo(cc):
        l.need(vm=[f"u{cc}"])
        for i in range(2): l.ds(f"ds_write_b128 v{vE0+i}, {vr(144 + 8*(cc-4) + 4*i, 4)} offset:{WOLOC[cc]}", "put"); pace()
    def only0(fn):
        sk = lab("o0")
        l(f"s_cmp_lg_u32 s{sA}, 0\ns_cbranch_scc1 {sk}"); fn(); l(f"{sk}:")
    def op_cki():
        only0(lambda: l(f"s_mov_b64 s[60:61], 0\ns_atomic_add_x2 s[60:61], s[{SWS}:{SWS+1}], s25 glc"))
    def op_ck():
        again, got = lab("ca"), lab("cg")
        def body():
            l(f"s_waitcnt lgkmcnt(0)\ns_mov_b32 s{sPoll}, 0\ns_cmp_eq_u32 s61, s{sN0}\ns_cbranch_scc0 {again}\n{got}:")
        only0(body)
        x = Asm()
        x(f"""{again}:
s_mov_b64 s[60:61], 0
s_atomic_add_x2 s[60:61], s[{SWS}:{SWS+1}], s25 glc
s_add_u32 s{sPoll}, s{sPoll}, 1
s_cmp_gt_u32 s{sPoll}, {SPIN}
s_waitcnt lgkmcnt(0)
s_cbranch_scc1 {got}
s_cmp_eq_u32 s61, s{sN0}
s_cbranch_scc0 {again}
s_branch {got}""")
        SLOW.append(x.cut())
    pdone = [0]
    def op_pg(n):
        d = n - pdone[0]; pdone[0] = n; r = 16 + (n % 4)
        only0(lambda: l(f"s_lshl_b32 s{r}, {d}, s24\ns_atomic_add s{r}, s[{SWS}:{SWS+1}], s25"))
    def poll(): l(f"s_mov_b32 s13, 0\ns_atomic_add s13, s[{SWS}:{SWS+1}], s25 glc")
    def take_ready(mask=0x7f):
        for i in range(7):
            if not mask >> i & 1: continue
            sk = lab("sk")
            l(f"s_bitcmp1_b32 s12, {i}\ns_cbranch_scc1 {sk}")
            if i < 6: l(f"s_lshl_b32 s{sT0}, s{sCH+5-i}, 2\ns_lshr_b32 s{sT0}, s13, s{sT0}\ns_and_b32 s{sT0}, s{sT0}, 15\ns_cmp_ge_u32 s{sT0}, {i+1}")
            else: l(f"s_lshr_b32 s{sT0}, s13, 28\ns_cmp_ge_u32 s{sT0}, s11")
            l(f"s_cbranch_scc0 {sk}\ns_bitset1_b32 s12, {i}")
            for h in range(2):
                l(f"s_mov_b32 m0, {INLOC[i] + 4096*h}\ns_add_u32 s{sT0}, s{4+i}, {4096*h}")
                for q in range(4): l(f"buffer_load_dwordx4 v{vL16}, {sq(SWS)}, s{sT0} offen offset:{1024*q} sc1 lds")
            l(f"{sk}:")
    def dma_last():
        l(f"""s_sub_u32 s16, s{sA}, 1
s_lshl_b32 s{sT2}, s{sCH+6}, 7
s_mul_i32 s17, s{sS}, {224*896}
s_add_u32 s17, s17, s{sT2}
s_mul_i32 s18, s{sS}, {56*896}
s_add_u32 s18, s18, s{sT2}""")
        for n, base, loc, srdn in ((28, 17, W2LOC[6], SW2), (7, 18, WOLOC[6], SWO)):
            for i in range((n + 2) // 3):
                l(f"s_add_u32 s{sT0}, s16, {3*i}")
                if 3 * i + 2 >= n: l(f"s_min_u32 s{sT0}, s{sT0}, {n-1}")
                l(f"s_lshl_b32 s{sT1}, s{sT0}, 10\ns_add_u32 m0, s{sT1}, {loc}\ns_mul_i32 s{sT0}, s{sT0}, {8*896}\ns_add_u32 s{sT0}, s{sT0}, s{base}")
                if not G("nodma"): l.vmem(f"buffer_load_dwordx4 v{vW2A}, {sq(srdn)}, s{sT0} offen lds", "w26")
    def op_tail():
        z, top, out = lab("z"), lab("tl"), lab("to")
        l(f"s_cmp_eq_u32 s{sA}, 0\ns_cbranch_scc1 {z}")
        vm0 = list(l.vm)
        if G("w6at", 20) == 19: dma_last()
        barrier(l, 20, vm=["w25", "wo5"])
        if G("w6at", 20) == 20: dma_last()
        barrier(l, 21, vm=["w26"])
        l.need(drain=True)
        l(f"s_cmp_eq_u32 s{sS}, 7\ns_cbranch_scc1 L_Lend\ns_barrier\ns_branch L_Lend\n{z}:")
        l.vm = []
        l(f"s_cmp_eq_u32 s{sS}, 7\ns_cselect_b32 s12, 0x7f, 0\ns_mov_b32 s13, 0")
        if G("noinb"): l("s_mov_b32 s12, 0x7f")
        if G("tk19", True): poll()
        l("s_waitcnt vmcnt(0) lgkmcnt(0)")
        if G("tk19") == "pre": take_ready(0x47)
        l("s_barrier")
        if "20" in PROG:
            d = PROG["20"] - pdone[0]; l(f"s_lshl_b32 s16, {d}, s24\ns_atomic_add s16, s[{SWS}:{SWS+1}], s25")
        nm = lab("nm")
        l(f"s_mov_b32 s{sPoll}, 0\ns_mov_b32 s14, {(1 << NE) - 1}\n{top}:")
        take_ready()
        l(f"""s_add_u32 s{sPoll}, s{sPoll}, 1
s_cmp_gt_u32 s{sPoll}, {SPIN}
s_cselect_b32 s12, 0x7f, s12
s_and_b32 s15, s12, s14
s_cmp_eq_u32 s15, s14
s_cbranch_scc0 {nm}
s_waitcnt vmcnt(0)
s_barrier
s_movk_i32 s14, 0xff
{nm}:
s_cmp_eq_u32 s12, 0x7f
s_cbranch_scc1 {out}""")
        poll()
        l(f"s_waitcnt lgkmcnt(0)\ns_branch {top}\n{out}:\ns_cmp_eq_u32 s{sS}, 7\ns_cbranch_scc1 L_Lend\ns_waitcnt vmcnt(0)\ns_barrier")
        if STAMP: l(f"v_writelane_b32 v0, s{sPoll}, 61")
        l("L_Lend:")
    OPS = dict(pfa=op_pfa, init=op_init, rpl=op_rpl, pfb=op_pfb, pf2=op_pf2, rps=op_rps, fl1=op_fl1, tab=op_tab, non=op_non, noi=op_noi,
               xr=op_xr, tlb=op_tlb, b2=op_b2, stg=op_stg, cki=op_cki, ck=op_ck, tail=op_tail,
               lo=lambda: l("s_setprio 0"), hi=lambda: l(f"s_setprio {G('lprio',3)}"))
    for k in range(7):
        OPS[f"s{k}"] = lambda k=k: dma_w1(k); OPS[f"q{k}"] = lambda k=k: dma_wq(7 + k)
        OPS[f"g{k}"] = lambda k=k: op_g(k)
        OPS[f"v{k}"] = lambda k=k: stg_w2(k); OPS[f"u{k}"] = lambda k=k: stg_wo(k)
        OPS[f"d{k}"] = lambda k=k: put_w2(k); OPS[f"e{k}"] = lambda k=k: put_wo(k)
        OPS[f"P{k}"] = lambda k=k: l(f"s_setprio {k}")
        OPS[f"w{k}"] = lambda k=k: dma_w2(k); OPS[f"o{k}"] = lambda k=k: dma_wo(k)
    PRO = G("pro", "rpl init tab rps lo noi s0 non s1 fl1 pf2 b2")
    MID = G("mid0", "B0 hi s2 B1 s3 B2 s4 B3 s5 B4 s6") + " " + \
          G("mid1", "B5 q0 B6 q1 B7 q2 xr B8 q3 w002 B9 q4 w024 B10 q5 w046") + " " + \
          G("mid2", "B11 q6 w067 o0 B12 w1 o1 B13 o2 cki B14 B22 w2 ck B15 lo o3") + " " + \
          G("mid3", "B16 w3 B17 o4 w4 B18 o5 w5 B19 tail")
    k = 1
    for o in PRO.split():
        OPS[o](); mark(l, o)
        if o in ("bx", "rps", "s0", "s1", "s2"):
            if len(l.pend) >= 3: l.need(drain=True)
            stamp(l, k); k += 1
    T_l1 = l.cut(); l("L_L2:")
    for o in MID.split():
        if o[0] == "B":
            j = int(o[1:]); need = []
            if j <= 13: need = [f"st{j}"]
            elif j == BH: need = [f"w2{i}" for i in range(RA)]
            elif j == 15: need = ["w20", "xr"] + [f"wo{i}" for i in range(max(RA, 1))]
            elif j > 15: need = [f"w2{j-15}", f"wo{j-15}"] + (["w22", "wo2"] if RA == 2 else [])
            barrier(l, j, vm=need); mark(l, o)
            if str(j) in PROG: op_pg(PROG[str(j)])
        elif o[0] in "wvd" and len(o) == 4 and o[1:].isdigit(): dict(w=dma_w2, v=stg_w2, d=put_w2)[o[0]](int(o[1]), int(o[2]), int(o[3]))
        else: OPS[o]()
    l.need(drain=True)
    if G("spin"):
        l(f"""s_add_u32 s40, s100, {G("spin")[1]}
L_spin:
s_sleep 2
s_memrealtime s[42:43]
s_waitcnt lgkmcnt(0)
s_sub_u32 s44, s42, s40
s_cmp_lt_i32 s44, 0
s_cbranch_scc1 L_spin""")
    l("L_fin:")
    if STAMP:
        l(f"""s_waitcnt vmcnt(0)
s_memrealtime s[96:97]
{SOP} s[98:99]
s_waitcnt lgkmcnt(0)
v_writelane_b32 v0, s96, 63
v_writelane_b32 v0, s98, 41
s_mul_i32 s{sT0}, s2, 12
s_add_u32 s{sT0}, s{sT0}, s{sW}
s_lshl_b32 s{sT0}, s{sT0}, 8
s_add_u32 s{sT0}, s{sT0}, {WS_STAMP}
v_lshlrev_b32 v{vT0}, 2, v{vL}
buffer_store_dword v0, v{vT0}, {sq(SWS)}, s{sT0} offen
""")
    l("L_end:\ns_endpgm")
    T_l2 = l.cut()

    K1 = NAME + "_kernel"
    return f"""; @launch grid=(256,1,1) block=(768,1,1) lds={LDS_BYTES}
.amdgcn_target "amdgcn-amd-amdhsa--gfx950"
.text
.globl {K1}
.p2align 8
.type {K1},@function
{K1}:
{T_entry}{T_c1}{T_f2}{T_a2}{T_l1}{T_l2}{''.join(SLOW)}L_codeend:
.section .rodata,"a"
.p2align 6
.amdhsa_kernel {K1}
  .amdhsa_next_free_vgpr 168
  .amdhsa_next_free_sgpr 102
  .amdhsa_accum_offset 168
  .amdhsa_group_segment_fixed_size 0
  .amdhsa_kernarg_size 88
  .amdhsa_user_sgpr_count 2
  .amdhsa_user_sgpr_kernarg_segment_ptr 1
  .amdhsa_system_sgpr_workgroup_id_x 1
.end_amdhsa_kernel
"""

if __name__ == "__main__":
    import json
    cfg = json.loads(sys.argv[2]) if len(sys.argv) > 2 else {}
    open(sys.argv[1], "w").write(gen(cfg))
```

```python
import sys, math, struct
NAME = "parallel_sum__sliding_local_dilated__dense_activation_gelu__prompt"

class Asm:
    def __init__(self):
        self.L = []; self.vm = []; self.lg = []; self.smem = False; self.pend = []; self.nst = 0
    def __call__(self, s):
        for l in s.strip("\n").split("\n"):
            l = l.strip()
            if l: self.L.append(l if l.endswith(":") else "  " + l)
    def fork(self):
        b = Asm(); b.vm = list(self.vm); b.lg = list(self.lg); b.smem = self.smem; return b
    def cut(self):
        t = "\n".join(self.L) + "\n"; self.L = []; return t
    def vmem(self, s, tag): self(s); self.vm.append(tag)
    def ds(self, s, tag): self(s); self.lg.append(tag)
    def _cnt(self, q, tags):
        last = -1
        for i, t in enumerate(q):
            if t in tags: last = i
        return None if last < 0 else len(q) - 1 - last
    def need(self, vm=(), lg=(), drain=False):
        parts = []
        n = self._cnt(self.vm, set(vm))
        if n is not None:
            n = min(n, 62); parts.append(f"vmcnt({n})"); self.vm = self.vm[len(self.vm) - n:] if n else []
        n = self._cnt(self.lg, set(lg))
        if drain: n = 0 if (self.lg or self.smem) else None
        if n is not None:
            n = min(n, 14)
            parts.append(f"lgkmcnt({n})"); self.lg = self.lg[len(self.lg) - n:] if n else []
        if parts: self("s_waitcnt " + " ".join(parts))
        if drain:
            self.smem = False
            for sg, idx in self.pend: self(f"v_writelane_b32 v0, s{sg}, {idx}")
            self.pend = []

def vr(a, n=1): return f"v{a}" if n == 1 else f"v[{a}:{a+n-1}]"
def sq(a): return f"s[{a}:{a+3}]"
def f2u(x): return "0x%08x" % struct.unpack("<I", struct.pack("<f", x))[0]

KP = 4608
HALO = 4096
ACT = 57344
WOR = 28672
def actoff(t): return (t - 7) * 4096 if t >= 7 else 8192 + 28672 + t * 4096
RING = 65536
SLOT = 28672
BIAS = RING + 3 * SLOT
XRES = BIAS + 1024
CNT = XRES + 8192 + 128
LDS_BYTES = XRES + 8192 + 256
INLOC = [RING + SLOT, RING + SLOT + 8192, RING + SLOT + 16384, 0, 8192, 16384, WOR + 2 * 7168]
W2LOC = [0, RING + 2 * SLOT, RING, RING + SLOT, 0, RING + 2 * SLOT, RING]
WOLOC = [WOR, WOR + 7168, WOR + 2 * 7168, WOR + 3 * 7168, WOR, ACT, WOR + 7168]
FOFF = 56 * 16384
WS_WQ = 0x2200000
WS_F1 = 0x2400000
WS_STAMP = 0x8000000
OOB = 0x7ff00000
SPIN = 200000
SX, SWS, SOUT, SW1, SB1, SWQ, SDBG, SW2, SWO, SB2 = 28, 32, 36, 36, 40, 40, 44, 48, 52, 56
sIN, sLO, sFE, sDum = 48, 55, 3, 63
sW, sS, sRB, sA, sRH, sHI, sROW0, sT0, sT1, sT2, sT3 = 68, 69, 70, 71, 72, 73, 74, 75, 76, 77, 78
sW1o, sWQo, sW2o, sJJ, sM0, sPart, sC2, sCH = 79, 80, 81, 82, 83, 84, 85, 86
sCW, sN0, sN1, sPoll, sM1 = 93, 94, 95, 96, 97
sR, sRC, sK = 0, 1, 93

def gen(cfg):
    G = cfg.get
    STAMP = G("stamp", False); SOP = G("stampop", "s_memtime")
    xm = G("xmap", 4); nsh = 32 // xm
    uid = [0]
    FR, FP = G('fr', 0x4100), G('fp', 4)
    def lab(n): uid[0] += 1; return f"L_{n}{uid[0]}"
    def stamp(b, idx):
        if not STAMP or (G("lite") and idx not in (3, 10, 17, 24, 25, 26, 30, 31, 32, 37)) or getattr(b, "nostamp", False): return
        sg = (64, 66, 98, 100)[b.nst % 4]; b.nst += 1
        assert len(b.pend) < 4
        b(f"{SOP} s[{sg}:{sg+1}]"); b.smem = True; b.pend.append((sg, idx))
    def mark(b, name):
        if G("spin") and G("spin")[0] == name: b("s_memrealtime s[100:101]"); b.smem = True
    def barrier(b, j, vm=()):
        pb0 = G("prebar")
        if pb0 is not None and pb0 <= j < pb0 + 8: stamp(b, 42 + j - pb0)
        b.need(vm=vm, drain=True)
        if pb0 is not None and pb0 <= j < pb0 + 8: stamp(b, 50 + j - pb0)
        b("s_barrier")
        stamp(b, 10 + j)
    BH = 22
    def srd(b, d, p, n):
        b(f"s_mov_b32 s{d}, s{p}\ns_and_b32 s{d+1}, s{p+1}, 0xffff\ns_mov_b32 s{d+2}, {n}\ns_mov_b32 s{d+3}, 0x20000")
    def mfma(b, d, x, y, c=None):
        b(f"v_mfma_f32_16x16x32_bf16 {vr(d,4)}, {vr(x,4)}, {vr(y,4)}, {vr(d,4) if c is None else c}")
    def chunks(b):
        for i in range(7):
            b(f"s_add_u32 s{sCH+i}, s{sS if i == 0 else sCH+i-1}, 1")
            b(f"s_cmp_ge_u32 s{sCH+i}, 7\ns_cselect_b32 s{sT0}, 7, 0\ns_sub_u32 s{sCH+i}, s{sCH+i}, s{sT0}")
    SLOW = []
    def get_nonce(b, vt, cp):
        again, got = lab("na"), lab("ng")
        b(f"s_buffer_load_dword s{sN0}, {sq(SDBG)}, {64*cp}"); b.smem = True
        yield
        b.need(drain=True)
        b(f"s_mov_b32 s{sPoll}, 0\ns_cmp_eq_u32 s{sN0}, 0\ns_cbranch_scc1 {again}\n{got}:\ns_mov_b32 s{sN1}, s{sN0}")
        if STAMP: b(f"v_writelane_b32 v0, s{sPoll}, 58")
        x = Asm()
        x(f"""{again}:
v_mov_b32 v{vt}, 0
s_add_u32 s{sPoll}, s{sPoll}, 1
buffer_load_dword v{vt}, v{vt}, {sq(SDBG)}, 0 offen sc1
s_cmp_gt_u32 s{sPoll}, {SPIN}
s_waitcnt vmcnt(0)
v_readfirstlane_b32 s{sN0}, v{vt}
s_cbranch_scc1 {got}
s_cmp_eq_u32 s{sN0}, 0
s_cbranch_scc1 {again}
s_branch {got}""")
        SLOW.append(x.cut())
        yield
    def slow_poll(retry, got, vt, addr, sbase):
        x = Asm()
        x(f"""{retry}:
{addr}
s_add_u32 s{sPoll}, s{sPoll}, 1
buffer_load_dword v{vt}, v{vt}, {sq(SWS)}, s{sbase} offen sc1
s_cmp_gt_u32 s{sPoll}, {SPIN}
s_waitcnt vmcnt(0)
v_cmp_ne_u32 vcc, s{sN0}, v{vt}
s_cbranch_scc1 {got}
s_nop 1
s_cbranch_vccnz {retry}
s_branch {got}""")
        SLOW.append(x.cut())
    def first_stamps(b):
        if STAMP: b("v_writelane_b32 v0, s98, 62\nv_writelane_b32 v0, s100, 0")

    vL, vL16, vActW, vT0, vT1, vT2, vT3 = 1, 2, 3, 4, 5, 6, 7
    vXE, vXO, vG2W, vG2W2, vG2O0, vG2O2 = 8, 9, 10, 11, 12, 13
    a = Asm()
    RAW, UNP = 136, 80
    lb = xm.bit_length() - 1
    a(f"""
s_load_dwordx16 s[4:19], s[0:1], 0
s_load_dwordx8 s[20:27], s[0:1], 56
s_cmpk_ge_u32 s2, 256
s_cbranch_scc1 L_end
s_getpc_b64 s[28:29]
L_pc:
s_lshr_b32 s3, s2, 3
v_lshrrev_b32 v{vT0}, 6, v0
v_mad_u32_u24 v{vT1}, s3, 12, v{vT0}
v_readfirstlane_b32 s{sW}, v{vT0}
v_lshlrev_b32 v{vT1}, 7, v{vT1}
v_min_u32 v{vT1}, L_codeend - L_pc - 4, v{vT1}
""")
    if G("codepf", True): a.vmem(f"global_load_dword v23, v{vT1}, s[28:29]", "pf")
    if G("bwprobe"):
        off, aux = G("bwprobe")
        a(f"""s_waitcnt lgkmcnt(0)
s_mov_b32 s40, s26
s_and_b32 s41, s27, 0xffff
s_mov_b32 s42, 0x10000000
s_mov_b32 s43, 0x20000
s_mul_i32 s44, s2, {12*12*1024}
s_add_u32 s44, s44, {off}
v_lshlrev_b32 v8, 4, v0""")
        for i in range(12):
            a(f"buffer_load_dwordx4 v[{32+4*i}:{35+4*i}], v8, s[40:43], s44 offen {aux}\ns_add_u32 s44, s44, {12*1024}")
        a("s_waitcnt vmcnt(0)\ns_barrier"); a.vm = []
    mark(a, "own")
    if STAMP: a(f"s_memrealtime s[98:99]\n{SOP} s[100:101]")
    if xm == 1: a(f"s_mov_b32 s{sRB}, s3")
    else: a(f"s_bfe_u32 s{sT0}, s2, {(lb << 16) | (3 - lb)}\ns_lshl_b32 s{sT0}, s{sT0}, {5-lb}\ns_lshr_b32 s{sT1}, s3, {lb}\ns_add_u32 s{sRB}, s{sT0}, s{sT1}")
    a(f"""
s_lshr_b32 s{sT0}, s{sRB}, 1
s_lshl_b32 s{sT0}, s{sT0}, 7
s_and_b32 s{sT1}, s{sRB}, 1
s_add_u32 s{sROW0}, s{sT0}, s{sT1}
""")
    EPF = G("epf", False)
    if EPF:
        a(f"s_cmp_ge_u32 s{sW}, 4\ns_cbranch_scc1 L_C")
        aL = a.fork()
        aL(f"s_mul_i32 s{sT0}, s2, 49\nv_min_u32 v{vT1}, 48, v0\nv_add_lshl_u32 v{vT1}, v{vT1}, s{sT0}, 7\ns_waitcnt lgkmcnt(0)")
        aL.vmem(f"global_load_dword v23, v{vT1}, s[12:13]", "pf")
        aL("s_branch L_L\nL_C:")
        a.L += aL.L
    else: a(f"s_cmp_lt_u32 s{sW}, 4\ns_cbranch_scc1 L_L"); aL = a
    T_entry = a.cut()
    def common2(b):
        b(f"""
v_and_b32 v{vL}, 63, v0
v_lshlrev_b32 v{vL16}, 4, v{vL}
s_and_b32 s{sA}, s{sW}, 3
""")
        if xm == 1: b(f"s_and_b32 s{sS}, s2, 7")
        else: b(f"s_and_b32 s{sT0}, s2, {8//xm - 1}\ns_lshl_b32 s{sT0}, s{sT0}, {lb}\ns_and_b32 s{sT2}, s3, {xm-1}\ns_add_u32 s{sS}, s{sT0}, s{sT2}")
        b(f"s_lshr_b32 s{sT0}, s3, {lb}")
        if xm == 8: b(f"s_lshl_b32 s{sR}, s{sT0}, 1")
        else: b(f"s_mul_i32 s{sT1}, s{sT0}, 37\ns_lshr_b32 s{sT1}, s{sT1}, 8\ns_mul_i32 s{sT1}, s{sT1}, 7\ns_sub_u32 s{sR}, s{sT0}, s{sT1}")
        b(f"s_mov_b32 s{sRC}, {'s%d' % sR if G('rotc', True) else 0}")
        if not G("rotk", True): b(f"s_mov_b32 s{sR}, 0")
        elif G('rotm', [3, 2]): b(f"s_and_b32 s{sR}, s{sT0}, {G('rotm', [3, 2])[0]}\ns_mul_i32 s{sR}, s{sR}, {G('rotm', [3, 2])[1]}")
        if STAMP: b("v_mov_b32 v0, 0")
    c = a.fork()
    c(f"v_lshrrev_b32 v{vT2}, 3, v0")
    if xm > 1 and G("xrot", True):
        c(f"s_lshl_b32 s{sT2}, s3, {6-lb}\ns_add_u32 s{sT2}, s{sT2}, 32\nv_add_u32 v{vT2}, s{sT2}, v{vT2}")
    else: c(f"v_add_u32 v{vT2}, 32, v{vT2}")
    c(f"""
v_and_b32 v{vT2}, 63, v{vT2}
v_lshl_add_u32 v{vT0}, v{vT2}, 1, s{sROW0}
v_mul_u32_u24 v{vT0}, 896, v{vT0}
v_and_b32 v{vT1}, 7, v0
v_lshl_add_u32 v{vXO}, v{vT1}, 4, v{vT0}
s_setprio {G('cprio', 1)}
s_waitcnt lgkmcnt(0)
""")
    for t in range(7):
        c.vmem(f"global_load_dwordx4 {vr(RAW+4*t,4)}, v{vXO}, s[4:5] offset:{128*t} {G('ntx','')}", f"x{t}")
    c("L_x256:")
    common2(c)
    first_stamps(c)
    c(f"""
s_sub_u32 s{sCW}, s{sW}, 4
s_and_b32 s{sRH}, s{sW}, 1
s_bfe_u32 s{sHI}, s{sW}, 0x10001
""")
    if G("spf", False):
        c(f"""s_lshl_b32 s{sT0}, s{sCW}, 5
s_add_u32 s{sT0}, s{sT0}, s{sRB}
s_mul_i32 s{sT0}, s{sT0}, 3584
s_mul_i32 s{sT1}, s{sS}, 448
s_add_u32 s{sT0}, s{sT0}, s{sT1}""")
        for i in range(7): c(f"s_load_dword s{sDum}, s[12:13], s{sT0} offset:{64*i}")
        c(f"""s_min_u32 s{sT2}, s{sCW}, 6
s_lshl_b32 s{sT2}, s{sT2}, 6
s_add_u32 s{sT1}, s{sT1}, s{sT2}
s_load_dword s{sDum}, s[14:15], s{sT1}
s_cmp_lt_u32 s{sCW}, 6
s_cselect_b32 s{sT2}, {256*3584}, 0
s_add_u32 s{sT0}, s{sT0}, s{sT2}""")
        for i in range(7): c(f"s_load_dword s{sDum}, s[12:13], s{sT0} offset:{64*i}")
    c(f"""
v_lshrrev_b32 v{vXE}, 4, v{vT2}
v_and_b32 v{vT1}, 15, v{vT2}
v_and_b32 v{vT0}, 3, v{vL}
v_bfe_u32 v{vT2}, v{vL}, 2, 1
v_mul_u32_u24 v{vActW}, 12, v{vT2}
v_or_b32 v{vActW}, v{vActW}, v{vT0}
v_xor_b32 v{vT1}, v{vT1}, v{vActW}
v_lshlrev_b32 v{vT1}, 4, v{vT1}
v_lshl_add_u32 v{vT1}, v{vT0}, 8, v{vT1}
v_mul_u32_u24 v{vT2}, {KP}, v{vT2}
v_lshl_add_u32 v{vT1}, v{vXE}, 10, v{vT1}
s_sub_u32 s{sT0}, 7, s{sR}
s_cmp_eq_u32 s{sR}, 0
s_cselect_b32 s{sT0}, 0, s{sT0}
s_mul_i32 s{sT0}, s{sT0}, {2*KP}
s_movk_i32 s{sT1}, {2*KP}
v_add3_u32 v{vActW}, v{vT1}, v{vT2}, s{sT0}
""")
    XA = [vActW, 40, 41, 42, 43, 44, 45]
    for t in range(1, 7): c(f"s_cmp_eq_u32 s{sR}, {t}\ns_cselect_b32 s{sT0}, {-12*KP}, s{sT1}\nv_add_u32 v{XA[t]}, s{sT0}, v{XA[t-1]}")
    c(f"s_cmp_ge_u32 s{sW}, 8\ns_cbranch_scc1 L_A2")
    T_c1 = c.cut()

    def col128(b, d, src):
        b(f"s_add_u32 s{d}, s{src}, s{sRC}\ns_sub_u32 s{sT3}, s{d}, 7\ns_min_u32 s{d}, s{d}, s{sT3}\ns_lshl_b32 s{d}, s{d}, 7")
    def halo_loads(b, HR):
        b(f"""
v_lshrrev_b32 v{vT0}, 5, v{vL}
s_lshl_b32 s{sT0}, s{sA}, 2
s_add_u32 s{sT0}, s{sT0}, s{sROW0}
s_sub_u32 s{sT0}, s{sT0}, 16
v_lshl_add_u32 v{vT0}, v{vT0}, 1, s{sT0}
s_movk_i32 s{sT3}, 896
v_mul_lo_u32 v{vT0}, v{vT0}, s{sT3}
v_and_b32 v{vT1}, 31, v{vL}
v_cmp_gt_u32 vcc, 24, v{vT1}
v_lshl_add_u32 v{vT1}, s{sR}, 3, v{vT1}
v_add_u32 v{vT2}, 32, v{vT1}
v_subrev_u32 v{vT3}, 24, v{vT1}
v_min_u32 v{vT2}, v{vT2}, v{vT3}
v_lshl_add_u32 v{vT2}, v{vT2}, 4, v{vT0}
v_subrev_u32 v{vT3}, 56, v{vT1}
v_min_u32 v{vT1}, v{vT1}, v{vT3}
v_lshl_add_u32 v{vT0}, v{vT1}, 4, v{vT0}
v_mov_b32 v{vT3}, {OOB}
v_cndmask_b32 v{vT2}, v{vT3}, v{vT2}, vcc
v_min_u32 v20, v{vT3}, v{vT0}
v_min_u32 v21, v{vT3}, v{vT2}
""")
        if HR: halo_issue(b, HR)
    def halo_issue(b, HR):
        b.vmem(f"buffer_load_dwordx4 {vr(HR[0],4)}, v20, {sq(SX)}, 0 offen", "h0")
        b.vmem(f"buffer_load_dwordx4 {vr(HR[1],4)}, v21, {sq(SX)}, 0 offen", "h1")
    HF = G("halof", True)
    def halo_write(b, HR):
        b(f"""v_lshrrev_b32 v{vT0}, 5, v{vL}
s_lshl_b32 s{sT0}, s{sA}, 1
v_add_u32 v{vT0}, s{sT0}, v{vT0}
v_and_b32 v{vT1}, 7, v{vL}
v_xor_b32 v{vT0}, v{vT0}, v{vT1}
v_lshlrev_b32 v{vT0}, 4, v{vT0}
v_and_b32 v{vT1}, 3, v{vL}
v_lshl_add_u32 v{vT0}, v{vT1}, 7, v{vT0}
v_bfe_u32 v{vT1}, v{vL}, 2, 3
v_mul_u32_u24 v{vT1}, {KP}, v{vT1}
v_add_u32 v{vT2}, v{vT0}, v{vT1}
ds_write_b128 v{vT2}, {vr(HR[0],4)} offset:{HALO}
s_mov_b32 exec_lo, 0x00ffffff
s_mov_b32 exec_hi, 0x00ffffff
ds_write_b128 v{vT2}, {vr(HR[1],4)} offset:{HALO + 8*KP}
s_mov_b64 exec, 0xff
v_lshlrev_b32 v{vT0}, 2, v{vL}
v_add_u32 v{vT0}, {CNT}, v{vT0}
v_mov_b32 v{vT1}, 0
ds_write_b32 v{vT0}, v{vT1}
s_mov_b64 exec, -1""")
    def xbases(b):
        b(f"""
v_lshrrev_b32 v{vT2}, 4, v{vL}
v_and_b32 v{vT3}, 15, v{vL}
v_xor_b32 v{vT0}, v{vT3}, v{vT2}
v_lshlrev_b32 v{vT1}, 8, v{vT2}
s_lshl_b32 s{sT0}, s{sRH}, 11
v_lshl_add_u32 v{vXE}, v{vT0}, 4, v{vT1}
v_add_u32 v{vXE}, s{sT0}, v{vXE}
v_xor_b32 v{vXO}, {12*16}, v{vXE}
""")
    def region(b, d):
        b(f"s_sub_u32 s{sT2}, 0, s{SWS}\ns_and_b32 s{sT2}, s{sT2}, 0xfffff\ns_lshl_b32 s{d}, s{sRB}, 20\ns_add_u32 s{d}, s{d}, s{sT2}")
    def setup_s(b):
        srd(b, SWS, 26, 0x10000000); srd(b, SOUT, 22, 2048 * 896)
        region(b, sFE)
        b(f"""
s_lshl_b32 s{sT2}, s{sCW}, 10
s_add_u32 s{sPart}, s{sFE}, s{sT2}
s_mul_i32 s{sM1}, s{sS}, {9*16384}
s_add_u32 s{sM1}, s{sM1}, s{sPart}
s_add_u32 s{sPart}, s{sPart}, {FOFF}
s_add_u32 s{sFE}, s{sFE}, {FOFF}
""")
    def setup_v1(b):
        b(f"""
v_lshrrev_b32 v{vT0}, 2, v{vL}
v_bfe_u32 v{vT1}, v{vL}, 3, 2
s_lshr_b32 s{sT2}, s{sCW}, 1
v_xor_b32 v{vT1}, s{sT2}, v{vT1}
v_lshlrev_b32 v{vT1}, 5, v{vT1}
v_lshl_add_u32 v{vT1}, v{vT0}, 7, v{vT1}
v_and_b32 v{vT0}, 3, v{vL}
v_lshl_add_u32 v{vG2O0}, v{vT0}, 3, v{vT1}
v_add_u32 v{vG2W}, {RING}, v{vG2O0}
""")
    def act_base(b):
        b(f"s_lshl_b32 s{sT0}, s{sRH}, 11\ns_add_u32 s{sT0}, s{sT0}, {ACT}\nv_add_u32 v{vActW}, s{sT0}, v{vL16}")
    def setup_v2(b):
        b(f"v_add_u32 v{vG2W2}, {RING+2*SLOT}, v{vG2O0}\nv_xor_b32 v{vG2O2}, 64, v{vG2O0}")

    def ln_core(b, raw, nraw, unp, tags, nl, pk=True):
        S, Q = vT0, vT2
        rw = (lambda d: raw + d) if isinstance(raw, int) else (lambda d: raw[d // 4] + d % 4)
        for d in range(nraw):
            if d % 4 == 0: b.need(vm=[tags[d // 4]])
            u = unp + 2 * d
            b(f"v_lshlrev_b32 v{u}, 16, v{rw(d)}\nv_and_b32 v{u+1}, 0xffff0000, v{rw(d)}")
            if not pk:
                if d == 0: b(f"v_mov_b32 v{S}, v{u}\nv_mov_b32 v{S+1}, v{u+1}\nv_mul_f32 v{Q}, v{u}, v{u}\nv_mul_f32 v{Q+1}, v{u+1}, v{u+1}")
                else: b(f"v_add_f32 v{S}, v{S}, v{u}\nv_add_f32 v{S+1}, v{S+1}, v{u+1}\nv_fmac_f32 v{Q}, v{u}, v{u}\nv_fmac_f32 v{Q+1}, v{u+1}, v{u+1}")
            elif d == 0: b(f"v_pk_mul_f32 {vr(Q,2)}, {vr(u,2)}, {vr(u,2)}")
            elif d == 1: b(f"v_pk_add_f32 {vr(S,2)}, {vr(u-2,2)}, {vr(u,2)}\nv_pk_fma_f32 {vr(Q,2)}, {vr(u,2)}, {vr(u,2)}, {vr(Q,2)}")
            else: b(f"v_pk_add_f32 {vr(S,2)}, {vr(S,2)}, {vr(u,2)}\nv_pk_fma_f32 {vr(Q,2)}, {vr(u,2)}, {vr(u,2)}, {vr(Q,2)}")
        yield "stats"
        b(f"v_add_f32 v{S}, v{S}, v{S+1}\nv_add_f32 v{Q}, v{Q}, v{Q+1}\ns_nop 0")
        for st in ["quad_perm:[1,0,3,2]", "quad_perm:[2,3,0,1]", "row_half_mirror", "row_mirror"][:min(nl, 4)]:
            b(f"v_add_f32_dpp v{S}, v{S}, v{S} {st} row_mask:0xf bank_mask:0xf\nv_add_f32_dpp v{Q}, v{Q}, v{Q} {st} row_mask:0xf bank_mask:0xf\ns_nop 0")
        if nl >= 5:
            b(f"""v_mov_b32 v{S+1}, v{S}
v_mov_b32 v{Q+1}, v{Q}
s_nop 1
v_permlane16_swap_b32 v{S}, v{S+1}
v_permlane16_swap_b32 v{Q}, v{Q+1}
s_nop 1
v_add_f32 v{S}, v{S}, v{S+1}
v_add_f32 v{Q}, v{Q}, v{Q+1}""")
        b(f"""v_mul_f32 v{S}, {f2u(1/448)}, v{S}
v_mul_f32 v{Q}, {f2u(1/448)}, v{Q}
v_fma_f32 v{Q}, -v{S}, v{S}, v{Q}
v_max_f32 v{Q}, 0, v{Q}
v_add_f32 v{Q}, {f2u(1e-5)}, v{Q}
v_rsq_f32 v{Q}, v{Q}
s_nop 0
v_mul_f32 v{S}, v{S}, v{Q}
.p2align 3""")
        yield "red"
        for d in range(nraw):
            u = unp + 2 * d
            if not pk: b(f"v_fma_f32 v{u}, v{u}, v{Q}, -v{S}\nv_fma_f32 v{u+1}, v{u+1}, v{Q}, -v{S}")
            else: b(f"v_pk_fma_f32 {vr(u,2)}, {vr(u,2)}, {vr(Q,2)}, {vr(S,2)} op_sel_hi:[1,0,0] neg_lo:[0,0,1] neg_hi:[0,0,1]")
            if d >= 1: b(f"v_cvt_pk_bf16_f32 v{rw(d-1)}, v{u-2}, v{u-1}")
            yield d - 1
        u = unp + 2 * (nraw - 1)
        b(f"v_cvt_pk_bf16_f32 v{rw(nraw-1)}, v{u}, v{u+1}")
        yield nraw - 1
    def ln_main(b, hook=None):
        for d in ln_core(b, RAW, 28, UNP, [f"x{t}" for t in range(7)], 3):
            if d == "stats":
                stamp(b, 2)
                if hook: hook()
            if not G("lnbatch") and isinstance(d, int) and d >= 0 and d % 4 == 3:
                b.ds(f"ds_write_b128 v{XA[d//4]}, {vr(RAW+d-3,4)}", "xw")
        if G("lnbatch"):
            for t in range(7): b.ds(f"ds_write_b128 v{XA[t]}, {vr(RAW+4*t,4)}", "xw")

    def g1_phase(b, st0, reads, mfmas, P, GAP, tail=None, head=None):
        M = [m for ks in range(14) for m in mfmas(ks)]
        per = len(M) // 14
        sched = {}
        for j in range(7):
            R0, R1 = reads(2 * j), reads(2 * j + 1)
            b0 = 2 * per * j - P; span = 2 * per - GAP; R = R0 + R1
            for i, r in enumerate(R):
                pos = b0 + (i * span) // len(R)
                if i >= len(R0): pos = max(pos, 2 * per * j - 1)
                sched.setdefault(max(pos, -1), []).append(r)
        barrier(b, st0)
        for r in sched.get(-1, []): b.ds(*r)
        if head: head()
        for m, (fn, tg) in enumerate(M):
            if (m + P) % (2 * per) == 0: barrier(b, st0 + (m + P) // (2 * per))
            b.need(lg=tg); fn()
            for r in sched.get(m, []): b.ds(*r)
            if tail: tail(m - len(M))

    RA = G("runahead", 1)
    PROG = G("prog", {"19": 2, "20": 3})
    NE = G('ne', 3); TM = G('tm', 3)
    def h_frags(b, vbase):
        for t in range(7):
            for pb in range(2): b.ds(f"ds_read_b128 {vr(96+4*(9*pb+t),4)}, v{vbase} offset:{actoff(t) + pb*1024}", f"hf{t}")
    def g2_phase(b, role):
        XR, PK, AC, WR, INB, ACTR = 14, 20, 28, 44, 68, 96
        NR = 6
        P2, GAP2, LEAD = G("p2" + role, 8), G("gap2" + role, 2), G("lead2", 8)
        ET = G("et" + role, 4)
        XT = G("xt" + role, 4)
        ra = RA if role == "F" else 0
        steps = [(cc, t) for cc in range(ra) for t in range(7)] + [(cc, t) for cc in range(ra) for t in (7, 8)] + \
                [(cc, t) for cc in range(ra, 7) for t in range(9)]
        N = len(steps); at = {s: n for n, s in enumerate(steps)}
        bpos = {}
        if role == "F":
            bpos[BH] = -1
            bpos[15] = 14 * ra - G("hold15", 14) if ra else 0
        else: bpos[15] = -1
        for cc in range(1, 7):
            if ra == 2 and cc <= 2: bpos[15 + cc] = 2 * at[(2, 0)]
            elif cc == 6: bpos[21] = 2 * at[(6, 0)]
            else: bpos[15 + cc] = max(2 * at[(cc, 0)] - (P2 if cc > ra or ra == 0 else 2), bpos[14 + cc] + 1)
        R = []
        for n, (cc, t) in enumerate(steps):
            w = WR + 4 * (n % NR)
            en = bpos[BH] if (cc < ra and t < 7) else (bpos[15] if cc < ra else bpos[15 + cc])
            war = 2 * (n - NR) + 1
            rel = bpos.get(16 + cc, 10 ** 6) - GAP2
            if cc == 0 and t >= 7:
                ena = bpos[15]
                for pb in range(2):
                    R.append((f"ds_read_b128 {vr(ACTR+4*(9*pb+t),4)}, v{vActW} offset:{actoff(t) + pb*1024}", f"w{n}", ena, min(2 * n - LEAD, rel)))
            for u in range(2):
                if t < 7:
                    loc = W2LOC[cc]
                    base, o = (vG2O0, 0) if loc == 0 else ((vG2W2, 0) if loc == RING + 2 * SLOT else (vG2W, loc - RING))
                    o += (96 + 112 * u if t == 6 else 112 * (t // 3) + 32 * (t % 3) + 16 * u) * 128
                else:
                    hd = t - 7
                    base = vG2O0 if (14*hd + 6*u) % 4 == 0 else vG2O2
                    o = WOLOC[cc] + (28*hd + 12*u) * 128
                R.append((f"ds_read_b64_tr_b16 {vr(w+2*u,2)}, v{base} offset:{o}", f"w{n}", max(en, war), min(2 * n - LEAD, rel)))
        pos = [0] * len(R); nxt = 10 ** 6
        for i in reversed(range(len(R))):
            nxt = max(min(R[i][3], nxt - 1), R[i][2], -1); pos[i] = nxt
        sched = {}; prev = -1
        for i, r in enumerate(R):
            p = max(pos[i], r[2], prev, -1)
            n = int(r[1][1:])
            burst = (ra == 2 and p == bpos[16] and n < at[(2, 0)] + 4) or (p == bpos[21] and n < at[(6, 0)] + 3)
            while not burst and len(sched.get(p, [])) >= (2 if p >= 0 else G("init2", 10)) and p + 1 < 2 * n - 1 and p + 1 < bpos.get(16 + steps[n][0], 10 ** 6): p += 1
            assert p < 2 * n or p == bpos[15] or burst, (r, p)
            sched.setdefault(p, []).append(r); prev = p
        bars = {}
        for j, p in bpos.items(): bars.setdefault(p, []).append(j)
        STA = G("sta" + role, {})
        nst = [0]; pendst = []
        def site():
            cc, k = pendst.pop(0)
            b(f"s_mov_b64 exec, s[{4+2*k}:{5+2*k}]")
            b.vmem(f"buffer_store_dwordx4 {vr(INB+4*cc,4)}, v{vL16}, {sq(SWS)}, s{sM1} offen sc1", f"p{cc}")
            b("s_mov_b64 exec, -1")
        def store(cc):
            assert nst[0] == cc; nst[0] += 1
            if cc == 0:
                b.need(lg=["h"])
                b(f"v_readfirstlane_b32 s{sT0}, v{vT3}\ns_nop 0\ns_add_u32 s{sM1}, s{sM1}, s{sT0}\ns_add_u32 s{sFE}, s{sFE}, s{sT0}")
            while pendst: site()
            b(f"s_add_u32 s{sM1}, s{sM1}, {8*16384}\ns_cmp_ge_u32 s{sM1}, s{sPart}\ns_cselect_b32 s{sT0}, {FOFF}, 0\ns_sub_u32 s{sM1}, s{sM1}, s{sT0}")
            if G("stag") and cc < 5:
                if cc == 0:
                    for k in range(4):
                        if G("stag") == "wave": b(f"s_cmp_eq_u32 s{sA}, {k}\ns_cselect_b64 s[{4+2*k}:{5+2*k}], -1, 0")
                        else: b(f"s_bfm_b64 s[{4+2*k}:{5+2*k}], 16, {16*k}")
                while pendst: site()
                pendst.extend((cc, k) for k in range(4)); site(); return
            while pendst: site()
            if not G("nopst"): b.vmem(f"buffer_store_dwordx4 {vr(INB+4*cc,4)}, v{vL16}, {sq(SWS)}, s{sM1} offen {G('pst','sc1')}", f"p{cc}")
        def epi(cc):
            ac = AC + 8 * (cc % 2)
            for q in range(4): b(f"v_cvt_pk_bf16_f32 v{INB+4*cc+q}, v{ac+2*q}, v{ac+2*q+1}")
            if str(cc) not in STA: store(cc)
        def signal(off=0, val=8, left=0, sreg=sT1):
            nf = lab("nf")
            b(f"""v_mov_b32 v{vT0}, {CNT + off}
v_mov_b32 v{vT1}, 1
s_lshl_b32 s{sreg}, s{sS}, 2
s_lshl_b32 s{sreg}, {val}, s{sreg}
s_mov_b64 exec, 1
s_waitcnt vmcnt({left})
ds_add_rtn_u32 v{vT1}, v{vT0}, v{vT1}
s_waitcnt lgkmcnt(0)
v_cmp_eq_u32 vcc, 7, v{vT1}
s_mov_b64 exec, -1
s_nop 0
s_cbranch_vccz {nf}
s_atomic_add s{sreg}, s[{SWS}:{SWS+1}], s{sFE}
{nf}:""")
        def lds_wait(off, val):
            top, ok = lab("lw"), lab("lo")
            b.need(drain=True)
            b(f"""v_mov_b32 v{vT2}, {CNT + off}
s_mov_b32 s{sPoll}, 0
{top}:
ds_read_b32 v{vT3}, v{vT2}
s_add_u32 s{sPoll}, s{sPoll}, 1
s_cmp_gt_u32 s{sPoll}, {SPIN * 16}
s_waitcnt lgkmcnt(0)
v_cmp_gt_u32 vcc, {val}, v{vT3}
s_cbranch_scc1 {ok}
s_nop 0
s_cbranch_vccnz {top}
{ok}:""")
        def before_own():
            b(f"""v_and_b32 v{vT0}, 15, v{vL}
v_bfe_u32 v{vT1}, v{vL}, 1, 2
s_lshr_b32 s{sT1}, s{sCW}, 1
v_xor_b32 v{vT1}, s{sT1}, v{vT1}
v_lshlrev_b32 v{vT1}, 5, v{vT1}
v_lshl_add_u32 v{vT1}, v{vT0}, 7, v{vT1}
v_lshrrev_b32 v{vT2}, 4, v{vL}
v_lshlrev_b32 v{vT2}, 3, v{vT2}""")
            epi(5)
            col128(b, sM0, sS)
            b(f"""s_lshl_b32 s{sT0}, s{sRH}, 12
s_add_u32 s{sT0}, s{sT0}, {XRES}
v_add3_u32 v{vT1}, v{vT1}, v{vT2}, s{sT0}
s_lshl_b32 s{sT1}, s{sT1}, 5
s_add_u32 s{sM0}, s{sM0}, s{sT1}
s_movk_i32 s{sLO}, 0x3f80
s_add_u32 s{sT1}, s{sT1}, {XRES + 8192}
v_add_u32 v{vT2}, s{sT1}, v{vT2}""")
            b.ds(f"ds_read_b64 {vr(XR,2)}, v{vT1}", "xr")
            b.ds(f"ds_read_b64 {vr(XR+2,2)}, v{vT1} offset:2048", "xr")
            b.ds(f"ds_read_b64 {vr(XR+4,2)}, v{vT2}", "xr")
            b(f"""s_lshl_b32 s{sT0}, s{sRH}, 6
s_add_u32 s{sT0}, s{sT0}, s{sROW0}
v_lshl_add_u32 v{vT0}, v{vT0}, 1, s{sT0}
v_bfe_u32 v{vT1}, v{vL}, 4, 1
v_lshl_add_u32 v{vT0}, v{vT1}, 5, v{vT0}
v_mul_u32_u24 v{vT0}, 896, v{vT0}
v_lshrrev_b32 v{vT2}, 5, v{vL}
v_lshl_add_u32 v{vXE}, v{vT2}, 4, v{vT0}
v_mov_b32 v{vXO}, 0x3f800000""")
            b.need(lg=["xr"])
            for d in range(2):
                b(f"v_lshlrev_b32 v{vT0}, 16, v{XR+4+d}\nv_and_b32 v{vT1}, 0xffff0000, v{XR+4+d}")
                for pb in range(2):
                    q = AC + 4 * pb + 2 * d
                    b(f"v_dot2_f32_bf16 v{q}, v{XR+2*pb+d}, s{sLO}, v{vT0}\nv_dot2_f32_bf16 v{q+1}, v{XR+2*pb+d}, v{vXO}, v{vT1}")
            ns = lab("ns")
            stamp(b, 37)
            if G("mids", False): signal(8, 5 - max([0] + list(PROG.values())), 1, sT2)
            if TM in (1, 3):
                b(f"s_cmp_eq_u32 s{sS}, 7\ns_cbranch_scc1 {ns}")
                signal()
                b(f"{ns}:")
        if role == "A": act_base(b)
        def h_read():
            b(f"v_mov_b32 v{vT3}, {CNT + 4}"); b.ds(f"ds_read_b32 v{vT3}, v{vT3}", "h")
        for j in bars.get(-1, []):
            barrier(b, j)
            if j == 15: h_read()
            if j == BH: h_frags(b, vActW)
        for r in sched.get(-1, []): b.ds(*r[:2])
        epi_at = {}
        for cc in range(2 if ra == 2 else 0, 5):
            n = at[(cc, 8)] + ET
            if cc + 2 < 7: n = min(n, at[(cc + 2, 0)] - 1)
            epi_at.setdefault(n, []).append((cc, n - at[(cc, 8)]))
        for n in range(N):
            cc, t = steps[n]
            ac = AC + 8 * (cc % 2); w = WR + 4 * (n % NR)
            for pb in range(2):
                m = 2 * n + pb
                early = []
                for j in bars.get(m, []):
                    if j == 21: before_own()
                    if j == 21 and TM == 3: lds_wait(12, 3 if not NE else 2); stamp(b, 31)
                    else: barrier(b, j, vm=[f"p{k}" for k in range(PROG.get(str(j), 0))])
                    if j == 15: h_read()
                    if ra == 2 and j == 16:
                        early = list(sched.get(m, []))
                        for r in early: b.ds(*r[:2])
                        epi(0); epi(1)
                    elif j == 21:
                        early = list(sched.get(m, []))
                        for r in early: b.ds(*r[:2])
                    elif not early:
                        early = [r for r in sched.get(m, []) if int(r[1][1:]) == n]
                        for r in early: b.ds(*r[:2])
                b.need(lg=[f"w{n}", f"hf{t}"])
                mfma(b, ac + 4 * pb, w, ACTR + 4 * (9 * pb + t), "0" if (t == 0 and cc < 6) else None)
                for r in sched.get(m, []):
                    if r not in early: b.ds(*r[:2])
            if pendst and n % G("stagd", 2) == 0: site()
            for e, dist in epi_at.get(n, []):
                if dist < 4: b(f"s_nop {7 - 2 * dist}")
                epi(e)
            for k, v in STA.items():
                if v == f"{cc},{t}": store(int(k))
        own, done = lab("own"), lab("done")
        if STAMP: b.need(drain=True); b(f"{SOP} s[64:65]")
        b(f"s_cmp_lg_u32 s{sS}, 7\ns_cbranch_scc1 {own}\ns_nop 5")
        epi(6); signal()
        b(f"s_branch {done}\n{own}:")
        if TM == 2: signal()
        b(f"""s_lshl_b32 s{sT0}, s{sCW}, 10
v_add_u32 v{vT0}, s{sT0}, v{vL16}
v_add_u32 v{vT1}, {RING}, v{vT0}
s_nop 1""")
        b.vm = []
        def take(slots):
            for i in slots:
                base, o = (vT1, INLOC[i] - RING) if INLOC[i] >= RING else (vT0, INLOC[i])
                b.ds(f"ds_read_b128 {vr(INB+4*i,4)}, v{base} offset:{o}", f"in{i}")
            for i in slots:
                b.need(lg=[f"in{i}"])
                for d in range(4):
                    b(f"v_dot2_f32_bf16 v{AC+2*d}, v{INB+4*i+d}, s{sLO}, v{AC+2*d}\nv_dot2_f32_bf16 v{AC+2*d+1}, v{INB+4*i+d}, v{vXO}, v{AC+2*d+1}")
        if TM == 2 and NE: b("s_barrier")
        if TM == 3 and NE: lds_wait(16, 1)
        take(range(NE))
        if STAMP: b(f"{SOP} s[66:67]")
        b("s_barrier")
        if STAMP: b(f"{SOP} s[98:99]")
        take(range(NE, 7))
        b("s_nop 1")
        for q in range(4): b(f"v_cvt_pk_bf16_f32 v{PK+q}, v{AC+2*q}, v{AC+2*q+1}")
        b(f"s_nop 1\nv_permlane16_swap_b32 v{PK}, v{PK+2}\nv_permlane16_swap_b32 v{PK+1}, v{PK+3}\ns_nop 0")
        b(f"buffer_store_dwordx4 {vr(PK,4)}, v{vXE}, {sq(SOUT)}, s{sM0} offen {G('ost','')}")
        if STAMP: b(f"s_waitcnt lgkmcnt(0)\nv_writelane_b32 v0, s66, 39\nv_writelane_b32 v0, s98, 40")
        b(f"{done}:")
        if STAMP: b(f"s_waitcnt lgkmcnt(0)\nv_writelane_b32 v0, s64, 38\ns_branch L_fin")
        else: b("s_endpgm")

    f = c.fork(); f.nostamp = G('nof')
    vWA, vWB, vWA2, vWB2, vC1, vBi = 14, 15, 16, 17, 18, 19
    FACC = 24; FBUF = (80, 116)
    srd(f, SB1, 14, 1792 * 2)
    FH = (FACC, FACC + 8)
    if HF: srd(f, SX, 4, 2048 * 896); halo_loads(f, None)
    f(f"""s_mul_i32 s{sT3}, s{sS}, 448
s_mul_i32 s{sT1}, s{sHI}, 224
s_add_u32 s{sT3}, s{sT3}, s{sT1}
s_lshl_b32 s{sT2}, s{sA}, 8
s_add_u32 s{sT2}, s{sT2}, {BIAS}
s_mov_b32 m0, s{sT2}""")
    def bias_dma():
        f("s_mov_b64 exec, 0x3fff")
        f.vmem(f"buffer_load_dwordx4 v{vL16}, {sq(SB1)}, s{sT3} offen lds", "bias")
        f("s_mov_b64 exec, -1")
        if HF: halo_issue(f, FH)
    def wbases():
        f(f"""v_lshrrev_b32 v{vT2}, 4, v{vL}
v_lshlrev_b32 v{vT0}, 3, v{vT2}
v_add_u32 v{vBi}, s{sT2}, v{vT0}
v_bfe_u32 v{vT1}, v{vL}, 2, 2
v_add_u32 v{vT0}, v{vT0}, v{vT1}
v_mul_u32_u24 v{vT0}, 448, v{vT0}
v_and_b32 v{vT1}, 3, v{vL}
v_lshl_add_u32 v{vT0}, v{vT1}, 3, v{vT0}
s_add_u32 s{sT1}, s{sT1}, {RING}
v_add_u32 v{vT0}, s{sT1}, v{vT0}
v_and_b32 v{vT1}, 1, v{vT2}
s_lshl_b32 s{sT2}, s{sHI}, 6
s_sub_u32 s{sT2}, 32, s{sT2}
v_mul_lo_u32 v{vT1}, v{vT1}, s{sT2}
v_add_u32 v{vWA}, v{vT0}, v{vT1}
v_sub_u32 v{vWB}, v{vT0}, v{vT1}
v_add_u32 v{vWA2}, {2*SLOT}, v{vWA}
v_add_u32 v{vWB2}, {2*SLOT}, v{vWB}
v_mov_b32 v{vC1}, {f2u(-2.3022081981)}
s_mov_b32 s{sC2}, {f2u(-2.3022081981*0.044715)}
""")
        xbases(f)
    FE = G("fearly", 1)
    if FE == 1: bias_dma()
    wbases()
    if not G('fl8'): setup_s(f); setup_v1(f); setup_v2(f)
    if FE == 2: bias_dma()
    stamp(f, 1)
    ln_main(f, None if FE else bias_dma)
    stamp(f, 3)
    f(f"s_setprio {G('fprio0', 0)}")
    f.need(vm=["bias"])
    for cb in range(7): f.ds(f"ds_read_b64 {vr(FACC+8*cb+6,2)}, v{vBi} offset:{32*cb}", "bias")
    for _ in ln_core(f, FH, 8, UNP, ["h0", "h1"], 5): pass
    halo_write(f, FH)
    def bias_unpack(cbs=range(7)):
        for cb in cbs:
            d = FACC + 8 * cb
            f(f"""v_lshlrev_b32 v{d}, 16, v{d+6}
v_and_b32 v{d+1}, 0xffff0000, v{d+6}
v_lshlrev_b32 v{d+2}, 16, v{d+7}
v_and_b32 v{d+3}, 0xffff0000, v{d+7}""")
    act_base(f)
    BU = G("bu", "gap")
    if BU == "pre":
        f.need(lg=["bias"]); bias_unpack(range(2, 7)); f.smem = True; f.need(drain=True); bias_unpack(range(2))
    f.smem = True
    def bu_gap(m):
        m += 196
        if BU == "gap" and m < 12 and m % 2 == 0: bias_unpack([m // 2 + 1])
    f("s_setprio 2")
    def f_reads(ks):
        B = FBUF[ks % 2]; slot = (ks // 2) % 3; out = []
        xb = vXE if ks % 2 == 0 else vXO
        for pb in range(2):
            out.append((f"ds_read_b128 {vr(B+4*pb,4)}, v{xb} offset:{pb*1024 + ks*KP}", f"x{ks}"))
        for cb in range(7):
            base = (vWA if cb % 2 == 0 else vWB) + (2 if slot == 2 else 0)
            o = (SLOT if slot == 1 else 0) + (ks % 2) * 14336 + cb * 32
            for u in range(2):
                out.append((f"ds_read_b64_tr_b16 {vr(B+8+4*cb+2*u,2)}, v{base} offset:{o + u*1792}", f"w{ks}_{cb}"))
        return out
    def f_mfmas(ks):
        B = FBUF[ks % 2]; out = []
        for cb in range(7):
            for pb in ((1, 0) if ks == 0 else (0, 1)):
                cin = vr(FACC + 8*cb, 4) if ks == 0 else None
                out.append((lambda cb=cb, pb=pb, cin=cin: mfma(f, FACC + 8*cb + 4*pb, B + 8 + 4*cb, B + 4*pb, cin), [f"x{ks}", f"w{ks}_{cb}"]))
        return out
    g1_phase(f, 0, f_reads, f_mfmas, G("pF", 10), G("gapF", 4), tail=bu_gap, head={'pre': None, 'head': bias_unpack, 'gap': lambda: (bias_unpack([0]), f('s_nop 0'))}[BU])
    f(f"s_setprio {G('gprio', 0)}")
    H, GT = 80, 108
    f(f"""s_lshl_b32 s{sT1}, s{sHI}, 3
s_mul_i32 s{sT2}, s{sHI}, {3*4096}
v_add_u32 v{vWA}, s{sT1}, v{vActW}
v_add_u32 v{vWB}, s{sT2}, v{vActW}""")
    ops = []
    for cb in range(7):
        a0 = FACC + 8 * cb; E = range(8) if not G("nogelu") else range(0)
        for e in E: ops.append((4, f"v_mul_f32 v{GT+e}, v{a0+e}, v{a0+e}"))
        for e in E: ops.append((4, f"v_fma_f32 v{GT+e}, v{GT+e}, s{sC2}, v{vC1}"))
        for e in E: ops.append((4, f"v_mul_f32 v{GT+e}, v{GT+e}, v{a0+e}"))
        for e in E: ops.append((8, f"v_exp_f32 v{GT+e}, v{GT+e}"))
        for e in E: ops.append((4, f"v_add_f32 v{GT+e}, 1.0, v{GT+e}"))
        for e in E: ops.append((8, f"v_rcp_f32 v{GT+e}, v{GT+e}"))
        for e in E: ops.append((4, f"v_mul_f32 v{GT+e}, v{GT+e}, v{a0+e}"))
        for q in range(4):
            d = H + 24 + q if cb == 6 else H + 8 * (cb // 2) + 4 * (q // 2) + 2 * (cb % 2) + q % 2
            ops.append((4, f"v_cvt_pk_bf16_f32 v{d}, v{GT+2*q}, v{GT+2*q+1}"))
    sl = []
    bud = G("gbud", [230, 316, 316, 316, 316, 317, 317]); acc = 0; j = 8; lim = bud[0]
    for k, (cost, op) in enumerate(ops):
        if acc + cost > lim and j <= 14:
            barrier(f, j); j += 1
            lim += bud[j - 8] if j <= 14 else 10 ** 6
        acc += cost; f(op)
        if sl and k % 4 == 3: f(sl.pop(0))
    while j <= 14:
        barrier(f, j); j += 1
    f("s_setprio 3")
    for p in range(3):
        for pb in range(2): f.ds(f"ds_write_b128 v{vWB}, {vr(H+8*p+4*pb,4)} offset:{actoff(p) + pb*1024}", "hw")
    f.ds(f"ds_write2st64_b64 v{vWA}, {vr(H+24,2)}, {vr(H+26,2)} offset0:{actoff(6)//512} offset1:{(actoff(6) + 1024)//512}", "hw")
    if G('fl8'): setup_s(f); setup_v1(f); setup_v2(f)
    f(f"s_setprio {G('f2prio', 1)}")
    g2_phase(f, "F")
    T_f2 = f.cut()

    w = c.fork(); w.nostamp = G('noa')
    vXPE, vXPO, vQA, vQA2, vZ, vMask, vPM = 14, 15, 16, 17, 18, 20, (11, 13)
    AACC = 32; ABUF = (96, 132); vHalo = 32
    w("L_A2:")
    stamp(w, 1)
    ln_main(w)
    stamp(w, 3)
    w("s_setprio 0")
    barrier(w, 0)
    srd(w, SDBG, 24, 256)
    setup_s(w); xbases(w)
    PN = G("pn", 10)
    def probe():
        sk, lp, dn = lab("nv"), lab("vl"), lab("vd")
        w.need(drain=True)
        w(f"""s_and_b32 s{sT0}, s{sS}, 5
s_or_b32 s{sT0}, s{sT0}, s{sA}
s_cbranch_scc1 {sk}
s_lshl_b32 s28, s{sS}, 5
s_add_u32 s28, s28, s{sRB}
s_lshl_b32 s28, s28, 7
s_add_u32 s28, s28, {WS_F1}
s_mov_b32 s50, 0
s_mov_b32 s29, 0
.p2align 5
s_load_dword s50, s[{SWS}:{SWS+1}], s28 glc
{lp}:
s_cmp_eq_u32 s50, s{sN0}
s_cbranch_scc1 {dn}
s_add_u32 s29, s29, 1
s_cmp_lt_u32 s29, {PN}
s_cbranch_scc1 {lp}
{dn}:
s_add_u32 s28, s28, s{SWS}
s_lshr_b32 s30, s28, 8
s_xor_b32 s28, s28, s30
s_lshl_b32 s30, s{sRB}, 9
s_xor_b32 s28, s28, s30
s_sub_u32 s30, 0, s29
s_bitcmp1_b32 s28, 13
s_cselect_b32 s30, s30, s29
s_add_u32 s30, s30, {0x10000 + 32}
s_atomic_add s30, s[{SDBG}:{SDBG+1}], 128""")
        if STAMP: w("v_writelane_b32 v0, s30, 59")
        w(f"{sk}:")
    def probes(j):
        if j == G("pat", 3): probe()
    barrier(w, 1)
    gn = get_nonce(w, vT0, 1); next(gn)
    w(f"""
v_lshrrev_b32 v{vT0}, 5, v{vL}
v_bfe_u32 v{vT1}, v{vL}, 2, 3
v_lshl_add_u32 v{vT0}, v{vT0}, 4, v{vT1}
v_mul_u32_u24 v{vT0}, 352, v{vT0}
v_and_b32 v{vT1}, 3, v{vL}
v_lshl_add_u32 v{vT0}, v{vT1}, 3, v{vT0}
s_mul_i32 s{sT0}, s{sHI}, 56
s_add_u32 s{sT0}, s{sT0}, {RING}
v_add_u32 v{vQA}, s{sT0}, v{vT0}
v_add_u32 v{vQA2}, {2*SLOT}, v{vQA}
; previous key block base
v_lshrrev_b32 v{vT2}, 4, v{vL}
v_and_b32 v{vT0}, 7, v{vL}
v_xor_b32 v{vT0}, v{vT0}, v{vT2}
v_lshlrev_b32 v{vT0}, 4, v{vT0}
v_lshl_add_u32 v{vT0}, v{vT2}, 7, v{vT0}
v_add_u32 v{vT0}, {HALO}, v{vT0}
v_subrev_u32 v{vT1}, 1024, v{vXE}
s_cmp_eq_u32 s{sRH}, 0
s_cselect_b64 vcc, -1, 0
s_cselect_b32 s{sT0}, 64, 192
v_cndmask_b32 v{vXPE}, v{vT1}, v{vT0}, vcc
v_xor_b32 v{vXPO}, s{sT0}, v{vXPE}
v_cmp_ne_u32 vcc, 0, v{vT2}
s_lshl_b32 s{sT0}, s{sRH}, 11
s_lshl_b32 s{sT1}, s{sHI}, 12
v_cndmask_b32 v{vZ}, 0, -1, vcc
s_add_u32 s{sT0}, s{sT0}, s{sT1}
v_add_u32 v{vActW}, s{sT0}, v{vL16}
""")
    setup_v1(w)
    w(f"""
s_lshl_b32 s{sT3}, s{sS}, 5
s_mul_i32 s{sT0}, s{sA}, 7
s_add_u32 s{sT3}, s{sT3}, s{sT0}
s_lshl_b32 s{sT3}, s{sT3}, 7
s_add_u32 s{sT3}, s{sT3}, {WS_F1}
""")
    w.smem = True; next(gn)
    barrier(w, 2)
    def prelude():
        w(f"""
v_and_b32 v{vT0}, 15, v{vL}
v_lshrrev_b32 v{vT2}, 4, v{vL}
v_lshlrev_b32 v{vT2}, 2, v{vT2}
v_sub_u32 v{vT0}, v{vT0}, v{vT2}
v_mov_b32 v{vT3}, {f2u(-1e30)}
v_mov_b32 v19, 0xffff
s_lshr_b32 s{sT0}, s{sRB}, 1
s_or_b32 s{sT0}, s{sT0}, s{sRH}
s_cmp_eq_u32 s{sT0}, 0
s_cselect_b32 s{sT1}, 0, 8
s_mov_b32 s{sC2}, {f2u(28 ** -0.5 * math.log2(math.e))}
""")
    def mask(jj):
        w(f"""
v_subrev_u32 v{vT1}, {jj}, v{vT0}
v_add_u32 v{vT2}, 16, v{vT1}
v_cmp_gt_u32 s[60:61], 8, v{vT1}
v_cmp_gt_u32 s[40:41], 8, v{vT2}
v_cmp_gt_u32 vcc, s{sT1}, v{vT2}
v_cndmask_b32 v{vMask+4+jj}, v{vT3}, 0, s[60:61]
v_cndmask_b32 v{vMask+jj}, v{vT3}, 0, s[40:41]
v_cndmask_b32 v{vMask+8+jj}, v{vT3}, 0, vcc
""")
        if jj % 2 == 0: w(f"v_cndmask_b32 v{vPM[jj//2]}, 0, v19, s[60:61]")
        else: w(f"v_cndmask_b32 v{vT1}, 0, v19, s[60:61]\nv_lshl_or_b32 v{vPM[jj//2]}, v{vT1}, 16, v{vPM[jj//2]}")
    PQ = [4, 8, 12, 16, 20, 24, 56]
    def p1_issue():
        for i, q in enumerate(PQ): w(f"s_buffer_load_dwordx4 {sq(q)}, {sq(SWS)}, s{sT3} offset:{128*i}")
    prelude(); mask(0); mask(1)
    barrier(w, 3)
    probes(3)
    if not G("p1late"): p1_issue()
    barrier(w, 4)
    if G("p1late"): p1_issue()
    w.smem = True
    chk, retry, got = lab("pc"), lab("pr"), lab("pg")
    w.need(drain=True)
    w(f"s_mov_b32 s{sPoll}, 0\n{chk}:")
    for q in PQ:
        for h in (0, 2): w(f"s_cmp_eq_u64 s[{q+h}:{q+h+1}], s[{sN0}:{sN1}]\ns_cbranch_scc0 {retry}")
    w(f"{got}:")
    if STAMP: w(f"v_writelane_b32 v0, s{sPoll}, 60")
    slow_poll(retry, got, vT1, f"v_min_u32 v{vT1}, 27, v{vL}\nv_lshrrev_b32 v{vT2}, 2, v{vT1}\nv_and_b32 v{vT1}, 3, v{vT1}\nv_lshlrev_b32 v{vT1}, 2, v{vT1}\nv_lshl_add_u32 v{vT1}, v{vT2}, 7, v{vT1}", sT3)
    probes(4)
    barrier(w, 5)
    probes(5)
    mask(2); mask(3)
    barrier(w, 6)
    probes(6)
    w(f"s_setprio {G('aprio',2)}")
    def a_reads(ks):
        B = ABUF[ks % 2]; slot = (7 + ks // 2) % 3; out = []
        xb = vXE if ks % 2 == 0 else vXO
        xp = vXPE if ks % 2 == 0 else vXPO
        out.append((f"ds_read_b128 {vr(B+4,4)}, v{xb} offset:{ks*KP}", f"x{ks}"))
        out.append((f"ds_read_b128 {vr(B+8,4)}, v{xb} offset:{1024 + ks*KP}", f"x{ks}"))
        base = vQA2 if slot == 2 else vQA
        for sec in range(3):
            if sec == 1: out.append((f"ds_read_b128 {vr(B,4)}, v{xp} offset:{ks*KP}", f"xp{ks}"))
            for db in range(2):
                o = (SLOT if slot == 1 else 0) + (ks % 2) * 32 * 352 + sec * 112 + db * 24
                for u in range(2):
                    out.append((f"ds_read_b64_tr_b16 {vr(B+12+4*(2*sec+db)+2*u,2)}, v{base} offset:{o + u*8*352}", f"w{ks}_{sec}{db}"))
        return out
    def a_mfmas(ks):
        B = ABUF[ks % 2]; out = []
        c0 = "0" if ks == 0 else None
        for db in range(2):
            for qb in range(2):
                out.append((lambda db=db, qb=qb: mfma(w, AACC + (2*db+qb)*4, B + 12 + 4*db, B + 4 + 4*qb, c0), [f"x{ks}", f"w{ks}_0{db}"]))
        for db in range(2):
            for kb in range(3):
                out.append((lambda db=db, kb=kb: mfma(w, AACC + 16 + (3*db+kb)*4, B + 20 + 4*db, B + 4*kb, c0), [f"xp{ks}", f"w{ks}_1{db}"]))
        for db in range(2):
            for kb in range(3):
                out.append((lambda db=db, kb=kb: mfma(w, AACC + 40 + (3*db+kb)*4, B + 4*kb, B + 28 + 4*db, c0), [f"w{ks}_2{db}"]))
        return out
    QP, KPk, VP, ONES, SS, MM, PP, LL, OO = 96, 104, 116, 128, 132, 148, 48, 160, 32
    tl = []
    for q in range(4): tl.append(f"v_mov_b32 v{ONES+q}, 0x3f803f80")
    for db in range(2):
        for qb in range(2):
            s0 = AACC + (2*db+qb)*4
            for h in range(2): tl.append(f"v_cvt_pk_bf16_f32 v{QP+4*qb+2*db+h}, v{s0+2*h}, v{s0+2*h+1}")
    for db in range(2):
        for kb in range(3):
            s0 = AACC + 16 + (3*db+kb)*4
            for h in range(2): tl.append(f"v_cvt_pk_bf16_f32 v{KPk+4*kb+2*db+h}, v{s0+2*h}, v{s0+2*h+1}")
    for qb in range(2):
        for h in range(2): tl.append(f"v_and_b32 v{QP+4*qb+2+h}, v{vZ}, v{QP+4*qb+2+h}")
    def a_tail(m):
        if m >= -10:
            for _ in range(2): w(tl.pop(0))
    g1_phase(w, 7, a_reads, a_mfmas, G("pA", 10), G("gapA", 3), a_tail)
    stamp(w, 5)
    for x in tl: w(x)
    vc = []
    for db in range(2):
        for kb in range(3):
            s0 = AACC + 40 + (3*db+kb)*4
            for h in range(2): vc.append(f"v_cvt_pk_bf16_f32 v{VP+6*db+2*kb+h}, v{s0+2*h}, v{s0+2*h+1}")
    def fill(n):
        for _ in range(n): w(vc.pop(0) if vc else "s_nop 0")
    for qb in range(2):
        for t in range(2):
            m = vMask + 4 if t == 1 else (vMask + 8 if qb == 0 else vMask)
            mfma(w, SS + 8*qb + 4*t, KPk + 4*(qb+t), QP + 4*qb, vr(m, 4))
    fill(4); w("s_nop 1")
    T, U = vT0, vT1
    for qb in range(2):
        for e in range(4): w(f"v_max_f32 v{MM+4*qb+e}, v{SS+8*qb+e}, v{SS+8*qb+4+e}")
    for qb in range(2): w(f"v_max3_f32 v{T+qb}, v{MM+4*qb}, v{MM+4*qb+1}, v{MM+4*qb+2}")
    for qb in range(2): w(f"v_max_f32 v{T+qb}, v{T+qb}, v{MM+4*qb+3}")
    fill(2); w(f"v_permlane32_swap_b32 v{T}, v{U}"); fill(1)
    w(f"v_max_f32 v{T}, v{T}, v{U}\nv_mov_b32 v{U}, v{T}")
    fill(2); w(f"v_permlane16_swap_b32 v{T}, v{U}"); fill(1)
    w(f"v_max_f32 v{T}, v{T}, v{U}\nv_mul_f32 v{U}, s{sC2}, v{T}\nv_mul_f32 v{T}, s{sC2}, v{T}")
    fill(2); w(f"v_permlane32_swap_b32 v{T}, v{U}"); fill(1)
    assert not vc
    for qb in range(2):
        m0 = MM + 4*qb
        for e in range(4): w(f"v_fma_f32 v{m0+e}, v{m0+e}, s{sC2}, -v{T+qb}")
        for e in range(4): w(f"v_exp_f32 v{m0+e}, v{m0+e}")
        w(f"v_cvt_pk_bf16_f32 v{m0}, v{m0}, v{m0+1}\nv_cvt_pk_bf16_f32 v{m0+2}, v{m0+2}, v{m0+3}")
        for h in range(2): w(f"v_bfi_b32 v{PP+4*qb+h}, v{vPM[h]}, 0, v{m0+2*h}")
        for h in range(2): w(f"v_and_b32 v{PP+4*qb+2+h}, v{vPM[h]}, v{m0+2*h}")
        if qb == 0: w("s_nop 1")
        else: setup_v2(w)
        mfma(w, LL + 4*qb, ONES, PP + 4*qb, "0")
        for db in range(2): mfma(w, OO + 8*qb + 4*db, VP + 6*db + 2*qb, PP + 4*qb, "0")
        if qb == G('bhq', 0):
            w(f"s_lshl_b32 s{sT0}, s{sRH}, 11\ns_add_u32 s{sT0}, s{sT0}, {ACT}\nv_add_u32 v{vXE}, s{sT0}, v{vL16}")
            barrier(w, BH)
    hb = Asm(); h_frags(hb, vXE); hq = list(zip(hb.L, hb.lg))
    def hr(n=1):
        for _ in range(n):
            if hq: w.ds(*hq.pop(0))
    for qb in range(2):
        w(f"v_rcp_f32 v{LL+4*qb}, v{LL+4*qb}"); hr() if G("hmix", False) else w("s_nop 0")
        w(f"v_and_b32 v{LL+4*qb+1}, v{vZ}, v{LL+4*qb}")
        for db in range(2):
            for e in range(4):
                w(f"v_mul_f32 v{OO+8*qb+4*db+e}, v{LL+4*qb+db}, v{OO+8*qb+4*db+e}")
                if e % 2 and G("hmix", False): hr()
        for q in range(4):
            w(f"v_cvt_pk_bf16_f32 v{PP+8+4*qb+q}, v{OO+8*qb+2*q}, v{OO+8*qb+2*q+1}")
            if q % 2 and G("hmix", False): hr()
    for qb in range(2):
        w.ds(f"ds_write_b128 v{vActW}, {vr(PP+8+4*qb,4)} offset:{ACT + qb*1024}", "ow")
    hr(14)
    w(f"s_setprio {G('a2prio', 2)}")
    stamp(w, 6)
    g2_phase(w, "A")
    T_a2 = w.cut()

    l = aL.fork(); l.nostamp = G('lite') or G('nol')
    xp = 1 if G('pfg', 1) else xm
    vW1a, vW1b, vW2A, vPF, vR0, vR1, vNon, vZero, vRP, vSent, vPA, vXR = 8, 9, 10, 11, 12, 13, 14, 15, 16, 24, 28, 29
    vNeed, vRng, vPoll, vPv, vPg = 24, 25, 26, 27, 30
    vW1 = 32
    l("L_L:")
    l(f"s_setprio {G('lprio0',3)}")
    common2(l)
    l(f"""
s_or_b32 s{sT3}, s2, s{sW}
s_cmp_lg_u32 s{sT3}, 0
s_cbranch_scc1 L_nolead0
s_memrealtime s[{sN0}:{sN1}]
L_nolead0:
""")
    for i, d in ((0, vR0), (1, vR1)):
        l(f"""
v_add_u32 v{vT0}, {64*i}, v{vL}
v_mul_u32_u24 v{vT2}, 2979, v{vT0}
v_lshrrev_b32 v{vT2}, 16, v{vT2}
v_mul_u32_u24 v{vT3}, 22, v{vT2}
v_sub_u32 v{vT0}, v{vT0}, v{vT3}
v_min_u32 v{vT0}, 20, v{vT0}
v_mul_u32_u24 v{vT3}, 37, v{vT0}
v_lshrrev_b32 v{vT3}, 8, v{vT3}
v_mul_u32_u24 v{vT3}, {896-112}, v{vT3}
v_lshl_add_u32 v{vT0}, v{vT0}, 4, v{vT3}
v_mul_u32_u24 v{vT2}, 2688, v{vT2}
v_add_u32 v{d}, v{vT0}, v{vT2}
""")
    l(f"""
s_and_b32 s{sT2}, s{sA}, 1
s_lshl_b32 s{sT2}, s{sT2}, 3
s_lshr_b32 s{sT1}, s{sA}, 1
s_lshl_b32 s{sT1}, s{sT1}, 2
s_add_u32 s{sT2}, s{sT2}, s{sT1}
s_lshl_b32 s{sT1}, s{sRB}, 4
s_add_u32 s{sT2}, s{sT2}, s{sT1}
s_mul_i32 s{sT2}, s{sT2}, 2688
s_mul_i32 s{sT1}, s{sS}, 112
s_add_u32 s{sC2}, s{sT2}, s{sT1}
; W1 prefetch offsets (rows 0..127)
s_and_b32 s{sJJ}, s{sRB}, {32//xp-1}
s_lshl_b32 s{sT1}, s{sJJ}, 2
s_add_u32 s{sRH}, s{sT1}, s{sA}
s_mul_i32 s{sT1}, s{sRH}, {xp}
v_min_u32 v{vT1}, {4*xp-1}, v{vL}
v_lshrrev_b32 v{vT2}, 2, v{vT1}
v_add_u32 v{vT2}, s{sT1}, v{vT2}
v_and_b32 v{vT1}, 3, v{vT1}
v_mul_u32_u24 v{vT2}, 3584, v{vT2}
v_lshl_add_u32 v{vPA}, v{vT1}, 7, v{vT2}
s_mul_i32 s{sW1o}, s{sS}, 448
s_and_b32 s{sHI}, s{sW1o}, 0xffffff80
v_mov_b32 v{vZero}, 0
s_waitcnt lgkmcnt(0)
""")
    mark(l, "ka")
    srd(l, SWQ, 6, 448 * 1344 * 2); srd(l, SW1, 12, 448 * 1792 * 2)
    def op_pfa():
        l.vmem(f"buffer_load_dword v{vPF}, v{vPA}, {sq(SW1)}, s{sHI} offen {G('ntw','')}", "pf")
    def op_rpl():
        l.vmem(f"buffer_load_dwordx4 {vr(vRP,4)}, v{vR0}, {sq(SWQ)}, s{sC2} offen {G('ntr','')}", "rp")
        l("s_mov_b64 exec, 0xffffff")
        l.vmem(f"buffer_load_dwordx4 {vr(vRP+4,4)}, v{vR1}, {sq(SWQ)}, s{sC2} offen {G('ntr','')}", "rp")
        l("s_mov_b64 exec, -1")
    def op_init():
        srd(l, SDBG, 24, 256)
        l(f"""
s_cmp_lg_u32 s{sT3}, 0
s_cbranch_scc1 L_nolead1
s_and_b32 s{sN0}, s{sN0}, -16
s_or_b32 s62, s{sN0}, 16
s_atomic_swap s62, s[{SDBG}:{SDBG+1}], 0
s_atomic_swap s62, s[{SDBG}:{SDBG+1}], 64
L_nolead1:
""")
        srd(l, SWS, 26, 0x10000000); srd(l, SW2, 16, 1792 * 448 * 2); srd(l, SWO, 8, 448 * 448 * 2)
        srd(l, SX, 4, 2048 * 896); srd(l, SB2, 18, 896)
        first_stamps(l)
        l(f"""
v_mul_u32_u24 v{vT0}, 2341, v{vL}
v_xor_b32 v{vT1}, 32, v{vL16}
v_and_b32 v{vT2}, 32, v{vL}
v_xor_b32 v{vT2}, v{vT2}, v{vL16}
s_movk_i32 s{sT1}, {3584-448}
""")
        for i in range(7):
            l(f"v_add_u32 v{vT3}, {64*i*2341}, v{vT0}\nv_lshrrev_b32 v{vT3}, 16, v{vT3}\nv_mad_u32_u24 v{vW1+i}, v{vT3}, s{sT1}, v{vL16 if i < 3 else (vT2 if i == 3 else vT1)}")
        l(f"""
s_mul_i32 s{sT1}, s{sA}, {16*3584}
s_add_u32 s{sW1o}, s{sW1o}, s{sT1}
s_mul_i32 s{sM0}, s{sA}, 7168
""")
    def op_pfb():
        l(f"""
s_mul_i32 s{sT1}, s{sRH}, {10*xp}
s_add_u32 s{sT1}, s{sT1}, 512
v_min_u32 v{vT1}, {10*xp-1}, v{vL}
v_add_u32 v{vT1}, s{sT1}, v{vT1}
v_lshrrev_b32 v{vT2}, 2, v{vT1}
v_and_b32 v{vT1}, 3, v{vT1}
v_mul_u32_u24 v{vT2}, 3584, v{vT2}
v_lshl_add_u32 v{vT1}, v{vT1}, 7, v{vT2}
""")
        l.vmem(f"buffer_load_dword v{vPF}, v{vT1}, {sq(SW1)}, s{sHI} offen {G('ntw','')}", "pf")
    def op_pf2():
        per = 49 * xp; pw = (per + 3) // 4
        l(f"""
s_mul_i32 s{sT2}, s{sJJ}, {per}
s_mul_i32 s{sT1}, s{sA}, {pw}
v_min_u32 v{vT1}, {pw-1}, v{vL}
v_add_u32 v{vT1}, s{sT1}, v{vT1}
v_min_u32 v{vT1}, {per-1}, v{vT1}
v_add_lshl_u32 v{vT1}, v{vT1}, s{sT2}, 7
s_mul_i32 s{sT1}, s{sS}, {224*896}
""")
        l.vmem(f"buffer_load_dword v{vPF}, v{vT1}, {sq(SW2)}, s{sT1} offen {G('nt2','')}", "pf2")
        per = 13 * xp; pw = (per + 3) // 4
        l(f"""
s_mul_i32 s{sT2}, s{sJJ}, {per}
s_mul_i32 s{sT1}, s{sA}, {pw}
v_min_u32 v{vT1}, {pw-1}, v{vL}
v_add_u32 v{vT1}, s{sT1}, v{vT1}
v_min_u32 v{vT1}, {per-1}, v{vT1}
v_add_u32 v{vT1}, s{sT2}, v{vT1}
v_min_u32 v{vT1}, 391, v{vT1}
v_lshlrev_b32 v{vT1}, 7, v{vT1}
s_mul_i32 s{sT1}, s{sS}, {56*896}
""")
        l.vmem(f"buffer_load_dword v{vPF}, v{vT1}, {sq(SWO)}, s{sT1} offen {G('nt2','')}", "pf2")
    def op_g(k):
        if k < 3:
            l(f"""
s_mul_i32 s{sT2}, s{sRB}, 49
s_mul_i32 s{sT1}, s{sA}, 5
s_add_u32 s{sT1}, s{sT1}, {17*k}
v_min_u32 v{vT1}, 4, v{vL}
v_add_u32 v{vT1}, s{sT1}, v{vT1}
v_min_u32 v{vT1}, {min(17*k+16, 48)}, v{vT1}
v_add_lshl_u32 v{vT1}, v{vT1}, s{sT2}, 7
s_mul_i32 s{sT1}, s{sS}, {224*896}
""")
            l.vmem(f"buffer_load_dword v{vPF}, v{vT1}, {sq(SW2)}, s{sT1} offen {G('nt2','')}", "pf2")
        else:
            l(f"""
s_mul_i32 s{sT2}, s{sRB}, 13
s_lshl_b32 s{sT1}, s{sA}, 2
v_min_u32 v{vT1}, 3, v{vL}
v_add_u32 v{vT1}, s{sT1}, v{vT1}
v_min_u32 v{vT1}, 12, v{vT1}
v_add_u32 v{vT1}, s{sT2}, v{vT1}
v_min_u32 v{vT1}, 391, v{vT1}
v_lshlrev_b32 v{vT1}, 7, v{vT1}
s_mul_i32 s{sT1}, s{sS}, {56*896}
""")
            l.vmem(f"buffer_load_dword v{vPF}, v{vT1}, {sq(SWO)}, s{sT1} offen {G('nt2','')}", "pf2")
    def op_b2():
        col128(l, sT1, sS)
        l(f"""s_cmp_eq_u32 s{sS}, 7
s_cselect_b32 s{sT1}, {OOB}, s{sT1}
s_mov_b32 m0, {XRES + 8192}
s_mov_b64 exec, 0xff""")
        l.vmem(f"buffer_load_dwordx4 v{vL16}, {sq(SB2)}, s{sT1} offen lds", "xr")
        l("s_mov_b64 exec, -1")
    def op_xr():
        col128(l, sT1, sS)
        l(f"""
s_lshl_b32 s{sT0}, s{sA}, 5
s_add_u32 s{sT0}, s{sT0}, s{sROW0}
s_mul_i32 s{sT0}, s{sT0}, 896
s_cmp_eq_u32 s{sS}, 7
s_cselect_b32 s{sT1}, {OOB}, s{sT1}
s_add_u32 s{sT0}, s{sT0}, s{sT1}
s_lshl_b32 s{sT2}, s{sA}, 11""")
        for i in range(2):
            l(f"s_add_u32 m0, s{sT2}, {XRES + 1024*i}\ns_add_u32 s{sT0}, s{sT0}, {16*896*i}")
            l.vmem(f"buffer_load_dwordx4 v{vXR}, {sq(SX)}, s{sT0} offen lds", "xr")
    def op_rps():
        l(f"""
s_mul_i32 s{sT1}, s{sS}, {448*352}
s_add_u32 s{sT1}, s{sT1}, {WS_WQ}
s_lshl_b32 s{sT0}, s{sRB}, 2
s_add_u32 s{sT0}, s{sT0}, s{sA}
s_mul_i32 s{sT0}, s{sT0}, {4*352}
s_add_u32 s{sT0}, s{sT0}, s{sT1}
s_cmp_ge_u32 s{sRB}, 28
s_cselect_b32 s{sT0}, {OOB}, s{sT0}
""")
        l.need(vm=["rp"])
        l.vmem(f"buffer_store_dwordx4 {vr(vRP,4)}, v{vL16}, {sq(SWS)}, s{sT0} offen sc1", "rps")
        l("s_mov_b64 exec, 0xffffff")
        l.vmem(f"buffer_store_dwordx4 {vr(vRP+4,4)}, v{vL16}, {sq(SWS)}, s{sT0} offen offset:1024 sc1", "rps")
        l("s_mov_b64 exec, -1")
    gl = get_nonce(l, vT0, 0)
    def op_noi(): next(gl)
    def op_non():
        next(gl)
    def op_fl1():
        region(l, 25)
        l(f"""s_add_u32 s25, s25, {FOFF}
s_lshl_b32 s{sT0}, s{sS}, 5
s_add_u32 s{sT0}, s{sT0}, s{sRB}
s_lshl_b32 s{sT0}, s{sT0}, 5
s_add_u32 s{sT0}, s{sT0}, s{sA}
s_lshl_b32 s{sT0}, s{sT0}, 2
s_add_u32 s{sT0}, s{sT0}, {WS_F1}""")
        l.need(vm=["rps"])
        ni = lab("ni")
        l(f"""s_atomic_swap s{sN0}, s[{SWS}:{SWS+1}], s{sT0}
s_or_b32 s{sT0}, s{sS}, s{sA}
s_cbranch_scc1 {ni}
s_mov_b32 s62, 0
s_atomic_swap s62, s[{SWS}:{SWS+1}], s25
s_atomic_swap s62, s[{SWS}:{SWS+1}], s25 offset:8192
{ni}:""")
    def op_tab():
        chunks(l)
        l(f"""
v_lshrrev_b32 v{vT0}, 3, v{vL}
v_lshrrev_b32 v{vT1}, 4, v{vL}
v_lshlrev_b32 v{vT1}, 1, v{vT1}
v_and_b32 v{vT2}, 7, v{vL}
v_xor_b32 v{vT1}, v{vT1}, v{vT2}
v_mul_u32_u24 v{vT0}, 896, v{vT0}
v_lshl_add_u32 v{vW2A}, v{vT1}, 4, v{vT0}
v_add_u32 v{vXR}, v{vW2A}, v{vT0}
s_mul_i32 s{sW2o}, s{sS}, {224*896}
s_mul_i32 s{sT0}, s{sA}, {8*896}
s_add_u32 s{sW2o}, s{sW2o}, s{sT0}
s_lshl_b32 s27, s{sA}, 10
s_mul_i32 s{sWQo}, s{sS}, {448*352}
s_add_u32 s{sWQo}, s{sWQo}, {WS_WQ}
s_mul_i32 s{sM1}, s{sA}, {16*352}
s_add_u32 s{sWQo}, s{sWQo}, s{sM1}
s_mul_i32 s{sT2}, s{sS}, {56*896}
s_lshl_b32 s{sT0}, s{sA}, 1
s_add_u32 s{sT1}, s{sT0}, 1
s_min_u32 s{sT1}, s{sT1}, 6
s_lshl_b32 s20, s{sT0}, 10
s_lshl_b32 s21, s{sT1}, 10
s_mul_i32 s22, s{sT0}, {8*896}
s_mul_i32 s23, s{sT1}, {8*896}
s_add_u32 s22, s22, s{sT2}
s_add_u32 s23, s23, s{sT2}
; inbox: source offsets per slot (s4..s10), poll address / need per lane
s_cmp_eq_u32 s{sA}, 3
s_cselect_b64 s[18:19], 0xff, -1
s_lshl_b32 s24, s{sS}, 2
s_add_u32 s11, s{sCH+5}, 1
s_mov_b32 s12, 0
""")
    def stage_off(first, step):
        if first: l(f"s_mul_i32 s{sK}, s{sR}, {step}")
        else: l(f"s_add_u32 s{sK}, s{sK}, {step}\ns_cmp_eq_u32 s{sK}, {7*step}\ns_cselect_b32 s{sK}, 0, s{sK}")
    def dma_w1(st):
        stage_off(st == 0, 64 * 3584)
        for i in range(7):
            if i == 0: l(f"s_add_u32 m0, s{sM0}, {RING + (st%3)*SLOT}\ns_add_u32 s{sT0}, s{sW1o}, s{sK}")
            if i == 4: l(f"s_add_u32 m0, s{sM0}, {RING + (st%3)*SLOT + 4096}\ns_add_u32 s{sT0}, s{sT0}, 4096")
            l.vmem(f"buffer_load_dwordx4 v{vW1+i}, {sq(SW1)}, s{sT0} offen offset:{1024*(i%4)} lds", f"st{st}")
    def dma_wq(st):
        if G("nodma"): return
        stage_off(st == 7, 22528)
        for i in range(6):
            if i == 0: l(f"s_add_u32 m0, s{sM1}, {RING + (st%3)*SLOT}\ns_add_u32 s{sT0}, s{sWQo}, s{sK}")
            if i == 4: l(f"s_add_u32 m0, s{sM1}, {RING + (st%3)*SLOT + 4096}\ns_add_u32 s{sT0}, s{sT0}, 4096")
            if i == 5: l("s_mov_b32 exec_hi, 0")
            l.vmem(f"buffer_load_dwordx4 v{vL16}, {sq(SWS)}, s{sT0} offen offset:{1024*(i%4)} lds", f"st{st}")
        l("s_mov_b32 exec_hi, -1")
    def dma_w2(cc, i0=0, i1=7):
        if G("nodma"): return
        col128(l, sT2, sCH + cc); l(f"s_add_u32 s{sT2}, s{sT2}, s{sW2o}")
        for i in range(i0, i1):
            l(f"s_add_u32 m0, s27, {W2LOC[cc] + 4096*i}\ns_add_u32 s{sT0}, s{sT2}, {32*896*i}")
            l.vmem(f"buffer_load_dwordx4 v{vW2A}, {sq(SW2)}, s{sT0} offen lds", f"w2{cc}")
    def dma_wo(cc):
        if G("nodma"): return
        col128(l, sT2, sCH + cc)
        for i in range(2):
            l(f"s_add_u32 m0, s{20+i}, {WOLOC[cc]}\ns_add_u32 s{sT0}, s{22+i}, s{sT2}")
            if i == 1 and G("nodup", True): l("s_mov_b64 exec, s[18:19]")
            l.vmem(f"buffer_load_dwordx4 v{vW2A}, {sq(SWO)}, s{sT0} offen lds", f"wo{cc}")
            if i == 1 and G("nodup", True): l("s_mov_b64 exec, -1")
    vD0, vD1, vD2, vE0, vE1 = 8, 9, 12, 13, 14
    def pace():
        if G("pace"): l(G("pace"))
    def op_stg():
        l(f"""v_add_u32 v{vD0}, s27, v{vL16}
v_add_u32 v{vD1}, {RING}, v{vD0}
v_add_u32 v{vD2}, {RING + 2*SLOT}, v{vD0}
v_add_u32 v{vE0}, s20, v{vL16}
v_add_u32 v{vE1}, s21, v{vL16}""")
    def stg_w2(cc, i0=0, i1=7):
        col128(l, sT2, sCH + cc); l(f"s_add_u32 s{sT2}, s{sT2}, s{sW2o}")
        for i in range(i0, i1):
            l(f"s_add_u32 s{sT0}, s{sT2}, {32*896*i}")
            l.vmem(f"buffer_load_dwordx4 {vr(32 + 28*(cc-3) + 4*i, 4)}, v{vW2A}, {sq(SW2)}, s{sT0} offen", f"v{cc}{i}")
    def stg_wo(cc):
        col128(l, sT2, sCH + cc)
        for i in range(2):
            l(f"s_add_u32 s{sT0}, s{22+i}, s{sT2}")
            l.vmem(f"buffer_load_dwordx4 {vr(144 + 8*(cc-4) + 4*i, 4)}, v{vW2A}, {sq(SWO)}, s{sT0} offen", f"u{cc}")
    def put_w2(cc, i0=0, i1=7):
        loc = W2LOC[cc]; base, o = (vD0, 0) if loc == 0 else ((vD2, 0) if loc == RING + 2 * SLOT else (vD1, loc - RING))
        for i in range(i0, i1):
            l.need(vm=[f"v{cc}{i}"])
            l.ds(f"ds_write_b128 v{base}, {vr(32 + 28*(cc-3) + 4*i, 4)} offset:{o + 4096*i}", "put"); pace()
    def put_wo(cc):
        l.need(vm=[f"u{cc}"])
        for i in range(2): l.ds(f"ds_write_b128 v{vE0+i}, {vr(144 + 8*(cc-4) + 4*i, 4)} offset:{WOLOC[cc]}", "put"); pace()
    def only0(fn, n=1):
        sk = lab("o0")
        l(f"s_cmp_ge_u32 s{sA}, {n}\ns_cbranch_scc1 {sk}"); fn(); l(f"{sk}:")
    def op_cki():
        only0(lambda: l(f"s_buffer_load_dword s61, {sq(SDBG)}, 128"), 2)
    def op_ck():
        again, got = lab("ca"), lab("cg")
        sel = {"auto": "s_cselect_b32 s61, 1, 0", "inv": "s_cselect_b32 s61, 0, 1", "0": "s_mov_b32 s61, 0"}[G("hsel", "auto")]
        def body():
            l(f"""s_waitcnt lgkmcnt(0)
s_mov_b32 s{sPoll}, 0
s_cmp_ge_u32 s61, {64 << 16}
s_cbranch_scc0 {again}
{got}:
s_and_b32 s61, s61, 0xffff
s_cmp_gt_u32 s61, {64*32}
{sel}
s_add_u32 s60, s25, s{SWS}
s_lshr_b32 s60, s60, 21
s_xor_b32 s61, s61, s60
s_lshr_b32 s60, s{sRB}, 4
s_xor_b32 s61, s61, s60
s_and_b32 s61, s61, 1
s_lshl_b32 s61, s61, 13
v_mov_b32 v{vT0}, {CNT + 4}
v_mov_b32 v{vT1}, s61
s_mov_b64 exec, 1
ds_write_b32 v{vT0}, v{vT1}
s_mov_b64 exec, -1
s_add_u32 s25, s25, s61
s_lshl_b32 s{sT0}, s{sS}, 17
s_add_u32 s{sPart}, s25, s{sT0}
s_sub_u32 s{sPart}, s{sPart}, {FOFF}
s_add_u32 s10, s{sPart}, {7*16384}""")
            for k in range(6): l(f"s_lshl_b32 s{sT1}, s{sCH+5-k}, 14\ns_add_u32 s{4+k}, s{sPart}, s{sT1}")
            if STAMP: l("s_lshr_b32 s61, s61, 13\nv_writelane_b32 v0, s61, 59")
        only0(body, 2)
        l.smem = True
        x = Asm()
        x(f"""{again}:
buffer_load_dword v{vT0}, v{vZero}, {sq(SDBG)}, 0 offen offset:128 sc1
s_add_u32 s{sPoll}, s{sPoll}, 1
s_cmp_gt_u32 s{sPoll}, {SPIN}
s_waitcnt vmcnt(0)
v_readfirstlane_b32 s61, v{vT0}
s_cbranch_scc1 {got}
s_cmp_ge_u32 s61, {64 << 16}
s_cbranch_scc0 {again}
s_branch {got}""")
        SLOW.append(x.cut())
    pdone = [0]
    def op_pg(n):
        d = n - pdone[0]; pdone[0] = n; r = 16 + (n % 2)
        only0(lambda: l(f"s_lshl_b32 s{r}, {d}, s24\ns_atomic_add s{r}, s[{SWS}:{SWS+1}], s25"))
    def poll(): l(f"s_mov_b32 s13, 0\ns_atomic_add s13, s[{SWS}:{SWS+1}], s25 glc")
    def take_ready(mask=0x7f):
        for i in range(7):
            if not mask >> i & 1: continue
            sk = lab("sk")
            l(f"s_bitcmp1_b32 s12, {i}\ns_cbranch_scc1 {sk}")
            if i < 6: l(f"s_lshl_b32 s{sT0}, s{sCH+5-i}, 2\ns_lshr_b32 s{sT0}, s13, s{sT0}\ns_and_b32 s{sT0}, s{sT0}, 15\ns_cmp_ge_u32 s{sT0}, {i+1}")
            else: l(f"s_lshr_b32 s{sT0}, s13, 28\ns_cmp_ge_u32 s{sT0}, s11")
            l(f"s_cbranch_scc0 {sk}\ns_bitset1_b32 s12, {i}")
            for h in range(2):
                l(f"s_mov_b32 m0, {INLOC[i] + 4096*h}\ns_add_u32 s{sT0}, s{4+i}, {4096*h}")
                for q in range(4): l(f"buffer_load_dwordx4 v{vL16}, {sq(SWS)}, s{sT0} offen offset:{1024*q} sc1 lds")
            l(f"{sk}:")
    def dma_last(ng=1):
        nw = 4 - ng
        col128(l, sT2, sCH + 6)
        l(f"""s_sub_u32 s16, s{sA}, {ng}
s_mul_i32 s17, s{sS}, {224*896}
s_add_u32 s17, s17, s{sT2}
s_mul_i32 s18, s{sS}, {56*896}
s_add_u32 s18, s18, s{sT2}""")
        for n, base, loc, srdn in ((28, 17, W2LOC[6], SW2), (7, 18, WOLOC[6], SWO)):
            for i in range((n + nw - 1) // nw):
                l(f"s_add_u32 s{sT0}, s16, {nw*i}")
                if nw * i + nw - 1 >= n: l(f"s_min_u32 s{sT0}, s{sT0}, {n-1}")
                l(f"s_lshl_b32 s{sT1}, s{sT0}, 10\ns_add_u32 m0, s{sT1}, {loc}\ns_mul_i32 s{sT0}, s{sT0}, {8*896}\ns_add_u32 s{sT0}, s{sT0}, s{base}")
                if not G("nodma"): l.vmem(f"buffer_load_dwordx4 v{vW2A}, {sq(srdn)}, s{sT0} offen lds", "w26")
    NG = 2 if NE else 1
    def own_pieces():
        nw = 4 - NG; k = 0
        for n, base, loc, srdn in ((28, 14, W2LOC[6], SW2), (7, 15, WOLOC[6], SWO)):
            for i in range((n + nw - 1) // nw):
                yield k, i, n, base, loc, srdn, nw; k += 1
    def op_sg6(lo, hi):
        sk = lab("g6")
        l(f"s_cmp_lt_u32 s{sA}, {NG}\ns_cbranch_scc1 {sk}\ns_cmp_eq_u32 s{sS}, 7\ns_cbranch_scc1 {sk}")
        if lo == 0:
            l.need(vm=list(l.vm))
            col128(l, sT2, sCH + 6)
            l(f"""s_sub_u32 s13, s{sA}, {NG}
s_mul_i32 s14, s{sS}, {224*896}
s_add_u32 s14, s14, s{sT2}
s_mul_i32 s15, s{sS}, {56*896}
s_add_u32 s15, s15, s{sT2}""")
        for k, i, n, base, loc, srdn, nw in own_pieces():
            if not lo <= k < hi: continue
            l(f"s_add_u32 s{sT0}, s13, {nw*i}")
            if nw * i + nw - 1 >= n: l(f"s_min_u32 s{sT0}, s{sT0}, {n-1}")
            l(f"s_mul_i32 s{sT0}, s{sT0}, {8*896}\ns_add_u32 s{sT0}, s{sT0}, s{base}")
            l(f"buffer_load_dwordx4 {vr(40 + 4*k, 4)}, v{vW2A}, {sq(srdn)}, s{sT0} offen")
        l(f"{sk}:")
    def put6():
        for k, i, n, base, loc, srdn, nw in own_pieces():
            if i == 0 or nw * i + nw - 1 >= n:
                l(f"s_add_u32 s{sT0}, s13, {nw*i}\ns_min_u32 s{sT0}, s{sT0}, {n-1}\ns_lshl_b32 s{sT0}, s{sT0}, 10\ns_add_u32 s{sT0}, s{sT0}, {loc}\nv_add_u32 v{vT2}, s{sT0}, v{vL16}")
                i0 = i
            l(f"ds_write_b128 v{vT2}, {vr(40 + 4*k, 4)} offset:{1024*nw*(i-i0)}")
        l("s_waitcnt lgkmcnt(0)")
    def lds_add(off):
        l(f"v_mov_b32 v{vT0}, {CNT + off}\nv_mov_b32 v{vT1}, 1\ns_mov_b64 exec, 1\ns_waitcnt vmcnt(0)\nds_add_u32 v{vT0}, v{vT1}\ns_mov_b64 exec, -1")
    def tail3():
        z, top, out, fin = lab("z"), lab("tl"), lab("to"), lab("tf")
        ng = 2 if NE else 1
        l(f"s_cmp_lt_u32 s{sA}, {ng}\ns_cbranch_scc1 {z}")
        if G("sg6", True):
            n7 = lab("n7")
            l(f"s_cmp_eq_u32 s{sS}, 7\ns_cbranch_scc1 {n7}\ns_waitcnt vmcnt(0)\ns_barrier\ns_setprio {G('putprio', 0)}")
            put6(); lds_add(12)
            l(f"s_branch {fin}\n{n7}:")
        if G("w6at", 19) == 19: dma_last(ng)
        barrier(l, 20, vm=["w25", "wo5", "xr"])
        if G("w6at", 19) == 20: dma_last(ng)
        lds_add(12)
        l.need(drain=True)
        l(f"s_branch {fin}\n{z}:")
        l.vm = []
        em = (1 << NE) - 1
        l(f"s_cmp_eq_u32 s{sA}, 0\ns_cselect_b32 s12, {em}, {0x7f ^ em}\ns_cmp_eq_u32 s{sS}, 7\ns_cselect_b32 s12, 0x7f, s12\ns_mov_b32 s13, 0")
        if G("noinb"): l("s_mov_b32 s12, 0x7f")
        if G("tk19", True):
            sk = lab("np"); l(f"s_cmp_eq_u32 s{sA}, {ng - 1}\ns_cbranch_scc0 {sk}"); poll(); l(f"{sk}:")
        l("s_waitcnt vmcnt(0) lgkmcnt(0)\ns_barrier")
        if "20" in PROG:
            d = PROG["20"] - pdone[0]; only0(lambda: l(f"s_lshl_b32 s16, {d}, s24\ns_atomic_add s16, s[{SWS}:{SWS+1}], s25"))
        l(f"s_mov_b32 s{sPoll}, 0\n{top}:")
        take_ready()
        l(f"""s_add_u32 s{sPoll}, s{sPoll}, 1
s_cmp_gt_u32 s{sPoll}, {SPIN}
s_cselect_b32 s12, 0x7f, s12
s_cmp_eq_u32 s12, 0x7f
s_cbranch_scc1 {out}""")
        poll()
        l(f"s_waitcnt lgkmcnt(0)\ns_branch {top}\n{out}:\ns_waitcnt vmcnt(0)")
        if STAMP: l(f"v_writelane_b32 v0, s{sPoll}, 61")
        if NE:
            l(f"s_cmp_eq_u32 s{sA}, 0\ns_cbranch_scc1 {fin}"); lds_add(16)
        l(f"{fin}:\ns_cmp_eq_u32 s{sS}, 7\ns_cbranch_scc1 L_Lend\ns_barrier\nL_Lend:")
    def op_tail():
        z, top, out = lab("z"), lab("tl"), lab("to")
        if TM == 3: return tail3()
        l(f"s_cmp_eq_u32 s{sA}, 0\ns_cbranch_scc1 {z}")
        vm0 = list(l.vm)
        if G("w6at", 19) == 19: dma_last()
        barrier(l, 20, vm=["w25", "wo5", "xr"])
        if G("w6at", 19) == 20: dma_last()
        barrier(l, 21, vm=["w26", "wo6"])
        l.need(drain=True)
        l(f"s_cmp_eq_u32 s{sS}, 7\ns_cbranch_scc1 L_Lend\ns_barrier")
        if TM == 2 and NE: l("s_barrier")
        l(f"s_branch L_Lend\n{z}:")
        l.vm = []
        l(f"s_cmp_eq_u32 s{sS}, 7\ns_cselect_b32 s12, 0x7f, 0\ns_mov_b32 s13, 0")
        if G("noinb"): l("s_mov_b32 s12, 0x7f")
        if G("tk19", True): poll()
        l("s_waitcnt vmcnt(0) lgkmcnt(0)")
        if G("tk19") == "pre": take_ready(0x47)
        l("s_barrier")
        if "20" in PROG:
            d = PROG["20"] - pdone[0]; l(f"s_lshl_b32 s16, {d}, s24\ns_atomic_add s16, s[{SWS}:{SWS+1}], s25")
        if TM == 2:
            take_ready(); poll(); l("s_waitcnt lgkmcnt(0)")
            if G("tk20", True): take_ready()
            l(f"s_barrier\ns_cmp_eq_u32 s{sS}, 7\ns_cbranch_scc1 L_Lend")
        nm = lab("nm")
        l(f"s_mov_b32 s{sPoll}, 0\ns_mov_b32 s14, {(1 << NE) - 1 if NE else 0xff}\n{top}:")
        take_ready()
        l(f"""s_add_u32 s{sPoll}, s{sPoll}, 1
s_cmp_gt_u32 s{sPoll}, {SPIN}
s_cselect_b32 s12, 0x7f, s12
s_and_b32 s15, s12, s14
s_cmp_eq_u32 s15, s14
s_cbranch_scc0 {nm}
s_waitcnt vmcnt(0)
s_barrier
s_movk_i32 s14, 0xff
{nm}:
s_cmp_eq_u32 s12, 0x7f
s_cbranch_scc1 {out}""")
        poll()
        l(f"s_waitcnt lgkmcnt(0)\ns_branch {top}\n{out}:\ns_cmp_eq_u32 s{sS}, 7\ns_cbranch_scc1 L_Lend\ns_waitcnt vmcnt(0)\ns_barrier")
        if STAMP: l(f"v_writelane_b32 v0, s{sPoll}, 61")
        l("L_Lend:")
    OPS = dict(pfa=op_pfa, init=op_init, rpl=op_rpl, pfb=op_pfb, pf2=op_pf2, rps=op_rps, fl1=op_fl1, tab=op_tab, non=op_non, noi=op_noi,
               xr=op_xr, b2=op_b2, stg=op_stg, dr=lambda: l('s_waitcnt lgkmcnt(0)'), g6a=lambda: op_sg6(0, G('g6n', 10)), g6b=lambda: op_sg6(G('g6n', 10), 99), vm0=lambda: l.need(vm=list(l.vm)), cki=op_cki, ck=op_ck, tail=op_tail,
               lo=lambda: l("s_setprio 0"), hi=lambda: l(f"s_setprio {G('lprio',3)}"))
    for k in range(7):
        OPS[f"s{k}"] = lambda k=k: dma_w1(k); OPS[f"q{k}"] = lambda k=k: dma_wq(7 + k)
        OPS[f"g{k}"] = lambda k=k: op_g(k)
        OPS[f"v{k}"] = lambda k=k: stg_w2(k); OPS[f"u{k}"] = lambda k=k: stg_wo(k)
        OPS[f"d{k}"] = lambda k=k: put_w2(k); OPS[f"e{k}"] = lambda k=k: put_wo(k)
        OPS[f"P{k}"] = lambda k=k: l(f"s_setprio {k}")
        OPS[f"w{k}"] = lambda k=k: dma_w2(k); OPS[f"o{k}"] = lambda k=k: dma_wo(k)
    PRO = G("pro", "rpl init lo s0 tab rps noi s1 non")
    MID = G("mid0", "B0 hi s2 pf2 b2 fl1 B1 s3 B2 s4 dr B3 s5 B4 s6") + " " + \
          G("mid1", "B5 q0 B6 q1 B7 q2 xr B8 q3 w002 B9 q4 w024 B10 q5 w046") + " " + \
          G("mid2", "B11 q6 w067 o0 B12 w1 o1 B13 w2 cki B14 vm0 g6a ck B22 g6b B15 lo o2 w3") + " " + \
          G("mid3", "B16 o3 w4 B17 o4 w5 B18 o5 B19 tail")
    k = 1
    for o in PRO.split():
        OPS[o](); mark(l, o)
        if o in ("bx", "rps", "s0", "s1", "s2"):
            if len(l.pend) >= 3: l.need(drain=True)
            stamp(l, k); k += 1
    T_l1 = l.cut(); l("L_L2:")
    for o in MID.split():
        if o[0] == "B":
            j = int(o[1:]); need = []
            if j <= 13: need = [f"st{j}"]
            elif j == BH: need = [f"w2{i}" for i in range(RA)]
            elif j == 15: need = ["w20", "xr"] + [f"wo{i}" for i in range(max(RA, 1))]
            elif j > 15: need = [f"w2{j-15}", f"wo{j-15}"] + (["w22", "wo2"] if RA == 2 else [])
            barrier(l, j, vm=need); mark(l, o)
            if str(j) in PROG: op_pg(PROG[str(j)])
        elif o[0] in "wvd" and len(o) == 4 and o[1:].isdigit(): dict(w=dma_w2, v=stg_w2, d=put_w2)[o[0]](int(o[1]), int(o[2]), int(o[3]))
        else: OPS[o]()
    l.need(drain=True)
    if G("spin"):
        l(f"""s_add_u32 s40, s100, {G("spin")[1]}
L_spin:
s_sleep 2
s_memrealtime s[42:43]
s_waitcnt lgkmcnt(0)
s_sub_u32 s44, s42, s40
s_cmp_lt_i32 s44, 0
s_cbranch_scc1 L_spin""")
    l("L_fin:")
    if STAMP:
        l(f"""s_waitcnt vmcnt(0)
s_memrealtime s[96:97]
{SOP} s[98:99]
s_waitcnt lgkmcnt(0)
v_writelane_b32 v0, s96, 63
v_writelane_b32 v0, s98, 41
s_mul_i32 s{sT0}, s2, 12
s_add_u32 s{sT0}, s{sT0}, s{sW}
s_lshl_b32 s{sT0}, s{sT0}, 8
s_add_u32 s{sT0}, s{sT0}, {WS_STAMP}
v_lshlrev_b32 v{vT0}, 2, v{vL}
buffer_store_dword v0, v{vT0}, {sq(SWS)}, s{sT0} offen
""")
    l("L_end:\ns_endpgm")
    T_l2 = l.cut()

    K1 = NAME + "_kernel"
    return f"""; @launch grid=(256,1,1) block=(768,1,1) lds={LDS_BYTES}
.amdgcn_target "amdgcn-amd-amdhsa--gfx950"
.text
.globl {K1}
.p2align 8
.type {K1},@function
{K1}:
{T_entry}{T_c1}{T_f2}{T_a2}{T_l1}{T_l2}{''.join(SLOW)}L_codeend:
.section .rodata,"a"
.p2align 6
.amdhsa_kernel {K1}
  .amdhsa_next_free_vgpr 168
  .amdhsa_next_free_sgpr 102
  .amdhsa_accum_offset 168
  .amdhsa_group_segment_fixed_size 0
  .amdhsa_kernarg_size 88
  .amdhsa_user_sgpr_count 2
  .amdhsa_user_sgpr_kernarg_segment_ptr 1
  .amdhsa_system_sgpr_workgroup_id_x 1
.end_amdhsa_kernel
"""

if __name__ == "__main__":
    import json
    cfg = json.loads(sys.argv[2]) if len(sys.argv) > 2 else {}
    open(sys.argv[1], "w").write(gen(cfg))
```

```python
import sys, math, struct
NAME = "parallel_sum__sliding_local_dilated__dense_activation_gelu__prompt"

class Asm:
    def __init__(self):
        self.L = []; self.vm = []; self.lg = []; self.smem = False; self.pend = []; self.nst = 0
    def __call__(self, s):
        for l in s.strip("\n").split("\n"):
            l = l.strip()
            if l: self.L.append(l if l.endswith(":") else "  " + l)
    def fork(self):
        b = Asm(); b.vm = list(self.vm); b.lg = list(self.lg); b.smem = self.smem; return b
    def cut(self):
        t = "\n".join(self.L) + "\n"; self.L = []; return t
    def vmem(self, s, tag): self(s); self.vm.append(tag)
    def ds(self, s, tag): self(s); self.lg.append(tag)
    def _cnt(self, q, tags):
        last = -1
        for i, t in enumerate(q):
            if t in tags: last = i
        return None if last < 0 else len(q) - 1 - last
    def need(self, vm=(), lg=(), drain=False):
        parts = []
        n = self._cnt(self.vm, set(vm))
        if n is not None:
            n = min(n, 62); parts.append(f"vmcnt({n})"); self.vm = self.vm[len(self.vm) - n:] if n else []
        n = self._cnt(self.lg, set(lg))
        if drain: n = 0 if (self.lg or self.smem) else None
        if n is not None:
            n = min(n, 14)
            parts.append(f"lgkmcnt({n})"); self.lg = self.lg[len(self.lg) - n:] if n else []
        if parts: self("s_waitcnt " + " ".join(parts))
        if drain:
            self.smem = False
            for sg, idx in self.pend: self(f"v_writelane_b32 v0, s{sg}, {idx}")
            self.pend = []

def vr(a, n=1): return f"v{a}" if n == 1 else f"v[{a}:{a+n-1}]"
def sq(a): return f"s[{a}:{a+3}]"
def f2u(x): return "0x%08x" % struct.unpack("<I", struct.pack("<f", x))[0]

KP = 4608
HALO = 4096
ACT = 57344
WOR = 28672
def actoff(t): return (t - 7) * 4096 if t >= 7 else 8192 + 28672 + t * 4096
RING = 65536
SLOT = 28672
BIAS = RING + 3 * SLOT
XRES = BIAS + 2048
CNT = XRES + 8192 + 128
LDS_BYTES = XRES + 8192 + 256
INLOC = [RING + SLOT, RING + SLOT + 8192, RING + SLOT + 16384, 0, 8192, 16384, 24576]
W2LOC = [0, RING + 2 * SLOT, RING, RING + SLOT, 0, RING + 2 * SLOT, RING]
WOLOC = [WOR, WOR + 7168, WOR + 2 * 7168, WOR + 3 * 7168, WOR, ACT, WOR + 7168]
FOFF = 56 * 16384
WS_WQ = 0x2200000
WS_F1 = 0x2400000
WS_STAMP = 0x8000000
OOB = 0x7ff00000
SPIN = 200000
SX, SWS, SOUT, SW1, SB1, SWQ, SDBG, SW2, SWO, SB2 = 28, 32, 36, 36, 40, 40, 44, 48, 52, 56
sIN, sLO, sFE, sDum = 48, 55, 3, 63
sW, sS, sRB, sA, sRH, sHI, sROW0, sT0, sT1, sT2, sT3 = 68, 69, 70, 71, 72, 73, 74, 75, 76, 77, 78
sW1o, sWQo, sW2o, sJJ, sM0, sPart, sC2, sCH = 79, 80, 81, 82, 83, 84, 85, 86
sCW, sN0, sN1, sPoll, sM1 = 93, 94, 95, 96, 97
sR, sRC, sK = 0, 1, 93

C1 = 2 * math.sqrt(2 / math.pi) * math.log2(math.e)
ALPHA = (C1 * 0.044715) ** (1 / 3)
GK = C1 / ALPHA

def gen(cfg):
    G = cfg.get
    STAMP = G("stamp", False); SOP = G("stampop", "s_memtime")
    xm = G("xmap", 4); nsh = 32 // xm
    uid = [0]
    WSH = G('wsh', 10)
    FR, FP = G('fr', 0x4100), G('fp', 4)
    def lab(n): uid[0] += 1; return f"L_{n}{uid[0]}"
    def stamp(b, idx):
        if not STAMP or (G("lite") and idx not in (3, 10, 17, 24, 25, 26, 30, 31, 32, 33, 34, 37)) or getattr(b, "nostamp", False): return
        sg = (64, 66, 98, 100)[b.nst % 4]; b.nst += 1
        assert len(b.pend) < 4
        b(f"{SOP} s[{sg}:{sg+1}]"); b.smem = True; b.pend.append((sg, idx))
    def mark(b, name):
        if G("spin") and G("spin")[0] == name: b("s_memrealtime s[100:101]"); b.smem = True
    def barrier(b, j, vm=()):
        pb0 = G("prebar")
        if pb0 is not None and pb0 <= j < pb0 + 8: stamp(b, 42 + j - pb0)
        b.need(vm=vm, drain=True)
        if pb0 is not None and pb0 <= j < pb0 + 8: stamp(b, 50 + j - pb0)
        b("s_barrier")
        stamp(b, 10 + j)
    BH = 22
    def srd(b, d, p, n):
        b(f"s_mov_b32 s{d}, s{p}\ns_and_b32 s{d+1}, s{p+1}, 0xffff\ns_mov_b32 s{d+2}, {n}\ns_mov_b32 s{d+3}, 0x20000")
    def mfma(b, d, x, y, c=None):
        b(f"v_mfma_f32_16x16x32_bf16 {vr(d,4)}, {vr(x,4)}, {vr(y,4)}, {vr(d,4) if c is None else c}")
    def chunks(b):
        for i in range(7):
            b(f"s_add_u32 s{sCH+i}, s{sS if i == 0 else sCH+i-1}, 1")
            b(f"s_cmp_ge_u32 s{sCH+i}, 7\ns_cselect_b32 s{sT0}, 7, 0\ns_sub_u32 s{sCH+i}, s{sCH+i}, s{sT0}")
    SLOW = []
    def get_nonce(b, vt, cp):
        again, got = lab("na"), lab("ng")
        b(f"s_buffer_load_dword s{sN0}, {sq(SDBG)}, {64*cp}"); b.smem = True
        yield
        b.need(drain=True)
        b(f"s_mov_b32 s{sPoll}, 0\ns_cmp_eq_u32 s{sN0}, 0\ns_cbranch_scc1 {again}\n{got}:\ns_mov_b32 s{sN1}, s{sN0}")
        if STAMP: b(f"v_writelane_b32 v0, s{sPoll}, 58")
        x = Asm()
        x(f"""{again}:
v_mov_b32 v{vt}, 0
s_add_u32 s{sPoll}, s{sPoll}, 1
buffer_load_dword v{vt}, v{vt}, {sq(SDBG)}, 0 offen sc1
s_cmp_gt_u32 s{sPoll}, {SPIN}
s_waitcnt vmcnt(0)
v_readfirstlane_b32 s{sN0}, v{vt}
s_cbranch_scc1 {got}
s_cmp_eq_u32 s{sN0}, 0
s_cbranch_scc1 {again}
s_branch {got}""")
        SLOW.append(x.cut())
        yield
    def slow_poll(retry, got, vt, addr, sbase):
        x = Asm()
        x(f"""{retry}:
{addr}
s_add_u32 s{sPoll}, s{sPoll}, 1
buffer_load_dword v{vt}, v{vt}, {sq(SWS)}, s{sbase} offen sc1
s_cmp_gt_u32 s{sPoll}, {SPIN}
s_waitcnt vmcnt(0)
v_cmp_ne_u32 vcc, s{sN0}, v{vt}
s_cbranch_scc1 {got}
s_nop 1
s_cbranch_vccnz {retry}
s_branch {got}""")
        SLOW.append(x.cut())
    def first_stamps(b):
        if STAMP: b("v_writelane_b32 v0, s98, 62\nv_writelane_b32 v0, s100, 0")

    vL, vL16, vActW, vT0, vT1, vT2, vT3 = 1, 2, 3, 4, 5, 6, 7
    vXE, vXO, vG2W, vG2W2, vG2O0, vG2O2 = 8, 9, 10, 11, 12, 13
    a = Asm()
    RAW, UNP = 136, 80
    lb = xm.bit_length() - 1
    a(f"""
s_load_dwordx16 s[4:19], s[0:1], 0
s_load_dwordx8 s[20:27], s[0:1], 56
s_cmpk_ge_u32 s2, 256
s_cbranch_scc1 L_end
s_getpc_b64 s[28:29]
L_pc:
s_lshr_b32 s3, s2, 3
v_lshrrev_b32 v{vT0}, 6, v0
v_mad_u32_u24 v{vT1}, s3, 12, v{vT0}
v_readfirstlane_b32 s{sW}, v{vT0}
v_lshlrev_b32 v{vT1}, 7, v{vT1}
v_min_u32 v{vT1}, L_codeend - L_pc - 4, v{vT1}
""")
    if G("codepf", True): a.vmem(f"global_load_dword v23, v{vT1}, s[28:29]", "pf")
    if G("delay"):
        xs, n = G("delay")
        a(f"s_and_b32 s40, s2, 7\ns_lshr_b32 s40, {xs}, s40\ns_bitcmp1_b32 s40, 0\ns_cbranch_scc0 L_nodelay")
        for _ in range(n): a("s_sleep 37")
        a("L_nodelay:")
    if G("bwprobe"):
        off, aux = G("bwprobe")
        a(f"""s_waitcnt lgkmcnt(0)
s_mov_b32 s40, s26
s_and_b32 s41, s27, 0xffff
s_mov_b32 s42, 0x10000000
s_mov_b32 s43, 0x20000
s_mul_i32 s44, s2, {12*12*1024}
s_add_u32 s44, s44, {off}
v_lshlrev_b32 v8, 4, v0""")
        for i in range(12):
            a(f"buffer_load_dwordx4 v[{32+4*i}:{35+4*i}], v8, s[40:43], s44 offen {aux}\ns_add_u32 s44, s44, {12*1024}")
        a("s_waitcnt vmcnt(0)\ns_barrier"); a.vm = []
    mark(a, "own")
    if STAMP: a(f"s_memrealtime s[98:99]\n{SOP} s[100:101]")
    if xm == 1: a(f"s_mov_b32 s{sRB}, s3")
    else: a(f"s_bfe_u32 s{sT0}, s2, {(lb << 16) | (3 - lb)}\ns_lshl_b32 s{sT0}, s{sT0}, {5-lb}\ns_lshr_b32 s{sT1}, s3, {lb}\ns_add_u32 s{sRB}, s{sT0}, s{sT1}")
    a(f"""
s_lshr_b32 s{sT0}, s{sRB}, 1
s_lshl_b32 s{sT0}, s{sT0}, 7
s_and_b32 s{sT1}, s{sRB}, 1
s_add_u32 s{sROW0}, s{sT0}, s{sT1}
""")
    EPF = G("epf", False)
    if EPF:
        a(f"s_cmp_ge_u32 s{sW}, 4\ns_cbranch_scc1 L_C")
        aL = a.fork()
        aL(f"s_mul_i32 s{sT0}, s2, 49\nv_min_u32 v{vT1}, 48, v0\nv_add_lshl_u32 v{vT1}, v{vT1}, s{sT0}, 7\ns_waitcnt lgkmcnt(0)")
        aL.vmem(f"global_load_dword v23, v{vT1}, s[12:13]", "pf")
        aL("s_branch L_L\nL_C:")
        a.L += aL.L
    else: a(f"s_cmp_lt_u32 s{sW}, 4\ns_cbranch_scc1 L_L"); aL = a
    T_entry = a.cut()
    def common2(b):
        b(f"""
v_and_b32 v{vL}, 63, v0
v_lshlrev_b32 v{vL16}, 4, v{vL}
s_and_b32 s{sA}, s{sW}, 3
""")
        if xm == 1: b(f"s_and_b32 s{sS}, s2, 7")
        else: b(f"s_and_b32 s{sT0}, s2, {8//xm - 1}\ns_lshl_b32 s{sT0}, s{sT0}, {lb}\ns_and_b32 s{sT2}, s3, {xm-1}\ns_add_u32 s{sS}, s{sT0}, s{sT2}")
        b(f"s_lshr_b32 s{sT0}, s3, {lb}")
        if xm == 8: b(f"s_lshl_b32 s{sR}, s{sT0}, 1")
        else: b(f"s_mul_i32 s{sT1}, s{sT0}, 37\ns_lshr_b32 s{sT1}, s{sT1}, 8\ns_mul_i32 s{sT1}, s{sT1}, 7\ns_sub_u32 s{sR}, s{sT0}, s{sT1}")
        b(f"s_mov_b32 s{sRC}, {'s%d' % sR if G('rotc', False) else 0}")
        if not G("rotk", True): b(f"s_mov_b32 s{sR}, 0")
        elif G('rotm', [3, 2]): b(f"s_and_b32 s{sR}, s{sT0}, {G('rotm', [3, 2])[0]}\ns_mul_i32 s{sR}, s{sR}, {G('rotm', [3, 2])[1]}")
        if STAMP: b("v_mov_b32 v0, 0")
    c = a.fork()
    c(f"v_lshrrev_b32 v{vT2}, 3, v0")
    if xm > 1 and G("xrot", False):
        c(f"s_lshl_b32 s{sT2}, s3, {6-lb}\ns_add_u32 s{sT2}, s{sT2}, 32\nv_add_u32 v{vT2}, s{sT2}, v{vT2}")
    else: c(f"v_add_u32 v{vT2}, 32, v{vT2}")
    c(f"""
v_and_b32 v{vT2}, 63, v{vT2}
v_lshl_add_u32 v{vT0}, v{vT2}, 1, s{sROW0}
v_mul_u32_u24 v{vT0}, 896, v{vT0}
v_and_b32 v{vT1}, 7, v0
v_lshl_add_u32 v{vXO}, v{vT1}, 4, v{vT0}
s_setprio {G('cprio', 1)}
s_waitcnt lgkmcnt(0)
""")
    for t in range(7):
        c.vmem(f"global_load_dwordx4 {vr(RAW+4*t,4)}, v{vXO}, s[4:5] offset:{128*t} {G('ntx','')}", f"x{t}")
    c("L_x256:")
    common2(c)
    first_stamps(c)
    c(f"""
s_sub_u32 s{sCW}, s{sW}, 4
s_and_b32 s{sRH}, s{sW}, 1
s_bfe_u32 s{sHI}, s{sW}, 0x10001
""")
    if G("spf", False):
        c(f"""s_lshl_b32 s{sT0}, s{sCW}, 5
s_add_u32 s{sT0}, s{sT0}, s{sRB}
s_mul_i32 s{sT0}, s{sT0}, 3584
s_mul_i32 s{sT1}, s{sS}, 448
s_add_u32 s{sT0}, s{sT0}, s{sT1}""")
        for i in range(7): c(f"s_load_dword s{sDum}, s[12:13], s{sT0} offset:{64*i}")
        c(f"""s_min_u32 s{sT2}, s{sCW}, 6
s_lshl_b32 s{sT2}, s{sT2}, 6
s_add_u32 s{sT1}, s{sT1}, s{sT2}
s_load_dword s{sDum}, s[14:15], s{sT1}
s_cmp_lt_u32 s{sCW}, 6
s_cselect_b32 s{sT2}, {256*3584}, 0
s_add_u32 s{sT0}, s{sT0}, s{sT2}""")
        for i in range(7): c(f"s_load_dword s{sDum}, s[12:13], s{sT0} offset:{64*i}")
    c(f"""
v_lshrrev_b32 v{vXE}, 4, v{vT2}
v_and_b32 v{vT1}, 15, v{vT2}
v_and_b32 v{vT0}, 3, v{vL}
v_bfe_u32 v{vT2}, v{vL}, 2, 1
v_mul_u32_u24 v{vActW}, 12, v{vT2}
v_or_b32 v{vActW}, v{vActW}, v{vT0}
v_xor_b32 v{vT1}, v{vT1}, v{vActW}
v_lshlrev_b32 v{vT1}, 4, v{vT1}
v_lshl_add_u32 v{vT1}, v{vT0}, 8, v{vT1}
v_mul_u32_u24 v{vT2}, {KP}, v{vT2}
v_lshl_add_u32 v{vT1}, v{vXE}, 10, v{vT1}
s_sub_u32 s{sT0}, 7, s{sR}
s_cmp_eq_u32 s{sR}, 0
s_cselect_b32 s{sT0}, 0, s{sT0}
s_mul_i32 s{sT0}, s{sT0}, {2*KP}
s_movk_i32 s{sT1}, {2*KP}
v_add3_u32 v{vActW}, v{vT1}, v{vT2}, s{sT0}
""")
    XA = [vActW, 40, 41, 42, 43, 44, 45]
    for t in range(1, 7): c(f"s_cmp_eq_u32 s{sR}, {t}\ns_cselect_b32 s{sT0}, {-12*KP}, s{sT1}\nv_add_u32 v{XA[t]}, s{sT0}, v{XA[t-1]}")
    c(f"s_cmp_ge_u32 s{sW}, 8\ns_cbranch_scc1 L_A2")
    T_c1 = c.cut()

    def col128(b, d, src):
        b(f"s_add_u32 s{d}, s{src}, s{sRC}\ns_sub_u32 s{sT3}, s{d}, 7\ns_min_u32 s{d}, s{d}, s{sT3}\ns_lshl_b32 s{d}, s{d}, 7")
    def halo_loads(b, HR):
        b(f"""
v_lshrrev_b32 v{vT0}, 5, v{vL}
s_lshl_b32 s{sT0}, s{sA}, 2
s_add_u32 s{sT0}, s{sT0}, s{sROW0}
s_sub_u32 s{sT0}, s{sT0}, 16
v_lshl_add_u32 v{vT0}, v{vT0}, 1, s{sT0}
s_movk_i32 s{sT3}, 896
v_mul_lo_u32 v{vT0}, v{vT0}, s{sT3}
v_and_b32 v{vT1}, 31, v{vL}
v_cmp_gt_u32 vcc, 24, v{vT1}
v_lshl_add_u32 v{vT1}, s{sR}, 3, v{vT1}
v_add_u32 v{vT2}, 32, v{vT1}
v_subrev_u32 v{vT3}, 24, v{vT1}
v_min_u32 v{vT2}, v{vT2}, v{vT3}
v_lshl_add_u32 v{vT2}, v{vT2}, 4, v{vT0}
v_subrev_u32 v{vT3}, 56, v{vT1}
v_min_u32 v{vT1}, v{vT1}, v{vT3}
v_lshl_add_u32 v{vT0}, v{vT1}, 4, v{vT0}
v_mov_b32 v{vT3}, {OOB}
v_cndmask_b32 v{vT2}, v{vT3}, v{vT2}, vcc
v_min_u32 v20, v{vT3}, v{vT0}
v_min_u32 v21, v{vT3}, v{vT2}
""")
        if HR: halo_issue(b, HR)
    def halo_issue(b, HR):
        b.vmem(f"buffer_load_dwordx4 {vr(HR[0],4)}, v20, {sq(SX)}, 0 offen", "h0")
        b.vmem(f"buffer_load_dwordx4 {vr(HR[1],4)}, v21, {sq(SX)}, 0 offen", "h1")
    HF = G("halof", True)
    def halo_write(b, HR):
        b(f"""v_lshrrev_b32 v{vT0}, 5, v{vL}
s_lshl_b32 s{sT0}, s{sA}, 1
v_add_u32 v{vT0}, s{sT0}, v{vT0}
v_and_b32 v{vT1}, 7, v{vL}
v_xor_b32 v{vT0}, v{vT0}, v{vT1}
v_lshlrev_b32 v{vT0}, 4, v{vT0}
v_and_b32 v{vT1}, 3, v{vL}
v_lshl_add_u32 v{vT0}, v{vT1}, 7, v{vT0}
v_bfe_u32 v{vT1}, v{vL}, 2, 3
v_mul_u32_u24 v{vT1}, {KP}, v{vT1}
v_add_u32 v{vT2}, v{vT0}, v{vT1}
ds_write_b128 v{vT2}, {vr(HR[0],4)} offset:{HALO}
s_mov_b32 exec_lo, 0x00ffffff
s_mov_b32 exec_hi, 0x00ffffff
ds_write_b128 v{vT2}, {vr(HR[1],4)} offset:{HALO + 8*KP}
s_mov_b64 exec, 0xff
v_lshlrev_b32 v{vT0}, 2, v{vL}
v_add_u32 v{vT0}, {CNT}, v{vT0}
v_mov_b32 v{vT1}, 0
ds_write_b32 v{vT0}, v{vT1}
s_mov_b64 exec, -1""")
    def xbases(b):
        b(f"""
v_lshrrev_b32 v{vT2}, 4, v{vL}
v_and_b32 v{vT3}, 15, v{vL}
v_xor_b32 v{vT0}, v{vT3}, v{vT2}
v_lshlrev_b32 v{vT1}, 8, v{vT2}
s_lshl_b32 s{sT0}, s{sRH}, 11
v_lshl_add_u32 v{vXE}, v{vT0}, 4, v{vT1}
v_add_u32 v{vXE}, s{sT0}, v{vXE}
v_xor_b32 v{vXO}, {12*16}, v{vXE}
""")
    def region(b, d):
        b(f"s_sub_u32 s{sT2}, 0, s{SWS}\ns_and_b32 s{sT2}, s{sT2}, 0xfffff\ns_lshl_b32 s{d}, s{sRB}, 20\ns_add_u32 s{d}, s{d}, s{sT2}")
    def setup_s(b):
        srd(b, SWS, 26, 0x10000000); srd(b, SOUT, 22, 2048 * 896)
        region(b, sFE)
        b(f"""
s_mul_i32 s{sT2}, s{sRB}, {G('wx', [1, 7])[0]}
s_and_b32 s{sT2}, s{sT2}, {G('wx', [1, 7])[1]}
s_xor_b32 s{sW2o}, s{sT2}, s{sCW}
s_lshl_b32 s{sW2o}, s{sW2o}, 10
s_add_u32 s{sPart}, s{sFE}, s{sW2o}
s_mul_i32 s{sM1}, s{sS}, {9*16384}
s_add_u32 s{sM1}, s{sM1}, s{sPart}
s_add_u32 s{sPart}, s{sPart}, {FOFF}
s_add_u32 s{sFE}, s{sFE}, {FOFF}
""")
    def setup_v1(b):
        b(f"""
v_lshrrev_b32 v{vT0}, 2, v{vL}
v_bfe_u32 v{vT1}, v{vL}, 3, 2
s_lshr_b32 s{sT2}, s{sCW}, 1
v_xor_b32 v{vT1}, s{sT2}, v{vT1}
v_lshlrev_b32 v{vT1}, 5, v{vT1}
v_lshl_add_u32 v{vT1}, v{vT0}, 7, v{vT1}
v_and_b32 v{vT0}, 3, v{vL}
v_lshl_add_u32 v{vG2O0}, v{vT0}, 3, v{vT1}
v_add_u32 v{vG2W}, {RING}, v{vG2O0}
""")
    def act_base(b):
        b(f"s_lshl_b32 s{sT0}, s{sRH}, 11\ns_add_u32 s{sT0}, s{sT0}, {ACT}\nv_add_u32 v{vActW}, s{sT0}, v{vL16}")
    def setup_v2(b):
        b(f"v_add_u32 v{vG2W2}, {RING+2*SLOT}, v{vG2O0}\nv_xor_b32 v{vG2O2}, 64, v{vG2O0}")

    def ln_core(b, raw, nraw, unp, tags, nl, pk=True):
        S, Q = vT0, vT2
        rw = (lambda d: raw + d) if isinstance(raw, int) else (lambda d: raw[d // 4] + d % 4)
        for d in range(nraw):
            if d % 4 == 0: b.need(vm=[tags[d // 4]])
            u = unp + 2 * d
            b(f"v_lshlrev_b32 v{u}, 16, v{rw(d)}\nv_and_b32 v{u+1}, 0xffff0000, v{rw(d)}")
            if not pk:
                if d == 0: b(f"v_mov_b32 v{S}, v{u}\nv_mov_b32 v{S+1}, v{u+1}\nv_mul_f32 v{Q}, v{u}, v{u}\nv_mul_f32 v{Q+1}, v{u+1}, v{u+1}")
                else: b(f"v_add_f32 v{S}, v{S}, v{u}\nv_add_f32 v{S+1}, v{S+1}, v{u+1}\nv_fmac_f32 v{Q}, v{u}, v{u}\nv_fmac_f32 v{Q+1}, v{u+1}, v{u+1}")
            elif d == 0: b(f"v_pk_mul_f32 {vr(Q,2)}, {vr(u,2)}, {vr(u,2)}")
            elif d == 1: b(f"v_pk_add_f32 {vr(S,2)}, {vr(u-2,2)}, {vr(u,2)}\nv_pk_fma_f32 {vr(Q,2)}, {vr(u,2)}, {vr(u,2)}, {vr(Q,2)}")
            else: b(f"v_pk_add_f32 {vr(S,2)}, {vr(S,2)}, {vr(u,2)}\nv_pk_fma_f32 {vr(Q,2)}, {vr(u,2)}, {vr(u,2)}, {vr(Q,2)}")
        yield "stats"
        b(f"v_add_f32 v{S}, v{S}, v{S+1}\nv_add_f32 v{Q}, v{Q}, v{Q+1}\ns_nop 0")
        for st in ["quad_perm:[1,0,3,2]", "quad_perm:[2,3,0,1]", "row_half_mirror", "row_mirror"][:min(nl, 4)]:
            b(f"v_add_f32_dpp v{S}, v{S}, v{S} {st} row_mask:0xf bank_mask:0xf\nv_add_f32_dpp v{Q}, v{Q}, v{Q} {st} row_mask:0xf bank_mask:0xf\ns_nop 0")
        if nl >= 5:
            b(f"""v_mov_b32 v{S+1}, v{S}
v_mov_b32 v{Q+1}, v{Q}
s_nop 1
v_permlane16_swap_b32 v{S}, v{S+1}
v_permlane16_swap_b32 v{Q}, v{Q+1}
s_nop 1
v_add_f32 v{S}, v{S}, v{S+1}
v_add_f32 v{Q}, v{Q}, v{Q+1}""")
        b(f"""v_mul_f32 v{S}, {f2u(1/448)}, v{S}
v_mul_f32 v{Q}, {f2u(1/448)}, v{Q}
v_fma_f32 v{Q}, -v{S}, v{S}, v{Q}
v_max_f32 v{Q}, 0, v{Q}
""")
        if G("lnr", True): b(f"""v_cvt_pk_bf16_f32 v{Q+1}, v{S}, v{Q}
v_and_b32 v{Q}, 0xffff0000, v{Q+1}
v_add_f32 v{Q}, {f2u(1e-5)}, v{Q}
v_cvt_pk_bf16_f32 v{Q}, v{Q}, v{Q}
v_lshlrev_b32 v{Q}, 16, v{Q}
v_sqrt_f32 v{Q}, v{Q}
v_lshlrev_b32 v{S}, 16, v{Q+1}
v_cvt_pk_bf16_f32 v{Q}, v{Q}, v{Q}
v_lshlrev_b32 v{Q}, 16, v{Q}
v_rcp_f32 v{Q}, v{Q}
""")
        else: b(f"v_add_f32 v{Q}, {f2u(1e-5)}, v{Q}\nv_rsq_f32 v{Q}, v{Q}")
        b(f"""s_nop 0
v_mul_f32 v{Q}, {f2u(ALPHA)}, v{Q}
v_mul_f32 v{S}, v{S}, v{Q}
.p2align 3""")
        yield "red"
        for d in range(nraw):
            u = unp + 2 * d
            if not pk: b(f"v_fma_f32 v{u}, v{u}, v{Q}, -v{S}\nv_fma_f32 v{u+1}, v{u+1}, v{Q}, -v{S}")
            else: b(f"v_pk_fma_f32 {vr(u,2)}, {vr(u,2)}, {vr(Q,2)}, {vr(S,2)} op_sel_hi:[1,0,0] neg_lo:[0,0,1] neg_hi:[0,0,1]")
            if d >= 1: b(f"v_cvt_pk_bf16_f32 v{rw(d-1)}, v{u-2}, v{u-1}")
            yield d - 1
        u = unp + 2 * (nraw - 1)
        b(f"v_cvt_pk_bf16_f32 v{rw(nraw-1)}, v{u}, v{u+1}")
        yield nraw - 1
    def ln_main(b, hook=None):
        if G("x_noln"):
            for t in range(7):
                if G("x_noln") != 3: b.need(vm=[f"x{t}"])
                if G("x_noln") == 1: b.ds(f"ds_write_b128 v{XA[t]}, {vr(RAW+4*t,4)}", "xw")
            return
        for d in ln_core(b, RAW, 28, UNP, [f"x{t}" for t in range(7)], 3):
            if d == "stats":
                stamp(b, 2)
                if hook: hook()
            if not G("lnbatch") and isinstance(d, int) and d >= 0 and d % 4 == 3:
                b.ds(f"ds_write_b128 v{XA[d//4]}, {vr(RAW+d-3,4)}", "xw")
        if G("lnbatch"):
            for t in range(7): b.ds(f"ds_write_b128 v{XA[t]}, {vr(RAW+4*t,4)}", "xw")

    def g1_phase(b, st0, reads, mfmas, P, GAP, tail=None, head=None):
        M = [m for ks in range(14) for m in mfmas(ks)]
        per = len(M) // 14
        sched = {}
        for j in range(7):
            R0, R1 = reads(2 * j), reads(2 * j + 1)
            b0 = 2 * per * j - P; span = 2 * per - GAP; R = R0 + R1
            for i, r in enumerate(R):
                pos = b0 + (i * span) // len(R)
                if i >= len(R0): pos = max(pos, 2 * per * j - 1)
                sched.setdefault(max(pos, -1), []).append(r)
        barrier(b, st0)
        for r in sched.get(-1, []): b.ds(*r)
        if head: head()
        for m, (fn, tg) in enumerate(M):
            if (m + P) % (2 * per) == 0: barrier(b, st0 + (m + P) // (2 * per))
            b.need(lg=tg); fn()
            for r in sched.get(m, []): b.ds(*r)
            if tail: tail(m - len(M))

    RA = G("runahead", 1)
    PROG = G("prog", {"19": 1, "20": 3})
    NE = G('ne', 3); TM = G('tm', 3)
    def arrival(b, k, d, base):
        b(f"""s_add_u32 s{d+1}, s{sS}, {(1 + k) % 7}
s_sub_u32 s{d}, s{d+1}, 7
s_min_u32 s{d+1}, s{d+1}, s{d}
s_lshl_b32 s{d+1}, s{d+1}, {WSH}
s_add_u32 s{d+1}, s{d+1}, s{base}
s_cmp_eq_u32 s{sS}, 7
s_cselect_b32 s{d}, 64, {1 << k}""")
    PD = max([0] + list(PROG.values())); MIDS = G("mids", False)
    def h_frags(b, vbase):
        for t in range(7):
            for pb in range(2): b.ds(f"ds_read_b128 {vr(96+4*(9*pb+t),4)}, v{vbase} offset:{actoff(t) + pb*1024}", f"hf{t}")
    def g2_phase(b, role):
        XR, PK, AC, WR, INB, ACTR = 14, 20, 28, 44, 68, 96
        NR = 6
        P2, GAP2, LEAD = G("p2" + role, 8), G("gap2" + role, 2), G("lead2", 8)
        ET = G("et" + role, 4)
        XT = G("xt" + role, 4)
        ra = RA if role == "F" else 0
        steps = [(cc, t) for cc in range(ra) for t in range(7)] + [(cc, t) for cc in range(ra) for t in (7, 8)] + \
                [(cc, t) for cc in range(ra, 7) for t in range(9)]
        N = len(steps); at = {s: n for n, s in enumerate(steps)}
        bpos = {}
        if role == "F":
            bpos[BH] = -1
            bpos[15] = 14 * ra - G("hold15", 14) if ra else 0
        else: bpos[15] = -1
        for cc in range(1, 7):
            if ra == 2 and cc <= 2: bpos[15 + cc] = 2 * at[(2, 0)]
            elif cc == 6: bpos[21] = 2 * at[(6, 0)]
            else: bpos[15 + cc] = max(2 * at[(cc, 0)] - (P2 if cc > ra or ra == 0 else 2), bpos[14 + cc] + 1)
        R = []
        for n, (cc, t) in enumerate(steps):
            w = WR + 4 * (n % NR)
            en = bpos[BH] if (cc < ra and t < 7) else (bpos[15] if cc < ra else bpos[15 + cc])
            war = 2 * (n - NR) + 1
            rel = bpos.get(16 + cc, 10 ** 6) - GAP2
            if cc == 0 and t >= 7:
                ena = bpos[15]
                for pb in range(2):
                    R.append((f"ds_read_b128 {vr(ACTR+4*(9*pb+t),4)}, v{vActW} offset:{actoff(t) + pb*1024}", f"w{n}", ena, min(2 * n - LEAD, rel)))
            for u in range(2):
                if t < 7:
                    loc = W2LOC[cc]
                    base, o = (vG2O0, 0) if loc == 0 else ((vG2W2, 0) if loc == RING + 2 * SLOT else (vG2W, loc - RING))
                    o += (96 + 112 * u if t == 6 else 112 * (t // 3) + 32 * (t % 3) + 16 * u) * 128
                else:
                    hd = t - 7
                    base = vG2O0 if (14*hd + 6*u) % 4 == 0 else vG2O2
                    o = WOLOC[cc] + (28*hd + 12*u) * 128
                R.append((f"ds_read_b64_tr_b16 {vr(w+2*u,2)}, v{base} offset:{o}", f"w{n}", max(en, war), min(2 * n - LEAD, rel)))
        pos = [0] * len(R); nxt = 10 ** 6
        for i in reversed(range(len(R))):
            nxt = max(min(R[i][3], nxt - 1), R[i][2], -1); pos[i] = nxt
        sched = {}; prev = -1
        for i, r in enumerate(R):
            p = max(pos[i], r[2], prev, -1)
            n = int(r[1][1:])
            burst = (ra == 2 and p == bpos[16] and n < at[(2, 0)] + 4) or (p == bpos[21] and n < at[(6, 0)] + 3)
            while not burst and len(sched.get(p, [])) >= (2 if p >= 0 else G("init2", 10)) and p + 1 < 2 * n - 1 and p + 1 < bpos.get(16 + steps[n][0], 10 ** 6): p += 1
            assert p < 2 * n or p == bpos[15] or burst, (r, p)
            sched.setdefault(p, []).append(r); prev = p
        bars = {}
        for j, p in bpos.items(): bars.setdefault(p, []).append(j)
        STA = G("sta" + role, {})
        nst = [0]; pendst = []
        def site():
            cc, k = pendst.pop(0)
            b(f"s_mov_b64 exec, s[{4+2*k}:{5+2*k}]")
            b.vmem(f"buffer_store_dwordx4 {vr(INB+4*cc,4)}, v{vL16}, {sq(SWS)}, s{sM1} offen sc1", f"p{cc}")
            b("s_mov_b64 exec, -1")
        def store(cc):
            assert nst[0] == cc; nst[0] += 1
            if cc == 0:
                b.need(lg=["h"])
                b(f"v_readfirstlane_b32 s{sT0}, v{vT3}\ns_nop 0\ns_add_u32 s{sM1}, s{sM1}, s{sT0}\ns_add_u32 s{sFE}, s{sFE}, s{sT0}")
            while pendst: site()
            b(f"s_add_u32 s{sM1}, s{sM1}, {8*16384}\ns_cmp_ge_u32 s{sM1}, s{sPart}\ns_cselect_b32 s{sT0}, {FOFF}, 0\ns_sub_u32 s{sM1}, s{sM1}, s{sT0}")
            if G("stag") and cc < 5:
                if cc == 0:
                    for k in range(4):
                        if G("stag") == "wave": b(f"s_cmp_eq_u32 s{sA}, {k}\ns_cselect_b64 s[{4+2*k}:{5+2*k}], -1, 0")
                        else: b(f"s_bfm_b64 s[{4+2*k}:{5+2*k}], 16, {16*k}")
                while pendst: site()
                pendst.extend((cc, k) for k in range(4)); site(); return
            while pendst: site()
            if G("x_75"): b.vmem(f"s_mov_b32 exec_hi, 0xffff\nbuffer_store_dwordx4 {vr(INB+4*cc,4)}, v{vL16}, {sq(SWS)}, s{sM1} offen sc1\ns_mov_b32 exec_hi, -1", f"p{cc}")
            elif not G("nopst"): b.vmem(f"buffer_store_dwordx4 {vr(INB+4*cc,4)}, v{vL16}, {sq(SWS)}, s{sM1} offen {G('pst','sc1')}", f"p{cc}")
        def epi(cc):
            ac = AC + 8 * (cc % 2)
            for q in range(4): b(f"v_cvt_pk_bf16_f32 v{INB+4*cc+q}, v{ac+2*q}, v{ac+2*q+1}")
            if str(cc) not in STA: store(cc)
        def signal(off, steps, left):
            nf = lab("nf")
            b(f"v_mov_b32 v{vT0}, {CNT + off}\nv_mov_b32 v{vT1}, 1")
            for k in steps: arrival(b, k, 4 + 2 * k, sFE)
            b(f"""s_mov_b64 exec, 1
s_waitcnt vmcnt({left})
ds_add_rtn_u32 v{vT1}, v{vT0}, v{vT1}
s_waitcnt lgkmcnt(0)
v_cmp_eq_u32 vcc, 7, v{vT1}
s_mov_b64 exec, -1
s_nop 0
s_cbranch_vccz {nf}""")
            for k in reversed(steps): b(f"s_atomic_add s{4+2*k}, s[{SWS}:{SWS+1}], s{5+2*k}")
            b(f"{nf}:")
        def lds_wait(off, val):
            top, ok = lab("lw"), lab("lo")
            b.need(drain=True)
            b(f"""v_mov_b32 v{vT2}, {CNT + off}
s_mov_b32 s{sPoll}, 0
{top}:
ds_read_b32 v{vT3}, v{vT2}
s_add_u32 s{sPoll}, s{sPoll}, 1
s_cmp_gt_u32 s{sPoll}, {SPIN * 16}
s_waitcnt lgkmcnt(0)
v_cmp_gt_u32 vcc, {val}, v{vT3}
s_cbranch_scc1 {ok}
s_nop 0
s_cbranch_vccnz {top}
{ok}:""")
        def before_own():
            b(f"""v_and_b32 v{vT0}, 15, v{vL}
v_bfe_u32 v{vT1}, v{vL}, 1, 2
s_lshr_b32 s{sT1}, s{sCW}, 1
v_xor_b32 v{vT1}, s{sT1}, v{vT1}
v_lshlrev_b32 v{vT1}, 5, v{vT1}
v_lshl_add_u32 v{vT1}, v{vT0}, 7, v{vT1}
v_lshrrev_b32 v{vT2}, 4, v{vL}
v_lshlrev_b32 v{vT2}, 3, v{vT2}""")
            epi(5)
            stamp(b, 33)
            if G("gate") or G("gateE"): b(f"v_mov_b32 v{vXE}, {CNT + 20}\nv_mov_b32 v{vXO}, 1\ns_mov_b64 exec, 1\nds_add_u32 v{vXE}, v{vXO}\ns_mov_b64 exec, -1"); b.lg.append("gt")
            ns, s7 = lab("ns"), lab("s7")
            b(f"s_cmp_eq_u32 s{sS}, 7\ns_cbranch_scc1 {s7}")
            x = Asm(); x(f"{s7}:")
            for q in range(8): x(f"v_mov_b32 v{AC+q}, 0")
            x(f"s_branch {ns}"); SLOW.append(x.cut())
            col128(b, sM0, sS)
            b(f"""s_lshl_b32 s{sT0}, s{sRH}, 12
s_add_u32 s{sT0}, s{sT0}, {XRES}
v_add3_u32 v{vT1}, v{vT1}, v{vT2}, s{sT0}
s_lshl_b32 s{sT1}, s{sT1}, 5
s_add_u32 s{sM0}, s{sM0}, s{sT1}
s_movk_i32 s{sLO}, 0x3f80
s_add_u32 s{sT1}, s{sT1}, {XRES + 8192}
v_add_u32 v{vT2}, s{sT1}, v{vT2}""")
            b.ds(f"ds_read_b64 {vr(XR,2)}, v{vT1}", "xr")
            b.ds(f"ds_read_b64 {vr(XR+2,2)}, v{vT1} offset:2048", "xr")
            b.ds(f"ds_read_b64 {vr(XR+4,2)}, v{vT2}", "xr")
            b(f"""s_lshl_b32 s{sT0}, s{sRH}, 6
s_add_u32 s{sT0}, s{sT0}, s{sROW0}
v_lshl_add_u32 v{vT0}, v{vT0}, 1, s{sT0}
v_bfe_u32 v{vT1}, v{vL}, 4, 1
v_lshl_add_u32 v{vT0}, v{vT1}, 5, v{vT0}
v_mul_u32_u24 v{vT0}, 896, v{vT0}
v_lshrrev_b32 v{vT2}, 5, v{vL}
v_lshl_add_u32 v{vXE}, v{vT2}, 4, v{vT0}
v_mov_b32 v{vXO}, 0x3f800000""")
            b.need(lg=["xr"])
            for d in range(2):
                b(f"v_lshlrev_b32 v{vT0}, 16, v{XR+4+d}\nv_and_b32 v{vT1}, 0xffff0000, v{XR+4+d}")
                for pb in range(2):
                    q = AC + 4 * pb + 2 * d
                    b(f"v_dot2_f32_bf16 v{q}, v{XR+2*pb+d}, s{sLO}, v{vT0}\nv_dot2_f32_bf16 v{q+1}, v{XR+2*pb+d}, v{vXO}, v{vT1}")
            stamp(b, 37)
            if True:
                if MIDS: signal(8, list(range(PD, 5)), 1)
                signal(0, list(range(5 if MIDS else PD, 6)), 0)
                b(f"{ns}:")
                stamp(b, 34)
        if role == "A": act_base(b)
        def h_read():
            b(f"v_mov_b32 v{vT3}, {CNT + 4}"); b.ds(f"ds_read_b32 v{vT3}, v{vT3}", "h")
        for j in bars.get(-1, []):
            barrier(b, j)
            if j == 15: h_read()
            if j == BH: h_frags(b, vActW)
        for r in sched.get(-1, []): b.ds(*r[:2])
        epi_at = {}
        for cc in range(2 if ra == 2 else 0, 5):
            n = at[(cc, 8)] + ET
            if cc + 2 < 7: n = min(n, at[(cc + 2, 0)] - 1)
            epi_at.setdefault(n, []).append((cc, n - at[(cc, 8)]))
        for n in range(N):
            cc, t = steps[n]
            ac = AC + 8 * (cc % 2); w = WR + 4 * (n % NR)
            for pb in range(2):
                m = 2 * n + pb
                early = []
                for j in bars.get(m, []):
                    if j == 21: before_own()
                    if j == 21 and TM == 3: lds_wait(12, 3 if not NE else 2); stamp(b, 31)
                    else: barrier(b, j, vm=[f"p{k}" for k in range(PROG.get(str(j), 0))])
                    if j == 15: h_read()
                    if ra == 2 and j == 16:
                        early = list(sched.get(m, []))
                        for r in early: b.ds(*r[:2])
                        epi(0); epi(1)
                    elif j == 21:
                        early = list(sched.get(m, []))
                        for r in early: b.ds(*r[:2])
                    elif not early:
                        early = [r for r in sched.get(m, []) if int(r[1][1:]) == n]
                        for r in early: b.ds(*r[:2])
                b.need(lg=[f"w{n}", f"hf{t}"])
                q = pb ^ (t & 1) if G("snake", True) else pb
                mfma(b, ac + 4 * q, w, ACTR + 4 * (9 * q + t), "0" if (t == 0 and cc < 6) else None)
                for r in sched.get(m, []):
                    if r not in early: b.ds(*r[:2])
            if pendst and n % G("stagd", 2) == 0: site()
            for e, dist in epi_at.get(n, []):
                if dist < 4: b(f"s_nop {7 - 2 * dist}")
                epi(e)
            for k, v in STA.items():
                if v == f"{cc},{t}": store(int(k))
        own, done = lab("own"), lab("done")
        if STAMP: b.need(drain=True); b(f"{SOP} s[64:65]")
        b(f"s_cmp_lg_u32 s{sS}, 7\ns_cbranch_scc1 {own}\ns_nop 5")
        epi(6)
        if G('mid7', True): signal(8, list(range(PD, 6)), 1)
        signal(0, list(range(6 if G('mid7', True) else PD, 7)), 0)
        b(f"s_branch {done}\n{own}:")
        b(f"""s_nop 0
v_add_u32 v{vT0}, s{sW2o}, v{vL16}
v_add_u32 v{vT1}, {RING}, v{vT0}
s_nop 1""")
        b.vm = []
        def take(slots):
            for i in slots:
                base, o = (vT1, INLOC[i] - RING) if INLOC[i] >= RING else (vT0, INLOC[i])
                b.ds(f"ds_read_b128 {vr(INB+4*i,4)}, v{base} offset:{o}", f"in{i}")
            for i in slots:
                b.need(lg=[f"in{i}"])
                for d in range(4):
                    b(f"v_dot2_f32_bf16 v{AC+2*d}, v{INB+4*i+d}, s{sLO}, v{AC+2*d}\nv_dot2_f32_bf16 v{AC+2*d+1}, v{INB+4*i+d}, v{vXO}, v{AC+2*d+1}")
        if TM == 2 and NE: b("s_barrier")
        if TM == 3 and NE: lds_wait(16, 1)
        take(range(NE))
        if STAMP: b(f"{SOP} s[66:67]")
        b("s_barrier")
        if STAMP: b(f"{SOP} s[98:99]")
        take(range(NE, 7))
        b("s_nop 1")
        for q in range(4): b(f"v_cvt_pk_bf16_f32 v{PK+q}, v{AC+2*q}, v{AC+2*q+1}")
        b(f"s_nop 1\nv_permlane16_swap_b32 v{PK}, v{PK+2}\nv_permlane16_swap_b32 v{PK+1}, v{PK+3}\ns_nop 0")
        b(f"buffer_store_dwordx4 {vr(PK,4)}, v{vXE}, {sq(SOUT)}, s{sM0} offen {G('ost','')}")
        if STAMP: b(f"s_waitcnt lgkmcnt(0)\nv_writelane_b32 v0, s66, 39\nv_writelane_b32 v0, s98, 40")
        b(f"{done}:")
        if STAMP: b(f"s_waitcnt lgkmcnt(0)\nv_writelane_b32 v0, s64, 38\ns_branch L_fin")
        else: b("s_endpgm")

    f = c.fork(); f.nostamp = G('nof')
    vWA, vWB, vWA2, vWB2, vC1, vBi = 14, 15, 16, 17, 18, 19
    FACC = 24; FBUF = (80, 116)
    srd(f, SB1, 14, 1792 * 2)
    FH = (FACC + 4, FACC + 12)
    if HF: srd(f, SX, 4, 2048 * 896); halo_loads(f, None)
    f(f"""s_mul_i32 s{sT3}, s{sS}, 448
s_mul_i32 s{sT1}, s{sHI}, 224
s_add_u32 s{sT3}, s{sT3}, s{sT1}
s_lshl_b32 s{sT2}, s{sA}, 9
s_add_u32 s{sT2}, s{sT2}, {BIAS}
v_lshlrev_b32 v22, 2, v{vL}
v_lshl_add_u32 v{vC1}, v{vL}, 3, s{sT2}""")
    def bias_dma():
        f.vmem(f"buffer_load_dword v{FACC+52}, v22, {sq(SB1)}, s{sT3} offen", "bias")
        if HF: halo_issue(f, FH)
    def wbases():
        f(f"""v_lshrrev_b32 v{vT2}, 4, v{vL}
v_lshlrev_b32 v{vT0}, 3, v{vT2}
v_lshl_add_u32 v{vBi}, v{vT2}, 4, s{sT2}
v_bfe_u32 v{vT1}, v{vL}, 2, 2
v_add_u32 v{vT0}, v{vT0}, v{vT1}
v_mul_u32_u24 v{vT0}, 448, v{vT0}
v_and_b32 v{vT1}, 3, v{vL}
v_lshl_add_u32 v{vT0}, v{vT1}, 3, v{vT0}
s_add_u32 s{sT1}, s{sT1}, {RING}
v_add_u32 v{vT0}, s{sT1}, v{vT0}
v_and_b32 v{vT1}, 1, v{vT2}
s_lshl_b32 s{sT2}, s{sHI}, 6
s_sub_u32 s{sT2}, 32, s{sT2}
v_mul_lo_u32 v{vT1}, v{vT1}, s{sT2}
v_add_u32 v{vWA}, v{vT0}, v{vT1}
v_sub_u32 v{vWB}, v{vT0}, v{vT1}
v_add_u32 v{vWA2}, {2*SLOT}, v{vWA}
v_add_u32 v{vWB2}, {2*SLOT}, v{vWB}
s_mov_b32 s{sC2}, {f2u(-GK)}
s_mov_b32 s{sJJ}, {f2u(ALPHA)}
""")
        xbases(f)
    FE = G("fearly", 1)
    if FE == 1: bias_dma()
    wbases()
    if not G('fl8'): setup_s(f); setup_v1(f); setup_v2(f)
    if FE == 2: bias_dma()
    stamp(f, 1)
    ln_main(f, None if FE else bias_dma)
    stamp(f, 3)
    f(f"s_setprio {G('fprio0', 0)}")
    f.need(vm=["bias"])
    f(f"""v_and_b32 v{FACC+53}, 0xffff0000, v{FACC+52}
v_lshlrev_b32 v{FACC+52}, 16, v{FACC+52}
v_mul_f32 v{FACC+53}, s{sJJ}, v{FACC+53}
v_mul_f32 v{FACC+52}, s{sJJ}, v{FACC+52}""")
    f.ds(f"ds_write_b64 v{vC1}, {vr(FACC+52,2)}", "bias")
    for cb in range(7): f.ds(f"ds_read_b128 {vr(FACC+8*cb,4)}, v{vBi} offset:{64*cb}", "bias")
    if G("x_nohalo"): f.need(vm=["h1"])
    else:
        for _ in ln_core(f, FH, 8, UNP, ["h0", "h1"], 5): pass
    halo_write(f, FH)
    act_base(f)
    f.smem = True
    f("s_setprio 2")
    def f_reads(ks):
        B = FBUF[ks % 2]; slot = (ks // 2) % 3; out = []
        xb = vXE if ks % 2 == 0 else vXO
        for pb in range(2):
            out.append((f"ds_read_b128 {vr(B+4*pb,4)}, v{xb} offset:{pb*1024 + ks*KP}", f"x{ks}"))
        for cb in range(7):
            base = (vWA if cb % 2 == 0 else vWB) + (2 if slot == 2 else 0)
            o = (SLOT if slot == 1 else 0) + (ks % 2) * 14336 + cb * 32
            for u in range(2):
                out.append((f"ds_read_b64_tr_b16 {vr(B+8+4*cb+2*u,2)}, v{base} offset:{o + u*1792}", f"w{ks}_{cb}"))
        return out
    def f_mfmas(ks):
        B = FBUF[ks % 2]; out = []
        for cb in range(7):
            for pb in ((1, 0) if ks == 0 else (0, 1)):
                cin = vr(FACC + 8*cb, 4) if ks == 0 else None
                out.append((lambda cb=cb, pb=pb, cin=cin: mfma(f, FACC + 8*cb + 4*pb, B + 8 + 4*cb, B + 4*pb, cin), [f"x{ks}", f"w{ks}_{cb}"]))
        return out
    g1_phase(f, 0, f_reads, f_mfmas, G("pF", 12), G("gapF", 4))
    f(f"s_setprio {G('gprio', 0)}")
    H, GT = 80, 108
    f(f"""s_lshl_b32 s{sT1}, s{sHI}, 3
s_mul_i32 s{sT2}, s{sHI}, {3*4096}
v_add_u32 v{vWA}, s{sT1}, v{vActW}
v_add_u32 v{vWB}, s{sT2}, v{vActW}""")
    ops = []
    for cb in range(7):
        a0 = FACC + 8 * cb; E = range(8) if not G("nogelu") else range(0)
        for e in E: ops.append((4, f"v_fma_f32 v{GT+e}, -v{a0+e}, v{a0+e}, s{sC2}"))
        for e in E: ops.append((4, f"v_mul_f32 v{GT+e}, v{GT+e}, v{a0+e}"))
        for e in E: ops.append((8, f"v_exp_f32 v{GT+e}, v{GT+e}"))
        for e in E: ops.append((4, f"v_fma_f32 v{GT+e}, v{GT+e}, s{sJJ}, s{sJJ}"))
        for e in E: ops.append((8, f"v_rcp_f32 v{GT+e}, v{GT+e}"))
        for e in E: ops.append((4, f"v_mul_f32 v{GT+e}, v{GT+e}, v{a0+e}"))
        for q in range(4):
            d = H + 24 + q if cb == 6 else H + 8 * (cb // 2) + 4 * (q // 2) + 2 * (cb % 2) + q % 2
            ops.append((4, f"v_cvt_pk_bf16_f32 v{d}, v{GT+2*q}, v{GT+2*q+1}"))
    sl = []
    bud = G("gbud", [200, 284, 284, 284, 284, 284, 284]); acc = 0; j = 8; lim = bud[0]
    for k, (cost, op) in enumerate(ops):
        if acc + cost > lim and j <= 14:
            barrier(f, j); j += 1
            lim += bud[j - 8] if j <= 14 else 10 ** 6
        acc += cost; f(op)
        if sl and k % 4 == 3: f(sl.pop(0))
    while j <= 14:
        barrier(f, j); j += 1
    f("s_setprio 3")
    for p in range(0 if G("x_nohw") else 3):
        for pb in range(2): f.ds(f"ds_write_b128 v{vWB}, {vr(H+8*p+4*pb,4)} offset:{actoff(p) + pb*1024}", "hw")
    f.ds(f"ds_write2st64_b64 v{vWA}, {vr(H+24,2)}, {vr(H+26,2)} offset0:{actoff(6)//512} offset1:{(actoff(6) + 1024)//512}", "hw")
    if G('fl8'): setup_s(f); setup_v1(f); setup_v2(f)
    f(f"s_setprio {G('f2prio', 1)}")
    g2_phase(f, "F")
    T_f2 = f.cut()

    w = c.fork(); w.nostamp = G('noa')
    vXPE, vXPO, vQA, vQA2, vZ, vMask, vPM = 14, 15, 16, 17, 18, 20, (11, 13)
    AACC = 32; ABUF = (96, 132); vHalo = 32
    w("L_A2:")
    stamp(w, 1)
    ln_main(w)
    stamp(w, 3)
    w("s_setprio 0")
    barrier(w, 0)
    srd(w, SDBG, 24, 256)
    setup_s(w); xbases(w)
    PN = G("pn", 20)
    def probe():
        sk, lp, dn = lab("nv"), lab("vl"), lab("vd")
        w.need(drain=True)
        w(f"""s_and_b32 s{sT0}, s{sS}, 5
s_or_b32 s{sT0}, s{sT0}, s{sA}
s_cbranch_scc1 {sk}
s_lshl_b32 s28, s{sS}, 5
s_add_u32 s28, s28, s{sRB}
s_lshl_b32 s28, s28, 7
s_add_u32 s28, s28, {WS_F1}
s_mov_b32 s50, 0
s_mov_b32 s29, 0
.p2align 5
s_load_dword s50, s[{SWS}:{SWS+1}], s28 glc
{lp}:
s_cmp_eq_u32 s50, s{sN0}
s_cbranch_scc1 {dn}
s_add_u32 s29, s29, 1
s_cmp_lt_u32 s29, {PN}
s_cbranch_scc1 {lp}
{dn}:
s_add_u32 s28, s28, s{SWS}
s_lshr_b32 s30, s28, 8
s_xor_b32 s28, s28, s30
s_lshl_b32 s30, s{sRB}, 9
s_xor_b32 s28, s28, s30
s_sub_u32 s30, 0, s29
s_bitcmp1_b32 s28, 13
s_cselect_b32 s30, s30, s29
s_add_u32 s30, s30, {0x10000 + 32}
s_atomic_add s30, s[{SDBG}:{SDBG+1}], 128""")
        if STAMP: w("v_writelane_b32 v0, s30, 59")
        w(f"{sk}:")
    def probes(j):
        if j == G("pat", 5): probe()
    barrier(w, 1)
    gn = get_nonce(w, vT0, 1); next(gn)
    w(f"""
; Wqkv read base: (16*(g>>1) + 4*(g&1) + r)*352 + hd*56 + c4*8
v_lshrrev_b32 v{vT0}, 5, v{vL}
v_bfe_u32 v{vT1}, v{vL}, 2, 3
v_lshl_add_u32 v{vT0}, v{vT0}, 4, v{vT1}
v_mul_u32_u24 v{vT0}, 352, v{vT0}
v_and_b32 v{vT1}, 3, v{vL}
v_lshl_add_u32 v{vT0}, v{vT1}, 3, v{vT0}
s_mul_i32 s{sT0}, s{sHI}, 56
s_add_u32 s{sT0}, s{sT0}, {RING}
v_add_u32 v{vQA}, s{sT0}, v{vT0}
v_add_u32 v{vQA2}, {2*SLOT}, v{vQA}
v_lshrrev_b32 v{vT2}, 4, v{vL}
v_and_b32 v{vT0}, 7, v{vL}
v_xor_b32 v{vT0}, v{vT0}, v{vT2}
v_lshlrev_b32 v{vT0}, 4, v{vT0}
v_lshl_add_u32 v{vT0}, v{vT2}, 7, v{vT0}
v_add_u32 v{vT0}, {HALO}, v{vT0}
v_subrev_u32 v{vT1}, 1024, v{vXE}
s_cmp_eq_u32 s{sRH}, 0
s_cselect_b64 vcc, -1, 0
s_cselect_b32 s{sT0}, 64, 192
v_cndmask_b32 v{vXPE}, v{vT1}, v{vT0}, vcc
v_xor_b32 v{vXPO}, s{sT0}, v{vXPE}
v_cmp_ne_u32 vcc, 0, v{vT2}
s_lshl_b32 s{sT0}, s{sRH}, 11
s_lshl_b32 s{sT1}, s{sHI}, 12
v_cndmask_b32 v{vZ}, 0, -1, vcc
s_add_u32 s{sT0}, s{sT0}, s{sT1}
v_add_u32 v{vActW}, s{sT0}, v{vL16}
""")
    setup_v1(w)
    w(f"""
s_lshl_b32 s{sT3}, s{sS}, 5
s_mul_i32 s{sT0}, s{sA}, 7
s_add_u32 s{sT3}, s{sT3}, s{sT0}
s_lshl_b32 s{sT3}, s{sT3}, 7
s_add_u32 s{sT3}, s{sT3}, {WS_F1}
""")
    w.smem = True; next(gn)
    barrier(w, 2)
    def prelude():
        w(f"""
v_and_b32 v{vT0}, 15, v{vL}
v_lshrrev_b32 v{vT2}, 4, v{vL}
v_lshlrev_b32 v{vT2}, 2, v{vT2}
v_sub_u32 v{vT0}, v{vT0}, v{vT2}
v_mov_b32 v{vT3}, {f2u(-1e30)}
v_mov_b32 v19, 0xffff
s_lshr_b32 s{sT0}, s{sRB}, 1
s_or_b32 s{sT0}, s{sT0}, s{sRH}
s_cmp_eq_u32 s{sT0}, 0
s_cselect_b32 s{sT1}, 0, 8
s_mov_b32 s{sC2}, {f2u(28 ** -0.5 * math.log2(math.e) / ALPHA ** 2)}
""")
    def mask(jj):
        w(f"""
v_subrev_u32 v{vT1}, {jj}, v{vT0}
v_add_u32 v{vT2}, 16, v{vT1}
v_cmp_gt_u32 s[60:61], 8, v{vT1}
v_cmp_gt_u32 s[40:41], 8, v{vT2}
v_cmp_gt_u32 vcc, s{sT1}, v{vT2}
v_cndmask_b32 v{vMask+4+jj}, v{vT3}, 0, s[60:61]
v_cndmask_b32 v{vMask+jj}, v{vT3}, 0, s[40:41]
v_cndmask_b32 v{vMask+8+jj}, v{vT3}, 0, vcc
""")
        if jj % 2 == 0: w(f"v_cndmask_b32 v{vPM[jj//2]}, 0, v19, s[60:61]")
        else: w(f"v_cndmask_b32 v{vT1}, 0, v19, s[60:61]\nv_lshl_or_b32 v{vPM[jj//2]}, v{vT1}, 16, v{vPM[jj//2]}")
    PQ = [4, 8, 12, 16, 20, 24, 56]
    def p1_issue():
        for i, q in enumerate(PQ): w(f"s_buffer_load_dword s{4+i}, {sq(SWS)}, s{sT3} offset:{128*i}")
    prelude(); mask(0); mask(1)
    barrier(w, 3)
    probes(3)
    if not G("p1late"): p1_issue()
    barrier(w, 4)
    if G("p1late"): p1_issue()
    w.smem = True
    chk, retry, got = lab("pc"), lab("pr"), lab("pg")
    w.need(drain=True)
    w(f"s_mov_b32 s{sPoll}, 0\n{chk}:")
    for q in (4, 6, 8): w(f"s_cmp_eq_u64 s[{q}:{q+1}], s[{sN0}:{sN1}]\ns_cbranch_scc0 {retry}")
    w(f"s_cmp_eq_u32 s10, s{sN0}\ns_cbranch_scc0 {retry}")
    w(f"{got}:")
    if STAMP: w(f"v_writelane_b32 v0, s{sPoll}, 60")
    slow_poll(retry, got, vT1, f"v_min_u32 v{vT1}, 6, v{vL}\nv_lshlrev_b32 v{vT1}, 7, v{vT1}", sT3)
    probes(4)
    barrier(w, 5)
    probes(5)
    mask(2); mask(3)
    barrier(w, 6)
    probes(6)
    v19h = 19
    w(f"s_lshl_b32 s{sT0}, s{sRH}, 11\ns_add_u32 s{sT0}, s{sT0}, {ACT}\nv_add_u32 v{v19h}, s{sT0}, v{vL16}")
    w(f"s_setprio {G('aprio',2)}")
    def a_reads(ks):
        B = ABUF[ks % 2]; slot = (7 + ks // 2) % 3; out = []
        xb = vXE if ks % 2 == 0 else vXO
        xp = vXPE if ks % 2 == 0 else vXPO
        out.append((f"ds_read_b128 {vr(B+4,4)}, v{xb} offset:{ks*KP}", f"x{ks}"))
        out.append((f"ds_read_b128 {vr(B+8,4)}, v{xb} offset:{1024 + ks*KP}", f"x{ks}"))
        base = vQA2 if slot == 2 else vQA
        for sec in range(3):
            if sec == 1: out.append((f"ds_read_b128 {vr(B,4)}, v{xp} offset:{ks*KP}", f"xp{ks}"))
            for db in range(2):
                o = (SLOT if slot == 1 else 0) + (ks % 2) * 32 * 352 + sec * 112 + db * 24
                for u in range(2):
                    out.append((f"ds_read_b64_tr_b16 {vr(B+12+4*(2*sec+db)+2*u,2)}, v{base} offset:{o + u*8*352}", f"w{ks}_{sec}{db}"))
        return out
    def a_mfmas(ks):
        B = ABUF[ks % 2]; out = []
        c0 = "0" if ks == 0 else None
        for db in range(2):
            for qb in range(2):
                out.append((lambda db=db, qb=qb: mfma(w, AACC + (2*db+qb)*4, B + 12 + 4*db, B + 4 + 4*qb, c0), [f"x{ks}", f"w{ks}_0{db}"]))
        for db in range(2):
            for kb in range(3):
                out.append((lambda db=db, kb=kb: mfma(w, AACC + 16 + (3*db+kb)*4, B + 20 + 4*db, B + 4*kb, c0), [f"xp{ks}", f"w{ks}_1{db}"]))
        for db in range(2):
            for kb in range(3):
                out.append((lambda db=db, kb=kb: mfma(w, AACC + 40 + (3*db+kb)*4, B + 4*kb, B + 28 + 4*db, c0), [f"w{ks}_2{db}"]))
        if G("x_q14"): del out[13]; del out[10]
        return out
    QP, KPk, VP, ONES, SS, MM, PP, LL, OO = 96, 104, 72, 128, 132, 64, 48, 160, 32
    tl = []
    for q in range(4): tl.append(f"v_mov_b32 v{ONES+q}, 0x3f803f80")
    for db in range(2):
        for qb in range(2):
            s0 = AACC + (2*db+qb)*4
            for h in range(2): tl.append(f"v_cvt_pk_bf16_f32 v{QP+4*qb+2*db+h}, v{s0+2*h}, v{s0+2*h+1}")
    for db in range(2):
        for kb in range(3):
            s0 = AACC + 16 + (3*db+kb)*4
            for h in range(2): tl.append(f"v_cvt_pk_bf16_f32 v{KPk+4*kb+2*db+h}, v{s0+2*h}, v{s0+2*h+1}")
    for qb in range(2):
        for h in range(2): tl.append(f"v_and_b32 v{QP+4*qb+2+h}, v{vZ}, v{QP+4*qb+2+h}")
    def a_tail(m):
        if m >= -10:
            for _ in range(2): w(tl.pop(0))
    g1_phase(w, 7, a_reads, a_mfmas, G("pA", 10), G("gapA", 3), a_tail)
    stamp(w, 5)
    for x in tl: w(x)
    vc = []
    for db in range(2):
        for kb in range(3):
            s0 = AACC + 40 + (3*db+kb)*4
            for h in range(2): vc.append(f"v_cvt_pk_bf16_f32 v{VP+6*db+2*kb+h}, v{s0+2*h}, v{s0+2*h+1}")
    def fill(n):
        for _ in range(n): w(vc.pop(0) if vc else "s_nop 0")
    for qb in range(2):
        for t in range(2):
            m = vMask + 4 if t == 1 else (vMask + 8 if qb == 0 else vMask)
            mfma(w, SS + 8*qb + 4*t, KPk + 4*(qb+t), QP + 4*qb, vr(m, 4))
    fill(4); w("s_nop 1")
    T, U = vT0, vT1
    for qb in range(2):
        for e in range(4): w(f"v_max_f32 v{MM+4*qb+e}, v{SS+8*qb+e}, v{SS+8*qb+4+e}")
    for qb in range(2): w(f"v_max3_f32 v{T+qb}, v{MM+4*qb}, v{MM+4*qb+1}, v{MM+4*qb+2}")
    for qb in range(2): w(f"v_max_f32 v{T+qb}, v{T+qb}, v{MM+4*qb+3}")
    fill(2); w(f"v_permlane32_swap_b32 v{T}, v{U}"); fill(1)
    w(f"v_max_f32 v{T}, v{T}, v{U}\nv_mov_b32 v{U}, v{T}")
    fill(2); w(f"v_permlane16_swap_b32 v{T}, v{U}"); fill(1)
    w(f"v_max_f32 v{T}, v{T}, v{U}\nv_mul_f32 v{U}, s{sC2}, v{T}\nv_mul_f32 v{T}, s{sC2}, v{T}")
    fill(2); w(f"v_permlane32_swap_b32 v{T}, v{U}"); fill(1)
    assert not vc
    rest = []
    r = rest.append
    for qb in range(2):
        m0 = MM + 4*qb
        for e in range(4): r(f"v_fma_f32 v{m0+e}, v{m0+e}, s{sC2}, -v{T+qb}")
        for e in range(4): r(f"v_exp_f32 v{m0+e}, v{m0+e}")
        r(f"v_cvt_pk_bf16_f32 v{m0}, v{m0}, v{m0+1}"); r(f"v_cvt_pk_bf16_f32 v{m0+2}, v{m0+2}, v{m0+3}")
        for h in range(2): r(f"v_bfi_b32 v{PP+4*qb+h}, v{vPM[h]}, 0, v{m0+2*h}")
        for h in range(2): r(f"v_and_b32 v{PP+4*qb+2+h}, v{vPM[h]}, v{m0+2*h}")
        x = Asm()
        if qb == 0: x("s_nop 1")
        else: setup_v2(x)
        mfma(x, LL + 4*qb, ONES, PP + 4*qb, "0")
        for db in range(2): mfma(x, OO + 8*qb + 4*db, VP + 6*db + 2*qb, PP + 4*qb, "0")
        rest += x.L
    for qb in range(2):
        r(f"v_rcp_f32 v{LL+4*qb}, v{LL+4*qb}\ns_nop 0")
        r(f"v_mul_f32 v{LL+4*qb}, {f2u(1 / ALPHA)}, v{LL+4*qb}"); r(f"v_and_b32 v{LL+4*qb+1}, v{vZ}, v{LL+4*qb}")
        for db in range(2):
            o0 = OO + 8*qb + 4*db
            if G("opk", True):
                for e in (0, 2): r(f"v_pk_mul_f32 {vr(o0+e,2)}, {vr(o0+e,2)}, {vr(LL+4*qb,2)} op_sel:[0,{db}] op_sel_hi:[1,{db}]")
            else:
                for e in range(4): r(f"v_mul_f32 v{o0+e}, v{LL+4*qb+db}, v{o0+e}")
        for q in range(4): r(f"v_cvt_pk_bf16_f32 v{PP+8+4*qb+q}, v{OO+8*qb+2*q}, v{OO+8*qb+2*q+1}")
    hb = Asm(); h_frags(hb, v19h); hq = list(zip(hb.L, hb.lg))
    BHI, HS = G("bhi", 24), G("hs", 2)
    for i, ins in enumerate(rest):
        if i == BHI: barrier(w, BH)
        w(ins)
        if HS and i >= BHI + G("hd", 0) and (i - BHI) % HS == 0 and hq: w.ds(*hq.pop(0))
    for qb in range(2):
        w.ds(f"ds_write_b128 v{vActW}, {vr(PP+8+4*qb,4)} offset:{ACT + qb*1024}", "ow")
    while hq: w.ds(*hq.pop(0))
    w(f"s_setprio {G('a2prio', 2)}")
    stamp(w, 6)
    g2_phase(w, "A")
    T_a2 = w.cut()

    l = aL.fork(); l.nostamp = G('lite') or G('nol')
    xp = 1 if G('pfg', 1) else xm
    vW1a, vW1b, vW2A, vPF, vR0, vR1, vNon, vZero, vRP, vSent, vPA, vXR = 8, 9, 10, 11, 12, 13, 14, 15, 16, 24, 28, 29
    vNeed, vRng, vPoll, vPv, vPg = 24, 25, 26, 27, 30
    vW1 = 32
    l("L_L:")
    l(f"s_setprio {G('lprio0',3)}")
    common2(l)
    l(f"""
s_or_b32 s{sT3}, s2, s{sW}
s_cmp_lg_u32 s{sT3}, 0
s_cbranch_scc1 L_nolead0
s_memrealtime s[{sN0}:{sN1}]
L_nolead0:
""")
    for i, d in ((0, vR0), (1, vR1)):
        l(f"""
v_add_u32 v{vT0}, {64*i}, v{vL}
v_mul_u32_u24 v{vT2}, 2979, v{vT0}
v_lshrrev_b32 v{vT2}, 16, v{vT2}
v_mul_u32_u24 v{vT3}, 22, v{vT2}
v_sub_u32 v{vT0}, v{vT0}, v{vT3}
v_min_u32 v{vT0}, 20, v{vT0}
v_mul_u32_u24 v{vT3}, 37, v{vT0}
v_lshrrev_b32 v{vT3}, 8, v{vT3}
v_mul_u32_u24 v{vT3}, {896-112}, v{vT3}
v_lshl_add_u32 v{vT0}, v{vT0}, 4, v{vT3}
v_mul_u32_u24 v{vT2}, 2688, v{vT2}
v_add_u32 v{d}, v{vT0}, v{vT2}
""")
    l(f"""
s_and_b32 s{sT2}, s{sA}, 1
s_lshl_b32 s{sT2}, s{sT2}, 3
s_lshr_b32 s{sT1}, s{sA}, 1
s_lshl_b32 s{sT1}, s{sT1}, 2
s_add_u32 s{sT2}, s{sT2}, s{sT1}
s_lshl_b32 s{sT1}, s{sRB}, 4
s_add_u32 s{sT2}, s{sT2}, s{sT1}
s_mul_i32 s{sT2}, s{sT2}, 2688
s_mul_i32 s{sT1}, s{sS}, 112
s_add_u32 s{sC2}, s{sT2}, s{sT1}
s_and_b32 s{sJJ}, s{sRB}, {32//xp-1}
s_lshl_b32 s{sT1}, s{sJJ}, 2
s_add_u32 s{sRH}, s{sT1}, s{sA}
s_mul_i32 s{sT1}, s{sRH}, {xp}
v_min_u32 v{vT1}, {4*xp-1}, v{vL}
v_lshrrev_b32 v{vT2}, 2, v{vT1}
v_add_u32 v{vT2}, s{sT1}, v{vT2}
v_and_b32 v{vT1}, 3, v{vT1}
v_mul_u32_u24 v{vT2}, 3584, v{vT2}
v_lshl_add_u32 v{vPA}, v{vT1}, 7, v{vT2}
s_mul_i32 s{sW1o}, s{sS}, {448*448 if G('x_w1lin') else 448}
s_and_b32 s{sHI}, s{sW1o}, 0xffffff80
v_mov_b32 v{vZero}, 0
s_waitcnt lgkmcnt(0)
""")
    mark(l, "ka")
    srd(l, SWQ, 6, 448 * 1344 * 2); srd(l, SW1, 12, 448 * 1792 * 2)
    def op_pfa():
        l.vmem(f"buffer_load_dword v{vPF}, v{vPA}, {sq(SW1)}, s{sHI} offen {G('ntw','')}", "pf")
    def op_rpl():
        l.vmem(f"buffer_load_dwordx4 {vr(vRP,4)}, v{vR0}, {sq(SWQ)}, s{sC2} offen {G('ntr','')}", "rp")
        l("s_mov_b64 exec, 0xffffff")
        l.vmem(f"buffer_load_dwordx4 {vr(vRP+4,4)}, v{vR1}, {sq(SWQ)}, s{sC2} offen {G('ntr','')}", "rp")
        l("s_mov_b64 exec, -1")
    def op_init():
        srd(l, SDBG, 24, 256)
        l(f"""
s_cmp_lg_u32 s{sT3}, 0
s_cbranch_scc1 L_nolead1
s_and_b32 s{sN0}, s{sN0}, -16
s_or_b32 s62, s{sN0}, 16
s_atomic_swap s62, s[{SDBG}:{SDBG+1}], 0
s_atomic_swap s62, s[{SDBG}:{SDBG+1}], 64
L_nolead1:
""")
        srd(l, SWS, 26, 0x10000000); srd(l, SW2, 16, 1792 * 448 * 2); srd(l, SWO, 8, 448 * 448 * 2)
        srd(l, SX, 4, 2048 * 896); srd(l, SB2, 18, 896)
        first_stamps(l)
        l(f"""
v_mul_u32_u24 v{vT0}, 2341, v{vL}
v_xor_b32 v{vT1}, 32, v{vL16}
v_and_b32 v{vT2}, 32, v{vL}
v_xor_b32 v{vT2}, v{vT2}, v{vL16}
s_movk_i32 s{sT1}, {0 if G('x_w1lin') else 3584-448}
""")
        for i in range(7):
            l(f"v_add_u32 v{vT3}, {64*i*2341}, v{vT0}\nv_lshrrev_b32 v{vT3}, 16, v{vT3}\nv_mad_u32_u24 v{vW1+i}, v{vT3}, s{sT1}, v{vL16 if i < 3 else (vT2 if i == 3 else vT1)}")
        l(f"""
s_mul_i32 s{sT1}, s{sA}, {16*448 if G('x_w1lin') else 16*3584}
s_add_u32 s{sW1o}, s{sW1o}, s{sT1}
s_mul_i32 s{sM0}, s{sA}, 7168
""")
    def op_pfb():
        l(f"""
s_mul_i32 s{sT1}, s{sRH}, {10*xp}
s_add_u32 s{sT1}, s{sT1}, 512
v_min_u32 v{vT1}, {10*xp-1}, v{vL}
v_add_u32 v{vT1}, s{sT1}, v{vT1}
v_lshrrev_b32 v{vT2}, 2, v{vT1}
v_and_b32 v{vT1}, 3, v{vT1}
v_mul_u32_u24 v{vT2}, 3584, v{vT2}
v_lshl_add_u32 v{vT1}, v{vT1}, 7, v{vT2}
""")
        l.vmem(f"buffer_load_dword v{vPF}, v{vT1}, {sq(SW1)}, s{sHI} offen {G('ntw','')}", "pf")
    def op_pf2():
        per = 49 * xp; pw = (per + 3) // 4
        l(f"""
s_mul_i32 s{sT2}, s{sJJ}, {per}
s_mul_i32 s{sT1}, s{sA}, {pw}
v_min_u32 v{vT1}, {pw-1}, v{vL}
v_add_u32 v{vT1}, s{sT1}, v{vT1}
v_min_u32 v{vT1}, {per-1}, v{vT1}
v_add_lshl_u32 v{vT1}, v{vT1}, s{sT2}, 7
s_mul_i32 s{sT1}, s{sS}, {224*896}
""")
        l.vmem(f"buffer_load_dword v{vPF}, v{vT1}, {sq(SW2)}, s{sT1} offen {G('nt2','')}", "pf2")
        per = 13 * xp; pw = (per + 3) // 4
        l(f"""
s_mul_i32 s{sT2}, s{sJJ}, {per}
s_mul_i32 s{sT1}, s{sA}, {pw}
v_min_u32 v{vT1}, {pw-1}, v{vL}
v_add_u32 v{vT1}, s{sT1}, v{vT1}
v_min_u32 v{vT1}, {per-1}, v{vT1}
v_add_u32 v{vT1}, s{sT2}, v{vT1}
v_min_u32 v{vT1}, 391, v{vT1}
v_lshlrev_b32 v{vT1}, 7, v{vT1}
s_mul_i32 s{sT1}, s{sS}, {56*896}
""")
        l.vmem(f"buffer_load_dword v{vPF}, v{vT1}, {sq(SWO)}, s{sT1} offen {G('nt2','')}", "pf2")
    def op_g(k):
        if k < 3:
            l(f"""
s_mul_i32 s{sT2}, s{sRB}, 49
s_mul_i32 s{sT1}, s{sA}, 5
s_add_u32 s{sT1}, s{sT1}, {17*k}
v_min_u32 v{vT1}, 4, v{vL}
v_add_u32 v{vT1}, s{sT1}, v{vT1}
v_min_u32 v{vT1}, {min(17*k+16, 48)}, v{vT1}
v_add_lshl_u32 v{vT1}, v{vT1}, s{sT2}, 7
s_mul_i32 s{sT1}, s{sS}, {224*896}
""")
            l.vmem(f"buffer_load_dword v{vPF}, v{vT1}, {sq(SW2)}, s{sT1} offen {G('nt2','')}", "pf2")
        else:
            l(f"""
s_mul_i32 s{sT2}, s{sRB}, 13
s_lshl_b32 s{sT1}, s{sA}, 2
v_min_u32 v{vT1}, 3, v{vL}
v_add_u32 v{vT1}, s{sT1}, v{vT1}
v_min_u32 v{vT1}, 12, v{vT1}
v_add_u32 v{vT1}, s{sT2}, v{vT1}
v_min_u32 v{vT1}, 391, v{vT1}
v_lshlrev_b32 v{vT1}, 7, v{vT1}
s_mul_i32 s{sT1}, s{sS}, {56*896}
""")
            l.vmem(f"buffer_load_dword v{vPF}, v{vT1}, {sq(SWO)}, s{sT1} offen {G('nt2','')}", "pf2")
    def op_b2():
        col128(l, sT1, sS)
        l(f"""s_cmp_eq_u32 s{sS}, 7
s_cselect_b32 s{sT1}, {OOB}, s{sT1}
s_mov_b32 m0, {XRES + 8192}
s_mov_b64 exec, 0xff""")
        l.vmem(f"buffer_load_dwordx4 v{vL16}, {sq(SB2)}, s{sT1} offen lds", "xr")
        l("s_mov_b64 exec, -1")
    def op_xr():
        col128(l, sT1, sS)
        l(f"""
s_lshl_b32 s{sT0}, s{sA}, 5
s_add_u32 s{sT0}, s{sT0}, s{sROW0}
s_mul_i32 s{sT0}, s{sT0}, 896
s_cmp_eq_u32 s{sS}, 7
s_cselect_b32 s{sT1}, {OOB}, s{sT1}
s_add_u32 s{sT0}, s{sT0}, s{sT1}
s_lshl_b32 s{sT2}, s{sA}, 11""")
        for i in range(2):
            l(f"s_add_u32 m0, s{sT2}, {XRES + 1024*i}\ns_add_u32 s{sT0}, s{sT0}, {16*896*i}")
            l.vmem(f"buffer_load_dwordx4 v{vXR}, {sq(SX)}, s{sT0} offen lds", "xr")
    def op_rps():
        l(f"""
s_mul_i32 s{sT1}, s{sS}, {448*352}
s_add_u32 s{sT1}, s{sT1}, {WS_WQ}
s_lshl_b32 s{sT0}, s{sRB}, 2
s_add_u32 s{sT0}, s{sT0}, s{sA}
s_mul_i32 s{sT0}, s{sT0}, {4*352}
s_add_u32 s{sT0}, s{sT0}, s{sT1}
s_cmp_ge_u32 s{sRB}, 28
s_cselect_b32 s{sT0}, {OOB}, s{sT0}
""")
        region(l, 25)
        ni = lab("ni")
        l(f"""s_add_u32 s25, s25, {FOFF}
s_lshl_b32 s{sT1}, s{sA}, 13
s_add_u32 s{sT1}, s{sT1}, s25
s_lshr_b32 s{sT2}, s{sA}, 1""")
        for q in range(4): l(f"v_mov_b32 v{24+q}, 0")
        l(f"v_lshrrev_b32 v{vT0}, 3, v{vL}\nv_and_b32 v{vT1}, 0x70, v{vL16}\nv_lshl_add_u32 v{vT0}, v{vT0}, {WSH}, v{vT1}")
        l(f"""s_or_b32 s{sT2}, s{sT2}, s{sS}
s_cselect_b32 s{sT1}, {OOB}, s{sT1}
s_lshl_b32 s26, s{sS}, 5
s_add_u32 s26, s26, s{sRB}
s_lshl_b32 s26, s26, 7
s_add_u32 s26, s26, {WS_F1}
s_cmp_eq_u32 s{sA}, 3
s_cselect_b32 s{sT1}, s26, s{sT1}
s_cselect_b64 s[60:61], 0xff, -1""")
        l.need(vm=["rp"])
        l("s_mov_b64 exec, s[60:61]")
        l.vmem(f"buffer_store_dwordx4 v[24:27], v{vT0}, {sq(SWS)}, s{sT1} offen sc1", "rps")
        l("s_mov_b64 exec, -1")
        l.vmem(f"buffer_store_dwordx4 {vr(vRP,4)}, v{vL16}, {sq(SWS)}, s{sT0} offen sc1", "rps")
        l("s_mov_b64 exec, 0xffffff")
        l.vmem(f"buffer_store_dwordx4 {vr(vRP+4,4)}, v{vL16}, {sq(SWS)}, s{sT0} offen offset:1024 sc1", "rps")
        l("s_mov_b64 exec, -1")
    gl = get_nonce(l, vT0, 0)
    def op_noi(): next(gl)
    def op_non():
        next(gl)
    def op_rpw(): l.need(vm=["rps"])
    def op_fl1():
        only0(lambda: l(f"s_atomic_swap s{sN0}, s[{SWS}:{SWS+1}], s26"))
    def op_tab():
        chunks(l)
        l(f"""
v_lshrrev_b32 v{vT0}, 3, v{vL}
v_lshrrev_b32 v{vT1}, 4, v{vL}
v_lshlrev_b32 v{vT1}, 1, v{vT1}
v_and_b32 v{vT2}, 7, v{vL}
v_xor_b32 v{vT1}, v{vT1}, v{vT2}
v_mul_u32_u24 v{vT0}, 896, v{vT0}
v_lshl_add_u32 v{vW2A}, v{vT1}, 4, v{vT0}
v_add_u32 v{vXR}, v{vW2A}, v{vT0}
s_mul_i32 s{sW2o}, s{sS}, {224*896}
s_mul_i32 s{sT0}, s{sA}, {8*896}
s_add_u32 s{sW2o}, s{sW2o}, s{sT0}
s_lshl_b32 s27, s{sA}, 10
s_mul_i32 s{sWQo}, s{sS}, {448*352}
s_add_u32 s{sWQo}, s{sWQo}, {WS_WQ}
s_mul_i32 s{sM1}, s{sA}, {16*352}
s_add_u32 s{sWQo}, s{sWQo}, s{sM1}
s_mul_i32 s{sT2}, s{sS}, {56*896}
s_lshl_b32 s{sT0}, s{sA}, 1
s_add_u32 s{sT1}, s{sT0}, 1
s_min_u32 s{sT1}, s{sT1}, 6
s_lshl_b32 s20, s{sT0}, 10
s_lshl_b32 s21, s{sT1}, 10
s_mul_i32 s22, s{sT0}, {8*896}
s_mul_i32 s23, s{sT1}, {8*896}
s_add_u32 s22, s22, s{sT2}
s_add_u32 s23, s23, s{sT2}
; inbox: source offsets per slot (s4..s10), poll address / need per lane
s_cmp_eq_u32 s{sA}, 3
s_cselect_b64 s[18:19], 0xff, -1
""")
    def stage_off(first, step):
        if first: l(f"s_mul_i32 s{sK}, s{sR}, {step}")
        else: l(f"s_add_u32 s{sK}, s{sK}, {step}\ns_cmp_eq_u32 s{sK}, {7*step}\ns_cselect_b32 s{sK}, 0, s{sK}")
    def dma_w1(st):
        stage_off(st == 0, 64 * (448 if G('x_w1lin') else 3584))
        for i in range(7):
            if i == 0: l(f"s_add_u32 m0, s{sM0}, {RING + (st%3)*SLOT}\ns_add_u32 s{sT0}, s{sW1o}, s{sK}")
            if i == 4: l(f"s_add_u32 m0, s{sM0}, {RING + (st%3)*SLOT + 4096}\ns_add_u32 s{sT0}, s{sT0}, 4096")
            l.vmem(f"buffer_load_dwordx4 v{vW1+i}, {sq(SW1)}, s{sT0} offen offset:{1024*(i%4)} lds", f"st{st}")
    def dma_wq(st):
        if G("nodma"): return
        stage_off(st == 7, 22528)
        for i in range(6):
            if i == 0: l(f"s_add_u32 m0, s{sM1}, {RING + (st%3)*SLOT}\ns_add_u32 s{sT0}, s{sWQo}, s{sK}")
            if i == 4: l(f"s_add_u32 m0, s{sM1}, {RING + (st%3)*SLOT + 4096}\ns_add_u32 s{sT0}, s{sT0}, 4096")
            if i == 5: l("s_mov_b32 exec_hi, 0")
            l.vmem(f"buffer_load_dwordx4 v{vL16}, {sq(SWS)}, s{sT0} offen offset:{1024*(i%4)} lds", f"st{st}")
        l("s_mov_b32 exec_hi, -1")
    def dma_w2(cc, i0=0, i1=7):
        if G("nodma"): return
        col128(l, sT2, sCH + cc); l(f"s_add_u32 s{sT2}, s{sT2}, s{sW2o}")
        for i in range(i0, i1):
            l(f"s_add_u32 m0, s27, {W2LOC[cc] + 4096*i}\ns_add_u32 s{sT0}, s{sT2}, {32*896*i}")
            l.vmem(f"buffer_load_dwordx4 v{vW2A}, {sq(SW2)}, s{sT0} offen lds", f"w2{cc}")
    def dma_wo(cc):
        if G("nodma"): return
        col128(l, sT2, sCH + cc)
        for i in range(2):
            l(f"s_add_u32 m0, s{20+i}, {WOLOC[cc]}\ns_add_u32 s{sT0}, s{22+i}, s{sT2}")
            if i == 1 and G("nodup", True): l("s_mov_b64 exec, s[18:19]")
            l.vmem(f"buffer_load_dwordx4 v{vW2A}, {sq(SWO)}, s{sT0} offen lds", f"wo{cc}")
            if i == 1 and G("nodup", True): l("s_mov_b64 exec, -1")
    vD0, vD1, vD2, vE0, vE1 = 8, 9, 12, 13, 14
    def pace():
        if G("pace"): l(G("pace"))
    def op_stg():
        l(f"""v_add_u32 v{vD0}, s27, v{vL16}
v_add_u32 v{vD1}, {RING}, v{vD0}
v_add_u32 v{vD2}, {RING + 2*SLOT}, v{vD0}
v_add_u32 v{vE0}, s20, v{vL16}
v_add_u32 v{vE1}, s21, v{vL16}""")
    def stg_w2(cc, i0=0, i1=7):
        col128(l, sT2, sCH + cc); l(f"s_add_u32 s{sT2}, s{sT2}, s{sW2o}")
        for i in range(i0, i1):
            l(f"s_add_u32 s{sT0}, s{sT2}, {32*896*i}")
            l.vmem(f"buffer_load_dwordx4 {vr(32 + 28*(cc-3) + 4*i, 4)}, v{vW2A}, {sq(SW2)}, s{sT0} offen", f"v{cc}{i}")
    def stg_wo(cc):
        col128(l, sT2, sCH + cc)
        for i in range(2):
            l(f"s_add_u32 s{sT0}, s{22+i}, s{sT2}")
            l.vmem(f"buffer_load_dwordx4 {vr(144 + 8*(cc-4) + 4*i, 4)}, v{vW2A}, {sq(SWO)}, s{sT0} offen", f"u{cc}")
    def put_w2(cc, i0=0, i1=7):
        loc = W2LOC[cc]; base, o = (vD0, 0) if loc == 0 else ((vD2, 0) if loc == RING + 2 * SLOT else (vD1, loc - RING))
        for i in range(i0, i1):
            l.need(vm=[f"v{cc}{i}"])
            l.ds(f"ds_write_b128 v{base}, {vr(32 + 28*(cc-3) + 4*i, 4)} offset:{o + 4096*i}", "put"); pace()
    def put_wo(cc):
        l.need(vm=[f"u{cc}"])
        for i in range(2): l.ds(f"ds_write_b128 v{vE0+i}, {vr(144 + 8*(cc-4) + 4*i, 4)} offset:{WOLOC[cc]}", "put"); pace()
    def only0(fn, n=1):
        sk = lab("o0")
        l(f"s_cmp_ge_u32 s{sA}, {n}\ns_cbranch_scc1 {sk}"); fn(); l(f"{sk}:")
    def op_cki():
        only0(lambda: l(f"s_buffer_load_dword s61, {sq(SDBG)}, 128"), 2)
    def op_ck():
        again, got = lab("ca"), lab("cg")
        sel = {"auto": "s_cselect_b32 s61, 1, 0", "inv": "s_cselect_b32 s61, 0, 1", "0": "s_mov_b32 s61, 0"}[G("hsel", "auto")]
        def body():
            l(f"""s_waitcnt lgkmcnt(0)
s_mov_b32 s{sPoll}, 0
s_cmp_ge_u32 s61, {64 << 16}
s_cbranch_scc0 {again}
{got}:
s_and_b32 s61, s61, 0xffff
s_sub_u32 s60, s61, {64*32 - 12}
s_cmp_gt_u32 s61, {64*32}
{sel}
s_cmp_lt_u32 s60, 25
s_cselect_b32 s61, s{sRB}, s61
s_add_u32 s60, s25, s{SWS}
s_lshr_b32 s60, s60, 21
s_xor_b32 s61, s61, s60
s_lshr_b32 s60, s{sRB}, 4
s_xor_b32 s61, s61, s60
s_and_b32 s61, s61, 1
s_lshl_b32 s61, s61, 13
v_mov_b32 v{vT0}, {CNT + 4}
v_mov_b32 v{vT1}, s61
s_mov_b64 exec, 1
ds_write_b32 v{vT0}, v{vT1}
s_mov_b64 exec, -1
s_add_u32 s25, s25, s61
s_lshl_b32 s{sT0}, s{sS}, 17
s_add_u32 s{sPart}, s25, s{sT0}
s_sub_u32 s{sPart}, s{sPart}, {FOFF}
s_lshl_b32 s{sT0}, s{sS}, {WSH}
s_add_u32 s24, s25, s{sT0}""")
            if STAMP: l(f"s_lshr_b32 s61, s61, 13\nv_writelane_b32 v0, s61, 59\nv_writelane_b32 v0, s{sPoll}, 60")
        only0(body, 2)
        l.smem = True
        x = Asm()
        x(f"""{again}:
buffer_load_dword v{vT0}, v{vZero}, {sq(SDBG)}, 0 offen offset:128 sc1
s_add_u32 s{sPoll}, s{sPoll}, 1
s_cmp_gt_u32 s{sPoll}, {SPIN}
s_waitcnt vmcnt(0)
v_readfirstlane_b32 s61, v{vT0}
s_cbranch_scc1 {got}
s_cmp_ge_u32 s61, {64 << 16}
s_cbranch_scc0 {again}
s_branch {got}""")
        SLOW.append(x.cut())
    pdone = [0]
    def progress(n):
        ks = list(range(pdone[0], n)); pdone[0] = n
        for k in ks: arrival(l, k, 4 + 2 * k, 25); l(f"s_atomic_add s{4+2*k}, s[{SWS}:{SWS+1}], s{5+2*k}")
    def op_pg(n): only0(lambda: progress(n))
    def poll(): l(f"s_mov_b32 s13, 0\ns_atomic_add s13, s[{SWS}:{SWS+1}], s24 glc")
    def dma_last(ng=1):
        nw = 4 - ng
        col128(l, sT2, sCH + 6)
        l(f"""s_sub_u32 s16, s{sA}, {ng}
s_mul_i32 s17, s{sS}, {224*896}
s_add_u32 s17, s17, s{sT2}
s_mul_i32 s18, s{sS}, {56*896}
s_add_u32 s18, s18, s{sT2}""")
        for n, base, loc, srdn in ((28, 17, W2LOC[6], SW2), (7, 18, WOLOC[6], SWO)):
            for i in range((n + nw - 1) // nw):
                l(f"s_add_u32 s{sT0}, s16, {nw*i}")
                if nw * i + nw - 1 >= n: l(f"s_min_u32 s{sT0}, s{sT0}, {n-1}")
                l(f"s_lshl_b32 s{sT1}, s{sT0}, 10\ns_add_u32 m0, s{sT1}, {loc}\ns_mul_i32 s{sT0}, s{sT0}, {8*896}\ns_add_u32 s{sT0}, s{sT0}, s{base}")
                if not G("nodma"): l.vmem(f"buffer_load_dwordx4 v{vW2A}, {sq(srdn)}, s{sT0} offen lds", "w26")
    NG = 2 if NE else 1
    def own_pieces():
        nw = 4 - NG; k = 0
        for n, base, loc, srdn in ((28, 14, W2LOC[6], SW2), (7, 15, WOLOC[6], SWO)):
            for i in range((n + nw - 1) // nw):
                yield k, i, n, base, loc, srdn, nw; k += 1
    def op_sg6(lo, hi):
        sk = lab("g6")
        l(f"s_cmp_lt_u32 s{sA}, {NG}\ns_cbranch_scc1 {sk}\ns_cmp_eq_u32 s{sS}, 7\ns_cbranch_scc1 {sk}")
        if lo == 0:
            l.need(vm=list(l.vm))
            col128(l, sT2, sCH + 6)
            l(f"""s_sub_u32 s13, s{sA}, {NG}
s_mul_i32 s14, s{sS}, {224*896}
s_add_u32 s14, s14, s{sT2}
s_mul_i32 s15, s{sS}, {56*896}
s_add_u32 s15, s15, s{sT2}""")
        for k, i, n, base, loc, srdn, nw in own_pieces():
            if not lo <= k < hi: continue
            l(f"s_add_u32 s{sT0}, s13, {nw*i}")
            if nw * i + nw - 1 >= n: l(f"s_min_u32 s{sT0}, s{sT0}, {n-1}")
            l(f"s_mul_i32 s{sT0}, s{sT0}, {8*896}\ns_add_u32 s{sT0}, s{sT0}, s{base}")
            l(f"buffer_load_dwordx4 {vr(40 + 4*k, 4)}, v{vW2A}, {sq(srdn)}, s{sT0} offen")
        l(f"{sk}:")
    def put6():
        for k, i, n, base, loc, srdn, nw in own_pieces():
            if i == 0 or nw * i + nw - 1 >= n:
                l(f"s_add_u32 s{sT0}, s13, {nw*i}\ns_min_u32 s{sT0}, s{sT0}, {n-1}\ns_lshl_b32 s{sT0}, s{sT0}, 10\ns_add_u32 s{sT0}, s{sT0}, {loc}\nv_add_u32 v{vT2}, s{sT0}, v{vL16}")
                i0 = i
            l(f"ds_write_b128 v{vT2}, {vr(40 + 4*k, 4)} offset:{1024*nw*(i-i0)}")
        l("s_waitcnt lgkmcnt(0)")
    def lds_add(off):
        l(f"v_mov_b32 v{vT0}, {CNT + off}\nv_mov_b32 v{vT1}, 1\ns_mov_b64 exec, 1\ns_waitcnt vmcnt(0)\nds_add_u32 v{vT0}, v{vT1}\ns_mov_b64 exec, -1")
    def gate_wait(val):
        gt, go = lab("gt"), lab("go")
        l(f"""v_mov_b32 v{vT2}, {CNT + 20}
s_mov_b32 s{sPoll}, 0
{gt}:
ds_read_b32 v{vT3}, v{vT2}
s_add_u32 s{sPoll}, s{sPoll}, 1
s_cmp_gt_u32 s{sPoll}, {SPIN * 16}
s_waitcnt lgkmcnt(0)
v_cmp_gt_u32 vcc, {val}, v{vT3}
s_cbranch_scc1 {go}
s_nop 0
s_cbranch_vccnz {gt}
{go}:""")
    def tail3():
        z, top, out, fin = lab("z"), lab("tl"), lab("to"), lab("tf")
        ng = 2 if NE else 1
        l(f"s_cmp_lt_u32 s{sA}, {ng}\ns_cbranch_scc1 {z}")
        if G("sg6", True):
            n7 = lab("n7")
            l(f"s_cmp_eq_u32 s{sS}, 7\ns_cbranch_scc1 {n7}\ns_waitcnt vmcnt(0)\ns_barrier\ns_setprio {G('putprio', 0)}")
            if G("gate"): gate_wait(G("gate"))
            put6(); lds_add(12)
            l(f"s_branch {fin}\n{n7}:")
        if G("w6at", 19) == 19: dma_last(ng)
        barrier(l, 20, vm=["w25", "wo5", "xr"])
        if G("w6at", 19) == 20: dma_last(ng)
        lds_add(12)
        l.need(drain=True)
        l(f"s_branch {fin}\n{z}:")
        l.vm = []
        em = (1 << NE) - 1
        l(f"s_cmp_eq_u32 s{sA}, 0\ns_cselect_b32 s12, {em}, {0x7f ^ em}\ns_cmp_eq_u32 s{sS}, 7\ns_cselect_b32 s12, 0x7f, s12\ns_mov_b32 s13, 0")
        if G("noinb"): l("s_mov_b32 s12, 0x7f")
        if G("tk19", True):
            sk = lab("np"); l(f"s_cmp_eq_u32 s{sA}, {ng - 1}\ns_cbranch_scc0 {sk}"); poll(); l(f"{sk}:")
        l("s_waitcnt vmcnt(0)\ns_barrier\ns_waitcnt lgkmcnt(0)\ns_and_b32 s13, s13, 0x7f")
        if "20" in PROG: op_pg(PROG["20"])
        if G("gateE"):
            gate_wait(G("gateE0", 4))
            l(f"s_load_dword s13, s[{SWS}:{SWS+1}], s24 glc")
            gate_wait(G("gateE"))
            l("s_and_b32 s13, s13, 0x7f")
        if G("x_75"): l("s_mov_b32 exec_hi, 0xffff")
        again = lab("ta")
        l(f"""s_mov_b32 s{sPoll}, 0
s_add_u32 s17, s{sS}, 6
.p2align 6
{top}:
s_andn2_b32 s14, s13, s12
s_cbranch_scc0 {again}
s_ff1_i32_b32 s14, s14
s_bitset1_b32 s12, s14
s_sub_u32 s15, s17, s14
s_sub_u32 s16, s15, 7
s_min_u32 s15, s15, s16
s_cmp_eq_u32 s14, 6
s_cselect_b32 s15, 7, s15
s_lshl_b32 s15, s15, 14
s_add_u32 s15, s15, s{sPart}
s_cmp_lt_u32 s14, 3
s_cselect_b32 s16, {(INLOC[0] + 24576) >> 12}, 0
s_lshl_b32 s14, s14, 1
s_add_u32 s14, s14, s16
s_sub_u32 s14, s14, 6
s_lshl_b32 m0, s14, 12
s_add_u32 s16, s15, 4096""")
        for q in range(4): l(f"buffer_load_dwordx4 v{vL16}, {sq(SWS)}, s15 offen offset:{1024*q} sc1 lds")
        l("s_add_u32 m0, m0, 4096\ns_cmp_eq_u32 s12, 0x7f")
        for q in range(4): l(f"buffer_load_dwordx4 v{vL16}, {sq(SWS)}, s16 offen offset:{1024*q} sc1 lds")
        l(f"""s_cbranch_scc0 {top}
{again}:
s_add_u32 s{sPoll}, s{sPoll}, 1
s_cmp_gt_u32 s{sPoll}, {SPIN}
s_cselect_b32 s12, 0x7f, s12
s_cmp_eq_u32 s12, 0x7f
s_cbranch_scc1 {out}""")
        if G("pollop", "load") == "load": l(f"s_load_dword s13, s[{SWS}:{SWS+1}], s24 glc")
        else: poll()
        l(f"s_waitcnt lgkmcnt(0)\ns_and_b32 s13, s13, 0x7f\ns_branch {top}\n{out}:")
        if STAMP: l(f"{SOP} s[64:65]")
        l("s_waitcnt vmcnt(0)")
        if STAMP: l(f"{SOP} s[66:67]\ns_waitcnt lgkmcnt(0)\nv_writelane_b32 v0, s{sPoll}, 61\nv_writelane_b32 v0, s64, 35\nv_writelane_b32 v0, s66, 36")
        if NE:
            l(f"s_cmp_eq_u32 s{sA}, 0\ns_cbranch_scc1 {fin}"); lds_add(16)
        l(f"{fin}:\ns_cmp_eq_u32 s{sS}, 7\ns_cbranch_scc1 L_Lend\ns_barrier\nL_Lend:")
    def op_tail(): tail3()
    OPS = dict(pfa=op_pfa, init=op_init, rpl=op_rpl, pfb=op_pfb, pf2=op_pf2, rps=op_rps, fl1=op_fl1, rpw=op_rpw, tab=op_tab, non=op_non, noi=op_noi,
               xr=op_xr, b2=op_b2, stg=op_stg, dr=lambda: l('s_waitcnt lgkmcnt(0)'), g6a=lambda: op_sg6(0, G('g6n', 10)), g6b=lambda: op_sg6(G('g6n', 10), 99), vm0=lambda: l.need(vm=list(l.vm)), cki=op_cki, ck=op_ck, tail=op_tail,
               lo=lambda: l("s_setprio 0"), hi=lambda: l(f"s_setprio {G('lprio',3)}"))
    for k in range(7):
        OPS[f"s{k}"] = lambda k=k: dma_w1(k); OPS[f"q{k}"] = lambda k=k: dma_wq(7 + k)
        OPS[f"g{k}"] = lambda k=k: op_g(k)
        OPS[f"v{k}"] = lambda k=k: stg_w2(k); OPS[f"u{k}"] = lambda k=k: stg_wo(k)
        OPS[f"d{k}"] = lambda k=k: put_w2(k); OPS[f"e{k}"] = lambda k=k: put_wo(k)
        OPS[f"P{k}"] = lambda k=k: l(f"s_setprio {k}")
        OPS[f"w{k}"] = lambda k=k: dma_w2(k); OPS[f"o{k}"] = lambda k=k: dma_wo(k)
    PRO = G("pro", "rpl init lo s0 tab rps noi s1 non s2")
    MID = G("mid0", "B0 hi pf2 b2 rpw B1 fl1 s3 B2 s4 B3 s5 B4 s6 dr") + " " + \
          G("mid1", "B5 q0 B6 q1 B7 q2 xr B8 q3 w002 B9 q4 w024 B10 q5 w046") + " " + \
          G("mid2", "B11 q6 w067 o0 B12 w1 o1 B13 w2 cki B14 vm0 g6a ck o2 B22 g6b o3 B15 lo w3") + " " + \
          G("mid3", "B16 w4 o4 B17 w5 o5 B18 B19 tail")
    k = 1
    for o in PRO.split():
        OPS[o](); mark(l, o)
        if o in ("bx", "rps", "s0", "s1", "s2"):
            if len(l.pend) >= 3: l.need(drain=True)
            stamp(l, k); k += 1
    T_l1 = l.cut(); l("L_L2:")
    for o in MID.split():
        if o[0] == "B":
            j = int(o[1:]); need = []
            if j <= 13: need = [f"st{j}"]
            elif j == BH: need = [f"w2{i}" for i in range(RA)]
            elif j == 15: need = ["w20", "xr"] + [f"wo{i}" for i in range(max(RA, 1))]
            elif j > 15: need = [f"w2{j-15}", f"wo{j-15}"] + (["w22", "wo2"] if RA == 2 else [])
            barrier(l, j, vm=need); mark(l, o)
            if str(j) in PROG: op_pg(PROG[str(j)])
        elif o[0] in "wvd" and len(o) == 4 and o[1:].isdigit(): dict(w=dma_w2, v=stg_w2, d=put_w2)[o[0]](int(o[1]), int(o[2]), int(o[3]))
        else: OPS[o]()
    l.need(drain=True)
    if G("spin"):
        l(f"""s_add_u32 s40, s100, {G("spin")[1]}
L_spin:
s_sleep 2
s_memrealtime s[42:43]
s_waitcnt lgkmcnt(0)
s_sub_u32 s44, s42, s40
s_cmp_lt_i32 s44, 0
s_cbranch_scc1 L_spin""")
    l("L_fin:")
    if STAMP:
        l(f"""s_waitcnt vmcnt(0)
s_memrealtime s[96:97]
{SOP} s[98:99]
s_waitcnt lgkmcnt(0)
v_writelane_b32 v0, s96, 63
v_writelane_b32 v0, s98, 41
s_mul_i32 s{sT0}, s2, 12
s_add_u32 s{sT0}, s{sT0}, s{sW}
s_lshl_b32 s{sT0}, s{sT0}, 8
s_add_u32 s{sT0}, s{sT0}, {WS_STAMP}
v_lshlrev_b32 v{vT0}, 2, v{vL}
buffer_store_dword v0, v{vT0}, {sq(SWS)}, s{sT0} offen
""")
    l("L_end:\ns_endpgm")
    T_l2 = l.cut()

    K1 = NAME + "_kernel"
    return f"""; @launch grid=(256,1,1) block=(768,1,1) lds={LDS_BYTES}
.amdgcn_target "amdgcn-amd-amdhsa--gfx950"
.text
.globl {K1}
.p2align 8
.type {K1},@function
{K1}:
{T_entry}{T_c1}{T_f2}{T_a2}{T_l1}{T_l2}{''.join(SLOW)}L_codeend:
.section .rodata,"a"
.p2align 6
.amdhsa_kernel {K1}
  .amdhsa_next_free_vgpr 168
  .amdhsa_next_free_sgpr 102
  .amdhsa_accum_offset 168
  .amdhsa_group_segment_fixed_size 0
  .amdhsa_kernarg_size 88
  .amdhsa_user_sgpr_count 2
  .amdhsa_user_sgpr_kernarg_segment_ptr 1
  .amdhsa_system_sgpr_workgroup_id_x 1
.end_amdhsa_kernel
"""

if __name__ == "__main__":
    import json
    cfg = json.loads(sys.argv[2]) if len(sys.argv) > 2 else {}
    open(sys.argv[1], "w").write(gen(cfg))
```

```python
import sys, math, struct
NAME = "parallel_sum__sliding_local_dilated__dense_activation_gelu__prompt"

class Asm:
    def __init__(self):
        self.L = []; self.vm = []; self.lg = []; self.smem = False; self.pend = []; self.nst = 0
    def __call__(self, s):
        for l in s.strip("\n").split("\n"):
            l = l.strip()
            if l: self.L.append(l if l.endswith(":") else "  " + l)
    def fork(self):
        b = Asm(); b.vm = list(self.vm); b.lg = list(self.lg); b.smem = self.smem; return b
    def cut(self):
        t = "\n".join(self.L) + "\n"; self.L = []; return t
    def vmem(self, s, tag): self(s); self.vm.append(tag)
    def ds(self, s, tag): self(s); self.lg.append(tag)
    def _cnt(self, q, tags):
        last = -1
        for i, t in enumerate(q):
            if t in tags: last = i
        return None if last < 0 else len(q) - 1 - last
    def need(self, vm=(), lg=(), drain=False):
        parts = []
        n = self._cnt(self.vm, set(vm))
        if n is not None:
            n = min(n, 62); parts.append(f"vmcnt({n})"); self.vm = self.vm[len(self.vm) - n:] if n else []
        n = self._cnt(self.lg, set(lg))
        if drain: n = 0 if (self.lg or self.smem) else None
        if n is not None:
            n = min(n, 14)
            parts.append(f"lgkmcnt({n})"); self.lg = self.lg[len(self.lg) - n:] if n else []
        if parts: self("s_waitcnt " + " ".join(parts))
        if drain:
            self.smem = False
            for sg, idx in self.pend: self(f"v_writelane_b32 v0, s{sg}, {idx}")
            self.pend = []

def vr(a, n=1): return f"v{a}" if n == 1 else f"v[{a}:{a+n-1}]"
def sq(a): return f"s[{a}:{a+3}]"
def f2u(x): return "0x%08x" % struct.unpack("<I", struct.pack("<f", x))[0]

KP = 4608
HALO = 4096
ACT = 57344
WOR = 28672
def actoff(t): return (t - 7) * 4096 if t >= 7 else 8192 + 28672 + t * 4096
RING = 65536
SLOT = 28672
BIAS = RING + 3 * SLOT
XRES = BIAS + 2048
CNT = XRES + 8192 + 128
LDS_BYTES = XRES + 8192 + 256
INLOC = [RING + SLOT, RING + SLOT + 8192, RING + SLOT + 16384, 0, 8192, 16384, 24576]
W2LOC = [0, RING + 2 * SLOT, RING, RING + SLOT, 0, RING + 2 * SLOT, RING]
WOLOC = [WOR, WOR + 7168, WOR + 2 * 7168, WOR + 3 * 7168, WOR, ACT, WOR + 7168]
FOFF = 56 * 16384
WS_WQ = 0x1000
WS_F1 = 0x140000
WS_STAMP = 0x8000000
OOB = 0x7ff00000
SPIN = 200000
SX, SWS, SOUT, SW1, SB1, SWQ, SDBG, SW2, SWO, SB2 = 28, 32, 36, 36, 40, 40, 44, 48, 52, 56
sIN, sLO, sFE, sDum = 48, 55, 3, 63
sW, sS, sRB, sA, sRH, sHI, sROW0, sT0, sT1, sT2, sT3 = 68, 69, 70, 71, 72, 73, 74, 75, 76, 77, 78
sW1o, sWQo, sW2o, sJJ, sM0, sPart, sC2, sCH = 79, 80, 81, 82, 83, 84, 85, 86
sCW, sN0, sN1, sPoll, sM1 = 93, 94, 95, 96, 97
sR, sRC, sK = 0, 1, 93

C1 = 2 * math.sqrt(2 / math.pi) * math.log2(math.e)
ALPHA = (C1 * 0.044715) ** (1 / 3)
GK = C1 / ALPHA

def gen(cfg):
    G = cfg.get
    STAMP = G("stamp", False); SOP = G("stampop", "s_memtime")
    xm = G("xmap", 4); nsh = 32 // xm
    sR, sRC = (0, 1) if STAMP else (64, 65)
    uid = [0]
    WSH = G('wsh', 10)
    FR, FP = G('fr', 0x4100), G('fp', 4)
    def lab(n): uid[0] += 1; return f"L_{n}{uid[0]}"
    def stamp(b, idx):
        if not STAMP or (G("lite") and idx not in (3, 10, 17, 24, 25, 26, 30, 31, 32, 33, 34, 37)) or getattr(b, "nostamp", False): return
        sg = (64, 66, 98, 100)[b.nst % 4]; b.nst += 1
        assert len(b.pend) < 4
        b(f"{SOP} s[{sg}:{sg+1}]"); b.smem = True; b.pend.append((sg, idx))
    def mark(b, name):
        if G("spin") and G("spin")[0] == name: b("s_memrealtime s[100:101]"); b.smem = True
    def barrier(b, j, vm=()):
        pb0 = G("prebar")
        if pb0 is not None and pb0 <= j < pb0 + 8: stamp(b, 42 + j - pb0)
        b.need(vm=vm, drain=True)
        if pb0 is not None and pb0 <= j < pb0 + 8: stamp(b, 50 + j - pb0)
        b("s_barrier")
        stamp(b, 10 + j)
    BH = 22
    def srd(b, d, p, n):
        b(f"s_mov_b32 s{d}, s{p}\ns_and_b32 s{d+1}, s{p+1}, 0xffff\ns_mov_b32 s{d+2}, {n}\ns_mov_b32 s{d+3}, 0x20000")
    def mfma(b, d, x, y, c=None):
        b(f"v_mfma_f32_16x16x32_bf16 {vr(d,4)}, {vr(x,4)}, {vr(y,4)}, {vr(d,4) if c is None else c}")
    def chunks(b):
        for i in range(7):
            b(f"s_add_u32 s{sCH+i}, s{sS if i == 0 else sCH+i-1}, 1")
            b(f"s_cmp_ge_u32 s{sCH+i}, 7\ns_cselect_b32 s{sT0}, 7, 0\ns_sub_u32 s{sCH+i}, s{sCH+i}, s{sT0}")
    SLOW = []
    def get_nonce(b, vt, cp):
        again, got = lab("na"), lab("ng")
        b(f"s_buffer_load_dword s{sN0}, {sq(SDBG)}, {64*cp}"); b.smem = True
        yield
        b.need(drain=True)
        b(f"s_mov_b32 s{sPoll}, 0\ns_cmp_eq_u32 s{sN0}, 0\ns_cbranch_scc1 {again}\n{got}:\ns_mov_b32 s{sN1}, s{sN0}")
        if STAMP: b(f"v_writelane_b32 v0, s{sPoll}, 58")
        x = Asm()
        x(f"""{again}:
v_mov_b32 v{vt}, 0
s_add_u32 s{sPoll}, s{sPoll}, 1
buffer_load_dword v{vt}, v{vt}, {sq(SDBG)}, 0 offen sc1
s_cmp_gt_u32 s{sPoll}, {SPIN}
s_waitcnt vmcnt(0)
v_readfirstlane_b32 s{sN0}, v{vt}
s_cbranch_scc1 {got}
s_cmp_eq_u32 s{sN0}, 0
s_cbranch_scc1 {again}
s_branch {got}""")
        SLOW.append(x.cut())
        yield
    def slow_poll(retry, got, vt, addr, sbase):
        x = Asm()
        x(f"""{retry}:
{addr}
s_add_u32 s{sPoll}, s{sPoll}, 1
buffer_load_dword v{vt}, v{vt}, {sq(SWS)}, s{sbase} offen sc1
s_cmp_gt_u32 s{sPoll}, {SPIN}
s_waitcnt vmcnt(0)
v_cmp_ne_u32 vcc, s{sN0}, v{vt}
s_cbranch_scc1 {got}
s_nop 1
s_cbranch_vccnz {retry}
s_branch {got}""")
        SLOW.append(x.cut())
    def first_stamps(b):
        if STAMP: b("v_writelane_b32 v0, s98, 62\nv_writelane_b32 v0, s100, 0")

    vL, vL16, vActW, vT0, vT1, vT2, vT3 = 1, 2, 3, 4, 5, 6, 7
    vXE, vXO, vG2W, vG2W2, vG2O0, vG2O2 = 8, 9, 10, 11, 12, 13
    a = Asm()
    RAW, UNP = 136, 80
    lb = xm.bit_length() - 1
    a(f"""
s_load_dwordx16 s[4:19], s[0:1], 0
{"" if G("etw") else "s_load_dwordx8 s[20:27], s[0:1], 56"}
s_cmpk_ge_u32 s2, 256
s_cbranch_scc1 L_end
s_getpc_b64 s[28:29]
L_pc:
s_lshr_b32 s3, s2, 3
v_lshrrev_b32 v{vT0}, 6, v0
v_mad_u32_u24 v{vT1}, s3, 12, v{vT0}
v_readfirstlane_b32 s{sW}, v{vT0}
v_lshlrev_b32 v{vT1}, 7, v{vT1}
v_min_u32 v{vT1}, L_codeend - L_pc - 4, v{vT1}
""")
    if G("codepf", True): a.vmem(f"global_load_dword v23, v{vT1}, s[28:29]", "pf")
    if G("delay"):
        xs, n = G("delay")
        a(f"s_and_b32 s40, s2, 7\ns_lshr_b32 s40, {xs}, s40\ns_bitcmp1_b32 s40, 0\ns_cbranch_scc0 L_nodelay")
        for _ in range(n): a("s_sleep 37")
        a("L_nodelay:")
    if G("bwprobe"):
        off, aux = G("bwprobe")
        a(f"""s_waitcnt lgkmcnt(0)
s_mov_b32 s40, s26
s_and_b32 s41, s27, 0xffff
s_mov_b32 s42, 0x10000000
s_mov_b32 s43, 0x20000
s_mul_i32 s44, s2, {12*12*1024}
s_add_u32 s44, s44, {off}
v_lshlrev_b32 v8, 4, v0""")
        for i in range(12):
            a(f"buffer_load_dwordx4 v[{32+4*i}:{35+4*i}], v8, s[40:43], s44 offen {aux}\ns_add_u32 s44, s44, {12*1024}")
        a("s_waitcnt vmcnt(0)\ns_barrier"); a.vm = []
    mark(a, "own")
    if STAMP: a(f"s_memrealtime s[98:99]\n{SOP} s[100:101]")
    if xm == 1: a(f"s_mov_b32 s{sRB}, s3")
    else: a(f"s_bfe_u32 s{sT0}, s2, {(lb << 16) | (3 - lb)}\ns_lshl_b32 s{sT0}, s{sT0}, {5-lb}\ns_lshr_b32 s{sT1}, s3, {lb}\ns_add_u32 s{sRB}, s{sT0}, s{sT1}")
    a(f"""
s_lshr_b32 s{sT0}, s{sRB}, 1
s_lshl_b32 s{sT0}, s{sT0}, 7
s_and_b32 s{sT1}, s{sRB}, 1
s_add_u32 s{sROW0}, s{sT0}, s{sT1}
""")
    ETL = G("etl", [6, 12, 14])
    aL = a.fork(); aL.L = []
    if G("etw"):
        ETL = [32, 34] + G("etw")
        aL(f"s_lshl_b32 s{sT0}, s{sW}, 4\ns_load_dwordx4 s[32:35], s[0:1], s{sT0} offset:24")
    if ETL:
        aL("s_waitcnt lgkmcnt(0)")
        for p in ETL: aL.vmem(f"global_load_ubyte v23, v{vT0}, s[{p}:{p+1}] offset:128", "pf")
    if G("epf"):
        aL(f"s_mul_i32 s{sT0}, s2, 49\nv_min_u32 v{vT1}, 48, v0\nv_add_lshl_u32 v{vT1}, v{vT1}, s{sT0}, 7\ns_waitcnt lgkmcnt(0)")
        aL.vmem(f"global_load_dword v23, v{vT1}, s[12:13]", "pf")
    if ETL or G("epf"):
        a(f"s_cmp_ge_u32 s{sW}, 4\ns_cbranch_scc1 L_C"); a.L += aL.L; a("s_branch L_L\nL_C:"); aL.L = []
    else: a(f"s_cmp_lt_u32 s{sW}, 4\ns_cbranch_scc1 L_L")
    T_entry = a.cut()
    def common2(b):
        if G("etw"): b("s_load_dwordx8 s[20:27], s[0:1], 56")
        b(f"""
v_and_b32 v{vL}, 63, v0
v_lshlrev_b32 v{vL16}, 4, v{vL}
s_and_b32 s{sA}, s{sW}, 3
""")
        if xm == 1: b(f"s_and_b32 s{sS}, s2, 7")
        else: b(f"s_and_b32 s{sT0}, s2, {8//xm - 1}\ns_lshl_b32 s{sT0}, s{sT0}, {lb}\ns_and_b32 s{sT2}, s3, {xm-1}\ns_add_u32 s{sS}, s{sT0}, s{sT2}")
        b(f"s_lshr_b32 s{sT0}, s3, {lb}")
        if xm == 8: b(f"s_lshl_b32 s{sR}, s{sT0}, 1")
        else: b(f"s_mul_i32 s{sT1}, s{sT0}, 37\ns_lshr_b32 s{sT1}, s{sT1}, 8\ns_mul_i32 s{sT1}, s{sT1}, 7\ns_sub_u32 s{sR}, s{sT0}, s{sT1}")
        b(f"s_mov_b32 s{sRC}, {'s%d' % sR if G('rotc', False) else 0}")
        if not G("rotk", True): b(f"s_mov_b32 s{sR}, 0")
        elif G('rotm', [3, 2]): b(f"s_and_b32 s{sR}, s{sT0}, {G('rotm', [3, 2])[0]}\ns_mul_i32 s{sR}, s{sR}, {G('rotm', [3, 2])[1]}")
        if STAMP: b("v_mov_b32 v0, 0")
    c = a.fork()
    c(f"v_lshrrev_b32 v{vT2}, 3, v0")
    if xm > 1 and G("xrot", False):
        c(f"s_lshl_b32 s{sT2}, s3, {6-lb}\ns_add_u32 s{sT2}, s{sT2}, 32\nv_add_u32 v{vT2}, s{sT2}, v{vT2}")
    else: c(f"v_add_u32 v{vT2}, 32, v{vT2}")
    c(f"""
v_and_b32 v{vT2}, 63, v{vT2}
v_lshl_add_u32 v{vT0}, v{vT2}, 1, s{sROW0}
v_mul_u32_u24 v{vT0}, 896, v{vT0}
v_and_b32 v{vT1}, 7, v0
v_lshl_add_u32 v{vXO}, v{vT1}, 4, v{vT0}
s_setprio {G('cprio', 1)}
s_waitcnt lgkmcnt(0)
""")
    for t in range(7):
        c.vmem(f"global_load_dwordx4 {vr(RAW+4*t,4)}, v{vXO}, s[4:5] offset:{128*t} {G('ntx','')}", f"x{t}")
        if t == G("ctat", 0):
            for p in G("ctl", []): c.vmem(f"global_load_ubyte v23, v{vT1}, s[{p}:{p+1}]", "pf")
    c("L_x256:")
    common2(c)
    first_stamps(c)
    c(f"""
s_sub_u32 s{sCW}, s{sW}, 4
s_and_b32 s{sRH}, s{sW}, 1
s_bfe_u32 s{sHI}, s{sW}, 0x10001
""")
    if G("spf", False):
        c(f"""s_lshl_b32 s{sT0}, s{sCW}, 5
s_add_u32 s{sT0}, s{sT0}, s{sRB}
s_mul_i32 s{sT0}, s{sT0}, 3584
s_mul_i32 s{sT1}, s{sS}, 448
s_add_u32 s{sT0}, s{sT0}, s{sT1}""")
        for i in range(7): c(f"s_load_dword s{sDum}, s[12:13], s{sT0} offset:{64*i}")
        c(f"""s_min_u32 s{sT2}, s{sCW}, 6
s_lshl_b32 s{sT2}, s{sT2}, 6
s_add_u32 s{sT1}, s{sT1}, s{sT2}
s_load_dword s{sDum}, s[14:15], s{sT1}
s_cmp_lt_u32 s{sCW}, 6
s_cselect_b32 s{sT2}, {256*3584}, 0
s_add_u32 s{sT0}, s{sT0}, s{sT2}""")
        for i in range(7): c(f"s_load_dword s{sDum}, s[12:13], s{sT0} offset:{64*i}")
    c(f"""
v_lshrrev_b32 v{vXE}, 4, v{vT2}
v_and_b32 v{vT1}, 15, v{vT2}
v_and_b32 v{vT0}, 3, v{vL}
v_bfe_u32 v{vT2}, v{vL}, 2, 1
v_mul_u32_u24 v{vActW}, 12, v{vT2}
v_or_b32 v{vActW}, v{vActW}, v{vT0}
v_xor_b32 v{vT1}, v{vT1}, v{vActW}
v_lshlrev_b32 v{vT1}, 4, v{vT1}
v_lshl_add_u32 v{vT1}, v{vT0}, 8, v{vT1}
v_mul_u32_u24 v{vT2}, {KP}, v{vT2}
v_lshl_add_u32 v{vT1}, v{vXE}, 10, v{vT1}
s_sub_u32 s{sT0}, 7, s{sR}
s_cmp_eq_u32 s{sR}, 0
s_cselect_b32 s{sT0}, 0, s{sT0}
s_mul_i32 s{sT0}, s{sT0}, {2*KP}
s_movk_i32 s{sT1}, {2*KP}
v_add3_u32 v{vActW}, v{vT1}, v{vT2}, s{sT0}
""")
    XA = [vActW, 40, 41, 42, 43, 44, 45]
    for t in range(1, 7): c(f"s_cmp_eq_u32 s{sR}, {t}\ns_cselect_b32 s{sT0}, {-12*KP}, s{sT1}\nv_add_u32 v{XA[t]}, s{sT0}, v{XA[t-1]}")
    c(f"s_cmp_ge_u32 s{sW}, 8\ns_cbranch_scc1 L_A2")
    T_c1 = c.cut()

    def col128(b, d, src):
        b(f"s_add_u32 s{d}, s{src}, s{sRC}\ns_sub_u32 s{sT3}, s{d}, 7\ns_min_u32 s{d}, s{d}, s{sT3}\ns_lshl_b32 s{d}, s{d}, 7")
    def halo_loads(b, HR):
        b(f"""
v_lshrrev_b32 v{vT0}, 5, v{vL}
s_lshl_b32 s{sT0}, s{sA}, 2
s_add_u32 s{sT0}, s{sT0}, s{sROW0}
s_sub_u32 s{sT0}, s{sT0}, 16
v_lshl_add_u32 v{vT0}, v{vT0}, 1, s{sT0}
s_movk_i32 s{sT3}, 896
v_mul_lo_u32 v{vT0}, v{vT0}, s{sT3}
v_and_b32 v{vT1}, 31, v{vL}
v_cmp_gt_u32 vcc, 24, v{vT1}
v_lshl_add_u32 v{vT1}, s{sR}, 3, v{vT1}
v_add_u32 v{vT2}, 32, v{vT1}
v_subrev_u32 v{vT3}, 24, v{vT1}
v_min_u32 v{vT2}, v{vT2}, v{vT3}
v_lshl_add_u32 v{vT2}, v{vT2}, 4, v{vT0}
v_subrev_u32 v{vT3}, 56, v{vT1}
v_min_u32 v{vT1}, v{vT1}, v{vT3}
v_lshl_add_u32 v{vT0}, v{vT1}, 4, v{vT0}
v_mov_b32 v{vT3}, {OOB}
v_cndmask_b32 v{vT2}, v{vT3}, v{vT2}, vcc
v_min_u32 v20, v{vT3}, v{vT0}
v_min_u32 v21, v{vT3}, v{vT2}
""")
        if HR: halo_issue(b, HR)
    def halo_issue(b, HR):
        b.vmem(f"buffer_load_dwordx4 {vr(HR[0],4)}, v20, {sq(SX)}, 0 offen", "h0")
        b.vmem(f"buffer_load_dwordx4 {vr(HR[1],4)}, v21, {sq(SX)}, 0 offen", "h1")
    HF = G("halof", True)
    def halo_write(b, HR):
        b(f"""v_lshrrev_b32 v{vT0}, 5, v{vL}
s_lshl_b32 s{sT0}, s{sA}, 1
v_add_u32 v{vT0}, s{sT0}, v{vT0}
v_and_b32 v{vT1}, 7, v{vL}
v_xor_b32 v{vT0}, v{vT0}, v{vT1}
v_lshlrev_b32 v{vT0}, 4, v{vT0}
v_and_b32 v{vT1}, 3, v{vL}
v_lshl_add_u32 v{vT0}, v{vT1}, 7, v{vT0}
v_bfe_u32 v{vT1}, v{vL}, 2, 3
v_mul_u32_u24 v{vT1}, {KP}, v{vT1}
v_add_u32 v{vT2}, v{vT0}, v{vT1}
ds_write_b128 v{vT2}, {vr(HR[0],4)} offset:{HALO}
s_mov_b32 exec_lo, 0x00ffffff
s_mov_b32 exec_hi, 0x00ffffff
ds_write_b128 v{vT2}, {vr(HR[1],4)} offset:{HALO + 8*KP}
s_mov_b64 exec, 0xff
v_lshlrev_b32 v{vT0}, 2, v{vL}
v_add_u32 v{vT0}, {CNT}, v{vT0}
v_mov_b32 v{vT1}, 0
ds_write_b32 v{vT0}, v{vT1}
s_mov_b64 exec, -1""")
    def xbases(b):
        b(f"""
v_lshrrev_b32 v{vT2}, 4, v{vL}
v_and_b32 v{vT3}, 15, v{vL}
v_xor_b32 v{vT0}, v{vT3}, v{vT2}
v_lshlrev_b32 v{vT1}, 8, v{vT2}
s_lshl_b32 s{sT0}, s{sRH}, 11
v_lshl_add_u32 v{vXE}, v{vT0}, 4, v{vT1}
v_add_u32 v{vXE}, s{sT0}, v{vXE}
v_xor_b32 v{vXO}, {12*16}, v{vXE}
""")
    def region(b, d):
        b(f"s_sub_u32 s{sT2}, 0, s{SWS}\ns_and_b32 s{sT2}, s{sT2}, 0xfffff\ns_add_u32 s{d}, s{sRB}, 2\ns_lshl_b32 s{d}, s{d}, 20\ns_add_u32 s{d}, s{d}, s{sT2}")
    def setup_s(b):
        srd(b, SWS, 26, 0x10000000); srd(b, SOUT, 22, 2048 * 896)
        region(b, sFE)
        b(f"""
s_mul_i32 s{sT2}, s{sRB}, {G('wx', [1, 7])[0]}
s_and_b32 s{sT2}, s{sT2}, {G('wx', [1, 7])[1]}
s_xor_b32 s{sW2o}, s{sT2}, s{sCW}
s_lshl_b32 s{sW2o}, s{sW2o}, 10
s_add_u32 s{sPart}, s{sFE}, s{sW2o}
s_mul_i32 s{sM1}, s{sS}, {9*16384}
s_add_u32 s{sM1}, s{sM1}, s{sPart}
s_add_u32 s{sPart}, s{sPart}, {FOFF}
s_add_u32 s{sFE}, s{sFE}, {FOFF}
""")
    def setup_v1(b):
        b(f"""
v_lshrrev_b32 v{vT0}, 2, v{vL}
v_bfe_u32 v{vT1}, v{vL}, 3, 2
s_lshr_b32 s{sT2}, s{sCW}, 1
v_xor_b32 v{vT1}, s{sT2}, v{vT1}
v_lshlrev_b32 v{vT1}, 5, v{vT1}
v_lshl_add_u32 v{vT1}, v{vT0}, 7, v{vT1}
v_and_b32 v{vT0}, 3, v{vL}
v_lshl_add_u32 v{vG2O0}, v{vT0}, 3, v{vT1}
v_add_u32 v{vG2W}, {RING}, v{vG2O0}
""")
    def act_base(b):
        b(f"s_lshl_b32 s{sT0}, s{sRH}, 11\ns_add_u32 s{sT0}, s{sT0}, {ACT}\nv_add_u32 v{vActW}, s{sT0}, v{vL16}")
    def setup_v2(b):
        b(f"v_add_u32 v{vG2W2}, {RING+2*SLOT}, v{vG2O0}\nv_xor_b32 v{vG2O2}, 64, v{vG2O0}")

    def ln_core(b, raw, nraw, unp, tags, nl, pk=True):
        S, Q = vT0, vT2
        rw = (lambda d: raw + d) if isinstance(raw, int) else (lambda d: raw[d // 4] + d % 4)
        for d in range(nraw):
            if d % 4 == 0: b.need(vm=[tags[d // 4]])
            u = unp + 2 * d
            b(f"v_lshlrev_b32 v{u}, 16, v{rw(d)}\nv_and_b32 v{u+1}, 0xffff0000, v{rw(d)}")
            if not pk:
                if d == 0: b(f"v_mov_b32 v{S}, v{u}\nv_mov_b32 v{S+1}, v{u+1}\nv_mul_f32 v{Q}, v{u}, v{u}\nv_mul_f32 v{Q+1}, v{u+1}, v{u+1}")
                else: b(f"v_add_f32 v{S}, v{S}, v{u}\nv_add_f32 v{S+1}, v{S+1}, v{u+1}\nv_fmac_f32 v{Q}, v{u}, v{u}\nv_fmac_f32 v{Q+1}, v{u+1}, v{u+1}")
            elif d == 0: b(f"v_pk_mul_f32 {vr(Q,2)}, {vr(u,2)}, {vr(u,2)}")
            elif d == 1: b(f"v_pk_add_f32 {vr(S,2)}, {vr(u-2,2)}, {vr(u,2)}\nv_pk_fma_f32 {vr(Q,2)}, {vr(u,2)}, {vr(u,2)}, {vr(Q,2)}")
            else: b(f"v_pk_add_f32 {vr(S,2)}, {vr(S,2)}, {vr(u,2)}\nv_pk_fma_f32 {vr(Q,2)}, {vr(u,2)}, {vr(u,2)}, {vr(Q,2)}")
        yield "stats"
        b(f"v_add_f32 v{S}, v{S}, v{S+1}\nv_add_f32 v{Q}, v{Q}, v{Q+1}\ns_nop 0")
        for st in ["quad_perm:[1,0,3,2]", "quad_perm:[2,3,0,1]", "row_half_mirror", "row_mirror"][:min(nl, 4)]:
            b(f"v_add_f32_dpp v{S}, v{S}, v{S} {st} row_mask:0xf bank_mask:0xf\nv_add_f32_dpp v{Q}, v{Q}, v{Q} {st} row_mask:0xf bank_mask:0xf\ns_nop 0")
        if nl >= 5:
            b(f"""v_mov_b32 v{S+1}, v{S}
v_mov_b32 v{Q+1}, v{Q}
s_nop 1
v_permlane16_swap_b32 v{S}, v{S+1}
v_permlane16_swap_b32 v{Q}, v{Q+1}
s_nop 1
v_add_f32 v{S}, v{S}, v{S+1}
v_add_f32 v{Q}, v{Q}, v{Q+1}""")
        b(f"""v_mul_f32 v{S}, {f2u(1/448)}, v{S}
v_mul_f32 v{Q}, {f2u(1/448)}, v{Q}
v_fma_f32 v{Q}, -v{S}, v{S}, v{Q}
v_max_f32 v{Q}, 0, v{Q}
""")
        if G("lnr", True): b(f"""v_cvt_pk_bf16_f32 v{Q+1}, v{S}, v{Q}
v_and_b32 v{Q}, 0xffff0000, v{Q+1}
v_add_f32 v{Q}, {f2u(1e-5)}, v{Q}
v_cvt_pk_bf16_f32 v{Q}, v{Q}, v{Q}
v_lshlrev_b32 v{Q}, 16, v{Q}
v_sqrt_f32 v{Q}, v{Q}
v_lshlrev_b32 v{S}, 16, v{Q+1}
v_cvt_pk_bf16_f32 v{Q}, v{Q}, v{Q}
v_lshlrev_b32 v{Q}, 16, v{Q}
v_rcp_f32 v{Q}, v{Q}
""")
        else: b(f"v_add_f32 v{Q}, {f2u(1e-5)}, v{Q}\nv_rsq_f32 v{Q}, v{Q}")
        b(f"""s_nop 0
v_mul_f32 v{Q}, {f2u(ALPHA)}, v{Q}
v_mul_f32 v{S}, v{S}, v{Q}
.p2align 3""")
        yield "red"
        for d in range(nraw):
            u = unp + 2 * d
            if not pk: b(f"v_fma_f32 v{u}, v{u}, v{Q}, -v{S}\nv_fma_f32 v{u+1}, v{u+1}, v{Q}, -v{S}")
            else: b(f"v_pk_fma_f32 {vr(u,2)}, {vr(u,2)}, {vr(Q,2)}, {vr(S,2)} op_sel_hi:[1,0,0] neg_lo:[0,0,1] neg_hi:[0,0,1]")
            if d >= 1: b(f"v_cvt_pk_bf16_f32 v{rw(d-1)}, v{u-2}, v{u-1}")
            yield d - 1
        u = unp + 2 * (nraw - 1)
        b(f"v_cvt_pk_bf16_f32 v{rw(nraw-1)}, v{u}, v{u+1}")
        yield nraw - 1
    def ln_main(b, hook=None):
        if G("x_noln"):
            for t in range(7):
                if G("x_noln") != 3: b.need(vm=[f"x{t}"])
                if G("x_noln") == 1: b.ds(f"ds_write_b128 v{XA[t]}, {vr(RAW+4*t,4)}", "xw")
            return
        for d in ln_core(b, RAW, 28, UNP, [f"x{t}" for t in range(7)], 3):
            if d == "stats":
                stamp(b, 2)
                if hook: hook()
            if not G("lnbatch") and isinstance(d, int) and d >= 0 and d % 4 == 3:
                b.ds(f"ds_write_b128 v{XA[d//4]}, {vr(RAW+d-3,4)}", "xw")
        if G("lnbatch"):
            for t in range(7): b.ds(f"ds_write_b128 v{XA[t]}, {vr(RAW+4*t,4)}", "xw")

    def g1_phase(b, st0, reads, mfmas, P, GAP, tail=None, head=None):
        M = [m for ks in range(14) for m in mfmas(ks)]
        per = len(M) // 14
        sched = {}
        for j in range(7):
            R0, R1 = reads(2 * j), reads(2 * j + 1)
            b0 = 2 * per * j - P; span = 2 * per - GAP; R = R0 + R1
            for i, r in enumerate(R):
                pos = b0 + (i * span) // len(R)
                if i >= len(R0): pos = max(pos, 2 * per * j - 1)
                sched.setdefault(max(pos, -1), []).append(r)
        barrier(b, st0)
        for r in sched.get(-1, []): b.ds(*r)
        if head: head()
        for m, (fn, tg) in enumerate(M):
            if (m + P) % (2 * per) == 0: barrier(b, st0 + (m + P) // (2 * per))
            b.need(lg=tg); fn()
            for r in sched.get(m, []): b.ds(*r)
            if tail: tail(m - len(M))

    RA = G("runahead", 1)
    PROG = G("prog", {"19": 1, "20": 3})
    NE = G('ne', 3); TM = G('tm', 3)
    def arrival(b, k, d, base):
        b(f"""s_add_u32 s{d+1}, s{sS}, {(1 + k) % 7}
s_sub_u32 s{d}, s{d+1}, 7
s_min_u32 s{d+1}, s{d+1}, s{d}
s_lshl_b32 s{d+1}, s{d+1}, {WSH}
s_add_u32 s{d+1}, s{d+1}, s{base}
s_cmp_eq_u32 s{sS}, 7
s_cselect_b32 s{d}, 64, {1 << k}""")
    PD = max([0] + list(PROG.values())); MIDS = G("mids", False)
    def h_frags(b, vbase):
        for t in range(7):
            for pb in range(2): b.ds(f"ds_read_b128 {vr(96+4*(9*pb+t),4)}, v{vbase} offset:{actoff(t) + pb*1024}", f"hf{t}")
    def g2_phase(b, role):
        XR, PK, AC, WR, INB, ACTR = 14, 20, 28, 44, 68, 96
        NR = 6
        P2, GAP2, LEAD = G("p2" + role, 8), G("gap2" + role, 2), G("lead2", 8)
        ET = G("et" + role, 4)
        XT = G("xt" + role, 4)
        ra = RA if role == "F" else 0
        steps = [(cc, t) for cc in range(ra) for t in range(7)] + [(cc, t) for cc in range(ra) for t in (7, 8)] + \
                [(cc, t) for cc in range(ra, 7) for t in range(9)]
        N = len(steps); at = {s: n for n, s in enumerate(steps)}
        bpos = {}
        if role == "F":
            bpos[BH] = -1
            bpos[15] = 14 * ra - G("hold15", 14) if ra else 0
        else: bpos[15] = -1
        for cc in range(1, 7):
            if ra == 2 and cc <= 2: bpos[15 + cc] = 2 * at[(2, 0)]
            elif cc == 6: bpos[21] = 2 * at[(6, 0)]
            else: bpos[15 + cc] = max(2 * at[(cc, 0)] - (P2 if cc > ra or ra == 0 else 2), bpos[14 + cc] + 1)
        R = []
        for n, (cc, t) in enumerate(steps):
            w = WR + 4 * (n % NR)
            en = bpos[BH] if (cc < ra and t < 7) else (bpos[15] if cc < ra else bpos[15 + cc])
            war = 2 * (n - NR) + 1
            rel = bpos.get(16 + cc, 10 ** 6) - GAP2
            if cc == 0 and t >= 7:
                ena = bpos[15]
                for pb in range(2):
                    R.append((f"ds_read_b128 {vr(ACTR+4*(9*pb+t),4)}, v{vActW} offset:{actoff(t) + pb*1024}", f"w{n}", ena, min(2 * n - LEAD, rel)))
            for u in range(2):
                if t < 7:
                    loc = W2LOC[cc]
                    base, o = (vG2O0, 0) if loc == 0 else ((vG2W2, 0) if loc == RING + 2 * SLOT else (vG2W, loc - RING))
                    o += (96 + 112 * u if t == 6 else 112 * (t // 3) + 32 * (t % 3) + 16 * u) * 128
                else:
                    hd = t - 7
                    base = vG2O0 if (14*hd + 6*u) % 4 == 0 else vG2O2
                    o = WOLOC[cc] + (28*hd + 12*u) * 128
                R.append((f"ds_read_b64_tr_b16 {vr(w+2*u,2)}, v{base} offset:{o}", f"w{n}", max(en, war), min(2 * n - LEAD, rel)))
        pos = [0] * len(R); nxt = 10 ** 6
        for i in reversed(range(len(R))):
            nxt = max(min(R[i][3], nxt - 1), R[i][2], -1); pos[i] = nxt
        sched = {}; prev = -1
        for i, r in enumerate(R):
            p = max(pos[i], r[2], prev, -1)
            n = int(r[1][1:])
            burst = (ra == 2 and p == bpos[16] and n < at[(2, 0)] + 4) or (p == bpos[21] and n < at[(6, 0)] + 3)
            while not burst and len(sched.get(p, [])) >= (2 if p >= 0 else G("init2", 10)) and p + 1 < 2 * n - 1 and p + 1 < bpos.get(16 + steps[n][0], 10 ** 6): p += 1
            assert p < 2 * n or p == bpos[15] or burst, (r, p)
            sched.setdefault(p, []).append(r); prev = p
        bars = {}
        for j, p in bpos.items(): bars.setdefault(p, []).append(j)
        STA = G("sta" + role, {})
        nst = [0]; pendst = []
        def site():
            cc, k = pendst.pop(0)
            b(f"s_mov_b64 exec, s[{4+2*k}:{5+2*k}]")
            b.vmem(f"buffer_store_dwordx4 {vr(INB+4*cc,4)}, v{vL16}, {sq(SWS)}, s{sM1} offen sc1", f"p{cc}")
            b("s_mov_b64 exec, -1")
        def store(cc):
            assert nst[0] == cc; nst[0] += 1
            if cc == 0:
                b.need(lg=["h"])
                b(f"v_readfirstlane_b32 s{sT0}, v{vT3}\ns_nop 0\ns_add_u32 s{sM1}, s{sM1}, s{sT0}\ns_add_u32 s{sFE}, s{sFE}, s{sT0}")
            while pendst: site()
            b(f"s_add_u32 s{sM1}, s{sM1}, {8*16384}\ns_cmp_ge_u32 s{sM1}, s{sPart}\ns_cselect_b32 s{sT0}, {FOFF}, 0\ns_sub_u32 s{sM1}, s{sM1}, s{sT0}")
            if G("stag") and cc < 5:
                if cc == 0:
                    for k in range(4):
                        if G("stag") == "wave": b(f"s_cmp_eq_u32 s{sA}, {k}\ns_cselect_b64 s[{4+2*k}:{5+2*k}], -1, 0")
                        else: b(f"s_bfm_b64 s[{4+2*k}:{5+2*k}], 16, {16*k}")
                while pendst: site()
                pendst.extend((cc, k) for k in range(4)); site(); return
            while pendst: site()
            if G("x_75"): b.vmem(f"s_mov_b32 exec_hi, 0xffff\nbuffer_store_dwordx4 {vr(INB+4*cc,4)}, v{vL16}, {sq(SWS)}, s{sM1} offen sc1\ns_mov_b32 exec_hi, -1", f"p{cc}")
            elif not G("nopst"): b.vmem(f"buffer_store_dwordx4 {vr(INB+4*cc,4)}, v{vL16}, {sq(SWS)}, s{sM1} offen {G('pst','sc1')}", f"p{cc}")
        def epi(cc):
            ac = AC + 8 * (cc % 2)
            for q in range(4): b(f"v_cvt_pk_bf16_f32 v{INB+4*cc+q}, v{ac+2*q}, v{ac+2*q+1}")
            if str(cc) not in STA: store(cc)
        def signal(off, steps, left):
            nf = lab("nf")
            b(f"v_mov_b32 v{vT0}, {CNT + off}\nv_mov_b32 v{vT1}, 1")
            for k in steps: arrival(b, k, 4 + 2 * k, sFE)
            b(f"""s_mov_b64 exec, 1
s_waitcnt vmcnt({left})
ds_add_rtn_u32 v{vT1}, v{vT0}, v{vT1}
s_waitcnt lgkmcnt(0)
v_cmp_eq_u32 vcc, 7, v{vT1}
s_mov_b64 exec, -1
s_nop 0
s_cbranch_vccz {nf}""")
            for k in reversed(steps): b(f"s_atomic_add s{4+2*k}, s[{SWS}:{SWS+1}], s{5+2*k}")
            b(f"{nf}:")
        def lds_wait(off, val):
            top, ok = lab("lw"), lab("lo")
            b.need(drain=True)
            b(f"""v_mov_b32 v{vT2}, {CNT + off}
s_mov_b32 s{sPoll}, 0
{top}:
ds_read_b32 v{vT3}, v{vT2}
s_add_u32 s{sPoll}, s{sPoll}, 1
s_cmp_gt_u32 s{sPoll}, {SPIN * 16}
s_waitcnt lgkmcnt(0)
v_cmp_gt_u32 vcc, {val}, v{vT3}
s_cbranch_scc1 {ok}
s_nop 0
s_cbranch_vccnz {top}
{ok}:""")
        def before_own():
            b(f"""v_and_b32 v{vT0}, 15, v{vL}
v_bfe_u32 v{vT1}, v{vL}, 1, 2
s_lshr_b32 s{sT1}, s{sCW}, 1
v_xor_b32 v{vT1}, s{sT1}, v{vT1}
v_lshlrev_b32 v{vT1}, 5, v{vT1}
v_lshl_add_u32 v{vT1}, v{vT0}, 7, v{vT1}
v_lshrrev_b32 v{vT2}, 4, v{vL}
v_lshlrev_b32 v{vT2}, 3, v{vT2}""")
            epi(5)
            stamp(b, 33)
            if G("gate") or G("gateE"): b(f"v_mov_b32 v{vXE}, {CNT + 20}\nv_mov_b32 v{vXO}, 1\ns_mov_b64 exec, 1\nds_add_u32 v{vXE}, v{vXO}\ns_mov_b64 exec, -1"); b.lg.append("gt")
            ns, s7 = lab("ns"), lab("s7")
            b(f"s_cmp_eq_u32 s{sS}, 7\ns_cbranch_scc1 {s7}")
            x = Asm(); x(f"{s7}:")
            for q in range(8): x(f"v_mov_b32 v{AC+q}, 0")
            x(f"s_branch {ns}"); SLOW.append(x.cut())
            col128(b, sM0, sS)
            b(f"""s_lshl_b32 s{sT0}, s{sRH}, 12
s_add_u32 s{sT0}, s{sT0}, {XRES}
v_add3_u32 v{vT1}, v{vT1}, v{vT2}, s{sT0}
s_lshl_b32 s{sT1}, s{sT1}, 5
s_add_u32 s{sM0}, s{sM0}, s{sT1}
s_movk_i32 s{sLO}, 0x3f80
s_add_u32 s{sT1}, s{sT1}, {XRES + 8192}
v_add_u32 v{vT2}, s{sT1}, v{vT2}""")
            b.ds(f"ds_read_b64 {vr(XR,2)}, v{vT1}", "xr")
            b.ds(f"ds_read_b64 {vr(XR+2,2)}, v{vT1} offset:2048", "xr")
            b.ds(f"ds_read_b64 {vr(XR+4,2)}, v{vT2}", "xr")
            b(f"""s_lshl_b32 s{sT0}, s{sRH}, 6
s_add_u32 s{sT0}, s{sT0}, s{sROW0}
v_lshl_add_u32 v{vT0}, v{vT0}, 1, s{sT0}
v_bfe_u32 v{vT1}, v{vL}, 4, 1
v_lshl_add_u32 v{vT0}, v{vT1}, 5, v{vT0}
v_mul_u32_u24 v{vT0}, 896, v{vT0}
v_lshrrev_b32 v{vT2}, 5, v{vL}
v_lshl_add_u32 v{vXE}, v{vT2}, 4, v{vT0}
v_mov_b32 v{vXO}, 0x3f800000""")
            b.need(lg=["xr"])
            for d in range(2):
                b(f"v_lshlrev_b32 v{vT0}, 16, v{XR+4+d}\nv_and_b32 v{vT1}, 0xffff0000, v{XR+4+d}")
                for pb in range(2):
                    q = AC + 4 * pb + 2 * d
                    b(f"v_dot2_f32_bf16 v{q}, v{XR+2*pb+d}, s{sLO}, v{vT0}\nv_dot2_f32_bf16 v{q+1}, v{XR+2*pb+d}, v{vXO}, v{vT1}")
            stamp(b, 37)
            if True:
                if MIDS: signal(8, list(range(PD, 5)), 1)
                signal(0, list(range(5 if MIDS else PD, 6)), 0)
                b(f"{ns}:")
                stamp(b, 34)
        if role == "A": act_base(b)
        def h_read():
            b(f"v_mov_b32 v{vT3}, {CNT + 4}"); b.ds(f"ds_read_b32 v{vT3}, v{vT3}", "h")
        for j in bars.get(-1, []):
            barrier(b, j)
            if j == 15: h_read()
            if j == BH: h_frags(b, vActW)
        for r in sched.get(-1, []): b.ds(*r[:2])
        epi_at = {}
        for cc in range(2 if ra == 2 else 0, 5):
            n = at[(cc, 8)] + ET
            if cc + 2 < 7: n = min(n, at[(cc + 2, 0)] - 1)
            epi_at.setdefault(n, []).append((cc, n - at[(cc, 8)]))
        for n in range(N):
            cc, t = steps[n]
            ac = AC + 8 * (cc % 2); w = WR + 4 * (n % NR)
            for pb in range(2):
                m = 2 * n + pb
                early = []
                for j in bars.get(m, []):
                    if j == 21: before_own()
                    if j == 21 and TM == 3: lds_wait(12, 3 if not NE else 2); stamp(b, 31)
                    else: barrier(b, j, vm=[f"p{k}" for k in range(PROG.get(str(j), 0))])
                    if j == 15: h_read()
                    if ra == 2 and j == 16:
                        early = list(sched.get(m, []))
                        for r in early: b.ds(*r[:2])
                        epi(0); epi(1)
                    elif j == 21:
                        early = list(sched.get(m, []))
                        for r in early: b.ds(*r[:2])
                    elif not early:
                        early = [r for r in sched.get(m, []) if int(r[1][1:]) == n]
                        for r in early: b.ds(*r[:2])
                b.need(lg=[f"w{n}", f"hf{t}"])
                q = pb ^ (t & 1) if G("snake", True) else pb
                mfma(b, ac + 4 * q, w, ACTR + 4 * (9 * q + t), "0" if (t == 0 and cc < 6) else None)
                for r in sched.get(m, []):
                    if r not in early: b.ds(*r[:2])
            if pendst and n % G("stagd", 2) == 0: site()
            for e, dist in epi_at.get(n, []):
                if dist < 4: b(f"s_nop {7 - 2 * dist}")
                epi(e)
            for k, v in STA.items():
                if v == f"{cc},{t}": store(int(k))
        own, done = lab("own"), lab("done")
        if STAMP: b.need(drain=True); b(f"{SOP} s[64:65]")
        b(f"s_cmp_lg_u32 s{sS}, 7\ns_cbranch_scc1 {own}\ns_nop 5")
        epi(6)
        if G('mid7', True): signal(8, list(range(PD, 6)), 1)
        signal(0, list(range(6 if G('mid7', True) else PD, 7)), 0)
        b(f"s_branch {done}\n{own}:")
        b(f"""s_nop 0
v_add_u32 v{vT0}, s{sW2o}, v{vL16}
v_add_u32 v{vT1}, {RING}, v{vT0}
s_nop 1""")
        b.vm = []
        def take(slots):
            for i in slots:
                base, o = (vT1, INLOC[i] - RING) if INLOC[i] >= RING else (vT0, INLOC[i])
                b.ds(f"ds_read_b128 {vr(INB+4*i,4)}, v{base} offset:{o}", f"in{i}")
            for i in slots:
                b.need(lg=[f"in{i}"])
                for d in range(4):
                    b(f"v_dot2_f32_bf16 v{AC+2*d}, v{INB+4*i+d}, s{sLO}, v{AC+2*d}\nv_dot2_f32_bf16 v{AC+2*d+1}, v{INB+4*i+d}, v{vXO}, v{AC+2*d+1}")
        if TM == 2 and NE: b("s_barrier")
        if TM == 3 and NE: lds_wait(16, 1)
        take(range(NE))
        if STAMP: b(f"{SOP} s[66:67]")
        b("s_barrier")
        if STAMP: b(f"{SOP} s[98:99]")
        take(range(NE, 7))
        b("s_nop 1")
        for q in range(4): b(f"v_cvt_pk_bf16_f32 v{PK+q}, v{AC+2*q}, v{AC+2*q+1}")
        b(f"s_nop 1\nv_permlane16_swap_b32 v{PK}, v{PK+2}\nv_permlane16_swap_b32 v{PK+1}, v{PK+3}\ns_nop 0")
        b(f"buffer_store_dwordx4 {vr(PK,4)}, v{vXE}, {sq(SOUT)}, s{sM0} offen {G('ost','')}")
        if STAMP: b(f"s_waitcnt lgkmcnt(0)\nv_writelane_b32 v0, s66, 39\nv_writelane_b32 v0, s98, 40")
        b(f"{done}:")
        if STAMP: b(f"s_waitcnt lgkmcnt(0)\nv_writelane_b32 v0, s64, 38\ns_branch L_fin")
        else: b("s_endpgm")

    f = c.fork(); f.nostamp = G('nof')
    vWA, vWB, vWA2, vWB2, vC1, vBi = 14, 15, 16, 17, 18, 19
    FACC = 24; FBUF = (80, 116)
    srd(f, SB1, 14, 1792 * 2)
    FH = (FACC + 4, FACC + 12)
    if HF: srd(f, SX, 4, 2048 * 896); halo_loads(f, None)
    f(f"""s_mul_i32 s{sT3}, s{sS}, 448
s_mul_i32 s{sT1}, s{sHI}, 224
s_add_u32 s{sT3}, s{sT3}, s{sT1}
s_lshl_b32 s{sT2}, s{sA}, 9
s_add_u32 s{sT2}, s{sT2}, {BIAS}
v_lshlrev_b32 v22, 2, v{vL}
v_lshl_add_u32 v{vC1}, v{vL}, 3, s{sT2}""")
    def bias_dma():
        f.vmem(f"buffer_load_dword v{FACC+52}, v22, {sq(SB1)}, s{sT3} offen", "bias")
        if HF: halo_issue(f, FH)
    def wbases():
        f(f"""v_lshrrev_b32 v{vT2}, 4, v{vL}
v_lshlrev_b32 v{vT0}, 3, v{vT2}
v_lshl_add_u32 v{vBi}, v{vT2}, 4, s{sT2}
v_bfe_u32 v{vT1}, v{vL}, 2, 2
v_add_u32 v{vT0}, v{vT0}, v{vT1}
v_mul_u32_u24 v{vT0}, 448, v{vT0}
v_and_b32 v{vT1}, 3, v{vL}
v_lshl_add_u32 v{vT0}, v{vT1}, 3, v{vT0}
s_add_u32 s{sT1}, s{sT1}, {RING}
v_add_u32 v{vT0}, s{sT1}, v{vT0}
v_and_b32 v{vT1}, 1, v{vT2}
s_lshl_b32 s{sT2}, s{sHI}, 6
s_sub_u32 s{sT2}, 32, s{sT2}
v_mul_lo_u32 v{vT1}, v{vT1}, s{sT2}
v_add_u32 v{vWA}, v{vT0}, v{vT1}
v_sub_u32 v{vWB}, v{vT0}, v{vT1}
v_add_u32 v{vWA2}, {2*SLOT}, v{vWA}
v_add_u32 v{vWB2}, {2*SLOT}, v{vWB}
s_mov_b32 s{sC2}, {f2u(-GK)}
s_mov_b32 s{sJJ}, {f2u(ALPHA)}
""")
        xbases(f)
    FE = G("fearly", 1)
    if FE == 1: bias_dma()
    wbases()
    if G("etw"): f("s_waitcnt lgkmcnt(0)")
    if not G('fl8'): setup_s(f); setup_v1(f); setup_v2(f)
    if FE == 2: bias_dma()
    stamp(f, 1)
    ln_main(f, None if FE else bias_dma)
    stamp(f, 3)
    f(f"s_setprio {G('fprio0', 0)}")
    f.need(vm=["bias"])
    f(f"""v_and_b32 v{FACC+53}, 0xffff0000, v{FACC+52}
v_lshlrev_b32 v{FACC+52}, 16, v{FACC+52}
v_mul_f32 v{FACC+53}, s{sJJ}, v{FACC+53}
v_mul_f32 v{FACC+52}, s{sJJ}, v{FACC+52}""")
    f.ds(f"ds_write_b64 v{vC1}, {vr(FACC+52,2)}", "bias")
    for cb in range(7): f.ds(f"ds_read_b128 {vr(FACC+8*cb,4)}, v{vBi} offset:{64*cb}", "bias")
    if G("x_nohalo"): f.need(vm=["h1"])
    else:
        for _ in ln_core(f, FH, 8, UNP, ["h0", "h1"], 5): pass
    halo_write(f, FH)
    act_base(f)
    f.smem = True
    f("s_setprio 2")
    def f_reads(ks):
        B = FBUF[ks % 2]; slot = (ks // 2) % 3; out = []
        xb = vXE if ks % 2 == 0 else vXO
        for pb in range(2):
            out.append((f"ds_read_b128 {vr(B+4*pb,4)}, v{xb} offset:{pb*1024 + ks*KP}", f"x{ks}"))
        for cb in range(7):
            base = (vWA if cb % 2 == 0 else vWB) + (2 if slot == 2 else 0)
            o = (SLOT if slot == 1 else 0) + (ks % 2) * 14336 + cb * 32
            for u in range(2):
                out.append((f"ds_read_b64_tr_b16 {vr(B+8+4*cb+2*u,2)}, v{base} offset:{o + u*1792}", f"w{ks}_{cb}"))
        return out
    def f_mfmas(ks):
        B = FBUF[ks % 2]; out = []
        for cb in range(7):
            for pb in ((1, 0) if ks == 0 else (0, 1)):
                cin = vr(FACC + 8*cb, 4) if ks == 0 else None
                out.append((lambda cb=cb, pb=pb, cin=cin: mfma(f, FACC + 8*cb + 4*pb, B + 8 + 4*cb, B + 4*pb, cin), [f"x{ks}", f"w{ks}_{cb}"]))
        return out
    g1_phase(f, 0, f_reads, f_mfmas, G("pF", 12), G("gapF", 4))
    f(f"s_setprio {G('gprio', 0)}")
    H, GT = 80, 108
    f(f"""s_lshl_b32 s{sT1}, s{sHI}, 3
s_mul_i32 s{sT2}, s{sHI}, {3*4096}
v_add_u32 v{vWA}, s{sT1}, v{vActW}
v_add_u32 v{vWB}, s{sT2}, v{vActW}""")
    ops = []
    for cb in range(7):
        a0 = FACC + 8 * cb; E = range(8) if not G("nogelu") else range(0)
        for e in E: ops.append((4, f"v_fma_f32 v{GT+e}, -v{a0+e}, v{a0+e}, s{sC2}"))
        for e in E: ops.append((4, f"v_mul_f32 v{GT+e}, v{GT+e}, v{a0+e}"))
        for e in E: ops.append((8, f"v_exp_f32 v{GT+e}, v{GT+e}"))
        for e in E: ops.append((4, f"v_fma_f32 v{GT+e}, v{GT+e}, s{sJJ}, s{sJJ}"))
        for e in E: ops.append((8, f"v_rcp_f32 v{GT+e}, v{GT+e}"))
        for e in E: ops.append((4, f"v_mul_f32 v{GT+e}, v{GT+e}, v{a0+e}"))
        for q in range(4):
            d = H + 24 + q if cb == 6 else H + 8 * (cb // 2) + 4 * (q // 2) + 2 * (cb % 2) + q % 2
            ops.append((4, f"v_cvt_pk_bf16_f32 v{d}, v{GT+2*q}, v{GT+2*q+1}"))
    sl = []
    bud = G("gbud", [200, 284, 284, 284, 284, 284, 284]); acc = 0; j = 8; lim = bud[0]
    for k, (cost, op) in enumerate(ops):
        if acc + cost > lim and j <= 14:
            barrier(f, j); j += 1
            lim += bud[j - 8] if j <= 14 else 10 ** 6
        acc += cost; f(op)
        if sl and k % 4 == 3: f(sl.pop(0))
    while j <= 14:
        barrier(f, j); j += 1
    f("s_setprio 3")
    for p in range(0 if G("x_nohw") else 3):
        for pb in range(2): f.ds(f"ds_write_b128 v{vWB}, {vr(H+8*p+4*pb,4)} offset:{actoff(p) + pb*1024}", "hw")
    f.ds(f"ds_write2st64_b64 v{vWA}, {vr(H+24,2)}, {vr(H+26,2)} offset0:{actoff(6)//512} offset1:{(actoff(6) + 1024)//512}", "hw")
    if G('fl8'): setup_s(f); setup_v1(f); setup_v2(f)
    f(f"s_setprio {G('f2prio', 1)}")
    g2_phase(f, "F")
    T_f2 = f.cut()

    w = c.fork(); w.nostamp = G('noa')
    vXPE, vXPO, vQA, vQA2, vZ, vMask, vPM = 14, 15, 16, 17, 18, 20, (11, 13)
    AACC = 32; ABUF = (96, 132); vHalo = 32
    w("L_A2:")
    stamp(w, 1)
    ln_main(w)
    stamp(w, 3)
    w("s_setprio 0")
    barrier(w, 0)
    srd(w, SDBG, 24, 256)
    setup_s(w); xbases(w)
    PN = G("pn", 20)
    def probe():
        sk, lp, dn = lab("nv"), lab("vl"), lab("vd")
        w.need(drain=True)
        w(f"""s_and_b32 s{sT0}, s{sS}, 5
s_or_b32 s{sT0}, s{sT0}, s{sA}
s_cbranch_scc1 {sk}
s_lshl_b32 s28, s{sS}, 5
s_add_u32 s28, s28, s{sRB}
s_lshl_b32 s28, s28, 7
s_add_u32 s28, s28, {WS_F1}
s_mov_b32 s50, 0
s_mov_b32 s29, 0
.p2align 5
s_load_dword s50, s[{SWS}:{SWS+1}], s28 glc
{lp}:
s_cmp_eq_u32 s50, s{sN0}
s_cbranch_scc1 {dn}
s_add_u32 s29, s29, 1
s_cmp_lt_u32 s29, {PN}
s_cbranch_scc1 {lp}
{dn}:
s_add_u32 s28, s28, s{SWS}
s_lshr_b32 s30, s28, 8
s_xor_b32 s28, s28, s30
s_lshl_b32 s30, s{sRB}, 9
s_xor_b32 s28, s28, s30
s_sub_u32 s30, 0, s29
s_bitcmp1_b32 s28, 13
s_cselect_b32 s30, s30, s29
s_add_u32 s30, s30, {0x10000 + 32}
s_atomic_add s30, s[{SDBG}:{SDBG+1}], 128""")
        if STAMP: w("v_writelane_b32 v0, s30, 59")
        w(f"{sk}:")
    def probes(j):
        if j == G("pat", 5): probe()
    barrier(w, 1)
    gn = get_nonce(w, vT0, 1); next(gn)
    w(f"""
; Wqkv read base: (16*(g>>1) + 4*(g&1) + r)*352 + hd*56 + c4*8
v_lshrrev_b32 v{vT0}, 5, v{vL}
v_bfe_u32 v{vT1}, v{vL}, 2, 3
v_lshl_add_u32 v{vT0}, v{vT0}, 4, v{vT1}
v_mul_u32_u24 v{vT0}, 352, v{vT0}
v_and_b32 v{vT1}, 3, v{vL}
v_lshl_add_u32 v{vT0}, v{vT1}, 3, v{vT0}
s_mul_i32 s{sT0}, s{sHI}, 56
s_add_u32 s{sT0}, s{sT0}, {RING}
v_add_u32 v{vQA}, s{sT0}, v{vT0}
v_add_u32 v{vQA2}, {2*SLOT}, v{vQA}
v_lshrrev_b32 v{vT2}, 4, v{vL}
v_and_b32 v{vT0}, 7, v{vL}
v_xor_b32 v{vT0}, v{vT0}, v{vT2}
v_lshlrev_b32 v{vT0}, 4, v{vT0}
v_lshl_add_u32 v{vT0}, v{vT2}, 7, v{vT0}
v_add_u32 v{vT0}, {HALO}, v{vT0}
v_subrev_u32 v{vT1}, 1024, v{vXE}
s_cmp_eq_u32 s{sRH}, 0
s_cselect_b64 vcc, -1, 0
s_cselect_b32 s{sT0}, 64, 192
v_cndmask_b32 v{vXPE}, v{vT1}, v{vT0}, vcc
v_xor_b32 v{vXPO}, s{sT0}, v{vXPE}
v_cmp_ne_u32 vcc, 0, v{vT2}
s_lshl_b32 s{sT0}, s{sRH}, 11
s_lshl_b32 s{sT1}, s{sHI}, 12
v_cndmask_b32 v{vZ}, 0, -1, vcc
s_add_u32 s{sT0}, s{sT0}, s{sT1}
v_add_u32 v{vActW}, s{sT0}, v{vL16}
""")
    setup_v1(w)
    w(f"""
s_lshl_b32 s{sT3}, s{sS}, 5
s_mul_i32 s{sT0}, s{sA}, 7
s_add_u32 s{sT3}, s{sT3}, s{sT0}
s_lshl_b32 s{sT3}, s{sT3}, 7
s_add_u32 s{sT3}, s{sT3}, {WS_F1}
""")
    w.smem = True; next(gn)
    barrier(w, 2)
    def prelude():
        w(f"""
v_and_b32 v{vT0}, 15, v{vL}
v_lshrrev_b32 v{vT2}, 4, v{vL}
v_lshlrev_b32 v{vT2}, 2, v{vT2}
v_sub_u32 v{vT0}, v{vT0}, v{vT2}
v_mov_b32 v{vT3}, {f2u(-1e30)}
v_mov_b32 v19, 0xffff
s_lshr_b32 s{sT0}, s{sRB}, 1
s_or_b32 s{sT0}, s{sT0}, s{sRH}
s_cmp_eq_u32 s{sT0}, 0
s_cselect_b32 s{sT1}, 0, 8
s_mov_b32 s{sC2}, {f2u(28 ** -0.5 * math.log2(math.e) / ALPHA ** 2)}
""")
    def mask(jj):
        w(f"""
v_subrev_u32 v{vT1}, {jj}, v{vT0}
v_add_u32 v{vT2}, 16, v{vT1}
v_cmp_gt_u32 s[60:61], 8, v{vT1}
v_cmp_gt_u32 s[40:41], 8, v{vT2}
v_cmp_gt_u32 vcc, s{sT1}, v{vT2}
v_cndmask_b32 v{vMask+4+jj}, v{vT3}, 0, s[60:61]
v_cndmask_b32 v{vMask+jj}, v{vT3}, 0, s[40:41]
v_cndmask_b32 v{vMask+8+jj}, v{vT3}, 0, vcc
""")
        if jj % 2 == 0: w(f"v_cndmask_b32 v{vPM[jj//2]}, 0, v19, s[60:61]")
        else: w(f"v_cndmask_b32 v{vT1}, 0, v19, s[60:61]\nv_lshl_or_b32 v{vPM[jj//2]}, v{vT1}, 16, v{vPM[jj//2]}")
    PQ = [4, 8, 12, 16, 20, 24, 56]
    def p1_issue():
        for i, q in enumerate(PQ): w(f"s_buffer_load_dword s{4+i}, {sq(SWS)}, s{sT3} offset:{128*i}")
    prelude(); mask(0); mask(1)
    barrier(w, 3)
    probes(3)
    if not G("p1late"): p1_issue()
    barrier(w, 4)
    if G("p1late"): p1_issue()
    w.smem = True
    chk, retry, got = lab("pc"), lab("pr"), lab("pg")
    w.need(drain=True)
    w(f"s_mov_b32 s{sPoll}, 0\n{chk}:")
    for q in (4, 6, 8): w(f"s_cmp_eq_u64 s[{q}:{q+1}], s[{sN0}:{sN1}]\ns_cbranch_scc0 {retry}")
    w(f"s_cmp_eq_u32 s10, s{sN0}\ns_cbranch_scc0 {retry}")
    w(f"{got}:")
    if STAMP: w(f"v_writelane_b32 v0, s{sPoll}, 60")
    slow_poll(retry, got, vT1, f"v_min_u32 v{vT1}, 6, v{vL}\nv_lshlrev_b32 v{vT1}, 7, v{vT1}", sT3)
    probes(4)
    barrier(w, 5)
    probes(5)
    mask(2); mask(3)
    barrier(w, 6)
    probes(6)
    v19h = 19
    w(f"s_lshl_b32 s{sT0}, s{sRH}, 11\ns_add_u32 s{sT0}, s{sT0}, {ACT}\nv_add_u32 v{v19h}, s{sT0}, v{vL16}")
    w(f"s_setprio {G('aprio',2)}")
    def a_reads(ks):
        B = ABUF[ks % 2]; slot = (7 + ks // 2) % 3; out = []
        xb = vXE if ks % 2 == 0 else vXO
        xp = vXPE if ks % 2 == 0 else vXPO
        out.append((f"ds_read_b128 {vr(B+4,4)}, v{xb} offset:{ks*KP}", f"x{ks}"))
        out.append((f"ds_read_b128 {vr(B+8,4)}, v{xb} offset:{1024 + ks*KP}", f"x{ks}"))
        base = vQA2 if slot == 2 else vQA
        for sec in range(3):
            if sec == 1: out.append((f"ds_read_b128 {vr(B,4)}, v{xp} offset:{ks*KP}", f"xp{ks}"))
            for db in range(2):
                o = (SLOT if slot == 1 else 0) + (ks % 2) * 32 * 352 + sec * 112 + db * 24
                for u in range(2):
                    out.append((f"ds_read_b64_tr_b16 {vr(B+12+4*(2*sec+db)+2*u,2)}, v{base} offset:{o + u*8*352}", f"w{ks}_{sec}{db}"))
        return out
    def a_mfmas(ks):
        B = ABUF[ks % 2]; out = []
        c0 = "0" if ks == 0 else None
        for db in range(2):
            for qb in range(2):
                out.append((lambda db=db, qb=qb: mfma(w, AACC + (2*db+qb)*4, B + 12 + 4*db, B + 4 + 4*qb, c0), [f"x{ks}", f"w{ks}_0{db}"]))
        for db in range(2):
            for kb in range(3):
                out.append((lambda db=db, kb=kb: mfma(w, AACC + 16 + (3*db+kb)*4, B + 20 + 4*db, B + 4*kb, c0), [f"xp{ks}", f"w{ks}_1{db}"]))
        for db in range(2):
            for kb in range(3):
                out.append((lambda db=db, kb=kb: mfma(w, AACC + 40 + (3*db+kb)*4, B + 4*kb, B + 28 + 4*db, c0), [f"w{ks}_2{db}"]))
        if G("x_q14"): del out[13]; del out[10]
        return out
    QP, KPk, VP, ONES, SS, MM, PP, LL, OO = 96, 104, 72, 128, 132, 64, 48, 160, 32
    tl = []
    for q in range(4): tl.append(f"v_mov_b32 v{ONES+q}, 0x3f803f80")
    for db in range(2):
        for qb in range(2):
            s0 = AACC + (2*db+qb)*4
            for h in range(2): tl.append(f"v_cvt_pk_bf16_f32 v{QP+4*qb+2*db+h}, v{s0+2*h}, v{s0+2*h+1}")
    for db in range(2):
        for kb in range(3):
            s0 = AACC + 16 + (3*db+kb)*4
            for h in range(2): tl.append(f"v_cvt_pk_bf16_f32 v{KPk+4*kb+2*db+h}, v{s0+2*h}, v{s0+2*h+1}")
    for qb in range(2):
        for h in range(2): tl.append(f"v_and_b32 v{QP+4*qb+2+h}, v{vZ}, v{QP+4*qb+2+h}")
    def a_tail(m):
        if m >= -10:
            for _ in range(2): w(tl.pop(0))
    g1_phase(w, 7, a_reads, a_mfmas, G("pA", 10), G("gapA", 3), a_tail)
    stamp(w, 5)
    for x in tl: w(x)
    vc = []
    for db in range(2):
        for kb in range(3):
            s0 = AACC + 40 + (3*db+kb)*4
            for h in range(2): vc.append(f"v_cvt_pk_bf16_f32 v{VP+6*db+2*kb+h}, v{s0+2*h}, v{s0+2*h+1}")
    def fill(n):
        for _ in range(n): w(vc.pop(0) if vc else "s_nop 0")
    for qb in range(2):
        for t in range(2):
            m = vMask + 4 if t == 1 else (vMask + 8 if qb == 0 else vMask)
            mfma(w, SS + 8*qb + 4*t, KPk + 4*(qb+t), QP + 4*qb, vr(m, 4))
    fill(4); w("s_nop 1")
    T, U = vT0, vT1
    for qb in range(2):
        for e in range(4): w(f"v_max_f32 v{MM+4*qb+e}, v{SS+8*qb+e}, v{SS+8*qb+4+e}")
    for qb in range(2): w(f"v_max3_f32 v{T+qb}, v{MM+4*qb}, v{MM+4*qb+1}, v{MM+4*qb+2}")
    for qb in range(2): w(f"v_max_f32 v{T+qb}, v{T+qb}, v{MM+4*qb+3}")
    fill(2); w(f"v_permlane32_swap_b32 v{T}, v{U}"); fill(1)
    w(f"v_max_f32 v{T}, v{T}, v{U}\nv_mov_b32 v{U}, v{T}")
    fill(2); w(f"v_permlane16_swap_b32 v{T}, v{U}"); fill(1)
    w(f"v_max_f32 v{T}, v{T}, v{U}\nv_mul_f32 v{U}, s{sC2}, v{T}\nv_mul_f32 v{T}, s{sC2}, v{T}")
    fill(2); w(f"v_permlane32_swap_b32 v{T}, v{U}"); fill(1)
    assert not vc
    rest = []
    r = rest.append
    for qb in range(2):
        m0 = MM + 4*qb
        for e in range(4): r(f"v_fma_f32 v{m0+e}, v{m0+e}, s{sC2}, -v{T+qb}")
        for e in range(4): r(f"v_exp_f32 v{m0+e}, v{m0+e}")
        r(f"v_cvt_pk_bf16_f32 v{m0}, v{m0}, v{m0+1}"); r(f"v_cvt_pk_bf16_f32 v{m0+2}, v{m0+2}, v{m0+3}")
        for h in range(2): r(f"v_bfi_b32 v{PP+4*qb+h}, v{vPM[h]}, 0, v{m0+2*h}")
        for h in range(2): r(f"v_and_b32 v{PP+4*qb+2+h}, v{vPM[h]}, v{m0+2*h}")
        x = Asm()
        if qb == 0: x("s_nop 1")
        else: setup_v2(x)
        mfma(x, LL + 4*qb, ONES, PP + 4*qb, "0")
        for db in range(2): mfma(x, OO + 8*qb + 4*db, VP + 6*db + 2*qb, PP + 4*qb, "0")
        rest += x.L
    for qb in range(2):
        r(f"v_rcp_f32 v{LL+4*qb}, v{LL+4*qb}\ns_nop 0")
        r(f"v_mul_f32 v{LL+4*qb}, {f2u(1 / ALPHA)}, v{LL+4*qb}"); r(f"v_and_b32 v{LL+4*qb+1}, v{vZ}, v{LL+4*qb}")
        for db in range(2):
            o0 = OO + 8*qb + 4*db
            if G("opk", True):
                for e in (0, 2): r(f"v_pk_mul_f32 {vr(o0+e,2)}, {vr(o0+e,2)}, {vr(LL+4*qb,2)} op_sel:[0,{db}] op_sel_hi:[1,{db}]")
            else:
                for e in range(4): r(f"v_mul_f32 v{o0+e}, v{LL+4*qb+db}, v{o0+e}")
        for q in range(4): r(f"v_cvt_pk_bf16_f32 v{PP+8+4*qb+q}, v{OO+8*qb+2*q}, v{OO+8*qb+2*q+1}")
    hb = Asm(); h_frags(hb, v19h); hq = list(zip(hb.L, hb.lg))
    BHI, HS = G("bhi", 24), G("hs", 2)
    for i, ins in enumerate(rest):
        if i == BHI: barrier(w, BH)
        w(ins)
        if HS and i >= BHI + G("hd", 0) and (i - BHI) % HS == 0 and hq: w.ds(*hq.pop(0))
    for qb in range(2):
        w.ds(f"ds_write_b128 v{vActW}, {vr(PP+8+4*qb,4)} offset:{ACT + qb*1024}", "ow")
    while hq: w.ds(*hq.pop(0))
    w(f"s_setprio {G('a2prio', 2)}")
    stamp(w, 6)
    g2_phase(w, "A")
    T_a2 = w.cut()

    l = aL.fork(); l.nostamp = G('lite') or G('nol')
    xp = 1 if G('pfg', 1) else xm
    vW1a, vW1b, vW2A, vPF, vR0, vR1, vNon, vZero, vRP, vSent, vPA, vXR = 8, 9, 10, 11, 12, 13, 14, 15, 16, 24, 28, 29
    vNeed, vRng, vPoll, vPv, vPg = 24, 25, 26, 27, 30
    vW1 = 32
    l("L_L:")
    l.L += aL.L
    l(f"s_setprio {G('lprio0',3)}")
    common2(l)
    l(f"""
s_or_b32 s{sT3}, s2, s{sW}
s_cmp_lg_u32 s{sT3}, 0
s_cbranch_scc1 L_nolead0
s_memrealtime s[{sN0}:{sN1}]
L_nolead0:
""")
    for i, d in ((0, vR0), (1, vR1)):
        l(f"""
v_add_u32 v{vT0}, {64*i}, v{vL}
v_mul_u32_u24 v{vT2}, 2979, v{vT0}
v_lshrrev_b32 v{vT2}, 16, v{vT2}
v_mul_u32_u24 v{vT3}, 22, v{vT2}
v_sub_u32 v{vT0}, v{vT0}, v{vT3}
v_min_u32 v{vT0}, 20, v{vT0}
v_mul_u32_u24 v{vT3}, 37, v{vT0}
v_lshrrev_b32 v{vT3}, 8, v{vT3}
v_mul_u32_u24 v{vT3}, {896-112}, v{vT3}
v_lshl_add_u32 v{vT0}, v{vT0}, 4, v{vT3}
v_mul_u32_u24 v{vT2}, 2688, v{vT2}
v_add_u32 v{d}, v{vT0}, v{vT2}
""")
    l(f"""
s_and_b32 s{sT2}, s{sA}, 1
s_lshl_b32 s{sT2}, s{sT2}, 3
s_lshr_b32 s{sT1}, s{sA}, 1
s_lshl_b32 s{sT1}, s{sT1}, 2
s_add_u32 s{sT2}, s{sT2}, s{sT1}
s_lshl_b32 s{sT1}, s{sRB}, 4
s_add_u32 s{sT2}, s{sT2}, s{sT1}
s_mul_i32 s{sT2}, s{sT2}, 2688
s_mul_i32 s{sT1}, s{sS}, 112
s_add_u32 s{sC2}, s{sT2}, s{sT1}
s_and_b32 s{sJJ}, s{sRB}, {32//xp-1}
s_lshl_b32 s{sT1}, s{sJJ}, 2
s_add_u32 s{sRH}, s{sT1}, s{sA}
s_mul_i32 s{sT1}, s{sRH}, {xp}
v_min_u32 v{vT1}, {4*xp-1}, v{vL}
v_lshrrev_b32 v{vT2}, 2, v{vT1}
v_add_u32 v{vT2}, s{sT1}, v{vT2}
v_and_b32 v{vT1}, 3, v{vT1}
v_mul_u32_u24 v{vT2}, 3584, v{vT2}
v_lshl_add_u32 v{vPA}, v{vT1}, 7, v{vT2}
s_mul_i32 s{sW1o}, s{sS}, {448*448 if G('x_w1lin') else 448}
s_and_b32 s{sHI}, s{sW1o}, 0xffffff80
v_mov_b32 v{vZero}, 0
s_waitcnt lgkmcnt(0)
""")
    mark(l, "ka")
    srd(l, SWQ, 6, 448 * 1344 * 2); srd(l, SW1, 12, 448 * 1792 * 2)
    def op_pfa():
        l.vmem(f"buffer_load_dword v{vPF}, v{vPA}, {sq(SW1)}, s{sHI} offen {G('ntw','')}", "pf")
    def op_rpl():
        l.vmem(f"buffer_load_dwordx4 {vr(vRP,4)}, v{vR0}, {sq(SWQ)}, s{sC2} offen {G('ntr','')}", "rp")
        l("s_mov_b64 exec, 0xffffff")
        l.vmem(f"buffer_load_dwordx4 {vr(vRP+4,4)}, v{vR1}, {sq(SWQ)}, s{sC2} offen {G('ntr','')}", "rp")
        l("s_mov_b64 exec, -1")
    def op_init():
        srd(l, SDBG, 24, 256)
        l(f"""
s_cmp_lg_u32 s{sT3}, 0
s_cbranch_scc1 L_nolead1
s_and_b32 s{sN0}, s{sN0}, -16
s_or_b32 s62, s{sN0}, 16
s_atomic_swap s62, s[{SDBG}:{SDBG+1}], 0
s_atomic_swap s62, s[{SDBG}:{SDBG+1}], 64
L_nolead1:
""")
        srd(l, SWS, 26, 0x10000000); srd(l, SW2, 16, 1792 * 448 * 2); srd(l, SWO, 8, 448 * 448 * 2)
        srd(l, SX, 4, 2048 * 896); srd(l, SB2, 18, 896)
        first_stamps(l)
        l(f"""
v_mul_u32_u24 v{vT0}, 2341, v{vL}
v_xor_b32 v{vT1}, 32, v{vL16}
v_and_b32 v{vT2}, 32, v{vL}
v_xor_b32 v{vT2}, v{vT2}, v{vL16}
s_movk_i32 s{sT1}, {0 if G('x_w1lin') else 3584-448}
""")
        for i in range(7):
            l(f"v_add_u32 v{vT3}, {64*i*2341}, v{vT0}\nv_lshrrev_b32 v{vT3}, 16, v{vT3}\nv_mad_u32_u24 v{vW1+i}, v{vT3}, s{sT1}, v{vL16 if i < 3 else (vT2 if i == 3 else vT1)}")
        l(f"""
s_mul_i32 s{sT1}, s{sA}, {16*448 if G('x_w1lin') else 16*3584}
s_add_u32 s{sW1o}, s{sW1o}, s{sT1}
s_mul_i32 s{sM0}, s{sA}, 7168
""")
    def op_pfb():
        l(f"""
s_mul_i32 s{sT1}, s{sRH}, {10*xp}
s_add_u32 s{sT1}, s{sT1}, 512
v_min_u32 v{vT1}, {10*xp-1}, v{vL}
v_add_u32 v{vT1}, s{sT1}, v{vT1}
v_lshrrev_b32 v{vT2}, 2, v{vT1}
v_and_b32 v{vT1}, 3, v{vT1}
v_mul_u32_u24 v{vT2}, 3584, v{vT2}
v_lshl_add_u32 v{vT1}, v{vT1}, 7, v{vT2}
""")
        l.vmem(f"buffer_load_dword v{vPF}, v{vT1}, {sq(SW1)}, s{sHI} offen {G('ntw','')}", "pf")
    def op_pf2():
        per = 49 * xp; pw = (per + 3) // 4
        l(f"""
s_mul_i32 s{sT2}, s{sJJ}, {per}
s_mul_i32 s{sT1}, s{sA}, {pw}
v_min_u32 v{vT1}, {pw-1}, v{vL}
v_add_u32 v{vT1}, s{sT1}, v{vT1}
v_min_u32 v{vT1}, {per-1}, v{vT1}
v_add_lshl_u32 v{vT1}, v{vT1}, s{sT2}, 7
s_mul_i32 s{sT1}, s{sS}, {224*896}
""")
        l.vmem(f"buffer_load_dword v{vPF}, v{vT1}, {sq(SW2)}, s{sT1} offen {G('nt2','')}", "pf2")
        per = 13 * xp; pw = (per + 3) // 4
        l(f"""
s_mul_i32 s{sT2}, s{sJJ}, {per}
s_mul_i32 s{sT1}, s{sA}, {pw}
v_min_u32 v{vT1}, {pw-1}, v{vL}
v_add_u32 v{vT1}, s{sT1}, v{vT1}
v_min_u32 v{vT1}, {per-1}, v{vT1}
v_add_u32 v{vT1}, s{sT2}, v{vT1}
v_min_u32 v{vT1}, 391, v{vT1}
v_lshlrev_b32 v{vT1}, 7, v{vT1}
s_mul_i32 s{sT1}, s{sS}, {56*896}
""")
        l.vmem(f"buffer_load_dword v{vPF}, v{vT1}, {sq(SWO)}, s{sT1} offen {G('nt2','')}", "pf2")
    def op_g(k):
        if k < 3:
            l(f"""
s_mul_i32 s{sT2}, s{sRB}, 49
s_mul_i32 s{sT1}, s{sA}, 5
s_add_u32 s{sT1}, s{sT1}, {17*k}
v_min_u32 v{vT1}, 4, v{vL}
v_add_u32 v{vT1}, s{sT1}, v{vT1}
v_min_u32 v{vT1}, {min(17*k+16, 48)}, v{vT1}
v_add_lshl_u32 v{vT1}, v{vT1}, s{sT2}, 7
s_mul_i32 s{sT1}, s{sS}, {224*896}
""")
            l.vmem(f"buffer_load_dword v{vPF}, v{vT1}, {sq(SW2)}, s{sT1} offen {G('nt2','')}", "pf2")
        else:
            l(f"""
s_mul_i32 s{sT2}, s{sRB}, 13
s_lshl_b32 s{sT1}, s{sA}, 2
v_min_u32 v{vT1}, 3, v{vL}
v_add_u32 v{vT1}, s{sT1}, v{vT1}
v_min_u32 v{vT1}, 12, v{vT1}
v_add_u32 v{vT1}, s{sT2}, v{vT1}
v_min_u32 v{vT1}, 391, v{vT1}
v_lshlrev_b32 v{vT1}, 7, v{vT1}
s_mul_i32 s{sT1}, s{sS}, {56*896}
""")
            l.vmem(f"buffer_load_dword v{vPF}, v{vT1}, {sq(SWO)}, s{sT1} offen {G('nt2','')}", "pf2")
    def op_tlb():
        region(l, sT0)
        l.vmem(f"buffer_load_dword v{vPF}, v{vZero}, {sq(SWS)}, s{sT0} offen", "pf2")
    def op_tl2():
        for p in G("tl2", [26, 24, 16, 8, 18, 22]): l.vmem(f"global_load_dword v{vPF}, v{vZero}, s[{p}:{p+1}] offset:{192 if p == 24 else 0}", "pf2")
    def op_b2():
        col128(l, sT1, sS)
        l(f"""s_cmp_eq_u32 s{sS}, 7
s_cselect_b32 s{sT1}, {OOB}, s{sT1}
s_mov_b32 m0, {XRES + 8192}
s_mov_b64 exec, 0xff""")
        l.vmem(f"buffer_load_dwordx4 v{vL16}, {sq(SB2)}, s{sT1} offen lds", "xr")
        l("s_mov_b64 exec, -1")
    def op_xr():
        col128(l, sT1, sS)
        l(f"""
s_lshl_b32 s{sT0}, s{sA}, 5
s_add_u32 s{sT0}, s{sT0}, s{sROW0}
s_mul_i32 s{sT0}, s{sT0}, 896
s_cmp_eq_u32 s{sS}, 7
s_cselect_b32 s{sT1}, {OOB}, s{sT1}
s_add_u32 s{sT0}, s{sT0}, s{sT1}
s_lshl_b32 s{sT2}, s{sA}, 11""")
        for i in range(2):
            l(f"s_add_u32 m0, s{sT2}, {XRES + 1024*i}\ns_add_u32 s{sT0}, s{sT0}, {16*896*i}")
            l.vmem(f"buffer_load_dwordx4 v{vXR}, {sq(SX)}, s{sT0} offen lds", "xr")
    def op_rps():
        l(f"""
s_mul_i32 s{sT1}, s{sS}, {448*352}
s_add_u32 s{sT1}, s{sT1}, {WS_WQ}
s_lshl_b32 s{sT0}, s{sRB}, 2
s_add_u32 s{sT0}, s{sT0}, s{sA}
s_mul_i32 s{sT0}, s{sT0}, {4*352}
s_add_u32 s{sT0}, s{sT0}, s{sT1}
s_cmp_ge_u32 s{sRB}, 28
s_cselect_b32 s{sT0}, {OOB}, s{sT0}
""")
        region(l, 25)
        ni = lab("ni")
        l(f"""s_add_u32 s25, s25, {FOFF}
s_lshl_b32 s{sT1}, s{sA}, 13
s_add_u32 s{sT1}, s{sT1}, s25
s_lshr_b32 s{sT2}, s{sA}, 1""")
        for q in range(4): l(f"v_mov_b32 v{24+q}, 0")
        l(f"v_lshrrev_b32 v{vT0}, 3, v{vL}\nv_and_b32 v{vT1}, 0x70, v{vL16}\nv_lshl_add_u32 v{vT0}, v{vT0}, {WSH}, v{vT1}")
        l(f"""s_or_b32 s{sT2}, s{sT2}, s{sS}
s_cselect_b32 s{sT1}, {OOB}, s{sT1}
s_lshl_b32 s26, s{sS}, 5
s_add_u32 s26, s26, s{sRB}
s_lshl_b32 s26, s26, 7
s_add_u32 s26, s26, {WS_F1}
s_cmp_eq_u32 s{sA}, 3
s_cselect_b32 s{sT1}, s26, s{sT1}
s_cselect_b64 s[60:61], 0xff, -1""")
        l.need(vm=["rp"])
        l("s_mov_b64 exec, s[60:61]")
        l.vmem(f"buffer_store_dwordx4 v[24:27], v{vT0}, {sq(SWS)}, s{sT1} offen sc1", "rps")
        l("s_mov_b64 exec, -1")
        l.vmem(f"buffer_store_dwordx4 {vr(vRP,4)}, v{vL16}, {sq(SWS)}, s{sT0} offen sc1", "rps")
        l("s_mov_b64 exec, 0xffffff")
        l.vmem(f"buffer_store_dwordx4 {vr(vRP+4,4)}, v{vL16}, {sq(SWS)}, s{sT0} offen offset:1024 sc1", "rps")
        l("s_mov_b64 exec, -1")
    gl = get_nonce(l, vT0, 0)
    def op_noi(): next(gl)
    def op_non():
        next(gl)
    def op_rpw(): l.need(vm=["rps"])
    def op_fl1():
        only0(lambda: l(f"s_atomic_swap s{sN0}, s[{SWS}:{SWS+1}], s26"))
    def op_tab():
        chunks(l)
        l(f"""
v_lshrrev_b32 v{vT0}, 3, v{vL}
v_lshrrev_b32 v{vT1}, 4, v{vL}
v_lshlrev_b32 v{vT1}, 1, v{vT1}
v_and_b32 v{vT2}, 7, v{vL}
v_xor_b32 v{vT1}, v{vT1}, v{vT2}
v_mul_u32_u24 v{vT0}, 896, v{vT0}
v_lshl_add_u32 v{vW2A}, v{vT1}, 4, v{vT0}
v_add_u32 v{vXR}, v{vW2A}, v{vT0}
s_mul_i32 s{sW2o}, s{sS}, {224*896}
s_mul_i32 s{sT0}, s{sA}, {8*896}
s_add_u32 s{sW2o}, s{sW2o}, s{sT0}
s_lshl_b32 s27, s{sA}, 10
s_mul_i32 s{sWQo}, s{sS}, {448*352}
s_add_u32 s{sWQo}, s{sWQo}, {WS_WQ}
s_mul_i32 s{sM1}, s{sA}, {16*352}
s_add_u32 s{sWQo}, s{sWQo}, s{sM1}
s_mul_i32 s{sT2}, s{sS}, {56*896}
s_lshl_b32 s{sT0}, s{sA}, 1
s_add_u32 s{sT1}, s{sT0}, 1
s_min_u32 s{sT1}, s{sT1}, 6
s_lshl_b32 s20, s{sT0}, 10
s_lshl_b32 s21, s{sT1}, 10
s_mul_i32 s22, s{sT0}, {8*896}
s_mul_i32 s23, s{sT1}, {8*896}
s_add_u32 s22, s22, s{sT2}
s_add_u32 s23, s23, s{sT2}
; inbox: source offsets per slot (s4..s10), poll address / need per lane
s_cmp_eq_u32 s{sA}, 3
s_cselect_b64 s[18:19], 0xff, -1
""")
    def stage_off(first, step):
        if first: l(f"s_mul_i32 s{sK}, s{sR}, {step}")
        else: l(f"s_add_u32 s{sK}, s{sK}, {step}\ns_cmp_eq_u32 s{sK}, {7*step}\ns_cselect_b32 s{sK}, 0, s{sK}")
    def dma_w1(st):
        stage_off(st == 0, 64 * (448 if G('x_w1lin') else 3584))
        for i in range(7):
            if i == 0: l(f"s_add_u32 m0, s{sM0}, {RING + (st%3)*SLOT}\ns_add_u32 s{sT0}, s{sW1o}, s{sK}")
            if i == 4: l(f"s_add_u32 m0, s{sM0}, {RING + (st%3)*SLOT + 4096}\ns_add_u32 s{sT0}, s{sT0}, 4096")
            l.vmem(f"buffer_load_dwordx4 v{vW1+i}, {sq(SW1)}, s{sT0} offen offset:{1024*(i%4)} lds", f"st{st}")
    def dma_wq(st):
        if G("nodma"): return
        stage_off(st == 7, 22528)
        for i in range(6):
            if i == 0: l(f"s_add_u32 m0, s{sM1}, {RING + (st%3)*SLOT}\ns_add_u32 s{sT0}, s{sWQo}, s{sK}")
            if i == 4: l(f"s_add_u32 m0, s{sM1}, {RING + (st%3)*SLOT + 4096}\ns_add_u32 s{sT0}, s{sT0}, 4096")
            if i == 5: l("s_mov_b32 exec_hi, 0")
            l.vmem(f"buffer_load_dwordx4 v{vL16}, {sq(SWS)}, s{sT0} offen offset:{1024*(i%4)} lds", f"st{st}")
        l("s_mov_b32 exec_hi, -1")
    def dma_w2(cc, i0=0, i1=7):
        if G("nodma"): return
        col128(l, sT2, sCH + cc); l(f"s_add_u32 s{sT2}, s{sT2}, s{sW2o}")
        for i in range(i0, i1):
            l(f"s_add_u32 m0, s27, {W2LOC[cc] + 4096*i}\ns_add_u32 s{sT0}, s{sT2}, {32*896*i}")
            l.vmem(f"buffer_load_dwordx4 v{vW2A}, {sq(SW2)}, s{sT0} offen lds", f"w2{cc}")
    def dma_wo(cc):
        if G("nodma"): return
        col128(l, sT2, sCH + cc)
        for i in range(2):
            l(f"s_add_u32 m0, s{20+i}, {WOLOC[cc]}\ns_add_u32 s{sT0}, s{22+i}, s{sT2}")
            if i == 1 and G("nodup", True): l("s_mov_b64 exec, s[18:19]")
            l.vmem(f"buffer_load_dwordx4 v{vW2A}, {sq(SWO)}, s{sT0} offen lds", f"wo{cc}")
            if i == 1 and G("nodup", True): l("s_mov_b64 exec, -1")
    vD0, vD1, vD2, vE0, vE1 = 8, 9, 12, 13, 14
    def pace():
        if G("pace"): l(G("pace"))
    def op_stg():
        l(f"""v_add_u32 v{vD0}, s27, v{vL16}
v_add_u32 v{vD1}, {RING}, v{vD0}
v_add_u32 v{vD2}, {RING + 2*SLOT}, v{vD0}
v_add_u32 v{vE0}, s20, v{vL16}
v_add_u32 v{vE1}, s21, v{vL16}""")
    def stg_w2(cc, i0=0, i1=7):
        col128(l, sT2, sCH + cc); l(f"s_add_u32 s{sT2}, s{sT2}, s{sW2o}")
        for i in range(i0, i1):
            l(f"s_add_u32 s{sT0}, s{sT2}, {32*896*i}")
            l.vmem(f"buffer_load_dwordx4 {vr(32 + 28*(cc-3) + 4*i, 4)}, v{vW2A}, {sq(SW2)}, s{sT0} offen", f"v{cc}{i}")
    def stg_wo(cc):
        col128(l, sT2, sCH + cc)
        for i in range(2):
            l(f"s_add_u32 s{sT0}, s{22+i}, s{sT2}")
            l.vmem(f"buffer_load_dwordx4 {vr(144 + 8*(cc-4) + 4*i, 4)}, v{vW2A}, {sq(SWO)}, s{sT0} offen", f"u{cc}")
    def put_w2(cc, i0=0, i1=7):
        loc = W2LOC[cc]; base, o = (vD0, 0) if loc == 0 else ((vD2, 0) if loc == RING + 2 * SLOT else (vD1, loc - RING))
        for i in range(i0, i1):
            l.need(vm=[f"v{cc}{i}"])
            l.ds(f"ds_write_b128 v{base}, {vr(32 + 28*(cc-3) + 4*i, 4)} offset:{o + 4096*i}", "put"); pace()
    def put_wo(cc):
        l.need(vm=[f"u{cc}"])
        for i in range(2): l.ds(f"ds_write_b128 v{vE0+i}, {vr(144 + 8*(cc-4) + 4*i, 4)} offset:{WOLOC[cc]}", "put"); pace()
    def only0(fn, n=1):
        sk = lab("o0")
        l(f"s_cmp_ge_u32 s{sA}, {n}\ns_cbranch_scc1 {sk}"); fn(); l(f"{sk}:")
    def op_cki():
        only0(lambda: l(f"s_buffer_load_dword s61, {sq(SDBG)}, 128"), 2)
    def op_ck():
        again, got = lab("ca"), lab("cg")
        sel = {"auto": "s_cselect_b32 s61, 1, 0", "inv": "s_cselect_b32 s61, 0, 1", "0": "s_mov_b32 s61, 0"}[G("hsel", "auto")]
        def body():
            l(f"""s_waitcnt lgkmcnt(0)
s_mov_b32 s{sPoll}, 0
s_cmp_ge_u32 s61, {64 << 16}
s_cbranch_scc0 {again}
{got}:
s_and_b32 s61, s61, 0xffff
s_sub_u32 s60, s61, {64*32 - 12}
s_cmp_gt_u32 s61, {64*32}
{sel}
s_cmp_lt_u32 s60, 25
s_cselect_b32 s61, s{sRB}, s61
s_add_u32 s60, s25, s{SWS}
s_lshr_b32 s60, s60, 21
s_xor_b32 s61, s61, s60
s_lshr_b32 s60, s{sRB}, 4
s_xor_b32 s61, s61, s60
s_and_b32 s61, s61, 1
s_lshl_b32 s61, s61, 13
v_mov_b32 v{vT0}, {CNT + 4}
v_mov_b32 v{vT1}, s61
s_mov_b64 exec, 1
ds_write_b32 v{vT0}, v{vT1}
s_mov_b64 exec, -1
s_add_u32 s25, s25, s61
s_lshl_b32 s{sT0}, s{sS}, 17
s_add_u32 s{sPart}, s25, s{sT0}
s_sub_u32 s{sPart}, s{sPart}, {FOFF}
s_lshl_b32 s{sT0}, s{sS}, {WSH}
s_add_u32 s24, s25, s{sT0}""")
            if STAMP: l(f"s_lshr_b32 s61, s61, 13\nv_writelane_b32 v0, s61, 59\nv_writelane_b32 v0, s{sPoll}, 60")
        only0(body, 2)
        l.smem = True
        x = Asm()
        x(f"""{again}:
buffer_load_dword v{vT0}, v{vZero}, {sq(SDBG)}, 0 offen offset:128 sc1
s_add_u32 s{sPoll}, s{sPoll}, 1
s_cmp_gt_u32 s{sPoll}, {SPIN}
s_waitcnt vmcnt(0)
v_readfirstlane_b32 s61, v{vT0}
s_cbranch_scc1 {got}
s_cmp_ge_u32 s61, {64 << 16}
s_cbranch_scc0 {again}
s_branch {got}""")
        SLOW.append(x.cut())
    pdone = [0]
    def progress(n):
        ks = list(range(pdone[0], n)); pdone[0] = n
        for k in ks: arrival(l, k, 4 + 2 * k, 25); l(f"s_atomic_add s{4+2*k}, s[{SWS}:{SWS+1}], s{5+2*k}")
    def op_pg(n): only0(lambda: progress(n))
    def poll(): l(f"s_mov_b32 s13, 0\ns_atomic_add s13, s[{SWS}:{SWS+1}], s24 glc")
    def dma_last(ng=1):
        nw = 4 - ng
        col128(l, sT2, sCH + 6)
        l(f"""s_sub_u32 s16, s{sA}, {ng}
s_mul_i32 s17, s{sS}, {224*896}
s_add_u32 s17, s17, s{sT2}
s_mul_i32 s18, s{sS}, {56*896}
s_add_u32 s18, s18, s{sT2}""")
        for n, base, loc, srdn in ((28, 17, W2LOC[6], SW2), (7, 18, WOLOC[6], SWO)):
            for i in range((n + nw - 1) // nw):
                l(f"s_add_u32 s{sT0}, s16, {nw*i}")
                if nw * i + nw - 1 >= n: l(f"s_min_u32 s{sT0}, s{sT0}, {n-1}")
                l(f"s_lshl_b32 s{sT1}, s{sT0}, 10\ns_add_u32 m0, s{sT1}, {loc}\ns_mul_i32 s{sT0}, s{sT0}, {8*896}\ns_add_u32 s{sT0}, s{sT0}, s{base}")
                if not G("nodma"): l.vmem(f"buffer_load_dwordx4 v{vW2A}, {sq(srdn)}, s{sT0} offen lds", "w26")
    NG = 2 if NE else 1
    def own_pieces():
        nw = 4 - NG; k = 0
        for n, base, loc, srdn in ((28, 14, W2LOC[6], SW2), (7, 15, WOLOC[6], SWO)):
            for i in range((n + nw - 1) // nw):
                yield k, i, n, base, loc, srdn, nw; k += 1
    def op_sg6(lo, hi):
        sk = lab("g6")
        l(f"s_cmp_lt_u32 s{sA}, {NG}\ns_cbranch_scc1 {sk}\ns_cmp_eq_u32 s{sS}, 7\ns_cbranch_scc1 {sk}")
        if lo == 0:
            l.need(vm=list(l.vm))
            col128(l, sT2, sCH + 6)
            l(f"""s_sub_u32 s13, s{sA}, {NG}
s_mul_i32 s14, s{sS}, {224*896}
s_add_u32 s14, s14, s{sT2}
s_mul_i32 s15, s{sS}, {56*896}
s_add_u32 s15, s15, s{sT2}""")
        for k, i, n, base, loc, srdn, nw in own_pieces():
            if not lo <= k < hi: continue
            l(f"s_add_u32 s{sT0}, s13, {nw*i}")
            if nw * i + nw - 1 >= n: l(f"s_min_u32 s{sT0}, s{sT0}, {n-1}")
            l(f"s_mul_i32 s{sT0}, s{sT0}, {8*896}\ns_add_u32 s{sT0}, s{sT0}, s{base}")
            l(f"buffer_load_dwordx4 {vr(40 + 4*k, 4)}, v{vW2A}, {sq(srdn)}, s{sT0} offen")
        l(f"{sk}:")
    def put6():
        for k, i, n, base, loc, srdn, nw in own_pieces():
            if i == 0 or nw * i + nw - 1 >= n:
                l(f"s_add_u32 s{sT0}, s13, {nw*i}\ns_min_u32 s{sT0}, s{sT0}, {n-1}\ns_lshl_b32 s{sT0}, s{sT0}, 10\ns_add_u32 s{sT0}, s{sT0}, {loc}\nv_add_u32 v{vT2}, s{sT0}, v{vL16}")
                i0 = i
            l(f"ds_write_b128 v{vT2}, {vr(40 + 4*k, 4)} offset:{1024*nw*(i-i0)}")
        l("s_waitcnt lgkmcnt(0)")
    def lds_add(off):
        l(f"v_mov_b32 v{vT0}, {CNT + off}\nv_mov_b32 v{vT1}, 1\ns_mov_b64 exec, 1\ns_waitcnt vmcnt(0)\nds_add_u32 v{vT0}, v{vT1}\ns_mov_b64 exec, -1")
    def gate_wait(val):
        gt, go = lab("gt"), lab("go")
        l(f"""v_mov_b32 v{vT2}, {CNT + 20}
s_mov_b32 s{sPoll}, 0
{gt}:
ds_read_b32 v{vT3}, v{vT2}
s_add_u32 s{sPoll}, s{sPoll}, 1
s_cmp_gt_u32 s{sPoll}, {SPIN * 16}
s_waitcnt lgkmcnt(0)
v_cmp_gt_u32 vcc, {val}, v{vT3}
s_cbranch_scc1 {go}
s_nop 0
s_cbranch_vccnz {gt}
{go}:""")
    def tail3():
        z, top, out, fin = lab("z"), lab("tl"), lab("to"), lab("tf")
        ng = 2 if NE else 1
        l(f"s_cmp_lt_u32 s{sA}, {ng}\ns_cbranch_scc1 {z}")
        if G("sg6", True):
            n7 = lab("n7")
            l(f"s_cmp_eq_u32 s{sS}, 7\ns_cbranch_scc1 {n7}\ns_waitcnt vmcnt(0)\ns_barrier\ns_setprio {G('putprio', 0)}")
            if G("gate"): gate_wait(G("gate"))
            put6(); lds_add(12)
            l(f"s_branch {fin}\n{n7}:")
        if G("w6at", 19) == 19: dma_last(ng)
        barrier(l, 20, vm=["w25", "wo5", "xr"])
        if G("w6at", 19) == 20: dma_last(ng)
        lds_add(12)
        l.need(drain=True)
        l(f"s_branch {fin}\n{z}:")
        l.vm = []
        em = (1 << NE) - 1
        l(f"s_cmp_eq_u32 s{sA}, 0\ns_cselect_b32 s12, {em}, {0x7f ^ em}\ns_cmp_eq_u32 s{sS}, 7\ns_cselect_b32 s12, 0x7f, s12\ns_mov_b32 s13, 0")
        if G("noinb"): l("s_mov_b32 s12, 0x7f")
        if G("tk19", True):
            sk = lab("np"); l(f"s_cmp_eq_u32 s{sA}, {ng - 1}\ns_cbranch_scc0 {sk}"); poll(); l(f"{sk}:")
        l("s_waitcnt vmcnt(0)\ns_barrier\ns_waitcnt lgkmcnt(0)\ns_and_b32 s13, s13, 0x7f")
        if "20" in PROG: op_pg(PROG["20"])
        if G("gateE"):
            gate_wait(G("gateE0", 4))
            l(f"s_load_dword s13, s[{SWS}:{SWS+1}], s24 glc")
            gate_wait(G("gateE"))
            l("s_and_b32 s13, s13, 0x7f")
        if G("x_75"): l("s_mov_b32 exec_hi, 0xffff")
        again = lab("ta")
        l(f"""s_mov_b32 s{sPoll}, 0
s_add_u32 s17, s{sS}, 6
.p2align 6
{top}:
s_andn2_b32 s14, s13, s12
s_cbranch_scc0 {again}
s_ff1_i32_b32 s14, s14
s_bitset1_b32 s12, s14
s_sub_u32 s15, s17, s14
s_sub_u32 s16, s15, 7
s_min_u32 s15, s15, s16
s_cmp_eq_u32 s14, 6
s_cselect_b32 s15, 7, s15
s_lshl_b32 s15, s15, 14
s_add_u32 s15, s15, s{sPart}
s_cmp_lt_u32 s14, 3
s_cselect_b32 s16, {(INLOC[0] + 24576) >> 12}, 0
s_lshl_b32 s14, s14, 1
s_add_u32 s14, s14, s16
s_sub_u32 s14, s14, 6
s_lshl_b32 m0, s14, 12
s_add_u32 s16, s15, 4096""")
        for q in range(4): l(f"buffer_load_dwordx4 v{vL16}, {sq(SWS)}, s15 offen offset:{1024*q} sc1 lds")
        l("s_add_u32 m0, m0, 4096\ns_cmp_eq_u32 s12, 0x7f")
        for q in range(4): l(f"buffer_load_dwordx4 v{vL16}, {sq(SWS)}, s16 offen offset:{1024*q} sc1 lds")
        l(f"""s_cbranch_scc0 {top}
{again}:
s_add_u32 s{sPoll}, s{sPoll}, 1
s_cmp_gt_u32 s{sPoll}, {SPIN}
s_cselect_b32 s12, 0x7f, s12
s_cmp_eq_u32 s12, 0x7f
s_cbranch_scc1 {out}""")
        if G("pollop", "load") == "load": l(f"s_load_dword s13, s[{SWS}:{SWS+1}], s24 glc")
        else: poll()
        l(f"s_waitcnt lgkmcnt(0)\ns_and_b32 s13, s13, 0x7f\ns_branch {top}\n{out}:")
        if STAMP: l(f"{SOP} s[64:65]")
        l("s_waitcnt vmcnt(0)")
        if STAMP: l(f"{SOP} s[66:67]\ns_waitcnt lgkmcnt(0)\nv_writelane_b32 v0, s{sPoll}, 61\nv_writelane_b32 v0, s64, 35\nv_writelane_b32 v0, s66, 36")
        if NE:
            l(f"s_cmp_eq_u32 s{sA}, 0\ns_cbranch_scc1 {fin}"); lds_add(16)
        l(f"{fin}:\ns_cmp_eq_u32 s{sS}, 7\ns_cbranch_scc1 L_Lend\ns_barrier\nL_Lend:")
    def op_tail(): tail3()
    OPS = dict(pfa=op_pfa, init=op_init, rpl=op_rpl, pfb=op_pfb, pf2=op_pf2, rps=op_rps, fl1=op_fl1, rpw=op_rpw, tab=op_tab, non=op_non, noi=op_noi,
               xr=op_xr, tlb=op_tlb, tl2=op_tl2, b2=op_b2, stg=op_stg, dr=lambda: l('s_waitcnt lgkmcnt(0)'), g6a=lambda: op_sg6(0, G('g6n', 10)), g6b=lambda: op_sg6(G('g6n', 10), 99), vm0=lambda: l.need(vm=list(l.vm)), cki=op_cki, ck=op_ck, tail=op_tail,
               lo=lambda: l("s_setprio 0"), hi=lambda: l(f"s_setprio {G('lprio',3)}"))
    for k in range(7):
        OPS[f"s{k}"] = lambda k=k: dma_w1(k); OPS[f"q{k}"] = lambda k=k: dma_wq(7 + k)
        OPS[f"g{k}"] = lambda k=k: op_g(k)
        OPS[f"v{k}"] = lambda k=k: stg_w2(k); OPS[f"u{k}"] = lambda k=k: stg_wo(k)
        OPS[f"d{k}"] = lambda k=k: put_w2(k); OPS[f"e{k}"] = lambda k=k: put_wo(k)
        OPS[f"P{k}"] = lambda k=k: l(f"s_setprio {k}")
        OPS[f"w{k}"] = lambda k=k: dma_w2(k); OPS[f"o{k}"] = lambda k=k: dma_wo(k)
    PRO = G("pro", "rpl tl2 init tlb lo s0 tab rps noi s1 non s2")
    MID = G("mid0", "B0 hi pf2 b2 rpw B1 fl1 s3 B2 s4 B3 s5 B4 s6 dr") + " " + \
          G("mid1", "B5 q0 B6 q1 B7 q2 xr B8 q3 w002 B9 q4 w024 B10 q5 w046") + " " + \
          G("mid2", "B11 q6 w067 o0 B12 w1 o1 B13 w2 cki B14 vm0 g6a ck o2 B22 g6b o3 B15 lo w3") + " " + \
          G("mid3", "B16 w4 o4 B17 w5 o5 B18 B19 tail")
    k = 1
    for o in PRO.split():
        OPS[o](); mark(l, o)
        if o in ("bx", "rps", "s0", "s1", "s2"):
            if len(l.pend) >= 3: l.need(drain=True)
            stamp(l, k); k += 1
    T_l1 = l.cut(); l("L_L2:")
    for o in MID.split():
        if o[0] == "B":
            j = int(o[1:]); need = []
            if j <= 13: need = [f"st{j}"]
            elif j == BH: need = [f"w2{i}" for i in range(RA)]
            elif j == 15: need = ["w20", "xr"] + [f"wo{i}" for i in range(max(RA, 1))]
            elif j > 15: need = [f"w2{j-15}", f"wo{j-15}"] + (["w22", "wo2"] if RA == 2 else [])
            barrier(l, j, vm=need); mark(l, o)
            if str(j) in PROG: op_pg(PROG[str(j)])
        elif o[0] in "wvd" and len(o) == 4 and o[1:].isdigit(): dict(w=dma_w2, v=stg_w2, d=put_w2)[o[0]](int(o[1]), int(o[2]), int(o[3]))
        else: OPS[o]()
    l.need(drain=True)
    if G("spin"):
        l(f"""s_add_u32 s40, s100, {G("spin")[1]}
L_spin:
s_sleep 2
s_memrealtime s[42:43]
s_waitcnt lgkmcnt(0)
s_sub_u32 s44, s42, s40
s_cmp_lt_i32 s44, 0
s_cbranch_scc1 L_spin""")
    l("L_fin:")
    if STAMP:
        l(f"""s_waitcnt vmcnt(0)
s_memrealtime s[96:97]
{SOP} s[98:99]
s_waitcnt lgkmcnt(0)
v_writelane_b32 v0, s96, 63
v_writelane_b32 v0, s98, 41
s_mul_i32 s{sT0}, s2, 12
s_add_u32 s{sT0}, s{sT0}, s{sW}
s_lshl_b32 s{sT0}, s{sT0}, 8
s_add_u32 s{sT0}, s{sT0}, {WS_STAMP}
v_lshlrev_b32 v{vT0}, 2, v{vL}
buffer_store_dword v0, v{vT0}, {sq(SWS)}, s{sT0} offen
""")
    l("L_end:\ns_endpgm")
    T_l2 = l.cut()

    K1 = NAME + "_kernel"
    return f"""; @launch grid=(256,1,1) block=(768,1,1) lds={LDS_BYTES}
.amdgcn_target "amdgcn-amd-amdhsa--gfx950"
.text
.globl {K1}
.p2align 8
.type {K1},@function
{K1}:
{T_entry}{T_c1}{T_f2}{T_a2}{T_l1}{T_l2}{''.join(SLOW)}L_codeend:
.section .rodata,"a"
.p2align 6
.amdhsa_kernel {K1}
  .amdhsa_next_free_vgpr 168
  .amdhsa_next_free_sgpr 102
  .amdhsa_accum_offset 168
  .amdhsa_group_segment_fixed_size 0
  .amdhsa_kernarg_size 88
  .amdhsa_user_sgpr_count 2
  .amdhsa_user_sgpr_kernarg_segment_ptr 1
  .amdhsa_system_sgpr_workgroup_id_x 1
.end_amdhsa_kernel
"""

if __name__ == "__main__":
    import json
    cfg = json.loads(sys.argv[2]) if len(sys.argv) > 2 else {}
    open(sys.argv[1], "w").write(gen(cfg))
```

```python
import sys, math, struct
NAME = "parallel_sum__sliding_local_dilated__dense_activation_gelu__prompt"

class Asm:
    def __init__(self):
        self.L = []; self.vm = []; self.lg = []; self.smem = False; self.pend = []; self.nst = 0
    def __call__(self, s):
        for l in s.strip("\n").split("\n"):
            l = l.strip()
            if l: self.L.append(l if l.endswith(":") else "  " + l)
    def fork(self):
        b = Asm(); b.vm = list(self.vm); b.lg = list(self.lg); b.smem = self.smem; return b
    def cut(self):
        t = "\n".join(self.L) + "\n"; self.L = []; return t
    def vmem(self, s, tag): self(s); self.vm.append(tag)
    def ds(self, s, tag): self(s); self.lg.append(tag)
    def _cnt(self, q, tags):
        last = -1
        for i, t in enumerate(q):
            if t in tags: last = i
        return None if last < 0 else len(q) - 1 - last
    def need(self, vm=(), lg=(), drain=False):
        parts = []
        n = self._cnt(self.vm, set(vm))
        if n is not None:
            n = min(n, 62); parts.append(f"vmcnt({n})"); self.vm = self.vm[len(self.vm) - n:] if n else []
        n = self._cnt(self.lg, set(lg))
        if drain: n = 0 if (self.lg or self.smem) else None
        if n is not None:
            n = min(n, 14)
            parts.append(f"lgkmcnt({n})"); self.lg = self.lg[len(self.lg) - n:] if n else []
        if parts: self("s_waitcnt " + " ".join(parts))
        if drain:
            self.smem = False
            for sg, idx in self.pend: self(f"v_writelane_b32 v0, s{sg}, {idx}")
            self.pend = []

def vr(a, n=1): return f"v{a}" if n == 1 else f"v[{a}:{a+n-1}]"
def sq(a): return f"s[{a}:{a+3}]"
def f2u(x): return "0x%08x" % struct.unpack("<I", struct.pack("<f", x))[0]

KP = 4608
HALO = 4096
ACT = 57344
WOR = 28672
def actoff(t): return (t - 7) * 4096 if t >= 7 else 8192 + 28672 + t * 4096
RING = 65536
SLOT = 28672
BIAS = RING + 3 * SLOT
XRES = BIAS + 2048
CNT = XRES + 8192 + 128
LDS_BYTES = XRES + 8192 + 256
INLOC = [RING + SLOT, RING + SLOT + 8192, RING + SLOT + 16384, 0, 8192, 16384, 24576]
W2LOC = [0, RING + 2 * SLOT, RING, RING + SLOT, 0, RING + 2 * SLOT, RING]
WOLOC = [WOR, WOR + 7168, WOR + 2 * 7168, WOR + 3 * 7168, WOR, ACT, WOR + 7168]
FOFF = 56 * 16384
WS_WQ = 0x2200000
WS_F1 = 0x2400000
WS_STAMP = 0x8000000
OOB = 0x7ff00000
SPIN = 200000
SX, SWS, SOUT, SW1, SB1, SWQ, SDBG, SW2, SWO, SB2 = 28, 32, 36, 36, 40, 40, 44, 48, 52, 56
sIN, sLO, sFE, sDum = 48, 55, 3, 63
sW, sS, sRB, sA, sRH, sHI, sROW0, sT0, sT1, sT2, sT3 = 68, 69, 70, 71, 72, 73, 74, 75, 76, 77, 78
sW1o, sWQo, sW2o, sJJ, sM0, sPart, sC2, sCH = 79, 80, 81, 82, 83, 84, 85, 86
sCW, sN0, sN1, sPoll, sM1 = 93, 94, 95, 96, 97
sR, sRC, sK = 0, 1, 93

C1 = 2 * math.sqrt(2 / math.pi) * math.log2(math.e)
ALPHA = (C1 * 0.044715) ** (1 / 3)
GK = C1 / ALPHA

def gen(cfg):
    G = cfg.get
    STAMP = G("stamp", False); SOP = G("stampop", "s_memtime")
    xm = G("xmap", 4); nsh = 32 // xm
    uid = [0]
    WSH = G('wsh', 10)
    FR, FP = G('fr', 0x4100), G('fp', 4)
    def lab(n): uid[0] += 1; return f"L_{n}{uid[0]}"
    def stamp(b, idx):
        if not STAMP or (G("lite") and idx not in (3, 10, 17, 24, 25, 26, 30, 31, 32, 33, 34, 37)) or getattr(b, "nostamp", False): return
        sg = (64, 66, 98, 100)[b.nst % 4]; b.nst += 1
        assert len(b.pend) < 4
        b(f"{SOP} s[{sg}:{sg+1}]"); b.smem = True; b.pend.append((sg, idx))
    def mark(b, name):
        if G("spin") and G("spin")[0] == name: b("s_memrealtime s[100:101]"); b.smem = True
    def barrier(b, j, vm=()):
        pb0 = G("prebar")
        if pb0 is not None and pb0 <= j < pb0 + 8: stamp(b, 42 + j - pb0)
        b.need(vm=vm, drain=True)
        if pb0 is not None and pb0 <= j < pb0 + 8: stamp(b, 50 + j - pb0)
        b("s_barrier")
        stamp(b, 10 + j)
    BH = 22
    def srd(b, d, p, n):
        b(f"s_mov_b32 s{d}, s{p}\ns_and_b32 s{d+1}, s{p+1}, 0xffff\ns_mov_b32 s{d+2}, {n}\ns_mov_b32 s{d+3}, 0x20000")
    def mfma(b, d, x, y, c=None):
        b(f"v_mfma_f32_16x16x32_bf16 {vr(d,4)}, {vr(x,4)}, {vr(y,4)}, {vr(d,4) if c is None else c}")
    def chunks(b):
        for i in range(7):
            b(f"s_add_u32 s{sCH+i}, s{sS if i == 0 else sCH+i-1}, 1")
            b(f"s_cmp_ge_u32 s{sCH+i}, 7\ns_cselect_b32 s{sT0}, 7, 0\ns_sub_u32 s{sCH+i}, s{sCH+i}, s{sT0}")
    SLOW = []
    def get_nonce(b, vt, cp):
        again, got = lab("na"), lab("ng")
        b(f"s_buffer_load_dword s{sN0}, {sq(SDBG)}, {64*cp}"); b.smem = True
        yield
        b.need(drain=True)
        b(f"s_mov_b32 s{sPoll}, 0\ns_cmp_eq_u32 s{sN0}, 0\ns_cbranch_scc1 {again}\n{got}:\ns_mov_b32 s{sN1}, s{sN0}")
        if STAMP: b(f"v_writelane_b32 v0, s{sPoll}, 58")
        x = Asm()
        x(f"""{again}:
v_mov_b32 v{vt}, 0
s_add_u32 s{sPoll}, s{sPoll}, 1
buffer_load_dword v{vt}, v{vt}, {sq(SDBG)}, 0 offen sc1
s_cmp_gt_u32 s{sPoll}, {SPIN}
s_waitcnt vmcnt(0)
v_readfirstlane_b32 s{sN0}, v{vt}
s_cbranch_scc1 {got}
s_cmp_eq_u32 s{sN0}, 0
s_cbranch_scc1 {again}
s_branch {got}""")
        SLOW.append(x.cut())
        yield
    def slow_poll(retry, got, vt, addr, sbase):
        x = Asm()
        x(f"""{retry}:
{addr}
s_add_u32 s{sPoll}, s{sPoll}, 1
buffer_load_dword v{vt}, v{vt}, {sq(SWS)}, s{sbase} offen sc1
s_cmp_gt_u32 s{sPoll}, {SPIN}
s_waitcnt vmcnt(0)
v_cmp_ne_u32 vcc, s{sN0}, v{vt}
s_cbranch_scc1 {got}
s_nop 1
s_cbranch_vccnz {retry}
s_branch {got}""")
        SLOW.append(x.cut())
    def first_stamps(b):
        if STAMP: b("v_writelane_b32 v0, s98, 62\nv_writelane_b32 v0, s100, 0")

    vL, vL16, vActW, vT0, vT1, vT2, vT3 = 1, 2, 3, 4, 5, 6, 7
    vXE, vXO, vG2W, vG2W2, vG2O0, vG2O2 = 8, 9, 10, 11, 12, 13
    a = Asm()
    RAW, UNP = 136, 80
    lb = xm.bit_length() - 1
    a(f"""
s_load_dwordx16 s[4:19], s[0:1], 0
s_load_dwordx8 s[20:27], s[0:1], 56
s_cmpk_ge_u32 s2, 256
s_cbranch_scc1 L_end
s_getpc_b64 s[28:29]
L_pc:
s_lshr_b32 s3, s2, 3
v_lshrrev_b32 v{vT0}, 6, v0
v_mad_u32_u24 v{vT1}, s3, 12, v{vT0}
v_readfirstlane_b32 s{sW}, v{vT0}
v_lshlrev_b32 v{vT1}, 7, v{vT1}
v_min_u32 v{vT1}, L_codeend - L_pc - 4, v{vT1}
""")
    if G("codepf", True): a.vmem(f"global_load_dword v23, v{vT1}, s[28:29]", "pf")
    if G("delay"):
        xs, n = G("delay")
        a(f"s_and_b32 s40, s2, 7\ns_lshr_b32 s40, {xs}, s40\ns_bitcmp1_b32 s40, 0\ns_cbranch_scc0 L_nodelay")
        for _ in range(n): a("s_sleep 37")
        a("L_nodelay:")
    if G("pgprobe"):
        step, n = G("pgprobe")
        a(f"""s_waitcnt lgkmcnt(0)
s_mov_b32 s40, s26
s_and_b32 s41, s27, 0xffff
s_mov_b32 s42, 0x10000000
s_mov_b32 s43, 0x20000
s_lshl_b32 s44, s2, 8
s_add_u32 s44, s44, 0x4000000
v_mov_b32 v8, 0""")
        for i in range(n): a(f"buffer_load_dword v9, v8, s[40:43], s44 offen\ns_add_u32 s44, s44, {step}\ns_waitcnt vmcnt(0)")
        a.vm = []
    if G("inprobe"):
        a("s_waitcnt lgkmcnt(0)\ns_lshl_b32 s44, s2, 2\nv_mov_b32 v8, s44")
        for p in G("inprobe"): a(f"global_load_dword v9, v8, s[{p}:{p+1}]\ns_waitcnt vmcnt(0)\nv_add_u32 v8, {G('instep', 0)}, v8")
        a.vm = []
    if G("bwprobe"):
        off, aux = G("bwprobe")
        a(f"""s_waitcnt lgkmcnt(0)
s_mov_b32 s40, s26
s_and_b32 s41, s27, 0xffff
s_mov_b32 s42, 0x10000000
s_mov_b32 s43, 0x20000
s_mul_i32 s44, s2, {12*12*1024}
s_add_u32 s44, s44, {off}
v_lshlrev_b32 v8, 4, v0""")
        for i in range(12):
            a(f"buffer_load_dwordx4 v[{32+4*i}:{35+4*i}], v8, s[40:43], s44 offen {aux}\ns_add_u32 s44, s44, {12*1024}")
        a("s_waitcnt vmcnt(0)\ns_barrier"); a.vm = []
    mark(a, "own")
    if STAMP: a(f"s_memrealtime s[98:99]\n{SOP} s[100:101]")
    if xm == 1: a(f"s_mov_b32 s{sRB}, s3")
    else: a(f"s_bfe_u32 s{sT0}, s2, {(lb << 16) | (3 - lb)}\ns_lshl_b32 s{sT0}, s{sT0}, {5-lb}\ns_lshr_b32 s{sT1}, s3, {lb}\ns_add_u32 s{sRB}, s{sT0}, s{sT1}")
    a(f"""
s_lshr_b32 s{sT0}, s{sRB}, 1
s_lshl_b32 s{sT0}, s{sT0}, 7
s_and_b32 s{sT1}, s{sRB}, 1
s_add_u32 s{sROW0}, s{sT0}, s{sT1}
""")
    EPF = G("epf", False)
    if EPF:
        a(f"s_cmp_ge_u32 s{sW}, 4\ns_cbranch_scc1 L_C")
        aL = a.fork()
        aL(f"s_mul_i32 s{sT0}, s2, 49\nv_min_u32 v{vT1}, 48, v0\nv_add_lshl_u32 v{vT1}, v{vT1}, s{sT0}, 7\ns_waitcnt lgkmcnt(0)")
        aL.vmem(f"global_load_dword v23, v{vT1}, s[12:13]", "pf")
        aL("s_branch L_L\nL_C:")
        a.L += aL.L
    else: a(f"s_cmp_lt_u32 s{sW}, 4\ns_cbranch_scc1 L_L"); aL = a
    T_entry = a.cut()
    def common2(b):
        b(f"""
v_and_b32 v{vL}, 63, v0
v_lshlrev_b32 v{vL16}, 4, v{vL}
s_and_b32 s{sA}, s{sW}, 3
""")
        if xm == 1: b(f"s_and_b32 s{sS}, s2, 7")
        else: b(f"s_and_b32 s{sT0}, s2, {8//xm - 1}\ns_lshl_b32 s{sT0}, s{sT0}, {lb}\ns_and_b32 s{sT2}, s3, {xm-1}\ns_add_u32 s{sS}, s{sT0}, s{sT2}")
        b(f"s_lshr_b32 s{sT0}, s3, {lb}")
        if xm == 8: b(f"s_lshl_b32 s{sR}, s{sT0}, 1")
        else: b(f"s_mul_i32 s{sT1}, s{sT0}, 37\ns_lshr_b32 s{sT1}, s{sT1}, 8\ns_mul_i32 s{sT1}, s{sT1}, 7\ns_sub_u32 s{sR}, s{sT0}, s{sT1}")
        b(f"s_mov_b32 s{sRC}, {'s%d' % sR if G('rotc', False) else 0}")
        if not G("rotk", True): b(f"s_mov_b32 s{sR}, 0")
        elif G('rotm', [3, 2]): b(f"s_and_b32 s{sR}, s{sT0}, {G('rotm', [3, 2])[0]}\ns_mul_i32 s{sR}, s{sR}, {G('rotm', [3, 2])[1]}")
        if STAMP: b("v_mov_b32 v0, 0")
    c = a.fork()
    c(f"v_lshrrev_b32 v{vT2}, 3, v0")
    if xm > 1 and G("xrot", False):
        c(f"s_lshl_b32 s{sT2}, s3, {6-lb}\ns_add_u32 s{sT2}, s{sT2}, 32\nv_add_u32 v{vT2}, s{sT2}, v{vT2}")
    else: c(f"v_add_u32 v{vT2}, 32, v{vT2}")
    c(f"""
v_and_b32 v{vT2}, 63, v{vT2}
v_lshl_add_u32 v{vT0}, v{vT2}, 1, s{sROW0}
v_mul_u32_u24 v{vT0}, 896, v{vT0}
v_and_b32 v{vT1}, 7, v0
v_lshl_add_u32 v{vXO}, v{vT1}, 4, v{vT0}
s_setprio {G('cprio', 1)}
s_waitcnt lgkmcnt(0)
""")
    for t in range(7):
        c.vmem(f"global_load_dwordx4 {vr(RAW+4*t,4)}, v{vXO}, s[4:5] offset:{128*t} {G('ntx','')}", f"x{t}")
    c("L_x256:")
    common2(c)
    first_stamps(c)
    c(f"""
s_sub_u32 s{sCW}, s{sW}, 4
s_and_b32 s{sRH}, s{sW}, 1
s_bfe_u32 s{sHI}, s{sW}, 0x10001
""")
    if G("spf", False):
        c(f"""s_lshl_b32 s{sT0}, s{sCW}, 5
s_add_u32 s{sT0}, s{sT0}, s{sRB}
s_mul_i32 s{sT0}, s{sT0}, 3584
s_mul_i32 s{sT1}, s{sS}, 448
s_add_u32 s{sT0}, s{sT0}, s{sT1}""")
        for i in range(7): c(f"s_load_dword s{sDum}, s[12:13], s{sT0} offset:{64*i}")
        c(f"""s_min_u32 s{sT2}, s{sCW}, 6
s_lshl_b32 s{sT2}, s{sT2}, 6
s_add_u32 s{sT1}, s{sT1}, s{sT2}
s_load_dword s{sDum}, s[14:15], s{sT1}
s_cmp_lt_u32 s{sCW}, 6
s_cselect_b32 s{sT2}, {256*3584}, 0
s_add_u32 s{sT0}, s{sT0}, s{sT2}""")
        for i in range(7): c(f"s_load_dword s{sDum}, s[12:13], s{sT0} offset:{64*i}")
    c(f"""
v_lshrrev_b32 v{vXE}, 4, v{vT2}
v_and_b32 v{vT1}, 15, v{vT2}
v_and_b32 v{vT0}, 3, v{vL}
v_bfe_u32 v{vT2}, v{vL}, 2, 1
v_mul_u32_u24 v{vActW}, 12, v{vT2}
v_or_b32 v{vActW}, v{vActW}, v{vT0}
v_xor_b32 v{vT1}, v{vT1}, v{vActW}
v_lshlrev_b32 v{vT1}, 4, v{vT1}
v_lshl_add_u32 v{vT1}, v{vT0}, 8, v{vT1}
v_mul_u32_u24 v{vT2}, {KP}, v{vT2}
v_lshl_add_u32 v{vT1}, v{vXE}, 10, v{vT1}
s_sub_u32 s{sT0}, 7, s{sR}
s_cmp_eq_u32 s{sR}, 0
s_cselect_b32 s{sT0}, 0, s{sT0}
s_mul_i32 s{sT0}, s{sT0}, {2*KP}
s_movk_i32 s{sT1}, {2*KP}
v_add3_u32 v{vActW}, v{vT1}, v{vT2}, s{sT0}
""")
    XA = [vActW, 40, 41, 42, 43, 44, 45]
    for t in range(1, 7): c(f"s_cmp_eq_u32 s{sR}, {t}\ns_cselect_b32 s{sT0}, {-12*KP}, s{sT1}\nv_add_u32 v{XA[t]}, s{sT0}, v{XA[t-1]}")
    c(f"s_cmp_ge_u32 s{sW}, 8\ns_cbranch_scc1 L_A2")
    T_c1 = c.cut()

    def col128(b, d, src):
        b(f"s_add_u32 s{d}, s{src}, s{sRC}\ns_sub_u32 s{sT3}, s{d}, 7\ns_min_u32 s{d}, s{d}, s{sT3}\ns_lshl_b32 s{d}, s{d}, 7")
    def halo_loads(b, HR):
        b(f"""
v_lshrrev_b32 v{vT0}, 5, v{vL}
s_lshl_b32 s{sT0}, s{sA}, 2
s_add_u32 s{sT0}, s{sT0}, s{sROW0}
s_sub_u32 s{sT0}, s{sT0}, 16
v_lshl_add_u32 v{vT0}, v{vT0}, 1, s{sT0}
s_movk_i32 s{sT3}, 896
v_mul_lo_u32 v{vT0}, v{vT0}, s{sT3}
v_and_b32 v{vT1}, 31, v{vL}
v_cmp_gt_u32 vcc, 24, v{vT1}
v_lshl_add_u32 v{vT1}, s{sR}, 3, v{vT1}
v_add_u32 v{vT2}, 32, v{vT1}
v_subrev_u32 v{vT3}, 24, v{vT1}
v_min_u32 v{vT2}, v{vT2}, v{vT3}
v_lshl_add_u32 v{vT2}, v{vT2}, 4, v{vT0}
v_subrev_u32 v{vT3}, 56, v{vT1}
v_min_u32 v{vT1}, v{vT1}, v{vT3}
v_lshl_add_u32 v{vT0}, v{vT1}, 4, v{vT0}
v_mov_b32 v{vT3}, {OOB}
v_cndmask_b32 v{vT2}, v{vT3}, v{vT2}, vcc
v_min_u32 v20, v{vT3}, v{vT0}
v_min_u32 v21, v{vT3}, v{vT2}
""")
        if HR: halo_issue(b, HR)
    def halo_issue(b, HR):
        b.vmem(f"buffer_load_dwordx4 {vr(HR[0],4)}, v20, {sq(SX)}, 0 offen", "h0")
        b.vmem(f"buffer_load_dwordx4 {vr(HR[1],4)}, v21, {sq(SX)}, 0 offen", "h1")
    HF = G("halof", True)
    def halo_write(b, HR):
        b(f"""v_lshrrev_b32 v{vT0}, 5, v{vL}
s_lshl_b32 s{sT0}, s{sA}, 1
v_add_u32 v{vT0}, s{sT0}, v{vT0}
v_and_b32 v{vT1}, 7, v{vL}
v_xor_b32 v{vT0}, v{vT0}, v{vT1}
v_lshlrev_b32 v{vT0}, 4, v{vT0}
v_and_b32 v{vT1}, 3, v{vL}
v_lshl_add_u32 v{vT0}, v{vT1}, 7, v{vT0}
v_bfe_u32 v{vT1}, v{vL}, 2, 3
v_mul_u32_u24 v{vT1}, {KP}, v{vT1}
v_add_u32 v{vT2}, v{vT0}, v{vT1}
ds_write_b128 v{vT2}, {vr(HR[0],4)} offset:{HALO}
s_mov_b32 exec_lo, 0x00ffffff
s_mov_b32 exec_hi, 0x00ffffff
ds_write_b128 v{vT2}, {vr(HR[1],4)} offset:{HALO + 8*KP}
s_mov_b64 exec, 0xff
v_lshlrev_b32 v{vT0}, 2, v{vL}
v_add_u32 v{vT0}, {CNT}, v{vT0}
v_mov_b32 v{vT1}, 0
ds_write_b32 v{vT0}, v{vT1}
s_mov_b64 exec, -1""")
    def xbases(b):
        b(f"""
v_lshrrev_b32 v{vT2}, 4, v{vL}
v_and_b32 v{vT3}, 15, v{vL}
v_xor_b32 v{vT0}, v{vT3}, v{vT2}
v_lshlrev_b32 v{vT1}, 8, v{vT2}
s_lshl_b32 s{sT0}, s{sRH}, 11
v_lshl_add_u32 v{vXE}, v{vT0}, 4, v{vT1}
v_add_u32 v{vXE}, s{sT0}, v{vXE}
v_xor_b32 v{vXO}, {12*16}, v{vXE}
""")
    def region(b, d):
        b(f"s_sub_u32 s{sT2}, 0, s{SWS}\ns_and_b32 s{sT2}, s{sT2}, 0xfffff\ns_lshl_b32 s{d}, s{sRB}, 20\ns_add_u32 s{d}, s{d}, s{sT2}")
    def setup_s(b):
        srd(b, SWS, 26, 0x10000000); srd(b, SOUT, 22, 2048 * 896)
        region(b, sFE)
        b(f"""
s_mul_i32 s{sT2}, s{sRB}, {G('wx', [1, 7])[0]}
s_and_b32 s{sT2}, s{sT2}, {G('wx', [1, 7])[1]}
s_xor_b32 s{sW2o}, s{sT2}, s{sCW}
s_lshl_b32 s{sW2o}, s{sW2o}, 10
s_add_u32 s{sPart}, s{sFE}, s{sW2o}
s_mul_i32 s{sM1}, s{sS}, {9*16384}
s_add_u32 s{sM1}, s{sM1}, s{sPart}
s_add_u32 s{sPart}, s{sPart}, {FOFF}
s_add_u32 s{sFE}, s{sFE}, {FOFF}
""")
    def setup_v1(b):
        b(f"""
v_lshrrev_b32 v{vT0}, 2, v{vL}
v_bfe_u32 v{vT1}, v{vL}, 3, 2
s_lshr_b32 s{sT2}, s{sCW}, 1
v_xor_b32 v{vT1}, s{sT2}, v{vT1}
v_lshlrev_b32 v{vT1}, 5, v{vT1}
v_lshl_add_u32 v{vT1}, v{vT0}, 7, v{vT1}
v_and_b32 v{vT0}, 3, v{vL}
v_lshl_add_u32 v{vG2O0}, v{vT0}, 3, v{vT1}
v_add_u32 v{vG2W}, {RING}, v{vG2O0}
""")
    def act_base(b):
        b(f"s_lshl_b32 s{sT0}, s{sRH}, 11\ns_add_u32 s{sT0}, s{sT0}, {ACT}\nv_add_u32 v{vActW}, s{sT0}, v{vL16}")
    def setup_v2(b):
        b(f"v_add_u32 v{vG2W2}, {RING+2*SLOT}, v{vG2O0}\nv_xor_b32 v{vG2O2}, 64, v{vG2O0}")

    def ln_core(b, raw, nraw, unp, tags, nl, pk=True):
        S, Q = vT0, vT2
        rw = (lambda d: raw + d) if isinstance(raw, int) else (lambda d: raw[d // 4] + d % 4)
        for d in range(nraw):
            if d % 4 == 0: b.need(vm=[tags[d // 4]])
            u = unp + 2 * d
            b(f"v_lshlrev_b32 v{u}, 16, v{rw(d)}\nv_and_b32 v{u+1}, 0xffff0000, v{rw(d)}")
            if not pk:
                if d == 0: b(f"v_mov_b32 v{S}, v{u}\nv_mov_b32 v{S+1}, v{u+1}\nv_mul_f32 v{Q}, v{u}, v{u}\nv_mul_f32 v{Q+1}, v{u+1}, v{u+1}")
                else: b(f"v_add_f32 v{S}, v{S}, v{u}\nv_add_f32 v{S+1}, v{S+1}, v{u+1}\nv_fmac_f32 v{Q}, v{u}, v{u}\nv_fmac_f32 v{Q+1}, v{u+1}, v{u+1}")
            elif d == 0: b(f"v_pk_mul_f32 {vr(Q,2)}, {vr(u,2)}, {vr(u,2)}")
            elif d == 1: b(f"v_pk_add_f32 {vr(S,2)}, {vr(u-2,2)}, {vr(u,2)}\nv_pk_fma_f32 {vr(Q,2)}, {vr(u,2)}, {vr(u,2)}, {vr(Q,2)}")
            else: b(f"v_pk_add_f32 {vr(S,2)}, {vr(S,2)}, {vr(u,2)}\nv_pk_fma_f32 {vr(Q,2)}, {vr(u,2)}, {vr(u,2)}, {vr(Q,2)}")
        yield "stats"
        b(f"v_add_f32 v{S}, v{S}, v{S+1}\nv_add_f32 v{Q}, v{Q}, v{Q+1}\ns_nop 0")
        for st in ["quad_perm:[1,0,3,2]", "quad_perm:[2,3,0,1]", "row_half_mirror", "row_mirror"][:min(nl, 4)]:
            b(f"v_add_f32_dpp v{S}, v{S}, v{S} {st} row_mask:0xf bank_mask:0xf\nv_add_f32_dpp v{Q}, v{Q}, v{Q} {st} row_mask:0xf bank_mask:0xf\ns_nop 0")
        if nl >= 5:
            b(f"""v_mov_b32 v{S+1}, v{S}
v_mov_b32 v{Q+1}, v{Q}
s_nop 1
v_permlane16_swap_b32 v{S}, v{S+1}
v_permlane16_swap_b32 v{Q}, v{Q+1}
s_nop 1
v_add_f32 v{S}, v{S}, v{S+1}
v_add_f32 v{Q}, v{Q}, v{Q+1}""")
        b(f"""v_mul_f32 v{S}, {f2u(1/448)}, v{S}
v_mul_f32 v{Q}, {f2u(1/448)}, v{Q}
v_fma_f32 v{Q}, -v{S}, v{S}, v{Q}
v_max_f32 v{Q}, 0, v{Q}
""")
        if G("lnr", True): b(f"""v_cvt_pk_bf16_f32 v{Q+1}, v{S}, v{Q}
v_and_b32 v{Q}, 0xffff0000, v{Q+1}
v_add_f32 v{Q}, {f2u(1e-5)}, v{Q}
v_cvt_pk_bf16_f32 v{Q}, v{Q}, v{Q}
v_lshlrev_b32 v{Q}, 16, v{Q}
v_sqrt_f32 v{Q}, v{Q}
v_lshlrev_b32 v{S}, 16, v{Q+1}
v_cvt_pk_bf16_f32 v{Q}, v{Q}, v{Q}
v_lshlrev_b32 v{Q}, 16, v{Q}
v_rcp_f32 v{Q}, v{Q}
""")
        else: b(f"v_add_f32 v{Q}, {f2u(1e-5)}, v{Q}\nv_rsq_f32 v{Q}, v{Q}")
        b(f"""s_nop 0
v_mul_f32 v{Q}, {f2u(ALPHA)}, v{Q}
v_mul_f32 v{S}, v{S}, v{Q}
.p2align 3""")
        yield "red"
        for d in range(nraw):
            u = unp + 2 * d
            if not pk: b(f"v_fma_f32 v{u}, v{u}, v{Q}, -v{S}\nv_fma_f32 v{u+1}, v{u+1}, v{Q}, -v{S}")
            else: b(f"v_pk_fma_f32 {vr(u,2)}, {vr(u,2)}, {vr(Q,2)}, {vr(S,2)} op_sel_hi:[1,0,0] neg_lo:[0,0,1] neg_hi:[0,0,1]")
            if d >= 1: b(f"v_cvt_pk_bf16_f32 v{rw(d-1)}, v{u-2}, v{u-1}")
            yield d - 1
        u = unp + 2 * (nraw - 1)
        b(f"v_cvt_pk_bf16_f32 v{rw(nraw-1)}, v{u}, v{u+1}")
        yield nraw - 1
    def ln_main(b, hook=None):
        if G("x_noln"):
            for t in range(7):
                if G("x_noln") != 3: b.need(vm=[f"x{t}"])
                if G("x_noln") == 1: b.ds(f"ds_write_b128 v{XA[t]}, {vr(RAW+4*t,4)}", "xw")
            return
        for d in ln_core(b, RAW, 28, UNP, [f"x{t}" for t in range(7)], 3):
            if d == "stats":
                stamp(b, 2)
                if hook: hook()
            if not G("lnbatch") and isinstance(d, int) and d >= 0 and d % 4 == 3:
                b.ds(f"ds_write_b128 v{XA[d//4]}, {vr(RAW+d-3,4)}", "xw")
        if G("lnbatch"):
            for t in range(7): b.ds(f"ds_write_b128 v{XA[t]}, {vr(RAW+4*t,4)}", "xw")

    def g1_phase(b, st0, reads, mfmas, P, GAP, tail=None, head=None):
        M = [m for ks in range(14) for m in mfmas(ks)]
        per = len(M) // 14
        sched = {}
        for j in range(7):
            R0, R1 = reads(2 * j), reads(2 * j + 1)
            b0 = 2 * per * j - P; span = 2 * per - GAP; R = R0 + R1
            for i, r in enumerate(R):
                pos = b0 + (i * span) // len(R)
                if i >= len(R0): pos = max(pos, 2 * per * j - 1)
                sched.setdefault(max(pos, -1), []).append(r)
        barrier(b, st0)
        for r in sched.get(-1, []): b.ds(*r)
        if head: head()
        for m, (fn, tg) in enumerate(M):
            if (m + P) % (2 * per) == 0: barrier(b, st0 + (m + P) // (2 * per))
            b.need(lg=tg); fn()
            for r in sched.get(m, []): b.ds(*r)
            if tail: tail(m - len(M))

    RA = G("runahead", 1)
    PROG = G("prog", {"19": 1, "20": 3})
    NE = G('ne', 3); TM = G('tm', 3)
    def arrival(b, k, d, base):
        b(f"""s_add_u32 s{d+1}, s{sS}, {(1 + k) % 7}
s_sub_u32 s{d}, s{d+1}, 7
s_min_u32 s{d+1}, s{d+1}, s{d}
s_lshl_b32 s{d+1}, s{d+1}, {WSH}
s_add_u32 s{d+1}, s{d+1}, s{base}
s_cmp_eq_u32 s{sS}, 7
s_cselect_b32 s{d}, 64, {1 << k}""")
    PD = max([0] + list(PROG.values())); MIDS = G("mids", False)
    def h_frags(b, vbase):
        for t in range(7):
            for pb in range(2): b.ds(f"ds_read_b128 {vr(96+4*(9*pb+t),4)}, v{vbase} offset:{actoff(t) + pb*1024}", f"hf{t}")
    def g2_phase(b, role):
        XR, PK, AC, WR, INB, ACTR = 14, 20, 28, 44, 68, 96
        NR = 6
        P2, GAP2, LEAD = G("p2" + role, 8), G("gap2" + role, 2), G("lead2", 8)
        ET = G("et" + role, 4)
        XT = G("xt" + role, 4)
        ra = RA if role == "F" else 0
        steps = [(cc, t) for cc in range(ra) for t in range(7)] + [(cc, t) for cc in range(ra) for t in (7, 8)] + \
                [(cc, t) for cc in range(ra, 7) for t in range(9)]
        N = len(steps); at = {s: n for n, s in enumerate(steps)}
        bpos = {}
        if role == "F":
            bpos[BH] = -1
            bpos[15] = 14 * ra - G("hold15", 14) if ra else 0
        else: bpos[15] = -1
        for cc in range(1, 7):
            if ra == 2 and cc <= 2: bpos[15 + cc] = 2 * at[(2, 0)]
            elif cc == 6: bpos[21] = 2 * at[(6, 0)]
            else: bpos[15 + cc] = max(2 * at[(cc, 0)] - (P2 if cc > ra or ra == 0 else 2), bpos[14 + cc] + 1)
        R = []
        for n, (cc, t) in enumerate(steps):
            w = WR + 4 * (n % NR)
            en = bpos[BH] if (cc < ra and t < 7) else (bpos[15] if cc < ra else bpos[15 + cc])
            war = 2 * (n - NR) + 1
            rel = bpos.get(16 + cc, 10 ** 6) - GAP2
            if cc == 0 and t >= 7:
                ena = bpos[15]
                for pb in range(2):
                    R.append((f"ds_read_b128 {vr(ACTR+4*(9*pb+t),4)}, v{vActW} offset:{actoff(t) + pb*1024}", f"w{n}", ena, min(2 * n - LEAD, rel)))
            for u in range(2):
                if t < 7:
                    loc = W2LOC[cc]
                    base, o = (vG2O0, 0) if loc == 0 else ((vG2W2, 0) if loc == RING + 2 * SLOT else (vG2W, loc - RING))
                    o += (96 + 112 * u if t == 6 else 112 * (t // 3) + 32 * (t % 3) + 16 * u) * 128
                else:
                    hd = t - 7
                    base = vG2O0 if (14*hd + 6*u) % 4 == 0 else vG2O2
                    o = WOLOC[cc] + (28*hd + 12*u) * 128
                R.append((f"ds_read_b64_tr_b16 {vr(w+2*u,2)}, v{base} offset:{o}", f"w{n}", max(en, war), min(2 * n - LEAD, rel)))
        pos = [0] * len(R); nxt = 10 ** 6
        for i in reversed(range(len(R))):
            nxt = max(min(R[i][3], nxt - 1), R[i][2], -1); pos[i] = nxt
        sched = {}; prev = -1
        for i, r in enumerate(R):
            p = max(pos[i], r[2], prev, -1)
            n = int(r[1][1:])
            burst = (ra == 2 and p == bpos[16] and n < at[(2, 0)] + 4) or (p == bpos[21] and n < at[(6, 0)] + 3)
            while not burst and len(sched.get(p, [])) >= (2 if p >= 0 else G("init2", 10)) and p + 1 < 2 * n - 1 and p + 1 < bpos.get(16 + steps[n][0], 10 ** 6): p += 1
            assert p < 2 * n or p == bpos[15] or burst, (r, p)
            sched.setdefault(p, []).append(r); prev = p
        bars = {}
        for j, p in bpos.items(): bars.setdefault(p, []).append(j)
        STA = G("sta" + role, {})
        nst = [0]; pendst = []
        def site():
            cc, k = pendst.pop(0)
            b(f"s_mov_b64 exec, s[{4+2*k}:{5+2*k}]")
            b.vmem(f"buffer_store_dwordx4 {vr(INB+4*cc,4)}, v{vL16}, {sq(SWS)}, s{sM1} offen sc1", f"p{cc}")
            b("s_mov_b64 exec, -1")
        def store(cc):
            assert nst[0] == cc; nst[0] += 1
            if cc == 0:
                b.need(lg=["h"])
                b(f"v_readfirstlane_b32 s{sT0}, v{vT3}\ns_nop 0\ns_add_u32 s{sM1}, s{sM1}, s{sT0}\ns_add_u32 s{sFE}, s{sFE}, s{sT0}")
            while pendst: site()
            b(f"s_add_u32 s{sM1}, s{sM1}, {8*16384}\ns_cmp_ge_u32 s{sM1}, s{sPart}\ns_cselect_b32 s{sT0}, {FOFF}, 0\ns_sub_u32 s{sM1}, s{sM1}, s{sT0}")
            if G("stag") and cc < 5:
                if cc == 0:
                    for k in range(4):
                        if G("stag") == "wave": b(f"s_cmp_eq_u32 s{sA}, {k}\ns_cselect_b64 s[{4+2*k}:{5+2*k}], -1, 0")
                        else: b(f"s_bfm_b64 s[{4+2*k}:{5+2*k}], 16, {16*k}")
                while pendst: site()
                pendst.extend((cc, k) for k in range(4)); site(); return
            while pendst: site()
            if G("x_75"): b.vmem(f"s_mov_b32 exec_hi, 0xffff\nbuffer_store_dwordx4 {vr(INB+4*cc,4)}, v{vL16}, {sq(SWS)}, s{sM1} offen sc1\ns_mov_b32 exec_hi, -1", f"p{cc}")
            elif not G("nopst"): b.vmem(f"buffer_store_dwordx4 {vr(INB+4*cc,4)}, v{vL16}, {sq(SWS)}, s{sM1} offen {G('pst','sc1')}", f"p{cc}")
        def epi(cc):
            ac = AC + 8 * (cc % 2)
            for q in range(4): b(f"v_cvt_pk_bf16_f32 v{INB+4*cc+q}, v{ac+2*q}, v{ac+2*q+1}")
            if str(cc) not in STA: store(cc)
        def signal(off, steps, left):
            nf = lab("nf")
            b(f"v_mov_b32 v{vT0}, {CNT + off}\nv_mov_b32 v{vT1}, 1")
            for k in steps: arrival(b, k, 4 + 2 * k, sFE)
            b(f"""s_mov_b64 exec, 1
s_waitcnt vmcnt({left})
ds_add_rtn_u32 v{vT1}, v{vT0}, v{vT1}
s_waitcnt lgkmcnt(0)
v_cmp_eq_u32 vcc, 7, v{vT1}
s_mov_b64 exec, -1
s_nop 0
s_cbranch_vccz {nf}""")
            for k in reversed(steps): b(f"s_atomic_add s{4+2*k}, s[{SWS}:{SWS+1}], s{5+2*k}")
            b(f"{nf}:")
        def lds_wait(off, val):
            top, ok = lab("lw"), lab("lo")
            b.need(drain=True)
            b(f"""v_mov_b32 v{vT2}, {CNT + off}
s_mov_b32 s{sPoll}, 0
{top}:
ds_read_b32 v{vT3}, v{vT2}
s_add_u32 s{sPoll}, s{sPoll}, 1
s_cmp_gt_u32 s{sPoll}, {SPIN * 16}
s_waitcnt lgkmcnt(0)
v_cmp_gt_u32 vcc, {val}, v{vT3}
s_cbranch_scc1 {ok}
s_nop 0
s_cbranch_vccnz {top}
{ok}:""")
        def before_own():
            b(f"""v_and_b32 v{vT0}, 15, v{vL}
v_bfe_u32 v{vT1}, v{vL}, 1, 2
s_lshr_b32 s{sT1}, s{sCW}, 1
v_xor_b32 v{vT1}, s{sT1}, v{vT1}
v_lshlrev_b32 v{vT1}, 5, v{vT1}
v_lshl_add_u32 v{vT1}, v{vT0}, 7, v{vT1}
v_lshrrev_b32 v{vT2}, 4, v{vL}
v_lshlrev_b32 v{vT2}, 3, v{vT2}""")
            epi(5)
            stamp(b, 33)
            if G("gate") or G("gateE"): b(f"v_mov_b32 v{vXE}, {CNT + 20}\nv_mov_b32 v{vXO}, 1\ns_mov_b64 exec, 1\nds_add_u32 v{vXE}, v{vXO}\ns_mov_b64 exec, -1"); b.lg.append("gt")
            ns, s7 = lab("ns"), lab("s7")
            b(f"s_cmp_eq_u32 s{sS}, 7\ns_cbranch_scc1 {s7}")
            x = Asm(); x(f"{s7}:")
            for q in range(8): x(f"v_mov_b32 v{AC+q}, 0")
            x(f"s_branch {ns}"); SLOW.append(x.cut())
            col128(b, sM0, sS)
            b(f"""s_lshl_b32 s{sT0}, s{sRH}, 12
s_add_u32 s{sT0}, s{sT0}, {XRES}
v_add3_u32 v{vT1}, v{vT1}, v{vT2}, s{sT0}
s_lshl_b32 s{sT1}, s{sT1}, 5
s_add_u32 s{sM0}, s{sM0}, s{sT1}
s_movk_i32 s{sLO}, 0x3f80
s_add_u32 s{sT1}, s{sT1}, {XRES + 8192}
v_add_u32 v{vT2}, s{sT1}, v{vT2}""")
            b.ds(f"ds_read_b64 {vr(XR,2)}, v{vT1}", "xr")
            b.ds(f"ds_read_b64 {vr(XR+2,2)}, v{vT1} offset:2048", "xr")
            b.ds(f"ds_read_b64 {vr(XR+4,2)}, v{vT2}", "xr")
            b(f"""s_lshl_b32 s{sT0}, s{sRH}, 6
s_add_u32 s{sT0}, s{sT0}, s{sROW0}
v_lshl_add_u32 v{vT0}, v{vT0}, 1, s{sT0}
v_bfe_u32 v{vT1}, v{vL}, 4, 1
v_lshl_add_u32 v{vT0}, v{vT1}, 5, v{vT0}
v_mul_u32_u24 v{vT0}, 896, v{vT0}
v_lshrrev_b32 v{vT2}, 5, v{vL}
v_lshl_add_u32 v{vXE}, v{vT2}, 4, v{vT0}
v_mov_b32 v{vXO}, 0x3f800000""")
            b.need(lg=["xr"])
            for d in range(2):
                b(f"v_lshlrev_b32 v{vT0}, 16, v{XR+4+d}\nv_and_b32 v{vT1}, 0xffff0000, v{XR+4+d}")
                for pb in range(2):
                    q = AC + 4 * pb + 2 * d
                    b(f"v_dot2_f32_bf16 v{q}, v{XR+2*pb+d}, s{sLO}, v{vT0}\nv_dot2_f32_bf16 v{q+1}, v{XR+2*pb+d}, v{vXO}, v{vT1}")
            stamp(b, 37)
            if True:
                if MIDS: signal(8, list(range(PD, 5)), 1)
                signal(0, list(range(5 if MIDS else PD, 6)), 0)
                b(f"{ns}:")
                stamp(b, 34)
        if role == "A": act_base(b)
        def h_read():
            b(f"v_mov_b32 v{vT3}, {CNT + 4}"); b.ds(f"ds_read_b32 v{vT3}, v{vT3}", "h")
        for j in bars.get(-1, []):
            barrier(b, j)
            if j == 15: h_read()
            if j == BH: h_frags(b, vActW)
        for r in sched.get(-1, []): b.ds(*r[:2])
        epi_at = {}
        for cc in range(2 if ra == 2 else 0, 5):
            n = at[(cc, 8)] + ET
            if cc + 2 < 7: n = min(n, at[(cc + 2, 0)] - 1)
            epi_at.setdefault(n, []).append((cc, n - at[(cc, 8)]))
        for n in range(N):
            cc, t = steps[n]
            ac = AC + 8 * (cc % 2); w = WR + 4 * (n % NR)
            for pb in range(2):
                m = 2 * n + pb
                early = []
                for j in bars.get(m, []):
                    if j == 21: before_own()
                    if j == 21 and TM == 3: lds_wait(12, 3 if not NE else 2); stamp(b, 31)
                    else: barrier(b, j, vm=[f"p{k}" for k in range(PROG.get(str(j), 0))])
                    if j == 15: h_read()
                    if ra == 2 and j == 16:
                        early = list(sched.get(m, []))
                        for r in early: b.ds(*r[:2])
                        epi(0); epi(1)
                    elif j == 21:
                        early = list(sched.get(m, []))
                        for r in early: b.ds(*r[:2])
                    elif not early:
                        early = [r for r in sched.get(m, []) if int(r[1][1:]) == n]
                        for r in early: b.ds(*r[:2])
                b.need(lg=[f"w{n}", f"hf{t}"])
                q = pb ^ (t & 1) if G("snake", True) else pb
                mfma(b, ac + 4 * q, w, ACTR + 4 * (9 * q + t), "0" if (t == 0 and cc < 6) else None)
                for r in sched.get(m, []):
                    if r not in early: b.ds(*r[:2])
            if pendst and n % G("stagd", 2) == 0: site()
            for e, dist in epi_at.get(n, []):
                if dist < 4: b(f"s_nop {7 - 2 * dist}")
                epi(e)
            for k, v in STA.items():
                if v == f"{cc},{t}": store(int(k))
        own, done = lab("own"), lab("done")
        if STAMP: b.need(drain=True); b(f"{SOP} s[64:65]")
        b(f"s_cmp_lg_u32 s{sS}, 7\ns_cbranch_scc1 {own}\ns_nop 5")
        epi(6)
        if G('mid7', True): signal(8, list(range(PD, 6)), 1)
        signal(0, list(range(6 if G('mid7', True) else PD, 7)), 0)
        b(f"s_branch {done}\n{own}:")
        b(f"""s_nop 0
v_add_u32 v{vT0}, s{sW2o}, v{vL16}
v_add_u32 v{vT1}, {RING}, v{vT0}
s_nop 1""")
        b.vm = []
        def take(slots):
            for i in slots:
                base, o = (vT1, INLOC[i] - RING) if INLOC[i] >= RING else (vT0, INLOC[i])
                b.ds(f"ds_read_b128 {vr(INB+4*i,4)}, v{base} offset:{o}", f"in{i}")
            for i in slots:
                b.need(lg=[f"in{i}"])
                for d in range(4):
                    b(f"v_dot2_f32_bf16 v{AC+2*d}, v{INB+4*i+d}, s{sLO}, v{AC+2*d}\nv_dot2_f32_bf16 v{AC+2*d+1}, v{INB+4*i+d}, v{vXO}, v{AC+2*d+1}")
        if TM == 2 and NE: b("s_barrier")
        if TM == 3 and NE: lds_wait(16, 1)
        take(range(NE))
        if STAMP: b(f"{SOP} s[66:67]")
        b("s_barrier")
        if STAMP: b(f"{SOP} s[98:99]")
        take(range(NE, 7))
        b("s_nop 1")
        for q in range(4): b(f"v_cvt_pk_bf16_f32 v{PK+q}, v{AC+2*q}, v{AC+2*q+1}")
        b(f"s_nop 1\nv_permlane16_swap_b32 v{PK}, v{PK+2}\nv_permlane16_swap_b32 v{PK+1}, v{PK+3}\ns_nop 0")
        b(f"buffer_store_dwordx4 {vr(PK,4)}, v{vXE}, {sq(SOUT)}, s{sM0} offen {G('ost','')}")
        if STAMP: b(f"s_waitcnt lgkmcnt(0)\nv_writelane_b32 v0, s66, 39\nv_writelane_b32 v0, s98, 40")
        b(f"{done}:")
        if STAMP: b(f"s_waitcnt lgkmcnt(0)\nv_writelane_b32 v0, s64, 38\ns_branch L_fin")
        else: b("s_endpgm")

    f = c.fork(); f.nostamp = G('nof')
    vWA, vWB, vWA2, vWB2, vC1, vBi = 14, 15, 16, 17, 18, 19
    FACC = 24; FBUF = (80, 116)
    srd(f, SB1, 14, 1792 * 2)
    FH = (FACC + 4, FACC + 12)
    if HF: srd(f, SX, 4, 2048 * 896); halo_loads(f, None)
    f(f"""s_mul_i32 s{sT3}, s{sS}, 448
s_mul_i32 s{sT1}, s{sHI}, 224
s_add_u32 s{sT3}, s{sT3}, s{sT1}
s_lshl_b32 s{sT2}, s{sA}, 9
s_add_u32 s{sT2}, s{sT2}, {BIAS}
v_lshlrev_b32 v22, 2, v{vL}
v_lshl_add_u32 v{vC1}, v{vL}, 3, s{sT2}""")
    def bias_dma():
        f.vmem(f"buffer_load_dword v{FACC+52}, v22, {sq(SB1)}, s{sT3} offen", "bias")
        if HF: halo_issue(f, FH)
    def wbases():
        f(f"""v_lshrrev_b32 v{vT2}, 4, v{vL}
v_lshlrev_b32 v{vT0}, 3, v{vT2}
v_lshl_add_u32 v{vBi}, v{vT2}, 4, s{sT2}
v_bfe_u32 v{vT1}, v{vL}, 2, 2
v_add_u32 v{vT0}, v{vT0}, v{vT1}
v_mul_u32_u24 v{vT0}, 448, v{vT0}
v_and_b32 v{vT1}, 3, v{vL}
v_lshl_add_u32 v{vT0}, v{vT1}, 3, v{vT0}
s_add_u32 s{sT1}, s{sT1}, {RING}
v_add_u32 v{vT0}, s{sT1}, v{vT0}
v_and_b32 v{vT1}, 1, v{vT2}
s_lshl_b32 s{sT2}, s{sHI}, 6
s_sub_u32 s{sT2}, 32, s{sT2}
v_mul_lo_u32 v{vT1}, v{vT1}, s{sT2}
v_add_u32 v{vWA}, v{vT0}, v{vT1}
v_sub_u32 v{vWB}, v{vT0}, v{vT1}
v_add_u32 v{vWA2}, {2*SLOT}, v{vWA}
v_add_u32 v{vWB2}, {2*SLOT}, v{vWB}
s_mov_b32 s{sC2}, {f2u(-GK)}
s_mov_b32 s{sJJ}, {f2u(ALPHA)}
""")
        xbases(f)
    FE = G("fearly", 1)
    if FE == 1: bias_dma()
    wbases()
    if not G('fl8'): setup_s(f); setup_v1(f); setup_v2(f)
    if FE == 2: bias_dma()
    stamp(f, 1)
    ln_main(f, None if FE else bias_dma)
    stamp(f, 3)
    f(f"s_setprio {G('fprio0', 0)}")
    f.need(vm=["bias"])
    f(f"""v_and_b32 v{FACC+53}, 0xffff0000, v{FACC+52}
v_lshlrev_b32 v{FACC+52}, 16, v{FACC+52}
v_mul_f32 v{FACC+53}, s{sJJ}, v{FACC+53}
v_mul_f32 v{FACC+52}, s{sJJ}, v{FACC+52}""")
    f.ds(f"ds_write_b64 v{vC1}, {vr(FACC+52,2)}", "bias")
    for cb in range(7): f.ds(f"ds_read_b128 {vr(FACC+8*cb,4)}, v{vBi} offset:{64*cb}", "bias")
    if G("x_nohalo"): f.need(vm=["h1"])
    else:
        for _ in ln_core(f, FH, 8, UNP, ["h0", "h1"], 5): pass
    halo_write(f, FH)
    act_base(f)
    f.smem = True
    f("s_setprio 2")
    def f_reads(ks):
        B = FBUF[ks % 2]; slot = (ks // 2) % 3; out = []
        xb = vXE if ks % 2 == 0 else vXO
        for pb in range(2):
            out.append((f"ds_read_b128 {vr(B+4*pb,4)}, v{xb} offset:{pb*1024 + ks*KP}", f"x{ks}"))
        for cb in range(7):
            base = (vWA if cb % 2 == 0 else vWB) + (2 if slot == 2 else 0)
            o = (SLOT if slot == 1 else 0) + (ks % 2) * 14336 + cb * 32
            for u in range(2):
                out.append((f"ds_read_b64_tr_b16 {vr(B+8+4*cb+2*u,2)}, v{base} offset:{o + u*1792}", f"w{ks}_{cb}"))
        return out
    def f_mfmas(ks):
        B = FBUF[ks % 2]; out = []
        for cb in range(7):
            for pb in ((1, 0) if ks == 0 else (0, 1)):
                cin = vr(FACC + 8*cb, 4) if ks == 0 else None
                out.append((lambda cb=cb, pb=pb, cin=cin: mfma(f, FACC + 8*cb + 4*pb, B + 8 + 4*cb, B + 4*pb, cin), [f"x{ks}", f"w{ks}_{cb}"]))
        return out
    g1_phase(f, 0, f_reads, f_mfmas, G("pF", 12), G("gapF", 4))
    f(f"s_setprio {G('gprio', 0)}")
    H, GT = 80, 108
    f(f"""s_lshl_b32 s{sT1}, s{sHI}, 3
s_mul_i32 s{sT2}, s{sHI}, {3*4096}
v_add_u32 v{vWA}, s{sT1}, v{vActW}
v_add_u32 v{vWB}, s{sT2}, v{vActW}""")
    ops = []
    for cb in range(7):
        a0 = FACC + 8 * cb; E = range(8) if not G("nogelu") else range(0)
        for e in E: ops.append((4, f"v_fma_f32 v{GT+e}, -v{a0+e}, v{a0+e}, s{sC2}"))
        for e in E: ops.append((4, f"v_mul_f32 v{GT+e}, v{GT+e}, v{a0+e}"))
        for e in E: ops.append((8, f"v_exp_f32 v{GT+e}, v{GT+e}"))
        for e in E: ops.append((4, f"v_fma_f32 v{GT+e}, v{GT+e}, s{sJJ}, s{sJJ}"))
        for e in E: ops.append((8, f"v_rcp_f32 v{GT+e}, v{GT+e}"))
        for e in E: ops.append((4, f"v_mul_f32 v{GT+e}, v{GT+e}, v{a0+e}"))
        for q in range(4):
            d = H + 24 + q if cb == 6 else H + 8 * (cb // 2) + 4 * (q // 2) + 2 * (cb % 2) + q % 2
            ops.append((4, f"v_cvt_pk_bf16_f32 v{d}, v{GT+2*q}, v{GT+2*q+1}"))
    sl = []
    bud = G("gbud", [200, 284, 284, 284, 284, 284, 284]); acc = 0; j = 8; lim = bud[0]
    for k, (cost, op) in enumerate(ops):
        if acc + cost > lim and j <= 14:
            barrier(f, j); j += 1
            lim += bud[j - 8] if j <= 14 else 10 ** 6
        acc += cost; f(op)
        if sl and k % 4 == 3: f(sl.pop(0))
    while j <= 14:
        barrier(f, j); j += 1
    f("s_setprio 3")
    for p in range(0 if G("x_nohw") else 3):
        for pb in range(2): f.ds(f"ds_write_b128 v{vWB}, {vr(H+8*p+4*pb,4)} offset:{actoff(p) + pb*1024}", "hw")
    f.ds(f"ds_write2st64_b64 v{vWA}, {vr(H+24,2)}, {vr(H+26,2)} offset0:{actoff(6)//512} offset1:{(actoff(6) + 1024)//512}", "hw")
    if G('fl8'): setup_s(f); setup_v1(f); setup_v2(f)
    f(f"s_setprio {G('f2prio', 1)}")
    g2_phase(f, "F")
    T_f2 = f.cut()

    w = c.fork(); w.nostamp = G('noa')
    vXPE, vXPO, vQA, vQA2, vZ, vMask, vPM = 14, 15, 16, 17, 18, 20, (11, 13)
    AACC = 32; ABUF = (96, 132); vHalo = 32
    w("L_A2:")
    stamp(w, 1)
    ln_main(w)
    stamp(w, 3)
    w("s_setprio 0")
    barrier(w, 0)
    srd(w, SDBG, 24, 256)
    setup_s(w); xbases(w)
    PN = G("pn", 20)
    def probe():
        sk, lp, dn = lab("nv"), lab("vl"), lab("vd")
        w.need(drain=True)
        w(f"""s_and_b32 s{sT0}, s{sS}, 5
s_or_b32 s{sT0}, s{sT0}, s{sA}
s_cbranch_scc1 {sk}
s_lshl_b32 s28, s{sS}, 5
s_add_u32 s28, s28, s{sRB}
s_lshl_b32 s28, s28, 7
s_add_u32 s28, s28, {WS_F1}
s_mov_b32 s50, 0
s_mov_b32 s29, 0
.p2align 5
s_load_dword s50, s[{SWS}:{SWS+1}], s28 glc
{lp}:
s_cmp_eq_u32 s50, s{sN0}
s_cbranch_scc1 {dn}
s_add_u32 s29, s29, 1
s_cmp_lt_u32 s29, {PN}
s_cbranch_scc1 {lp}
{dn}:
s_add_u32 s28, s28, s{SWS}
s_lshr_b32 s30, s28, 8
s_xor_b32 s28, s28, s30
s_lshl_b32 s30, s{sRB}, 9
s_xor_b32 s28, s28, s30
s_sub_u32 s30, 0, s29
s_bitcmp1_b32 s28, 13
s_cselect_b32 s30, s30, s29
s_add_u32 s30, s30, {0x10000 + 32}
s_atomic_add s30, s[{SDBG}:{SDBG+1}], 128""")
        if STAMP: w("v_writelane_b32 v0, s30, 59")
        w(f"{sk}:")
    def probes(j):
        if j == G("pat", 5): probe()
    barrier(w, 1)
    gn = get_nonce(w, vT0, 1); next(gn)
    w(f"""
; Wqkv read base: (16*(g>>1) + 4*(g&1) + r)*352 + hd*56 + c4*8
v_lshrrev_b32 v{vT0}, 5, v{vL}
v_bfe_u32 v{vT1}, v{vL}, 2, 3
v_lshl_add_u32 v{vT0}, v{vT0}, 4, v{vT1}
v_mul_u32_u24 v{vT0}, 352, v{vT0}
v_and_b32 v{vT1}, 3, v{vL}
v_lshl_add_u32 v{vT0}, v{vT1}, 3, v{vT0}
s_mul_i32 s{sT0}, s{sHI}, 56
s_add_u32 s{sT0}, s{sT0}, {RING}
v_add_u32 v{vQA}, s{sT0}, v{vT0}
v_add_u32 v{vQA2}, {2*SLOT}, v{vQA}
v_lshrrev_b32 v{vT2}, 4, v{vL}
v_and_b32 v{vT0}, 7, v{vL}
v_xor_b32 v{vT0}, v{vT0}, v{vT2}
v_lshlrev_b32 v{vT0}, 4, v{vT0}
v_lshl_add_u32 v{vT0}, v{vT2}, 7, v{vT0}
v_add_u32 v{vT0}, {HALO}, v{vT0}
v_subrev_u32 v{vT1}, 1024, v{vXE}
s_cmp_eq_u32 s{sRH}, 0
s_cselect_b64 vcc, -1, 0
s_cselect_b32 s{sT0}, 64, 192
v_cndmask_b32 v{vXPE}, v{vT1}, v{vT0}, vcc
v_xor_b32 v{vXPO}, s{sT0}, v{vXPE}
v_cmp_ne_u32 vcc, 0, v{vT2}
s_lshl_b32 s{sT0}, s{sRH}, 11
s_lshl_b32 s{sT1}, s{sHI}, 12
v_cndmask_b32 v{vZ}, 0, -1, vcc
s_add_u32 s{sT0}, s{sT0}, s{sT1}
v_add_u32 v{vActW}, s{sT0}, v{vL16}
""")
    setup_v1(w)
    w(f"""
s_lshl_b32 s{sT3}, s{sS}, 5
s_mul_i32 s{sT0}, s{sA}, 7
s_add_u32 s{sT3}, s{sT3}, s{sT0}
s_lshl_b32 s{sT3}, s{sT3}, 7
s_add_u32 s{sT3}, s{sT3}, {WS_F1}
""")
    w.smem = True; next(gn)
    barrier(w, 2)
    def prelude():
        w(f"""
v_and_b32 v{vT0}, 15, v{vL}
v_lshrrev_b32 v{vT2}, 4, v{vL}
v_lshlrev_b32 v{vT2}, 2, v{vT2}
v_sub_u32 v{vT0}, v{vT0}, v{vT2}
v_mov_b32 v{vT3}, {f2u(-1e30)}
v_mov_b32 v19, 0xffff
s_lshr_b32 s{sT0}, s{sRB}, 1
s_or_b32 s{sT0}, s{sT0}, s{sRH}
s_cmp_eq_u32 s{sT0}, 0
s_cselect_b32 s{sT1}, 0, 8
s_mov_b32 s{sC2}, {f2u(28 ** -0.5 * math.log2(math.e) / ALPHA ** 2)}
""")
    def mask(jj):
        w(f"""
v_subrev_u32 v{vT1}, {jj}, v{vT0}
v_add_u32 v{vT2}, 16, v{vT1}
v_cmp_gt_u32 s[60:61], 8, v{vT1}
v_cmp_gt_u32 s[40:41], 8, v{vT2}
v_cmp_gt_u32 vcc, s{sT1}, v{vT2}
v_cndmask_b32 v{vMask+4+jj}, v{vT3}, 0, s[60:61]
v_cndmask_b32 v{vMask+jj}, v{vT3}, 0, s[40:41]
v_cndmask_b32 v{vMask+8+jj}, v{vT3}, 0, vcc
""")
        if jj % 2 == 0: w(f"v_cndmask_b32 v{vPM[jj//2]}, 0, v19, s[60:61]")
        else: w(f"v_cndmask_b32 v{vT1}, 0, v19, s[60:61]\nv_lshl_or_b32 v{vPM[jj//2]}, v{vT1}, 16, v{vPM[jj//2]}")
    PQ = [4, 8, 12, 16, 20, 24, 56]
    def p1_issue():
        for i, q in enumerate(PQ): w(f"s_buffer_load_dword s{4+i}, {sq(SWS)}, s{sT3} offset:{128*i}")
    prelude(); mask(0); mask(1)
    barrier(w, 3)
    probes(3)
    if not G("p1late"): p1_issue()
    barrier(w, 4)
    if G("p1late"): p1_issue()
    w.smem = True
    chk, retry, got = lab("pc"), lab("pr"), lab("pg")
    w.need(drain=True)
    w(f"s_mov_b32 s{sPoll}, 0\n{chk}:")
    for q in (4, 6, 8): w(f"s_cmp_eq_u64 s[{q}:{q+1}], s[{sN0}:{sN1}]\ns_cbranch_scc0 {retry}")
    w(f"s_cmp_eq_u32 s10, s{sN0}\ns_cbranch_scc0 {retry}")
    w(f"{got}:")
    if STAMP: w(f"v_writelane_b32 v0, s{sPoll}, 60")
    slow_poll(retry, got, vT1, f"v_min_u32 v{vT1}, 6, v{vL}\nv_lshlrev_b32 v{vT1}, 7, v{vT1}", sT3)
    probes(4)
    barrier(w, 5)
    probes(5)
    mask(2); mask(3)
    barrier(w, 6)
    probes(6)
    v19h = 19
    w(f"s_lshl_b32 s{sT0}, s{sRH}, 11\ns_add_u32 s{sT0}, s{sT0}, {ACT}\nv_add_u32 v{v19h}, s{sT0}, v{vL16}")
    w(f"s_setprio {G('aprio',2)}")
    def a_reads(ks):
        B = ABUF[ks % 2]; slot = (7 + ks // 2) % 3; out = []
        xb = vXE if ks % 2 == 0 else vXO
        xp = vXPE if ks % 2 == 0 else vXPO
        out.append((f"ds_read_b128 {vr(B+4,4)}, v{xb} offset:{ks*KP}", f"x{ks}"))
        out.append((f"ds_read_b128 {vr(B+8,4)}, v{xb} offset:{1024 + ks*KP}", f"x{ks}"))
        base = vQA2 if slot == 2 else vQA
        for sec in range(3):
            if sec == 1: out.append((f"ds_read_b128 {vr(B,4)}, v{xp} offset:{ks*KP}", f"xp{ks}"))
            for db in range(2):
                o = (SLOT if slot == 1 else 0) + (ks % 2) * 32 * 352 + sec * 112 + db * 24
                for u in range(2):
                    out.append((f"ds_read_b64_tr_b16 {vr(B+12+4*(2*sec+db)+2*u,2)}, v{base} offset:{o + u*8*352}", f"w{ks}_{sec}{db}"))
        return out
    def a_mfmas(ks):
        B = ABUF[ks % 2]; out = []
        c0 = "0" if ks == 0 else None
        for db in range(2):
            for qb in range(2):
                out.append((lambda db=db, qb=qb: mfma(w, AACC + (2*db+qb)*4, B + 12 + 4*db, B + 4 + 4*qb, c0), [f"x{ks}", f"w{ks}_0{db}"]))
        for db in range(2):
            for kb in range(3):
                out.append((lambda db=db, kb=kb: mfma(w, AACC + 16 + (3*db+kb)*4, B + 20 + 4*db, B + 4*kb, c0), [f"xp{ks}", f"w{ks}_1{db}"]))
        for db in range(2):
            for kb in range(3):
                out.append((lambda db=db, kb=kb: mfma(w, AACC + 40 + (3*db+kb)*4, B + 4*kb, B + 28 + 4*db, c0), [f"w{ks}_2{db}"]))
        if G("x_q14"): del out[13]; del out[10]
        return out
    QP, KPk, VP, ONES, SS, MM, PP, LL, OO = 96, 104, 72, 128, 132, 64, 48, 160, 32
    tl = []
    for q in range(4): tl.append(f"v_mov_b32 v{ONES+q}, 0x3f803f80")
    for db in range(2):
        for qb in range(2):
            s0 = AACC + (2*db+qb)*4
            for h in range(2): tl.append(f"v_cvt_pk_bf16_f32 v{QP+4*qb+2*db+h}, v{s0+2*h}, v{s0+2*h+1}")
    for db in range(2):
        for kb in range(3):
            s0 = AACC + 16 + (3*db+kb)*4
            for h in range(2): tl.append(f"v_cvt_pk_bf16_f32 v{KPk+4*kb+2*db+h}, v{s0+2*h}, v{s0+2*h+1}")
    for qb in range(2):
        for h in range(2): tl.append(f"v_and_b32 v{QP+4*qb+2+h}, v{vZ}, v{QP+4*qb+2+h}")
    def a_tail(m):
        if m >= -10:
            for _ in range(2): w(tl.pop(0))
    g1_phase(w, 7, a_reads, a_mfmas, G("pA", 10), G("gapA", 3), a_tail)
    stamp(w, 5)
    for x in tl: w(x)
    vc = []
    for db in range(2):
        for kb in range(3):
            s0 = AACC + 40 + (3*db+kb)*4
            for h in range(2): vc.append(f"v_cvt_pk_bf16_f32 v{VP+6*db+2*kb+h}, v{s0+2*h}, v{s0+2*h+1}")
    def fill(n):
        for _ in range(n): w(vc.pop(0) if vc else "s_nop 0")
    for qb in range(2):
        for t in range(2):
            m = vMask + 4 if t == 1 else (vMask + 8 if qb == 0 else vMask)
            mfma(w, SS + 8*qb + 4*t, KPk + 4*(qb+t), QP + 4*qb, vr(m, 4))
    fill(4); w("s_nop 1")
    T, U = vT0, vT1
    for qb in range(2):
        for e in range(4): w(f"v_max_f32 v{MM+4*qb+e}, v{SS+8*qb+e}, v{SS+8*qb+4+e}")
    for qb in range(2): w(f"v_max3_f32 v{T+qb}, v{MM+4*qb}, v{MM+4*qb+1}, v{MM+4*qb+2}")
    for qb in range(2): w(f"v_max_f32 v{T+qb}, v{T+qb}, v{MM+4*qb+3}")
    fill(2); w(f"v_permlane32_swap_b32 v{T}, v{U}"); fill(1)
    w(f"v_max_f32 v{T}, v{T}, v{U}\nv_mov_b32 v{U}, v{T}")
    fill(2); w(f"v_permlane16_swap_b32 v{T}, v{U}"); fill(1)
    w(f"v_max_f32 v{T}, v{T}, v{U}\nv_mul_f32 v{U}, s{sC2}, v{T}\nv_mul_f32 v{T}, s{sC2}, v{T}")
    fill(2); w(f"v_permlane32_swap_b32 v{T}, v{U}"); fill(1)
    assert not vc
    rest = []
    r = rest.append
    for qb in range(2):
        m0 = MM + 4*qb
        for e in range(4): r(f"v_fma_f32 v{m0+e}, v{m0+e}, s{sC2}, -v{T+qb}")
        for e in range(4): r(f"v_exp_f32 v{m0+e}, v{m0+e}")
        r(f"v_cvt_pk_bf16_f32 v{m0}, v{m0}, v{m0+1}"); r(f"v_cvt_pk_bf16_f32 v{m0+2}, v{m0+2}, v{m0+3}")
        for h in range(2): r(f"v_bfi_b32 v{PP+4*qb+h}, v{vPM[h]}, 0, v{m0+2*h}")
        for h in range(2): r(f"v_and_b32 v{PP+4*qb+2+h}, v{vPM[h]}, v{m0+2*h}")
        x = Asm()
        if qb == 0: x("s_nop 1")
        else: setup_v2(x)
        mfma(x, LL + 4*qb, ONES, PP + 4*qb, "0")
        for db in range(2): mfma(x, OO + 8*qb + 4*db, VP + 6*db + 2*qb, PP + 4*qb, "0")
        rest += x.L
    for qb in range(2):
        r(f"v_rcp_f32 v{LL+4*qb}, v{LL+4*qb}\ns_nop 0")
        r(f"v_mul_f32 v{LL+4*qb}, {f2u(1 / ALPHA)}, v{LL+4*qb}"); r(f"v_and_b32 v{LL+4*qb+1}, v{vZ}, v{LL+4*qb}")
        for db in range(2):
            o0 = OO + 8*qb + 4*db
            if G("opk", True):
                for e in (0, 2): r(f"v_pk_mul_f32 {vr(o0+e,2)}, {vr(o0+e,2)}, {vr(LL+4*qb,2)} op_sel:[0,{db}] op_sel_hi:[1,{db}]")
            else:
                for e in range(4): r(f"v_mul_f32 v{o0+e}, v{LL+4*qb+db}, v{o0+e}")
        for q in range(4): r(f"v_cvt_pk_bf16_f32 v{PP+8+4*qb+q}, v{OO+8*qb+2*q}, v{OO+8*qb+2*q+1}")
    hb = Asm(); h_frags(hb, v19h); hq = list(zip(hb.L, hb.lg))
    BHI, HS = G("bhi", 24), G("hs", 2)
    for i, ins in enumerate(rest):
        if i == BHI: barrier(w, BH)
        w(ins)
        if HS and i >= BHI + G("hd", 0) and (i - BHI) % HS == 0 and hq: w.ds(*hq.pop(0))
    for qb in range(2):
        w.ds(f"ds_write_b128 v{vActW}, {vr(PP+8+4*qb,4)} offset:{ACT + qb*1024}", "ow")
    while hq: w.ds(*hq.pop(0))
    w(f"s_setprio {G('a2prio', 2)}")
    stamp(w, 6)
    g2_phase(w, "A")
    T_a2 = w.cut()

    l = aL.fork(); l.nostamp = G('lite') or G('nol')
    xp = 1 if G('pfg', 1) else xm
    vW1a, vW1b, vW2A, vPF, vR0, vR1, vNon, vZero, vRP, vSent, vPA, vXR = 8, 9, 10, 11, 12, 13, 14, 15, 16, 24, 28, 29
    vNeed, vRng, vPoll, vPv, vPg = 24, 25, 26, 27, 30
    vW1 = 32
    l("L_L:")
    l(f"s_setprio {G('lprio0',3)}")
    common2(l)
    l(f"""
s_or_b32 s{sT3}, s2, s{sW}
s_cmp_lg_u32 s{sT3}, 0
s_cbranch_scc1 L_nolead0
s_memrealtime s[{sN0}:{sN1}]
L_nolead0:
""")
    for i, d in ((0, vR0), (1, vR1)):
        l(f"""
v_add_u32 v{vT0}, {64*i}, v{vL}
v_mul_u32_u24 v{vT2}, 2979, v{vT0}
v_lshrrev_b32 v{vT2}, 16, v{vT2}
v_mul_u32_u24 v{vT3}, 22, v{vT2}
v_sub_u32 v{vT0}, v{vT0}, v{vT3}
v_min_u32 v{vT0}, 20, v{vT0}
v_mul_u32_u24 v{vT3}, 37, v{vT0}
v_lshrrev_b32 v{vT3}, 8, v{vT3}
v_mul_u32_u24 v{vT3}, {896-112}, v{vT3}
v_lshl_add_u32 v{vT0}, v{vT0}, 4, v{vT3}
v_mul_u32_u24 v{vT2}, 2688, v{vT2}
v_add_u32 v{d}, v{vT0}, v{vT2}
""")
    l(f"""
s_and_b32 s{sT2}, s{sA}, 1
s_lshl_b32 s{sT2}, s{sT2}, 3
s_lshr_b32 s{sT1}, s{sA}, 1
s_lshl_b32 s{sT1}, s{sT1}, 2
s_add_u32 s{sT2}, s{sT2}, s{sT1}
s_lshl_b32 s{sT1}, s{sRB}, 4
s_add_u32 s{sT2}, s{sT2}, s{sT1}
s_mul_i32 s{sT2}, s{sT2}, 2688
s_mul_i32 s{sT1}, s{sS}, 112
s_add_u32 s{sC2}, s{sT2}, s{sT1}
s_and_b32 s{sJJ}, s{sRB}, {32//xp-1}
s_lshl_b32 s{sT1}, s{sJJ}, 2
s_add_u32 s{sRH}, s{sT1}, s{sA}
s_mul_i32 s{sT1}, s{sRH}, {xp}
v_min_u32 v{vT1}, {4*xp-1}, v{vL}
v_lshrrev_b32 v{vT2}, 2, v{vT1}
v_add_u32 v{vT2}, s{sT1}, v{vT2}
v_and_b32 v{vT1}, 3, v{vT1}
v_mul_u32_u24 v{vT2}, 3584, v{vT2}
v_lshl_add_u32 v{vPA}, v{vT1}, 7, v{vT2}
s_mul_i32 s{sW1o}, s{sS}, {448*448 if G('x_w1lin') else 448}
s_and_b32 s{sHI}, s{sW1o}, 0xffffff80
v_mov_b32 v{vZero}, 0
s_waitcnt lgkmcnt(0)
""")
    mark(l, "ka")
    srd(l, SWQ, 6, 448 * 1344 * 2); srd(l, SW1, 12, 448 * 1792 * 2)
    def op_pfa():
        l.vmem(f"buffer_load_dword v{vPF}, v{vPA}, {sq(SW1)}, s{sHI} offen {G('ntw','')}", "pf")
    def op_rpl():
        l.vmem(f"buffer_load_dwordx4 {vr(vRP,4)}, v{vR0}, {sq(SWQ)}, s{sC2} offen {G('ntr','')}", "rp")
        l("s_mov_b64 exec, 0xffffff")
        l.vmem(f"buffer_load_dwordx4 {vr(vRP+4,4)}, v{vR1}, {sq(SWQ)}, s{sC2} offen {G('ntr','')}", "rp")
        l("s_mov_b64 exec, -1")
    def op_init():
        srd(l, SDBG, 24, 256)
        l(f"""
s_cmp_lg_u32 s{sT3}, 0
s_cbranch_scc1 L_nolead1
s_and_b32 s{sN0}, s{sN0}, -16
s_or_b32 s62, s{sN0}, 16
s_atomic_swap s62, s[{SDBG}:{SDBG+1}], 0
s_atomic_swap s62, s[{SDBG}:{SDBG+1}], 64
L_nolead1:
""")
        srd(l, SWS, 26, 0x10000000); srd(l, SW2, 16, 1792 * 448 * 2); srd(l, SWO, 8, 448 * 448 * 2)
        srd(l, SX, 4, 2048 * 896); srd(l, SB2, 18, 896)
        first_stamps(l)
        l(f"""
v_mul_u32_u24 v{vT0}, 2341, v{vL}
v_xor_b32 v{vT1}, 32, v{vL16}
v_and_b32 v{vT2}, 32, v{vL}
v_xor_b32 v{vT2}, v{vT2}, v{vL16}
s_movk_i32 s{sT1}, {0 if G('x_w1lin') else 3584-448}
""")
        for i in range(7):
            l(f"v_add_u32 v{vT3}, {64*i*2341}, v{vT0}\nv_lshrrev_b32 v{vT3}, 16, v{vT3}\nv_mad_u32_u24 v{vW1+i}, v{vT3}, s{sT1}, v{vL16 if i < 3 else (vT2 if i == 3 else vT1)}")
        l(f"""
s_mul_i32 s{sT1}, s{sA}, {16*448 if G('x_w1lin') else 16*3584}
s_add_u32 s{sW1o}, s{sW1o}, s{sT1}
s_mul_i32 s{sM0}, s{sA}, 7168
""")
    def op_pfb():
        l(f"""
s_mul_i32 s{sT1}, s{sRH}, {10*xp}
s_add_u32 s{sT1}, s{sT1}, 512
v_min_u32 v{vT1}, {10*xp-1}, v{vL}
v_add_u32 v{vT1}, s{sT1}, v{vT1}
v_lshrrev_b32 v{vT2}, 2, v{vT1}
v_and_b32 v{vT1}, 3, v{vT1}
v_mul_u32_u24 v{vT2}, 3584, v{vT2}
v_lshl_add_u32 v{vT1}, v{vT1}, 7, v{vT2}
""")
        l.vmem(f"buffer_load_dword v{vPF}, v{vT1}, {sq(SW1)}, s{sHI} offen {G('ntw','')}", "pf")
    def op_pf2():
        per = 49 * xp; pw = (per + 3) // 4
        l(f"""
s_mul_i32 s{sT2}, s{sJJ}, {per}
s_mul_i32 s{sT1}, s{sA}, {pw}
v_min_u32 v{vT1}, {pw-1}, v{vL}
v_add_u32 v{vT1}, s{sT1}, v{vT1}
v_min_u32 v{vT1}, {per-1}, v{vT1}
v_add_lshl_u32 v{vT1}, v{vT1}, s{sT2}, 7
s_mul_i32 s{sT1}, s{sS}, {224*896}
""")
        l.vmem(f"buffer_load_dword v{vPF}, v{vT1}, {sq(SW2)}, s{sT1} offen {G('nt2','')}", "pf2")
        per = 13 * xp; pw = (per + 3) // 4
        l(f"""
s_mul_i32 s{sT2}, s{sJJ}, {per}
s_mul_i32 s{sT1}, s{sA}, {pw}
v_min_u32 v{vT1}, {pw-1}, v{vL}
v_add_u32 v{vT1}, s{sT1}, v{vT1}
v_min_u32 v{vT1}, {per-1}, v{vT1}
v_add_u32 v{vT1}, s{sT2}, v{vT1}
v_min_u32 v{vT1}, 391, v{vT1}
v_lshlrev_b32 v{vT1}, 7, v{vT1}
s_mul_i32 s{sT1}, s{sS}, {56*896}
""")
        l.vmem(f"buffer_load_dword v{vPF}, v{vT1}, {sq(SWO)}, s{sT1} offen {G('nt2','')}", "pf2")
    def op_g(k):
        if k < 3:
            l(f"""
s_mul_i32 s{sT2}, s{sRB}, 49
s_mul_i32 s{sT1}, s{sA}, 5
s_add_u32 s{sT1}, s{sT1}, {17*k}
v_min_u32 v{vT1}, 4, v{vL}
v_add_u32 v{vT1}, s{sT1}, v{vT1}
v_min_u32 v{vT1}, {min(17*k+16, 48)}, v{vT1}
v_add_lshl_u32 v{vT1}, v{vT1}, s{sT2}, 7
s_mul_i32 s{sT1}, s{sS}, {224*896}
""")
            l.vmem(f"buffer_load_dword v{vPF}, v{vT1}, {sq(SW2)}, s{sT1} offen {G('nt2','')}", "pf2")
        else:
            l(f"""
s_mul_i32 s{sT2}, s{sRB}, 13
s_lshl_b32 s{sT1}, s{sA}, 2
v_min_u32 v{vT1}, 3, v{vL}
v_add_u32 v{vT1}, s{sT1}, v{vT1}
v_min_u32 v{vT1}, 12, v{vT1}
v_add_u32 v{vT1}, s{sT2}, v{vT1}
v_min_u32 v{vT1}, 391, v{vT1}
v_lshlrev_b32 v{vT1}, 7, v{vT1}
s_mul_i32 s{sT1}, s{sS}, {56*896}
""")
            l.vmem(f"buffer_load_dword v{vPF}, v{vT1}, {sq(SWO)}, s{sT1} offen {G('nt2','')}", "pf2")
    def op_b2():
        col128(l, sT1, sS)
        l(f"""s_cmp_eq_u32 s{sS}, 7
s_cselect_b32 s{sT1}, {OOB}, s{sT1}
s_mov_b32 m0, {XRES + 8192}
s_mov_b64 exec, 0xff""")
        l.vmem(f"buffer_load_dwordx4 v{vL16}, {sq(SB2)}, s{sT1} offen lds", "xr")
        l("s_mov_b64 exec, -1")
    def op_xr():
        col128(l, sT1, sS)
        l(f"""
s_lshl_b32 s{sT0}, s{sA}, 5
s_add_u32 s{sT0}, s{sT0}, s{sROW0}
s_mul_i32 s{sT0}, s{sT0}, 896
s_cmp_eq_u32 s{sS}, 7
s_cselect_b32 s{sT1}, {OOB}, s{sT1}
s_add_u32 s{sT0}, s{sT0}, s{sT1}
s_lshl_b32 s{sT2}, s{sA}, 11""")
        for i in range(2):
            l(f"s_add_u32 m0, s{sT2}, {XRES + 1024*i}\ns_add_u32 s{sT0}, s{sT0}, {16*896*i}")
            l.vmem(f"buffer_load_dwordx4 v{vXR}, {sq(SX)}, s{sT0} offen lds", "xr")
    def op_rps():
        l(f"""
s_mul_i32 s{sT1}, s{sS}, {448*352}
s_add_u32 s{sT1}, s{sT1}, {WS_WQ}
s_lshl_b32 s{sT0}, s{sRB}, 2
s_add_u32 s{sT0}, s{sT0}, s{sA}
s_mul_i32 s{sT0}, s{sT0}, {4*352}
s_add_u32 s{sT0}, s{sT0}, s{sT1}
s_cmp_ge_u32 s{sRB}, 28
s_cselect_b32 s{sT0}, {OOB}, s{sT0}
""")
        region(l, 25)
        ni = lab("ni")
        l(f"""s_add_u32 s25, s25, {FOFF}
s_lshl_b32 s{sT1}, s{sA}, 13
s_add_u32 s{sT1}, s{sT1}, s25
s_lshr_b32 s{sT2}, s{sA}, 1""")
        for q in range(4): l(f"v_mov_b32 v{24+q}, 0")
        l(f"v_lshrrev_b32 v{vT0}, 3, v{vL}\nv_and_b32 v{vT1}, 0x70, v{vL16}\nv_lshl_add_u32 v{vT0}, v{vT0}, {WSH}, v{vT1}")
        l(f"""s_or_b32 s{sT2}, s{sT2}, s{sS}
s_cselect_b32 s{sT1}, {OOB}, s{sT1}
s_lshl_b32 s26, s{sS}, 5
s_add_u32 s26, s26, s{sRB}
s_lshl_b32 s26, s26, 7
s_add_u32 s26, s26, {WS_F1}
s_cmp_eq_u32 s{sA}, 3
s_cselect_b32 s{sT1}, s26, s{sT1}
s_cselect_b64 s[60:61], 0xff, -1""")
        l.need(vm=["rp"])
        l("s_mov_b64 exec, s[60:61]")
        l.vmem(f"buffer_store_dwordx4 v[24:27], v{vT0}, {sq(SWS)}, s{sT1} offen sc1", "rps")
        l("s_mov_b64 exec, -1")
        l.vmem(f"buffer_store_dwordx4 {vr(vRP,4)}, v{vL16}, {sq(SWS)}, s{sT0} offen sc1", "rps")
        l("s_mov_b64 exec, 0xffffff")
        l.vmem(f"buffer_store_dwordx4 {vr(vRP+4,4)}, v{vL16}, {sq(SWS)}, s{sT0} offen offset:1024 sc1", "rps")
        l("s_mov_b64 exec, -1")
    gl = get_nonce(l, vT0, 0)
    def op_noi(): next(gl)
    def op_non():
        next(gl)
    def op_rpw(): l.need(vm=["rps"])
    def op_fl1():
        only0(lambda: l(f"s_atomic_swap s{sN0}, s[{SWS}:{SWS+1}], s26"))
    def op_tab():
        chunks(l)
        l(f"""
v_lshrrev_b32 v{vT0}, 3, v{vL}
v_lshrrev_b32 v{vT1}, 4, v{vL}
v_lshlrev_b32 v{vT1}, 1, v{vT1}
v_and_b32 v{vT2}, 7, v{vL}
v_xor_b32 v{vT1}, v{vT1}, v{vT2}
v_mul_u32_u24 v{vT0}, 896, v{vT0}
v_lshl_add_u32 v{vW2A}, v{vT1}, 4, v{vT0}
v_add_u32 v{vXR}, v{vW2A}, v{vT0}
s_mul_i32 s{sW2o}, s{sS}, {224*896}
s_mul_i32 s{sT0}, s{sA}, {8*896}
s_add_u32 s{sW2o}, s{sW2o}, s{sT0}
s_lshl_b32 s27, s{sA}, 10
s_mul_i32 s{sWQo}, s{sS}, {448*352}
s_add_u32 s{sWQo}, s{sWQo}, {WS_WQ}
s_mul_i32 s{sM1}, s{sA}, {16*352}
s_add_u32 s{sWQo}, s{sWQo}, s{sM1}
s_mul_i32 s{sT2}, s{sS}, {56*896}
s_lshl_b32 s{sT0}, s{sA}, 1
s_add_u32 s{sT1}, s{sT0}, 1
s_min_u32 s{sT1}, s{sT1}, 6
s_lshl_b32 s20, s{sT0}, 10
s_lshl_b32 s21, s{sT1}, 10
s_mul_i32 s22, s{sT0}, {8*896}
s_mul_i32 s23, s{sT1}, {8*896}
s_add_u32 s22, s22, s{sT2}
s_add_u32 s23, s23, s{sT2}
; inbox: source offsets per slot (s4..s10), poll address / need per lane
s_cmp_eq_u32 s{sA}, 3
s_cselect_b64 s[18:19], 0xff, -1
""")
    def stage_off(first, step):
        if first: l(f"s_mul_i32 s{sK}, s{sR}, {step}")
        else: l(f"s_add_u32 s{sK}, s{sK}, {step}\ns_cmp_eq_u32 s{sK}, {7*step}\ns_cselect_b32 s{sK}, 0, s{sK}")
    def dma_w1(st):
        stage_off(st == 0, 64 * (448 if G('x_w1lin') else 3584))
        for i in range(7):
            if i == 0: l(f"s_add_u32 m0, s{sM0}, {RING + (st%3)*SLOT}\ns_add_u32 s{sT0}, s{sW1o}, s{sK}")
            if i == 4: l(f"s_add_u32 m0, s{sM0}, {RING + (st%3)*SLOT + 4096}\ns_add_u32 s{sT0}, s{sT0}, 4096")
            l.vmem(f"buffer_load_dwordx4 v{vW1+i}, {sq(SW1)}, s{sT0} offen offset:{1024*(i%4)} lds", f"st{st}")
    def dma_wq(st):
        if G("nodma"): return
        stage_off(st == 7, 22528)
        for i in range(6):
            if i == 0: l(f"s_add_u32 m0, s{sM1}, {RING + (st%3)*SLOT}\ns_add_u32 s{sT0}, s{sWQo}, s{sK}")
            if i == 4: l(f"s_add_u32 m0, s{sM1}, {RING + (st%3)*SLOT + 4096}\ns_add_u32 s{sT0}, s{sT0}, 4096")
            if i == 5: l("s_mov_b32 exec_hi, 0")
            l.vmem(f"buffer_load_dwordx4 v{vL16}, {sq(SWS)}, s{sT0} offen offset:{1024*(i%4)} lds", f"st{st}")
        l("s_mov_b32 exec_hi, -1")
    def dma_w2(cc, i0=0, i1=7):
        if G("nodma"): return
        col128(l, sT2, sCH + cc); l(f"s_add_u32 s{sT2}, s{sT2}, s{sW2o}")
        for i in range(i0, i1):
            l(f"s_add_u32 m0, s27, {W2LOC[cc] + 4096*i}\ns_add_u32 s{sT0}, s{sT2}, {32*896*i}")
            l.vmem(f"buffer_load_dwordx4 v{vW2A}, {sq(SW2)}, s{sT0} offen lds", f"w2{cc}")
    def dma_wo(cc):
        if G("nodma"): return
        col128(l, sT2, sCH + cc)
        for i in range(2):
            l(f"s_add_u32 m0, s{20+i}, {WOLOC[cc]}\ns_add_u32 s{sT0}, s{22+i}, s{sT2}")
            if i == 1 and G("nodup", True): l("s_mov_b64 exec, s[18:19]")
            l.vmem(f"buffer_load_dwordx4 v{vW2A}, {sq(SWO)}, s{sT0} offen lds", f"wo{cc}")
            if i == 1 and G("nodup", True): l("s_mov_b64 exec, -1")
    vD0, vD1, vD2, vE0, vE1 = 8, 9, 12, 13, 14
    def pace():
        if G("pace"): l(G("pace"))
    def op_stg():
        l(f"""v_add_u32 v{vD0}, s27, v{vL16}
v_add_u32 v{vD1}, {RING}, v{vD0}
v_add_u32 v{vD2}, {RING + 2*SLOT}, v{vD0}
v_add_u32 v{vE0}, s20, v{vL16}
v_add_u32 v{vE1}, s21, v{vL16}""")
    def stg_w2(cc, i0=0, i1=7):
        col128(l, sT2, sCH + cc); l(f"s_add_u32 s{sT2}, s{sT2}, s{sW2o}")
        for i in range(i0, i1):
            l(f"s_add_u32 s{sT0}, s{sT2}, {32*896*i}")
            l.vmem(f"buffer_load_dwordx4 {vr(32 + 28*(cc-3) + 4*i, 4)}, v{vW2A}, {sq(SW2)}, s{sT0} offen", f"v{cc}{i}")
    def stg_wo(cc):
        col128(l, sT2, sCH + cc)
        for i in range(2):
            l(f"s_add_u32 s{sT0}, s{22+i}, s{sT2}")
            l.vmem(f"buffer_load_dwordx4 {vr(144 + 8*(cc-4) + 4*i, 4)}, v{vW2A}, {sq(SWO)}, s{sT0} offen", f"u{cc}")
    def put_w2(cc, i0=0, i1=7):
        loc = W2LOC[cc]; base, o = (vD0, 0) if loc == 0 else ((vD2, 0) if loc == RING + 2 * SLOT else (vD1, loc - RING))
        for i in range(i0, i1):
            l.need(vm=[f"v{cc}{i}"])
            l.ds(f"ds_write_b128 v{base}, {vr(32 + 28*(cc-3) + 4*i, 4)} offset:{o + 4096*i}", "put"); pace()
    def put_wo(cc):
        l.need(vm=[f"u{cc}"])
        for i in range(2): l.ds(f"ds_write_b128 v{vE0+i}, {vr(144 + 8*(cc-4) + 4*i, 4)} offset:{WOLOC[cc]}", "put"); pace()
    def only0(fn, n=1):
        sk = lab("o0")
        l(f"s_cmp_ge_u32 s{sA}, {n}\ns_cbranch_scc1 {sk}"); fn(); l(f"{sk}:")
    def op_cki():
        only0(lambda: l(f"s_buffer_load_dword s61, {sq(SDBG)}, 128"), 2)
    def op_ck():
        again, got = lab("ca"), lab("cg")
        sel = {"auto": "s_cselect_b32 s61, 1, 0", "inv": "s_cselect_b32 s61, 0, 1", "0": "s_mov_b32 s61, 0"}[G("hsel", "auto")]
        def body():
            l(f"""s_waitcnt lgkmcnt(0)
s_mov_b32 s{sPoll}, 0
s_cmp_ge_u32 s61, {64 << 16}
s_cbranch_scc0 {again}
{got}:
s_and_b32 s61, s61, 0xffff
s_sub_u32 s60, s61, {64*32 - 12}
s_cmp_gt_u32 s61, {64*32}
{sel}
s_cmp_lt_u32 s60, 25
s_cselect_b32 s61, s{sRB}, s61
s_add_u32 s60, s25, s{SWS}
s_lshr_b32 s60, s60, 21
s_xor_b32 s61, s61, s60
s_lshr_b32 s60, s{sRB}, 4
s_xor_b32 s61, s61, s60
s_and_b32 s61, s61, 1
s_lshl_b32 s61, s61, 13
v_mov_b32 v{vT0}, {CNT + 4}
v_mov_b32 v{vT1}, s61
s_mov_b64 exec, 1
ds_write_b32 v{vT0}, v{vT1}
s_mov_b64 exec, -1
s_add_u32 s25, s25, s61
s_lshl_b32 s{sT0}, s{sS}, 17
s_add_u32 s{sPart}, s25, s{sT0}
s_sub_u32 s{sPart}, s{sPart}, {FOFF}
s_lshl_b32 s{sT0}, s{sS}, {WSH}
s_add_u32 s24, s25, s{sT0}""")
            if STAMP: l(f"s_lshr_b32 s61, s61, 13\nv_writelane_b32 v0, s61, 59\nv_writelane_b32 v0, s{sPoll}, 60")
        only0(body, 2)
        l.smem = True
        x = Asm()
        x(f"""{again}:
buffer_load_dword v{vT0}, v{vZero}, {sq(SDBG)}, 0 offen offset:128 sc1
s_add_u32 s{sPoll}, s{sPoll}, 1
s_cmp_gt_u32 s{sPoll}, {SPIN}
s_waitcnt vmcnt(0)
v_readfirstlane_b32 s61, v{vT0}
s_cbranch_scc1 {got}
s_cmp_ge_u32 s61, {64 << 16}
s_cbranch_scc0 {again}
s_branch {got}""")
        SLOW.append(x.cut())
    pdone = [0]
    def progress(n):
        ks = list(range(pdone[0], n)); pdone[0] = n
        for k in ks: arrival(l, k, 4 + 2 * k, 25); l(f"s_atomic_add s{4+2*k}, s[{SWS}:{SWS+1}], s{5+2*k}")
    def op_pg(n): only0(lambda: progress(n))
    def poll(): l(f"s_mov_b32 s13, 0\ns_atomic_add s13, s[{SWS}:{SWS+1}], s24 glc")
    def dma_last(ng=1):
        nw = 4 - ng
        col128(l, sT2, sCH + 6)
        l(f"""s_sub_u32 s16, s{sA}, {ng}
s_mul_i32 s17, s{sS}, {224*896}
s_add_u32 s17, s17, s{sT2}
s_mul_i32 s18, s{sS}, {56*896}
s_add_u32 s18, s18, s{sT2}""")
        for n, base, loc, srdn in ((28, 17, W2LOC[6], SW2), (7, 18, WOLOC[6], SWO)):
            for i in range((n + nw - 1) // nw):
                l(f"s_add_u32 s{sT0}, s16, {nw*i}")
                if nw * i + nw - 1 >= n: l(f"s_min_u32 s{sT0}, s{sT0}, {n-1}")
                l(f"s_lshl_b32 s{sT1}, s{sT0}, 10\ns_add_u32 m0, s{sT1}, {loc}\ns_mul_i32 s{sT0}, s{sT0}, {8*896}\ns_add_u32 s{sT0}, s{sT0}, s{base}")
                if not G("nodma"): l.vmem(f"buffer_load_dwordx4 v{vW2A}, {sq(srdn)}, s{sT0} offen lds", "w26")
    NG = 2 if NE else 1
    def own_pieces():
        nw = 4 - NG; k = 0
        for n, base, loc, srdn in ((28, 14, W2LOC[6], SW2), (7, 15, WOLOC[6], SWO)):
            for i in range((n + nw - 1) // nw):
                yield k, i, n, base, loc, srdn, nw; k += 1
    def op_sg6(lo, hi):
        sk = lab("g6")
        l(f"s_cmp_lt_u32 s{sA}, {NG}\ns_cbranch_scc1 {sk}\ns_cmp_eq_u32 s{sS}, 7\ns_cbranch_scc1 {sk}")
        if lo == 0:
            l.need(vm=list(l.vm))
            col128(l, sT2, sCH + 6)
            l(f"""s_sub_u32 s13, s{sA}, {NG}
s_mul_i32 s14, s{sS}, {224*896}
s_add_u32 s14, s14, s{sT2}
s_mul_i32 s15, s{sS}, {56*896}
s_add_u32 s15, s15, s{sT2}""")
        for k, i, n, base, loc, srdn, nw in own_pieces():
            if not lo <= k < hi: continue
            l(f"s_add_u32 s{sT0}, s13, {nw*i}")
            if nw * i + nw - 1 >= n: l(f"s_min_u32 s{sT0}, s{sT0}, {n-1}")
            l(f"s_mul_i32 s{sT0}, s{sT0}, {8*896}\ns_add_u32 s{sT0}, s{sT0}, s{base}")
            l(f"buffer_load_dwordx4 {vr(40 + 4*k, 4)}, v{vW2A}, {sq(srdn)}, s{sT0} offen")
        l(f"{sk}:")
    def put6():
        for k, i, n, base, loc, srdn, nw in own_pieces():
            if i == 0 or nw * i + nw - 1 >= n:
                l(f"s_add_u32 s{sT0}, s13, {nw*i}\ns_min_u32 s{sT0}, s{sT0}, {n-1}\ns_lshl_b32 s{sT0}, s{sT0}, 10\ns_add_u32 s{sT0}, s{sT0}, {loc}\nv_add_u32 v{vT2}, s{sT0}, v{vL16}")
                i0 = i
            l(f"ds_write_b128 v{vT2}, {vr(40 + 4*k, 4)} offset:{1024*nw*(i-i0)}")
        l("s_waitcnt lgkmcnt(0)")
    def lds_add(off):
        l(f"v_mov_b32 v{vT0}, {CNT + off}\nv_mov_b32 v{vT1}, 1\ns_mov_b64 exec, 1\ns_waitcnt vmcnt(0)\nds_add_u32 v{vT0}, v{vT1}\ns_mov_b64 exec, -1")
    def gate_wait(val):
        gt, go = lab("gt"), lab("go")
        l(f"""v_mov_b32 v{vT2}, {CNT + 20}
s_mov_b32 s{sPoll}, 0
{gt}:
ds_read_b32 v{vT3}, v{vT2}
s_add_u32 s{sPoll}, s{sPoll}, 1
s_cmp_gt_u32 s{sPoll}, {SPIN * 16}
s_waitcnt lgkmcnt(0)
v_cmp_gt_u32 vcc, {val}, v{vT3}
s_cbranch_scc1 {go}
s_nop 0
s_cbranch_vccnz {gt}
{go}:""")
    def tail3():
        z, top, out, fin = lab("z"), lab("tl"), lab("to"), lab("tf")
        ng = 2 if NE else 1
        l(f"s_cmp_lt_u32 s{sA}, {ng}\ns_cbranch_scc1 {z}")
        if G("sg6", True):
            n7 = lab("n7")
            l(f"s_cmp_eq_u32 s{sS}, 7\ns_cbranch_scc1 {n7}\ns_waitcnt vmcnt(0)\ns_barrier\ns_setprio {G('putprio', 0)}")
            if G("gate"): gate_wait(G("gate"))
            put6(); lds_add(12)
            l(f"s_branch {fin}\n{n7}:")
        if G("w6at", 19) == 19: dma_last(ng)
        barrier(l, 20, vm=["w25", "wo5", "xr"])
        if G("w6at", 19) == 20: dma_last(ng)
        lds_add(12)
        l.need(drain=True)
        l(f"s_branch {fin}\n{z}:")
        l.vm = []
        em = (1 << NE) - 1
        l(f"s_cmp_eq_u32 s{sA}, 0\ns_cselect_b32 s12, {em}, {0x7f ^ em}\ns_cmp_eq_u32 s{sS}, 7\ns_cselect_b32 s12, 0x7f, s12\ns_mov_b32 s13, 0")
        if G("noinb"): l("s_mov_b32 s12, 0x7f")
        if G("tk19", True):
            sk = lab("np"); l(f"s_cmp_eq_u32 s{sA}, {ng - 1}\ns_cbranch_scc0 {sk}"); poll(); l(f"{sk}:")
        l("s_waitcnt vmcnt(0)\ns_barrier\ns_waitcnt lgkmcnt(0)\ns_and_b32 s13, s13, 0x7f")
        if "20" in PROG: op_pg(PROG["20"])
        if G("gateE"):
            gate_wait(G("gateE0", 4))
            l(f"s_load_dword s13, s[{SWS}:{SWS+1}], s24 glc")
            gate_wait(G("gateE"))
            l("s_and_b32 s13, s13, 0x7f")
        if G("x_75"): l("s_mov_b32 exec_hi, 0xffff")
        again = lab("ta")
        l(f"""s_mov_b32 s{sPoll}, 0
s_add_u32 s17, s{sS}, 6
.p2align 6
{top}:
s_andn2_b32 s14, s13, s12
s_cbranch_scc0 {again}
s_ff1_i32_b32 s14, s14
s_bitset1_b32 s12, s14
s_sub_u32 s15, s17, s14
s_sub_u32 s16, s15, 7
s_min_u32 s15, s15, s16
s_cmp_eq_u32 s14, 6
s_cselect_b32 s15, 7, s15
s_lshl_b32 s15, s15, 14
s_add_u32 s15, s15, s{sPart}
s_cmp_lt_u32 s14, 3
s_cselect_b32 s16, {(INLOC[0] + 24576) >> 12}, 0
s_lshl_b32 s14, s14, 1
s_add_u32 s14, s14, s16
s_sub_u32 s14, s14, 6
s_lshl_b32 m0, s14, 12
s_add_u32 s16, s15, 4096""")
        for q in range(4): l(f"buffer_load_dwordx4 v{vL16}, {sq(SWS)}, s15 offen offset:{1024*q} sc1 lds")
        l("s_add_u32 m0, m0, 4096\ns_cmp_eq_u32 s12, 0x7f")
        for q in range(4): l(f"buffer_load_dwordx4 v{vL16}, {sq(SWS)}, s16 offen offset:{1024*q} sc1 lds")
        l(f"""s_cbranch_scc0 {top}
{again}:
s_add_u32 s{sPoll}, s{sPoll}, 1
s_cmp_gt_u32 s{sPoll}, {SPIN}
s_cselect_b32 s12, 0x7f, s12
s_cmp_eq_u32 s12, 0x7f
s_cbranch_scc1 {out}""")
        if G("pollop", "load") == "load": l(f"s_load_dword s13, s[{SWS}:{SWS+1}], s24 glc")
        else: poll()
        l(f"s_waitcnt lgkmcnt(0)\ns_and_b32 s13, s13, 0x7f\ns_branch {top}\n{out}:")
        if STAMP: l(f"{SOP} s[64:65]")
        l("s_waitcnt vmcnt(0)")
        if STAMP: l(f"{SOP} s[66:67]\ns_waitcnt lgkmcnt(0)\nv_writelane_b32 v0, s{sPoll}, 61\nv_writelane_b32 v0, s64, 35\nv_writelane_b32 v0, s66, 36")
        if NE:
            l(f"s_cmp_eq_u32 s{sA}, 0\ns_cbranch_scc1 {fin}"); lds_add(16)
        l(f"{fin}:\ns_cmp_eq_u32 s{sS}, 7\ns_cbranch_scc1 L_Lend\ns_barrier\nL_Lend:")
    def op_tail(): tail3()
    OPS = dict(pfa=op_pfa, init=op_init, rpl=op_rpl, pfb=op_pfb, pf2=op_pf2, rps=op_rps, fl1=op_fl1, rpw=op_rpw, tab=op_tab, non=op_non, noi=op_noi,
               xr=op_xr, b2=op_b2, stg=op_stg, dr=lambda: l('s_waitcnt lgkmcnt(0)'), g6a=lambda: op_sg6(0, G('g6n', 10)), g6b=lambda: op_sg6(G('g6n', 10), 99), vm0=lambda: l.need(vm=list(l.vm)), cki=op_cki, ck=op_ck, tail=op_tail,
               lo=lambda: l("s_setprio 0"), hi=lambda: l(f"s_setprio {G('lprio',3)}"))
    for k in range(7):
        OPS[f"s{k}"] = lambda k=k: dma_w1(k); OPS[f"q{k}"] = lambda k=k: dma_wq(7 + k)
        OPS[f"g{k}"] = lambda k=k: op_g(k)
        OPS[f"v{k}"] = lambda k=k: stg_w2(k); OPS[f"u{k}"] = lambda k=k: stg_wo(k)
        OPS[f"d{k}"] = lambda k=k: put_w2(k); OPS[f"e{k}"] = lambda k=k: put_wo(k)
        OPS[f"P{k}"] = lambda k=k: l(f"s_setprio {k}")
        OPS[f"w{k}"] = lambda k=k: dma_w2(k); OPS[f"o{k}"] = lambda k=k: dma_wo(k)
    PRO = G("pro", "rpl init lo s0 tab rps noi s1 non s2")
    MID = G("mid0", "B0 hi pf2 b2 rpw B1 fl1 s3 B2 s4 B3 s5 B4 s6 dr") + " " + \
          G("mid1", "B5 q0 B6 q1 B7 q2 xr B8 q3 w002 B9 q4 w024 B10 q5 w046") + " " + \
          G("mid2", "B11 q6 w067 o0 B12 w1 o1 B13 w2 cki B14 vm0 g6a ck o2 B22 g6b o3 B15 lo w3") + " " + \
          G("mid3", "B16 w4 o4 B17 w5 o5 B18 B19 tail")
    k = 1
    for o in PRO.split():
        OPS[o](); mark(l, o)
        if o in ("bx", "rps", "s0", "s1", "s2"):
            if len(l.pend) >= 3: l.need(drain=True)
            stamp(l, k); k += 1
    T_l1 = l.cut(); l("L_L2:")
    for o in MID.split():
        if o[0] == "B":
            j = int(o[1:]); need = []
            if j <= 13: need = [f"st{j}"]
            elif j == BH: need = [f"w2{i}" for i in range(RA)]
            elif j == 15: need = ["w20", "xr"] + [f"wo{i}" for i in range(max(RA, 1))]
            elif j > 15: need = [f"w2{j-15}", f"wo{j-15}"] + (["w22", "wo2"] if RA == 2 else [])
            barrier(l, j, vm=need); mark(l, o)
            if str(j) in PROG: op_pg(PROG[str(j)])
        elif o[0] in "wvd" and len(o) == 4 and o[1:].isdigit(): dict(w=dma_w2, v=stg_w2, d=put_w2)[o[0]](int(o[1]), int(o[2]), int(o[3]))
        else: OPS[o]()
    l.need(drain=True)
    if G("spin"):
        l(f"""s_add_u32 s40, s100, {G("spin")[1]}
L_spin:
s_sleep 2
s_memrealtime s[42:43]
s_waitcnt lgkmcnt(0)
s_sub_u32 s44, s42, s40
s_cmp_lt_i32 s44, 0
s_cbranch_scc1 L_spin""")
    l("L_fin:")
    if STAMP:
        l(f"""s_waitcnt vmcnt(0)
s_memrealtime s[96:97]
{SOP} s[98:99]
s_waitcnt lgkmcnt(0)
v_writelane_b32 v0, s96, 63
v_writelane_b32 v0, s98, 41
s_mul_i32 s{sT0}, s2, 12
s_add_u32 s{sT0}, s{sT0}, s{sW}
s_lshl_b32 s{sT0}, s{sT0}, 8
s_add_u32 s{sT0}, s{sT0}, {WS_STAMP}
v_lshlrev_b32 v{vT0}, 2, v{vL}
buffer_store_dword v0, v{vT0}, {sq(SWS)}, s{sT0} offen
""")
    l("L_end:\ns_endpgm")
    T_l2 = l.cut()

    K1 = NAME + "_kernel"
    return f"""; @launch grid=(256,1,1) block=(768,1,1) lds={LDS_BYTES}
.amdgcn_target "amdgcn-amd-amdhsa--gfx950"
.text
.globl {K1}
.p2align 8
.type {K1},@function
{K1}:
{T_entry}{T_c1}{T_f2}{T_a2}{T_l1}{T_l2}{''.join(SLOW)}L_codeend:
.section .rodata,"a"
.p2align 6
.amdhsa_kernel {K1}
  .amdhsa_next_free_vgpr 168
  .amdhsa_next_free_sgpr 102
  .amdhsa_accum_offset 168
  .amdhsa_group_segment_fixed_size 0
  .amdhsa_kernarg_size 88
  .amdhsa_user_sgpr_count 2
  .amdhsa_user_sgpr_kernarg_segment_ptr 1
  .amdhsa_system_sgpr_workgroup_id_x 1
.end_amdhsa_kernel
"""

if __name__ == "__main__":
    import json
    cfg = json.loads(sys.argv[2]) if len(sys.argv) > 2 else {}
    open(sys.argv[1], "w").write(gen(cfg))
```

```python
import sys, math, struct
NAME = "parallel_sum__sliding_local_dilated__dense_activation_gelu__prompt"

class Asm:
    def __init__(self):
        self.L = []; self.vm = []; self.lg = []; self.smem = False; self.pend = []; self.nst = 0
    def __call__(self, s):
        for l in s.strip("\n").split("\n"):
            l = l.strip()
            if l: self.L.append(l if l.endswith(":") else "  " + l)
    def fork(self):
        b = Asm(); b.vm = list(self.vm); b.lg = list(self.lg); b.smem = self.smem; return b
    def cut(self):
        t = "\n".join(self.L) + "\n"; self.L = []; return t
    def vmem(self, s, tag): self(s); self.vm.append(tag)
    def ds(self, s, tag): self(s); self.lg.append(tag)
    def _cnt(self, q, tags):
        last = -1
        for i, t in enumerate(q):
            if t in tags: last = i
        return None if last < 0 else len(q) - 1 - last
    def need(self, vm=(), lg=(), drain=False):
        parts = []
        n = self._cnt(self.vm, set(vm))
        if n is not None:
            n = min(n, 62); parts.append(f"vmcnt({n})"); self.vm = self.vm[len(self.vm) - n:] if n else []
        n = self._cnt(self.lg, set(lg))
        if drain: n = 0 if (self.lg or self.smem) else None
        if n is not None:
            n = min(n, 14)
            parts.append(f"lgkmcnt({n})"); self.lg = self.lg[len(self.lg) - n:] if n else []
        if parts: self("s_waitcnt " + " ".join(parts))
        if drain:
            self.smem = False
            for sg, idx in self.pend: self(f"v_writelane_b32 v0, s{sg}, {idx}")
            self.pend = []

def vr(a, n=1): return f"v{a}" if n == 1 else f"v[{a}:{a+n-1}]"
def sq(a): return f"s[{a}:{a+3}]"
def f2u(x): return "0x%08x" % struct.unpack("<I", struct.pack("<f", x))[0]

KP = 4608
HALO = 4096
ACT = 57344
WOR = 28672
def actoff(t): return (t - 7) * 4096 if t >= 7 else 8192 + 28672 + t * 4096
RING = 65536
SLOT = 28672
BIAS = RING + 3 * SLOT
XRES = BIAS + 2048
CNT = XRES + 8192 + 128
LDS_BYTES = XRES + 8192 + 256
INLOC = [RING + SLOT, RING + SLOT + 8192, RING + SLOT + 16384, 0, 8192, 16384, 24576]
W2LOC = [0, RING + 2 * SLOT, RING, RING + SLOT, 0, RING + 2 * SLOT, RING]
WOLOC = [WOR, WOR + 7168, WOR + 2 * 7168, WOR + 3 * 7168, WOR, ACT, WOR + 7168]
FOFF = 56 * 16384
WS_WQ = 0x2200000
WS_F1 = 0x2400000
WS_STAMP = 0x8000000
OOB = 0x7ff00000
SPIN = 200000
SX, SWS, SOUT, SW1, SB1, SWQ, SDBG, SW2, SWO, SB2 = 28, 32, 36, 36, 40, 40, 44, 48, 52, 56
sIN, sLO, sFE, sDum = 48, 55, 3, 63
sW, sS, sRB, sA, sRH, sHI, sROW0, sT0, sT1, sT2, sT3 = 68, 69, 70, 71, 72, 73, 74, 75, 76, 77, 78
sW1o, sWQo, sW2o, sJJ, sM0, sPart, sC2, sCH = 79, 80, 81, 82, 83, 84, 85, 86
sCW, sN0, sN1, sPoll, sM1 = 93, 94, 95, 96, 97
sR, sRC, sK = 0, 1, 93

C1 = 2 * math.sqrt(2 / math.pi) * math.log2(math.e)
ALPHA = (C1 * 0.044715) ** (1 / 3)
GK = C1 / ALPHA

def gen(cfg):
    G = cfg.get
    STAMP = G("stamp", False); SOP = G("stampop", "s_memtime")
    xm = G("xmap", 4); nsh = 32 // xm
    sR, sE = (0, 1) if STAMP else (64, 65)
    uid = [0]
    WSH = G('wsh', 10)
    FR, FP = G('fr', 0x4100), G('fp', 4)
    def lab(n): uid[0] += 1; return f"L_{n}{uid[0]}"
    def stamp(b, idx):
        if not STAMP or (G("lite") and idx not in (3, 10, 17, 24, 25, 26, 30, 31, 32, 33, 34, 37)) or getattr(b, "nostamp", False): return
        sg = (64, 66, 98, 100)[b.nst % 4]; b.nst += 1
        if len(b.pend) >= 4: b.need(drain=True)
        b(f"{SOP} s[{sg}:{sg+1}]"); b.smem = True; b.pend.append((sg, idx))
    def mark(b, name):
        if G("spin") and G("spin")[0] == name: b("s_memrealtime s[100:101]"); b.smem = True
    def barrier(b, j, vm=(), lg=None):
        if lg is not None and not (b.pend or b.smem):
            b.need(vm=vm, lg=lg); b("s_barrier"); stamp(b, 10 + j); return
        pb0 = G("prebar")
        if pb0 is not None and pb0 <= j < pb0 + 8: stamp(b, 42 + j - pb0)
        b.need(vm=vm, drain=True)
        if pb0 is not None and pb0 <= j < pb0 + 8: stamp(b, 50 + j - pb0)
        b("s_barrier")
        stamp(b, 10 + j)
    BH = 22
    def srd(b, d, p, n):
        b(f"s_mov_b32 s{d}, s{p}\ns_and_b32 s{d+1}, s{p+1}, 0xffff\ns_mov_b32 s{d+2}, {n}\ns_mov_b32 s{d+3}, 0x20000")
    def mfma(b, d, x, y, c=None):
        b(f"v_mfma_f32_16x16x32_bf16 {vr(d,4)}, {vr(x,4)}, {vr(y,4)}, {vr(d,4) if c is None else c}")
    def chunks(b):
        for i in range(7):
            b(f"s_add_u32 s{sCH+i}, s{sE if i == 0 else sCH+i-1}, 1")
            b(f"s_cmp_ge_u32 s{sCH+i}, 7\ns_cselect_b32 s{sT0}, 7, 0\ns_sub_u32 s{sCH+i}, s{sCH+i}, s{sT0}")
    SLOW = []
    def get_nonce(b, vt, cp):
        again, got = lab("na"), lab("ng")
        b(f"s_buffer_load_dword s{sN0}, {sq(SDBG)}, {64*cp}"); b.smem = True
        yield
        b.need(drain=True)
        b(f"s_mov_b32 s{sPoll}, 0\ns_cmp_eq_u32 s{sN0}, 0\ns_cbranch_scc1 {again}\n{got}:\ns_mov_b32 s{sN1}, s{sN0}")
        if STAMP: b(f"v_writelane_b32 v0, s{sPoll}, 58")
        x = Asm()
        x(f"""{again}:
v_mov_b32 v{vt}, 0
s_add_u32 s{sPoll}, s{sPoll}, 1
buffer_load_dword v{vt}, v{vt}, {sq(SDBG)}, 0 offen sc1
s_cmp_gt_u32 s{sPoll}, {SPIN}
s_waitcnt vmcnt(0)
v_readfirstlane_b32 s{sN0}, v{vt}
s_cbranch_scc1 {got}
s_cmp_eq_u32 s{sN0}, 0
s_cbranch_scc1 {again}
s_branch {got}""")
        SLOW.append(x.cut())
        yield
    def slow_poll(retry, got, vt, addr, sbase):
        x = Asm()
        x(f"""{retry}:
{addr}
s_add_u32 s{sPoll}, s{sPoll}, 1
buffer_load_dword v{vt}, v{vt}, {sq(SWS)}, s{sbase} offen sc1
s_cmp_gt_u32 s{sPoll}, {SPIN}
s_waitcnt vmcnt(0)
v_cmp_ne_u32 vcc, s{sN0}, v{vt}
s_cbranch_scc1 {got}
s_nop 1
s_cbranch_vccnz {retry}
s_branch {got}""")
        SLOW.append(x.cut())
    def first_stamps(b):
        if STAMP: b("v_writelane_b32 v0, s98, 62\nv_writelane_b32 v0, s100, 0")

    vL, vL16, vActW, vT0, vT1, vT2, vT3 = 1, 2, 3, 4, 5, 6, 7
    vXE, vXO, vG2W, vG2W2, vG2O0, vG2O2 = 8, 9, 10, 11, 12, 13
    a = Asm()
    RAW, UNP = 136, 80
    lb = xm.bit_length() - 1
    a(f"""
s_load_dwordx16 s[4:19], s[0:1], 0
s_load_dwordx8 s[20:27], s[0:1], 56
s_cmpk_ge_u32 s2, 256
s_cbranch_scc1 L_end
s_getpc_b64 s[28:29]
L_pc:
s_lshr_b32 s3, s2, 3
v_lshrrev_b32 v{vT0}, 6, v0
v_mad_u32_u24 v{vT1}, s3, 12, v{vT0}
v_readfirstlane_b32 s{sW}, v{vT0}
v_lshlrev_b32 v{vT1}, 7, v{vT1}
v_min_u32 v{vT1}, L_codeend - L_pc - 4, v{vT1}
""")
    if G("codepf", True): a.vmem(f"global_load_dword v23, v{vT1}, s[28:29]", "pf")
    if G("delay"):
        xs, n = G("delay")
        a(f"s_and_b32 s40, s2, 7\ns_lshr_b32 s40, {xs}, s40\ns_bitcmp1_b32 s40, 0\ns_cbranch_scc0 L_nodelay")
        for _ in range(n): a("s_sleep 37")
        a("L_nodelay:")
    if G("pgprobe"):
        step, n = G("pgprobe")
        a(f"""s_waitcnt lgkmcnt(0)
s_mov_b32 s40, s26
s_and_b32 s41, s27, 0xffff
s_mov_b32 s42, 0x10000000
s_mov_b32 s43, 0x20000
s_lshl_b32 s44, s2, 8
s_add_u32 s44, s44, 0x4000000
v_mov_b32 v8, 0""")
        for i in range(n): a(f"buffer_load_dword v9, v8, s[40:43], s44 offen\ns_add_u32 s44, s44, {step}\ns_waitcnt vmcnt(0)")
        a.vm = []
    if G("inprobe"):
        a("s_waitcnt lgkmcnt(0)\ns_lshl_b32 s44, s2, 2\nv_mov_b32 v8, s44")
        for p in G("inprobe"): a(f"global_load_dword v9, v8, s[{p}:{p+1}]\ns_waitcnt vmcnt(0)\nv_add_u32 v8, {G('instep', 0)}, v8")
        a.vm = []
    if G("bwprobe"):
        off, aux = G("bwprobe")
        a(f"""s_waitcnt lgkmcnt(0)
s_mov_b32 s40, s26
s_and_b32 s41, s27, 0xffff
s_mov_b32 s42, 0x10000000
s_mov_b32 s43, 0x20000
s_mul_i32 s44, s2, {12*12*1024}
s_add_u32 s44, s44, {off}
v_lshlrev_b32 v8, 4, v0""")
        for i in range(12):
            a(f"buffer_load_dwordx4 v[{32+4*i}:{35+4*i}], v8, s[40:43], s44 offen {aux}\ns_add_u32 s44, s44, {12*1024}")
        a("s_waitcnt vmcnt(0)\ns_barrier"); a.vm = []
    mark(a, "own")
    if STAMP: a(f"s_memrealtime s[98:99]\n{SOP} s[100:101]")
    if xm == 1: a(f"s_mov_b32 s{sRB}, s3")
    else: a(f"s_bfe_u32 s{sT0}, s2, {(lb << 16) | (3 - lb)}\ns_lshl_b32 s{sT0}, s{sT0}, {5-lb}\ns_lshr_b32 s{sT1}, s3, {lb}\ns_add_u32 s{sRB}, s{sT0}, s{sT1}")
    a(f"""
s_lshr_b32 s{sT0}, s{sRB}, 1
s_lshl_b32 s{sT0}, s{sT0}, 7
s_and_b32 s{sT1}, s{sRB}, 1
s_add_u32 s{sROW0}, s{sT0}, s{sT1}
""")
    EPF = G("epf", False)
    if EPF:
        a(f"s_cmp_ge_u32 s{sW}, 4\ns_cbranch_scc1 L_C")
        aL = a.fork()
        aL(f"s_mul_i32 s{sT0}, s2, 49\nv_min_u32 v{vT1}, 48, v0\nv_add_lshl_u32 v{vT1}, v{vT1}, s{sT0}, 7\ns_waitcnt lgkmcnt(0)")
        aL.vmem(f"global_load_dword v23, v{vT1}, s[12:13]", "pf")
        aL("s_branch L_L\nL_C:")
        a.L += aL.L
    else: a(f"s_cmp_lt_u32 s{sW}, 4\ns_cbranch_scc1 L_L"); aL = a
    T_entry = a.cut()
    def common2(b):
        b(f"""
v_and_b32 v{vL}, 63, v0
v_lshlrev_b32 v{vL16}, 4, v{vL}
s_and_b32 s{sA}, s{sW}, 3
""")
        if xm == 1: b(f"s_and_b32 s{sS}, s2, 7")
        else: b(f"s_and_b32 s{sT0}, s2, {8//xm - 1}\ns_lshl_b32 s{sT0}, s{sT0}, {lb}\ns_and_b32 s{sT2}, s3, {xm-1}\ns_add_u32 s{sS}, s{sT0}, s{sT2}")
        b(f"s_lshr_b32 s{sT0}, s3, {lb}")
        rm = G("rotm", [3, 2])
        b(f"s_and_b32 s{sR}, s{sT0}, {rm[0]}\ns_mul_i32 s{sR}, s{sR}, {rm[1]}")
        fl = G("flip", [1, 4])
        if fl == 0: b(f"s_mov_b32 s{sE}, s{sS}")
        elif fl == 1: b(f"s_xor_b32 s{sE}, s{sS}, 4")
        else: b(f"s_mul_i32 s{sE}, s{sRB}, {fl[0]}\ns_and_b32 s{sE}, s{sE}, {fl[1]}\ns_xor_b32 s{sE}, s{sE}, s{sS}")
        if STAMP: b("v_mov_b32 v0, 0")
    c = a.fork()
    c("; ---- compute waves: x rows")
    c(f"v_lshrrev_b32 v{vT2}, 3, v0")
    if xm > 1 and G("xrot", False):
        c(f"s_lshl_b32 s{sT2}, s3, {6-lb}\ns_add_u32 s{sT2}, s{sT2}, 32\nv_add_u32 v{vT2}, s{sT2}, v{vT2}")
    else: c(f"v_add_u32 v{vT2}, 32, v{vT2}")
    c(f"""
v_and_b32 v{vT2}, 63, v{vT2}
v_lshl_add_u32 v{vT0}, v{vT2}, 1, s{sROW0}
v_mul_u32_u24 v{vT0}, 896, v{vT0}
v_and_b32 v{vT1}, 7, v0
v_lshl_add_u32 v{vXO}, v{vT1}, 4, v{vT0}
s_setprio {G('cprio', 1)}
s_waitcnt lgkmcnt(0)
""")
    for t in range(7):
        c.vmem(f"global_load_dwordx4 {vr(RAW+4*t,4)}, v{vXO}, s[4:5] offset:{128*t} {G('ntx','')}", f"x{t}")
    c("L_x256:")
    common2(c)
    first_stamps(c)
    c(f"""
s_sub_u32 s{sCW}, s{sW}, 4
s_and_b32 s{sRH}, s{sW}, 1
s_bfe_u32 s{sHI}, s{sW}, 0x10001
""")
    if G("spf", False):
        c(f"""s_lshl_b32 s{sT0}, s{sCW}, 5
s_add_u32 s{sT0}, s{sT0}, s{sRB}
s_mul_i32 s{sT0}, s{sT0}, 3584
s_mul_i32 s{sT1}, s{sS}, 448
s_add_u32 s{sT0}, s{sT0}, s{sT1}""")
        for i in range(7): c(f"s_load_dword s{sDum}, s[12:13], s{sT0} offset:{64*i}")
        c(f"""s_min_u32 s{sT2}, s{sCW}, 6
s_lshl_b32 s{sT2}, s{sT2}, 6
s_add_u32 s{sT1}, s{sT1}, s{sT2}
s_load_dword s{sDum}, s[14:15], s{sT1}
s_cmp_lt_u32 s{sCW}, 6
s_cselect_b32 s{sT2}, {256*3584}, 0
s_add_u32 s{sT0}, s{sT0}, s{sT2}""")
        for i in range(7): c(f"s_load_dword s{sDum}, s[12:13], s{sT0} offset:{64*i}")
    c(f"""
v_lshrrev_b32 v{vXE}, 4, v{vT2}
v_and_b32 v{vT1}, 15, v{vT2}
v_and_b32 v{vT0}, 3, v{vL}
v_bfe_u32 v{vT2}, v{vL}, 2, 1
v_mul_u32_u24 v{vActW}, 12, v{vT2}
v_or_b32 v{vActW}, v{vActW}, v{vT0}
v_xor_b32 v{vT1}, v{vT1}, v{vActW}
v_lshlrev_b32 v{vT1}, 4, v{vT1}
v_lshl_add_u32 v{vT1}, v{vT0}, 8, v{vT1}
v_mul_u32_u24 v{vT2}, {KP}, v{vT2}
v_lshl_add_u32 v{vT1}, v{vXE}, 10, v{vT1}
s_sub_u32 s{sT0}, 7, s{sR}
s_cmp_eq_u32 s{sR}, 0
s_cselect_b32 s{sT0}, 0, s{sT0}
s_mul_i32 s{sT0}, s{sT0}, {2*KP}
s_movk_i32 s{sT1}, {2*KP}
v_add3_u32 v{vActW}, v{vT1}, v{vT2}, s{sT0}
""")
    XA = [vActW, 40, 41, 42, 43, 44, 45]
    for t in range(1, 7): c(f"s_cmp_eq_u32 s{sR}, {t}\ns_cselect_b32 s{sT0}, {-12*KP}, s{sT1}\nv_add_u32 v{XA[t]}, s{sT0}, v{XA[t-1]}")
    c(f"s_cmp_ge_u32 s{sW}, 8\ns_cbranch_scc1 L_A2")
    T_c1 = c.cut()

    def col128(b, d, src):
        b(f"s_lshl_b32 s{d}, s{src}, 7")
    def halo_loads(b, HR):
        b(f"""
v_lshrrev_b32 v{vT0}, 5, v{vL}
s_lshl_b32 s{sT0}, s{sA}, 2
s_add_u32 s{sT0}, s{sT0}, s{sROW0}
s_sub_u32 s{sT0}, s{sT0}, 16
v_lshl_add_u32 v{vT0}, v{vT0}, 1, s{sT0}
s_movk_i32 s{sT3}, 896
v_mul_lo_u32 v{vT0}, v{vT0}, s{sT3}
v_and_b32 v{vT1}, 31, v{vL}
v_cmp_gt_u32 vcc, 24, v{vT1}
v_lshl_add_u32 v{vT1}, s{sR}, 3, v{vT1}
v_add_u32 v{vT2}, 32, v{vT1}
v_subrev_u32 v{vT3}, 24, v{vT1}
v_min_u32 v{vT2}, v{vT2}, v{vT3}
v_lshl_add_u32 v{vT2}, v{vT2}, 4, v{vT0}
v_subrev_u32 v{vT3}, 56, v{vT1}
v_min_u32 v{vT1}, v{vT1}, v{vT3}
v_lshl_add_u32 v{vT0}, v{vT1}, 4, v{vT0}
v_mov_b32 v{vT3}, {OOB}
v_cndmask_b32 v{vT2}, v{vT3}, v{vT2}, vcc
v_min_u32 v20, v{vT3}, v{vT0}
v_min_u32 v21, v{vT3}, v{vT2}
""")
        if HR: halo_issue(b, HR)
    def halo_issue(b, HR):
        b.vmem(f"buffer_load_dwordx4 {vr(HR[0],4)}, v20, {sq(SX)}, 0 offen", "h0")
        b.vmem(f"buffer_load_dwordx4 {vr(HR[1],4)}, v21, {sq(SX)}, 0 offen", "h1")
    HF = G("halof", True)
    def halo_write(b, HR):
        b(f"""v_lshrrev_b32 v{vT0}, 5, v{vL}
s_lshl_b32 s{sT0}, s{sA}, 1
v_add_u32 v{vT0}, s{sT0}, v{vT0}
v_and_b32 v{vT1}, 7, v{vL}
v_xor_b32 v{vT0}, v{vT0}, v{vT1}
v_lshlrev_b32 v{vT0}, 4, v{vT0}
v_and_b32 v{vT1}, 3, v{vL}
v_lshl_add_u32 v{vT0}, v{vT1}, 7, v{vT0}
v_bfe_u32 v{vT1}, v{vL}, 2, 3
v_mul_u32_u24 v{vT1}, {KP}, v{vT1}
v_add_u32 v{vT2}, v{vT0}, v{vT1}
ds_write_b128 v{vT2}, {vr(HR[0],4)} offset:{HALO}
s_mov_b32 exec_lo, 0x00ffffff
s_mov_b32 exec_hi, 0x00ffffff
ds_write_b128 v{vT2}, {vr(HR[1],4)} offset:{HALO + 8*KP}
s_mov_b64 exec, 0xff
v_lshlrev_b32 v{vT0}, 2, v{vL}
v_add_u32 v{vT0}, {CNT}, v{vT0}
v_mov_b32 v{vT1}, 0
ds_write_b32 v{vT0}, v{vT1}
s_mov_b64 exec, -1""")
    def xbases(b):
        b(f"""
v_lshrrev_b32 v{vT2}, 4, v{vL}
v_and_b32 v{vT3}, 15, v{vL}
v_xor_b32 v{vT0}, v{vT3}, v{vT2}
v_lshlrev_b32 v{vT1}, 8, v{vT2}
s_lshl_b32 s{sT0}, s{sRH}, 11
v_lshl_add_u32 v{vXE}, v{vT0}, 4, v{vT1}
v_add_u32 v{vXE}, s{sT0}, v{vXE}
v_xor_b32 v{vXO}, {12*16}, v{vXE}
""")
    def region(b, d):
        b(f"s_sub_u32 s{sT2}, 0, s{SWS}\ns_and_b32 s{sT2}, s{sT2}, 0xfffff\ns_lshl_b32 s{d}, s{sRB}, 20\ns_add_u32 s{d}, s{d}, s{sT2}")
    def setup_s(b):
        srd(b, SWS, 26, 0x10000000); srd(b, SOUT, 22, 2048 * 896)
        region(b, sFE)
        b(f"""
s_mul_i32 s{sT2}, s{sRB}, {G('wx', [1, 7])[0]}
s_and_b32 s{sT2}, s{sT2}, {G('wx', [1, 7])[1]}
s_xor_b32 s{sW2o}, s{sT2}, s{sCW}
s_lshl_b32 s{sW2o}, s{sW2o}, 10
s_add_u32 s{sPart}, s{sFE}, s{sW2o}
s_mul_i32 s{sM1}, s{sE}, {9*16384}
s_add_u32 s{sM1}, s{sM1}, s{sPart}
s_add_u32 s{sPart}, s{sPart}, {FOFF}
s_add_u32 s{sFE}, s{sFE}, {FOFF}
""")
    def setup_v1(b):
        b(f"""
v_lshrrev_b32 v{vT0}, 2, v{vL}
v_bfe_u32 v{vT1}, v{vL}, 3, 2
s_lshr_b32 s{sT2}, s{sCW}, 1
v_xor_b32 v{vT1}, s{sT2}, v{vT1}
v_lshlrev_b32 v{vT1}, 5, v{vT1}
v_lshl_add_u32 v{vT1}, v{vT0}, 7, v{vT1}
v_and_b32 v{vT0}, 3, v{vL}
v_lshl_add_u32 v{vG2O0}, v{vT0}, 3, v{vT1}
v_add_u32 v{vG2W}, {RING}, v{vG2O0}
""")
    def act_base(b):
        b(f"s_lshl_b32 s{sT0}, s{sRH}, 11\ns_add_u32 s{sT0}, s{sT0}, {ACT}\nv_add_u32 v{vActW}, s{sT0}, v{vL16}")
    def setup_v2(b):
        b(f"v_add_u32 v{vG2W2}, {RING+2*SLOT}, v{vG2O0}\nv_xor_b32 v{vG2O2}, 64, v{vG2O0}")

    def ln_core(b, raw, nraw, unp, tags, nl, pk=True):
        S, Q = vT0, vT2
        rw = (lambda d: raw + d) if isinstance(raw, int) else (lambda d: raw[d // 4] + d % 4)
        for d in range(nraw):
            if d % 4 == 0: b.need(vm=[tags[d // 4]])
            u = unp + 2 * d
            b(f"v_lshlrev_b32 v{u}, 16, v{rw(d)}\nv_and_b32 v{u+1}, 0xffff0000, v{rw(d)}")
            if not pk:
                if d == 0: b(f"v_mov_b32 v{S}, v{u}\nv_mov_b32 v{S+1}, v{u+1}\nv_mul_f32 v{Q}, v{u}, v{u}\nv_mul_f32 v{Q+1}, v{u+1}, v{u+1}")
                else: b(f"v_add_f32 v{S}, v{S}, v{u}\nv_add_f32 v{S+1}, v{S+1}, v{u+1}\nv_fmac_f32 v{Q}, v{u}, v{u}\nv_fmac_f32 v{Q+1}, v{u+1}, v{u+1}")
            elif d == 0: b(f"v_pk_mul_f32 {vr(Q,2)}, {vr(u,2)}, {vr(u,2)}")
            elif d == 1: b(f"v_pk_add_f32 {vr(S,2)}, {vr(u-2,2)}, {vr(u,2)}\nv_pk_fma_f32 {vr(Q,2)}, {vr(u,2)}, {vr(u,2)}, {vr(Q,2)}")
            else: b(f"v_pk_add_f32 {vr(S,2)}, {vr(S,2)}, {vr(u,2)}\nv_pk_fma_f32 {vr(Q,2)}, {vr(u,2)}, {vr(u,2)}, {vr(Q,2)}")
        yield "stats"
        b(f"v_add_f32 v{S}, v{S}, v{S+1}\nv_add_f32 v{Q}, v{Q}, v{Q+1}\ns_nop 0")
        for st in ["quad_perm:[1,0,3,2]", "quad_perm:[2,3,0,1]", "row_half_mirror", "row_mirror"][:min(nl, 4)]:
            b(f"v_add_f32_dpp v{S}, v{S}, v{S} {st} row_mask:0xf bank_mask:0xf\nv_add_f32_dpp v{Q}, v{Q}, v{Q} {st} row_mask:0xf bank_mask:0xf\ns_nop 0")
        if nl >= 5:
            b(f"""v_mov_b32 v{S+1}, v{S}
v_mov_b32 v{Q+1}, v{Q}
s_nop 1
v_permlane16_swap_b32 v{S}, v{S+1}
v_permlane16_swap_b32 v{Q}, v{Q+1}
s_nop 1
v_add_f32 v{S}, v{S}, v{S+1}
v_add_f32 v{Q}, v{Q}, v{Q+1}""")
        b(f"""v_mul_f32 v{S}, {f2u(1/448)}, v{S}
v_mul_f32 v{Q}, {f2u(1/448)}, v{Q}
v_fma_f32 v{Q}, -v{S}, v{S}, v{Q}
v_max_f32 v{Q}, 0, v{Q}
""")
        if G("lnr", True): b(f"""v_cvt_pk_bf16_f32 v{Q+1}, v{S}, v{Q}
v_and_b32 v{Q}, 0xffff0000, v{Q+1}
v_add_f32 v{Q}, {f2u(1e-5)}, v{Q}
v_cvt_pk_bf16_f32 v{Q}, v{Q}, v{Q}
v_lshlrev_b32 v{Q}, 16, v{Q}
v_sqrt_f32 v{Q}, v{Q}
v_lshlrev_b32 v{S}, 16, v{Q+1}
v_cvt_pk_bf16_f32 v{Q}, v{Q}, v{Q}
v_lshlrev_b32 v{Q}, 16, v{Q}
v_rcp_f32 v{Q}, v{Q}
""")
        else: b(f"v_add_f32 v{Q}, {f2u(1e-5)}, v{Q}\nv_rsq_f32 v{Q}, v{Q}")
        b(f"""s_nop 0
v_mul_f32 v{Q}, {f2u(ALPHA)}, v{Q}
v_mul_f32 v{S}, v{S}, v{Q}
.p2align 3""")
        yield "red"
        for d in range(nraw):
            u = unp + 2 * d
            if not pk: b(f"v_fma_f32 v{u}, v{u}, v{Q}, -v{S}\nv_fma_f32 v{u+1}, v{u+1}, v{Q}, -v{S}")
            else: b(f"v_pk_fma_f32 {vr(u,2)}, {vr(u,2)}, {vr(Q,2)}, {vr(S,2)} op_sel_hi:[1,0,0] neg_lo:[0,0,1] neg_hi:[0,0,1]")
            if d >= 1: b(f"v_cvt_pk_bf16_f32 v{rw(d-1)}, v{u-2}, v{u-1}")
            yield d - 1
        u = unp + 2 * (nraw - 1)
        b(f"v_cvt_pk_bf16_f32 v{rw(nraw-1)}, v{u}, v{u+1}")
        yield nraw - 1
    def ln_main(b, hook=None):
        if G("x_noln"):
            for t in range(7):
                if G("x_noln") != 3: b.need(vm=[f"x{t}"])
                if G("x_noln") == 1: b.ds(f"ds_write_b128 v{XA[t]}, {vr(RAW+4*t,4)}", "xw")
            return
        for d in ln_core(b, RAW, 28, UNP, [f"x{t}" for t in range(7)], 3):
            if d == "stats":
                stamp(b, 2)
                if hook: hook()
            if not G("lnbatch") and isinstance(d, int) and d >= 0 and d % 4 == 3:
                b.ds(f"ds_write_b128 v{XA[d//4]}, {vr(RAW+d-3,4)}", "xw")
        if G("lnbatch"):
            for t in range(7): b.ds(f"ds_write_b128 v{XA[t]}, {vr(RAW+4*t,4)}", "xw")

    def g1_phase(b, st0, groups, nx, xread, wread, XB, WB, NW, P, GAP, LEAD, tail=None, xfirst=False, xearly=False):
        M = []; first = {}; last = {}; xb = None
        for j in range(7):
            k = 0
            for g, (name, accs) in enumerate(groups):
                n = j * len(groups) + g
                accs = list(accs)
                if j > 0 and accs[-1][1] == xb and accs[0][1] != xb: accs.reverse()
                first[n] = len(M)
                for acc, xb, swap, cin in accs:
                    for kk in (k, 1 - k):
                        wr = WB + 8 * (n % NW) + 4 * kk; xr = XB + 4 * (2 * nx * (j % 2) + 2 * xb + kk)
                        M.append((acc, (xr, wr) if swap else (wr, xr), cin if (j == 0 and kk == k) else None, [f"w{n}_{kk}", f"x{j}_{xb}_{kk}"]))
                    k = 1 - k
                last[n] = len(M) - 1
        per = len(M) // 7
        bpos = {j: per * j - P for j in range(8)}
        need_at = {}
        for m, (_, _, _, tg) in enumerate(M):
            for t in tg: need_at.setdefault(t, m)
        R = []
        for j in range(7):
            for g, (name, accs) in enumerate(groups):
                n = j * len(groups) + g
                for kk in sorted((0, 1), key=lambda q: need_at[f"w{n}_{q}"]):
                    for u in range(2):
                        tag = f"w{n}_{kk}"
                        R.append((wread(j, g, kk, u, WB + 8 * (n % NW) + 4 * kk + 2 * u), tag, max(bpos[j], last.get(n - NW, -1), -1),
                                  min(need_at[tag] - LEAD, bpos[j + 1] - GAP - 1)))
        pos = [0] * len(R); nxt = 10 ** 6
        for i in reversed(range(len(R))):
            nxt = max(min(R[i][3], nxt - 1), R[i][2]); pos[i] = nxt
        sched = {}; prev = -1
        for i, r in enumerate(R):
            p = max(pos[i], prev)
            while len(sched.get(p, [])) >= (2 if p >= 0 else 6): p += 1
            j = int(r[1][1:].split("_")[0]) // len(groups)
            assert p < need_at[r[1]] and p < bpos[j + 1], (r, p)
            sched.setdefault(p, []).append(r[:2]); prev = p
        x0 = []
        for j in range(7):
            X = sorted(((xb, kk) for xb in range(nx) for kk in range(2)), key=lambda q: need_at[f"x{j}_{q[0]}_{q[1]}"])
            X = [(xread(2 * j + kk, xb, XB + 4 * (2 * nx * (j % 2) + 2 * xb + kk)), f"x{j}_{xb}_{kk}") for xb, kk in X]
            if j == 0: x0 = X; continue
            cand = sorted(range(per * (j - 1), bpos[j] - GAP if xearly else per * j - LEAD), key=lambda p: (len(sched.get(p, [])), -p))[:len(X)]
            for p, r in zip(sorted(cand), X): sched.setdefault(p, []).append(r)
        if xfirst:
            for r in x0: b.ds(*r)
        barrier(b, st0, lg=[] if xfirst and not xearly else None)
        ini = sched.get(-1, [])
        if not xfirst: ini = x0[:1] + ini[:2] + x0[1:2] + ini[2:4] + x0[2:] + ini[4:]
        for r in ini: b.ds(*r)
        for m, (acc, (p, q), cin, tg) in enumerate(M):
            if (m + P) % per == 0:
                j = (m + P) // per
                barrier(b, st0 + j, lg=[f"w{n}_{kk}" for n in range((j - 1) * len(groups), j * len(groups)) for kk in range(2)] +
                        ([f"x{j}_{xb}_{kk}" for xb in range(nx) for kk in range(2)] if xearly else []))
            b.need(lg=tg); mfma(b, acc, p, q, cin)
            for r in sched.get(m, []): b.ds(*r)
            if tail: tail(m - len(M))

    RA = G("runahead", 1)
    PROG = G("prog", {"19": 1, "20": 3})
    NE = G('ne', 3); TM = G('tm', 3)
    def arrival(b, k, d, base):
        b(f"""s_add_u32 s{d+1}, s{sE}, {(1 + k) % 7}
s_sub_u32 s{d}, s{d+1}, 7
s_min_u32 s{d+1}, s{d+1}, s{d}
s_lshl_b32 s{d+1}, s{d+1}, {WSH}
s_add_u32 s{d+1}, s{d+1}, s{base}
s_cmp_eq_u32 s{sE}, 7
s_cselect_b32 s{d}, 64, {1 << k}""")
    PD = max([0] + list(PROG.values())); MIDS = G("mids", False)
    def h_frags(b, vbase):
        for t in range(7):
            for pb in range(2): b.ds(f"ds_read_b128 {vr(96+4*(9*pb+t),4)}, v{vbase} offset:{actoff(t) + pb*1024}", f"hf{t}")
    def g2_phase(b, role):
        XR, PK, AC, WR, INB, ACTR = 14, 20, 28, 44, 68, 96
        NR = 6
        P2, GAP2, LEAD = G("p2" + role, 8), G("gap2" + role, 2), G("lead2", 8)
        ET = G("et" + role, 4)
        XT = G("xt" + role, 4)
        ra = RA if role == "F" else 0
        steps = [(cc, t) for cc in range(ra) for t in range(7)] + [(cc, t) for cc in range(ra) for t in (7, 8)] + \
                [(cc, t) for cc in range(ra, 7) for t in range(9)]
        N = len(steps); at = {s: n for n, s in enumerate(steps)}
        bpos = {}
        if role == "F":
            bpos[BH] = -1
            bpos[15] = 14 * ra - G("hold15", 8) if ra else 0
        else: bpos[15] = -1
        for cc in range(1, 7):
            if ra == 2 and cc <= 2: bpos[15 + cc] = 2 * at[(2, 0)]
            elif cc == 6: bpos[21] = 2 * at[(6, 0)]
            else: bpos[15 + cc] = max(2 * at[(cc, 0)] - (P2 if cc > ra or ra == 0 else 2), bpos[14 + cc] + 1)
        R = []
        for n, (cc, t) in enumerate(steps):
            w = WR + 4 * (n % NR)
            en = bpos[BH] if (cc < ra and t < 7) else (bpos[15] if cc < ra else bpos[15 + cc])
            war = 2 * (n - NR) + 1
            rel = bpos.get(16 + cc, 10 ** 6) - GAP2
            if cc == 0 and t >= 7:
                ena = bpos[15]
                for pb in range(2):
                    R.append((f"ds_read_b128 {vr(ACTR+4*(9*pb+t),4)}, v{vActW} offset:{actoff(t) + pb*1024}", f"w{n}", ena, min(2 * n - LEAD, rel)))
            for u in range(2):
                if t < 7:
                    loc = W2LOC[cc]
                    base, o = (vG2O0, 0) if loc == 0 else ((vG2W2, 0) if loc == RING + 2 * SLOT else (vG2W, loc - RING))
                    o += (96 + 112 * u if t == 6 else 112 * (t // 3) + 32 * (t % 3) + 16 * u) * 128
                else:
                    hd = t - 7
                    base = vG2O0 if (14*hd + 6*u) % 4 == 0 else vG2O2
                    o = WOLOC[cc] + (28*hd + 12*u) * 128
                R.append((f"ds_read_b64_tr_b16 {vr(w+2*u,2)}, v{base} offset:{o}", f"w{n}", max(en, war), min(2 * n - LEAD, rel)))
        pos = [0] * len(R); nxt = 10 ** 6
        for i in reversed(range(len(R))):
            nxt = max(min(R[i][3], nxt - 1), R[i][2], -1); pos[i] = nxt
        sched = {}; prev = -1
        for i, r in enumerate(R):
            p = max(pos[i], r[2], prev, -1)
            n = int(r[1][1:])
            burst = (ra == 2 and p == bpos[16] and n < at[(2, 0)] + 4) or (p == bpos[21] and n < at[(6, 0)] + 3)
            while not burst and len(sched.get(p, [])) >= (2 if p >= 0 else G("init2", 10)) and p + 1 < 2 * n - 1 and p + 1 < bpos.get(16 + steps[n][0], 10 ** 6): p += 1
            assert p < 2 * n or p == bpos[15] or burst, (r, p)
            sched.setdefault(p, []).append(r); prev = p
        bars = {}
        for j, p in bpos.items(): bars.setdefault(p, []).append(j)
        STA = G("sta" + role, {})
        nst = [0]; pendst = []
        def site():
            cc, k = pendst.pop(0)
            b(f"s_mov_b64 exec, s[{4+2*k}:{5+2*k}]")
            b.vmem(f"buffer_store_dwordx4 {vr(INB+4*cc,4)}, v{vL16}, {sq(SWS)}, s{sM1} offen sc1", f"p{cc}")
            b("s_mov_b64 exec, -1")
        def store(cc):
            assert nst[0] == cc; nst[0] += 1
            if cc == 0:
                b.need(lg=["h"])
                b(f"v_readfirstlane_b32 s{sT0}, v{vT3}\ns_nop 0\ns_add_u32 s{sM1}, s{sM1}, s{sT0}\ns_add_u32 s{sFE}, s{sFE}, s{sT0}")
            while pendst: site()
            b(f"s_add_u32 s{sM1}, s{sM1}, {8*16384}\ns_cmp_ge_u32 s{sM1}, s{sPart}\ns_cselect_b32 s{sT0}, {FOFF}, 0\ns_sub_u32 s{sM1}, s{sM1}, s{sT0}")
            if G("stag") and cc < 5:
                if cc == 0:
                    for k in range(4):
                        if G("stag") == "wave": b(f"s_cmp_eq_u32 s{sA}, {k}\ns_cselect_b64 s[{4+2*k}:{5+2*k}], -1, 0")
                        else: b(f"s_bfm_b64 s[{4+2*k}:{5+2*k}], 16, {16*k}")
                while pendst: site()
                pendst.extend((cc, k) for k in range(4)); site(); return
            while pendst: site()
            if G("x_75"): b.vmem(f"s_mov_b32 exec_hi, 0xffff\nbuffer_store_dwordx4 {vr(INB+4*cc,4)}, v{vL16}, {sq(SWS)}, s{sM1} offen sc1\ns_mov_b32 exec_hi, -1", f"p{cc}")
            elif not G("nopst"): b.vmem(f"buffer_store_dwordx4 {vr(INB+4*cc,4)}, v{vL16}, {sq(SWS)}, s{sM1} offen {G('pst','sc1')}", f"p{cc}")
        def epi(cc):
            ac = AC + 8 * (cc % 2)
            for q in range(G("x_enc", 0)): b(f"v_add_f32 v{PK+q%8}, v{ac+q%8}, v{ac+(q+1)%8}")
            for q in range(4): b(f"v_cvt_pk_bf16_f32 v{INB+4*cc+q}, v{ac+2*q}, v{ac+2*q+1}")
            if str(cc) not in STA: store(cc)
            if G("tog") and cc < G("togn", 5): b(f"s_setprio {G('tog')[role][1]}")
        def signal(off, steps, left):
            nf = lab("nf")
            b(f"v_mov_b32 v{vT0}, {CNT + off}\nv_mov_b32 v{vT1}, 1")
            for k in steps: arrival(b, k, 4 + 2 * k, sFE)
            b(f"""s_mov_b64 exec, 1
s_waitcnt vmcnt({left})
ds_add_rtn_u32 v{vT1}, v{vT0}, v{vT1}
s_waitcnt lgkmcnt(0)
v_cmp_eq_u32 vcc, 7, v{vT1}
s_mov_b64 exec, -1
s_nop 0
s_cbranch_vccz {nf}""")
            for k in reversed(steps): b(f"s_atomic_add s{4+2*k}, s[{SWS}:{SWS+1}], s{5+2*k}")
            b(f"{nf}:")
        def lds_wait(off, val):
            top, ok = lab("lw"), lab("lo")
            b.need(drain=True)
            b(f"""v_mov_b32 v{vT2}, {CNT + off}
s_mov_b32 s{sPoll}, 0
{top}:
ds_read_b32 v{vT3}, v{vT2}
s_add_u32 s{sPoll}, s{sPoll}, 1
s_cmp_gt_u32 s{sPoll}, {SPIN * 16}
s_waitcnt lgkmcnt(0)
v_cmp_gt_u32 vcc, {val}, v{vT3}
s_cbranch_scc1 {ok}
s_nop 0
s_cbranch_vccnz {top}
{ok}:""")
        def before_own():
            b(f"""v_and_b32 v{vT0}, 15, v{vL}
v_bfe_u32 v{vT1}, v{vL}, 1, 2
s_lshr_b32 s{sT1}, s{sCW}, 1
v_xor_b32 v{vT1}, s{sT1}, v{vT1}
v_lshlrev_b32 v{vT1}, 5, v{vT1}
v_lshl_add_u32 v{vT1}, v{vT0}, 7, v{vT1}
v_lshrrev_b32 v{vT2}, 4, v{vL}
v_lshlrev_b32 v{vT2}, 3, v{vT2}""")
            epi(5)
            stamp(b, 33)
            if G("gate") or G("gateL"): b(f"v_mov_b32 v{vXE}, {CNT + 20}\nv_mov_b32 v{vXO}, 1\ns_mov_b64 exec, 1\nds_add_u32 v{vXE}, v{vXO}\ns_mov_b64 exec, -1"); b.lg.append("gt")
            ns, s7 = lab("ns"), lab("s7")
            b(f"s_cmp_eq_u32 s{sE}, 7\ns_cbranch_scc1 {s7}")
            x = Asm(); x(f"{s7}:")
            for q in range(8): x(f"v_mov_b32 v{AC+q}, 0")
            x(f"s_branch {ns}"); SLOW.append(x.cut())
            col128(b, sM0, sE)
            b(f"""s_lshl_b32 s{sT0}, s{sRH}, 12
s_add_u32 s{sT0}, s{sT0}, {XRES}
v_add3_u32 v{vT1}, v{vT1}, v{vT2}, s{sT0}
s_lshl_b32 s{sT1}, s{sT1}, 5
s_add_u32 s{sM0}, s{sM0}, s{sT1}
s_movk_i32 s{sLO}, 0x3f80
s_add_u32 s{sT1}, s{sT1}, {XRES + 8192}
v_add_u32 v{vT2}, s{sT1}, v{vT2}""")
            b.ds(f"ds_read_b64 {vr(XR,2)}, v{vT1}", "xr")
            b.ds(f"ds_read_b64 {vr(XR+2,2)}, v{vT1} offset:2048", "xr")
            b.ds(f"ds_read_b64 {vr(XR+4,2)}, v{vT2}", "xr")
            b(f"""s_lshl_b32 s{sT0}, s{sRH}, 6
s_add_u32 s{sT0}, s{sT0}, s{sROW0}
v_lshl_add_u32 v{vT0}, v{vT0}, 1, s{sT0}
v_bfe_u32 v{vT1}, v{vL}, 4, 1
v_lshl_add_u32 v{vT0}, v{vT1}, 5, v{vT0}
v_mul_u32_u24 v{vT0}, 896, v{vT0}
v_lshrrev_b32 v{vT2}, 5, v{vL}
v_lshl_add_u32 v{vXE}, v{vT2}, 4, v{vT0}
v_mov_b32 v{vXO}, 0x3f800000""")
            b.need(lg=["xr"])
            for d in range(2):
                b(f"v_lshlrev_b32 v{vT0}, 16, v{XR+4+d}\nv_and_b32 v{vT1}, 0xffff0000, v{XR+4+d}")
                for pb in range(2):
                    q = AC + 4 * pb + 2 * d
                    b(f"v_dot2_f32_bf16 v{q}, v{XR+2*pb+d}, s{sLO}, v{vT0}\nv_dot2_f32_bf16 v{q+1}, v{XR+2*pb+d}, v{vXO}, v{vT1}")
            stamp(b, 37)
            if True:
                if MIDS: signal(8, list(range(PD, 5)), 1)
                signal(0, list(range(5 if MIDS else PD, 6)), 0)
                b(f"{ns}:")
                stamp(b, 34)
        if role == "A": act_base(b)
        def h_read():
            b(f"v_mov_b32 v{vT3}, {CNT + 4}"); b.ds(f"ds_read_b32 v{vT3}, v{vT3}", "h")
        for j in bars.get(-1, []):
            barrier(b, j)
            if j == 15: h_read()
            if j == BH: h_frags(b, vActW)
        for r in sched.get(-1, []): b.ds(*r[:2])
        epi_at = {}
        for cc in range(2 if ra == 2 else 0, 5):
            n = at[(cc, 8)] + ET
            if cc + 2 < 7: n = min(n, at[(cc + 2, 0)] - 1)
            epi_at.setdefault(n, []).append((cc, n - at[(cc, 8)]))
        for n in range(N):
            cc, t = steps[n]
            ac = AC + 8 * (cc % 2); w = WR + 4 * (n % NR)
            for pb in range(2):
                m = 2 * n + pb
                early = []
                for j in bars.get(m, []):
                    if j == 21: before_own()
                    if j == 21 and TM == 3: lds_wait(12, 3 if not NE else 2); stamp(b, 31)
                    else: barrier(b, j, vm=[f"p{k}" for k in range(PROG.get(str(j), 0))])
                    if j == 15: h_read()
                    if G("tog") and 16 <= j <= 20: b(f"s_setprio {G('tog')[role][0]}")
                    if ra == 2 and j == 16:
                        early = list(sched.get(m, []))
                        for r in early: b.ds(*r[:2])
                        epi(0); epi(1)
                    elif j == 21:
                        early = list(sched.get(m, []))
                        for r in early: b.ds(*r[:2])
                    elif not early:
                        early = [r for r in sched.get(m, []) if int(r[1][1:]) == n]
                        for r in early: b.ds(*r[:2])
                b.need(lg=[f"w{n}", f"hf{t}"])
                q = pb ^ (t & 1) if G("snake", True) else pb
                mfma(b, ac + 4 * q, w, ACTR + 4 * (9 * q + t), "0" if (t == 0 and cc < 6) else None)
                for r in sched.get(m, []):
                    if r not in early: b.ds(*r[:2])
            if pendst and n % G("stagd", 2) == 0: site()
            for e, dist in epi_at.get(n, []):
                if dist < 4: b(f"s_nop {7 - 2 * dist}")
                epi(e)
            for k, v in STA.items():
                if v == f"{cc},{t}": store(int(k))
        own, done = lab("own"), lab("done")
        if STAMP: b.need(drain=True); b(f"{SOP} s[64:65]")
        b(f"s_cmp_lg_u32 s{sE}, 7\ns_cbranch_scc1 {own}\ns_nop 5")
        epi(6)
        if G('mid7', True): signal(8, list(range(PD, 6)), 1)
        signal(0, list(range(6 if G('mid7', True) else PD, 7)), 0)
        b(f"s_branch {done}\n{own}:")
        b(f"""s_nop 0
v_add_u32 v{vT0}, s{sW2o}, v{vL16}
v_add_u32 v{vT1}, {RING}, v{vT0}
s_nop 1""")
        b.vm = []
        def take(slots):
            for i in slots:
                base, o = (vT1, INLOC[i] - RING) if INLOC[i] >= RING else (vT0, INLOC[i])
                b.ds(f"ds_read_b128 {vr(INB+4*i,4)}, v{base} offset:{o}", f"in{i}")
            for i in slots:
                b.need(lg=[f"in{i}"])
                for q in range(G("x_dec", 0) if i < G("x_decn", 7) else 0): b(f"v_bfe_u32 v{PK+q%8}, v{INB+4*i+q%4}, 11, 11")
                for d in range(4):
                    b(f"v_dot2_f32_bf16 v{AC+2*d}, v{INB+4*i+d}, s{sLO}, v{AC+2*d}\nv_dot2_f32_bf16 v{AC+2*d+1}, v{INB+4*i+d}, v{vXO}, v{AC+2*d+1}")
        if TM == 2 and NE: b("s_barrier")
        if TM == 3 and NE: lds_wait(16, 1)
        take(range(NE))
        if STAMP: b(f"{SOP} s[66:67]")
        b("s_barrier")
        if STAMP: b(f"{SOP} s[98:99]")
        take(range(NE, 7))
        b("s_nop 1")
        for q in range(4): b(f"v_cvt_pk_bf16_f32 v{PK+q}, v{AC+2*q}, v{AC+2*q+1}")
        b(f"s_nop 1\nv_permlane16_swap_b32 v{PK}, v{PK+2}\nv_permlane16_swap_b32 v{PK+1}, v{PK+3}\ns_nop 0")
        b(f"buffer_store_dwordx4 {vr(PK,4)}, v{vXE}, {sq(SOUT)}, s{sM0} offen {G('ost','')}")
        if STAMP: b(f"s_waitcnt lgkmcnt(0)\nv_writelane_b32 v0, s66, 39\nv_writelane_b32 v0, s98, 40")
        b(f"{done}:")
        if STAMP: b(f"s_waitcnt lgkmcnt(0)\nv_writelane_b32 v0, s64, 38\ns_branch L_fin")
        else: b("s_endpgm")

    f = c.fork(); f.nostamp = G('nof')
    vWA, vWB, vWA2, vWB2, vC1, vBi = 14, 15, 16, 17, 18, 19
    FACC = 24; FBUF = (80, 116)
    srd(f, SB1, 14, 1792 * 2)
    FH = (FACC + 4, FACC + 12)
    if HF: srd(f, SX, 4, 2048 * 896); halo_loads(f, None)
    f(f"""s_mul_i32 s{sT3}, s{sS}, 448
s_mul_i32 s{sT1}, s{sHI}, 224
s_add_u32 s{sT3}, s{sT3}, s{sT1}
s_lshl_b32 s{sT2}, s{sA}, 9
s_add_u32 s{sT2}, s{sT2}, {BIAS}
v_lshlrev_b32 v22, 2, v{vL}
v_lshl_add_u32 v{vC1}, v{vL}, 3, s{sT2}""")
    def bias_dma():
        f.vmem(f"buffer_load_dword v{FACC+52}, v22, {sq(SB1)}, s{sT3} offen", "bias")
        if HF: halo_issue(f, FH)
    def wbases():
        f(f"""v_lshrrev_b32 v{vT2}, 4, v{vL}
v_lshlrev_b32 v{vT0}, 3, v{vT2}
v_lshl_add_u32 v{vBi}, v{vT2}, 4, s{sT2}
v_bfe_u32 v{vT1}, v{vL}, 2, 2
v_add_u32 v{vT0}, v{vT0}, v{vT1}
v_mul_u32_u24 v{vT0}, 448, v{vT0}
v_and_b32 v{vT1}, 3, v{vL}
v_lshl_add_u32 v{vT0}, v{vT1}, 3, v{vT0}
s_add_u32 s{sT1}, s{sT1}, {RING}
v_add_u32 v{vT0}, s{sT1}, v{vT0}
v_and_b32 v{vT1}, 1, v{vT2}
s_lshl_b32 s{sT2}, s{sHI}, 6
s_sub_u32 s{sT2}, 32, s{sT2}
v_mul_lo_u32 v{vT1}, v{vT1}, s{sT2}
v_add_u32 v{vWA}, v{vT0}, v{vT1}
v_sub_u32 v{vWB}, v{vT0}, v{vT1}
v_add_u32 v{vWA2}, {2*SLOT}, v{vWA}
v_add_u32 v{vWB2}, {2*SLOT}, v{vWB}
s_mov_b32 s{sC2}, {f2u(-GK)}
s_mov_b32 s{sJJ}, {f2u(ALPHA)}
""")
        xbases(f)
    FE = G("fearly", 1)
    if FE == 1: bias_dma()
    wbases()
    if not G('fl8'): setup_s(f); setup_v1(f); setup_v2(f)
    if FE == 2: bias_dma()
    stamp(f, 1)
    ln_main(f, None if FE else bias_dma)
    stamp(f, 3)
    f(f"s_setprio {G('fprio0', 0)}")
    f.need(vm=["bias"])
    f(f"""v_and_b32 v{FACC+53}, 0xffff0000, v{FACC+52}
v_lshlrev_b32 v{FACC+52}, 16, v{FACC+52}
v_mul_f32 v{FACC+53}, s{sJJ}, v{FACC+53}
v_mul_f32 v{FACC+52}, s{sJJ}, v{FACC+52}""")
    f.ds(f"ds_write_b64 v{vC1}, {vr(FACC+52,2)}", "bias")
    for cb in range(7): f.ds(f"ds_read_b128 {vr(FACC+8*cb,4)}, v{vBi} offset:{64*cb}", "bias")
    if G("x_nohalo"): f.need(vm=["h1"])
    else:
        for _ in ln_core(f, FH, 8, UNP, ["h0", "h1"], 5): pass
    halo_write(f, FH)
    act_base(f)
    f.smem = True
    f("s_setprio 2")
    def f_x(ks, pb, d): return f"ds_read_b128 {vr(d,4)}, v{vXE if ks % 2 == 0 else vXO} offset:{pb*1024 + ks*KP}"
    def f_w(j, cb, kk, u, d):
        slot = j % 3; base = (vWA if cb % 2 == 0 else vWB) + (2 if slot == 2 else 0)
        return f"ds_read_b64_tr_b16 {vr(d,2)}, v{base} offset:{(SLOT if slot == 1 else 0) + kk * 14336 + cb * 32 + u * 1792}"
    fg = [(cb, [(FACC + 8*cb + 4, 1, False, vr(FACC + 8*cb, 4)), (FACC + 8*cb, 0, False, None)]) for cb in range(7)]
    g1_phase(f, 0, fg, 2, f_x, f_w, 80, 112, 5, G("pF", 12), G("gapF", 3), G("leadF", 8))
    f(f"s_setprio {G('gprio', 2)}")
    H, GT = 80, 108
    f(f"""s_lshl_b32 s{sT1}, s{sHI}, 3
s_mul_i32 s{sT2}, s{sHI}, {3*4096}
v_add_u32 v{vWA}, s{sT1}, v{vActW}
v_add_u32 v{vWB}, s{sT2}, v{vActW}""")
    ops = []
    for cb in range(7):
        a0 = FACC + 8 * cb; E = range(8) if not G("nogelu") else range(0)
        for e in E: ops.append((4, f"v_fma_f32 v{GT+e}, -v{a0+e}, v{a0+e}, s{sC2}"))
        for e in E: ops.append((4, f"v_mul_f32 v{GT+e}, v{GT+e}, v{a0+e}"))
        for e in E: ops.append((8, f"v_exp_f32 v{GT+e}, v{GT+e}"))
        for e in E: ops.append((4, f"v_fma_f32 v{GT+e}, v{GT+e}, s{sJJ}, s{sJJ}"))
        for e in E: ops.append((8, f"v_rcp_f32 v{GT+e}, v{GT+e}"))
        for e in E: ops.append((4, f"v_mul_f32 v{GT+e}, v{GT+e}, v{a0+e}"))
        for q in range(4):
            d = H + 24 + q if cb == 6 else H + 8 * (cb // 2) + 4 * (q // 2) + 2 * (cb % 2) + q % 2
            ops.append((4, f"v_cvt_pk_bf16_f32 v{d}, v{GT+2*q}, v{GT+2*q+1}"))
    sl = []
    bud = G("gbud", [200, 284, 284, 284, 284, 284, 284]); acc = 0; j = 8; lim = bud[0]
    for k, (cost, op) in enumerate(ops):
        if acc + cost > lim and j <= 14:
            barrier(f, j); j += 1
            lim += bud[j - 8] if j <= 14 else 10 ** 6
        acc += cost; f(op)
        if sl and k % 4 == 3: f(sl.pop(0))
    while j <= 14:
        barrier(f, j); j += 1
    f("s_setprio 3")
    for p in range(0 if G("x_nohw") else 3):
        for pb in range(2): f.ds(f"ds_write_b128 v{vWB}, {vr(H+8*p+4*pb,4)} offset:{actoff(p) + pb*1024}", "hw")
    f.ds(f"ds_write2st64_b64 v{vWA}, {vr(H+24,2)}, {vr(H+26,2)} offset0:{actoff(6)//512} offset1:{(actoff(6) + 1024)//512}", "hw")
    if G('fl8'): setup_s(f); setup_v1(f); setup_v2(f)
    f(f"s_setprio {G('f2prio', 1)}")
    g2_phase(f, "F")
    T_f2 = f.cut()

    w = c.fork(); w.nostamp = G('noa')
    vXPE, vXPO, vQA, vQA2, vZ, vMask, vPM = 14, 15, 16, 17, 18, 20, (11, 13)
    AACC = 32; ABUF = (96, 132); vHalo = 32
    w("; ---- attention waves\nL_A2:")
    stamp(w, 1)
    ln_main(w)
    stamp(w, 3)
    w("s_setprio 0")
    barrier(w, 0)
    srd(w, SDBG, 24, 256)
    setup_s(w); xbases(w)
    PN = G("pn", 20)
    def probe():
        sk, lp, dn = lab("nv"), lab("vl"), lab("vd")
        w.need(drain=True)
        w(f"""s_and_b32 s{sT0}, s{sS}, 5
s_or_b32 s{sT0}, s{sT0}, s{sA}
s_cbranch_scc1 {sk}
s_lshl_b32 s28, s{sS}, 5
s_add_u32 s28, s28, s{sRB}
s_lshl_b32 s28, s28, 7
s_add_u32 s28, s28, {WS_F1}
s_mov_b32 s50, 0
s_mov_b32 s29, 0
.p2align 5
s_load_dword s50, s[{SWS}:{SWS+1}], s28 glc
{lp}:
s_cmp_eq_u32 s50, s{sN0}
s_cbranch_scc1 {dn}
s_add_u32 s29, s29, 1
s_cmp_lt_u32 s29, {PN}
s_cbranch_scc1 {lp}
{dn}:
s_add_u32 s28, s28, s{SWS}
s_lshr_b32 s30, s28, 8
s_xor_b32 s28, s28, s30
s_lshl_b32 s30, s{sRB}, 9
s_xor_b32 s28, s28, s30
s_sub_u32 s30, 0, s29
s_bitcmp1_b32 s28, 13
s_cselect_b32 s30, s30, s29
s_add_u32 s30, s30, {0x10000 + 32}
s_atomic_add s30, s[{SDBG}:{SDBG+1}], 128""")
        if STAMP: w("v_writelane_b32 v0, s30, 59")
        w(f"{sk}:")
    def probes(j):
        if j == G("pat", 5): probe()
    barrier(w, 1)
    gn = get_nonce(w, vT0, 1); next(gn)
    w(f"""
; Wqkv read base: (16*(g>>1) + 4*(g&1) + r)*352 + hd*56 + c4*8
v_lshrrev_b32 v{vT0}, 5, v{vL}
v_bfe_u32 v{vT1}, v{vL}, 2, 3
v_lshl_add_u32 v{vT0}, v{vT0}, 4, v{vT1}
v_mul_u32_u24 v{vT0}, 352, v{vT0}
v_and_b32 v{vT1}, 3, v{vL}
v_lshl_add_u32 v{vT0}, v{vT1}, 3, v{vT0}
s_mul_i32 s{sT0}, s{sHI}, 56
s_add_u32 s{sT0}, s{sT0}, {RING}
v_add_u32 v{vQA}, s{sT0}, v{vT0}
v_add_u32 v{vQA2}, {2*SLOT}, v{vQA}
; previous key block base
v_lshrrev_b32 v{vT2}, 4, v{vL}
v_and_b32 v{vT0}, 7, v{vL}
v_xor_b32 v{vT0}, v{vT0}, v{vT2}
v_lshlrev_b32 v{vT0}, 4, v{vT0}
v_lshl_add_u32 v{vT0}, v{vT2}, 7, v{vT0}
v_add_u32 v{vT0}, {HALO}, v{vT0}
v_subrev_u32 v{vT1}, 1024, v{vXE}
s_cmp_eq_u32 s{sRH}, 0
s_cselect_b64 vcc, -1, 0
s_cselect_b32 s{sT0}, 64, 192
v_cndmask_b32 v{vXPE}, v{vT1}, v{vT0}, vcc
v_xor_b32 v{vXPO}, s{sT0}, v{vXPE}
v_cmp_ne_u32 vcc, 0, v{vT2}
s_lshl_b32 s{sT0}, s{sRH}, 11
s_lshl_b32 s{sT1}, s{sHI}, 12
v_cndmask_b32 v{vZ}, 0, -1, vcc
s_add_u32 s{sT0}, s{sT0}, s{sT1}
v_add_u32 v{vActW}, s{sT0}, v{vL16}
""")
    setup_v1(w)
    w(f"""
s_lshl_b32 s{sT3}, s{sS}, 5
s_mul_i32 s{sT0}, s{sA}, 7
s_add_u32 s{sT3}, s{sT3}, s{sT0}
s_lshl_b32 s{sT3}, s{sT3}, 7
s_add_u32 s{sT3}, s{sT3}, {WS_F1}
""")
    w.smem = True; next(gn)
    barrier(w, 2)
    def prelude():
        w(f"""
v_and_b32 v{vT0}, 15, v{vL}
v_lshrrev_b32 v{vT2}, 4, v{vL}
v_lshlrev_b32 v{vT2}, 2, v{vT2}
v_sub_u32 v{vT0}, v{vT0}, v{vT2}
v_mov_b32 v{vT3}, {f2u(-1e30)}
v_mov_b32 v19, 0xffff
s_lshr_b32 s{sT0}, s{sRB}, 1
s_or_b32 s{sT0}, s{sT0}, s{sRH}
s_cmp_eq_u32 s{sT0}, 0
s_cselect_b32 s{sT1}, 0, 8
s_mov_b32 s{sC2}, {f2u(28 ** -0.5 * math.log2(math.e) / ALPHA ** 2)}
""")
    def mask(jj):
        w(f"""
v_subrev_u32 v{vT1}, {jj}, v{vT0}
v_add_u32 v{vT2}, 16, v{vT1}
v_cmp_gt_u32 s[60:61], 8, v{vT1}
v_cmp_gt_u32 s[40:41], 8, v{vT2}
v_cmp_gt_u32 vcc, s{sT1}, v{vT2}
v_cndmask_b32 v{vMask+4+jj}, v{vT3}, 0, s[60:61]
v_cndmask_b32 v{vMask+jj}, v{vT3}, 0, s[40:41]
v_cndmask_b32 v{vMask+8+jj}, v{vT3}, 0, vcc
""")
        if jj % 2 == 0: w(f"v_cndmask_b32 v{vPM[jj//2]}, 0, v19, s[60:61]")
        else: w(f"v_cndmask_b32 v{vT1}, 0, v19, s[60:61]\nv_lshl_or_b32 v{vPM[jj//2]}, v{vT1}, 16, v{vPM[jj//2]}")
    PQ = [4, 8, 12, 16, 20, 24, 56]
    def p1_issue():
        for i, q in enumerate(PQ): w(f"s_buffer_load_dword s{4+i}, {sq(SWS)}, s{sT3} offset:{128*i}")
    prelude(); mask(0); mask(1)
    barrier(w, 3)
    probes(3)
    if not G("p1late"): p1_issue()
    barrier(w, 4)
    if G("p1late"): p1_issue()
    w.smem = True
    chk, retry, got = lab("pc"), lab("pr"), lab("pg")
    w.need(drain=True)
    w(f"s_mov_b32 s{sPoll}, 0\n{chk}:")
    for q in (4, 6, 8): w(f"s_cmp_eq_u64 s[{q}:{q+1}], s[{sN0}:{sN1}]\ns_cbranch_scc0 {retry}")
    w(f"s_cmp_eq_u32 s10, s{sN0}\ns_cbranch_scc0 {retry}")
    w(f"{got}:")
    if STAMP: w(f"v_writelane_b32 v0, s{sPoll}, 60")
    slow_poll(retry, got, vT1, f"v_min_u32 v{vT1}, 6, v{vL}\nv_lshlrev_b32 v{vT1}, 7, v{vT1}", sT3)
    probes(4)
    barrier(w, 5)
    probes(5)
    mask(2); mask(3)
    barrier(w, 6)
    probes(6)
    v19h = 19
    w(f"s_lshl_b32 s{sT0}, s{sRH}, 11\ns_add_u32 s{sT0}, s{sT0}, {ACT}\nv_add_u32 v{v19h}, s{sT0}, v{vL16}")
    w(f"s_setprio {G('aprio',2)}")
    def a_x(ks, kb, d):
        base = (vXE if ks % 2 == 0 else vXO) if kb else (vXPE if ks % 2 == 0 else vXPO)
        return f"ds_read_b128 {vr(d,4)}, v{base} offset:{max(kb - 1, 0) * 1024 + ks*KP}"
    def a_w(j, g, kk, u, d):
        slot = (7 + j) % 3; sec, db = divmod(g, 2)
        return f"ds_read_b64_tr_b16 {vr(d,2)}, v{vQA2 if slot == 2 else vQA} offset:{(SLOT if slot == 1 else 0) + kk * 32 * 352 + sec * 112 + db * 24 + u * 8 * 352}"
    ag = [(f"q{db}", [(AACC + (2*db+qb)*4, 1 + qb, False, "0") for qb in range(2)]) for db in range(2)] + \
         [(f"k{db}", [(AACC + 16 + (3*db+kb)*4, kb, False, "0") for kb in range(3)]) for db in range(2)] + \
         [(f"v{db}", [(AACC + 40 + (3*db+kb)*4, kb, True, "0") for kb in range(3)]) for db in range(2)]
    QP, KPk, VP, ONES, SS, MM, PP, LL, OO = 120, 132, 72, 128, 32, 64, 48, 160, 32
    tq, tk = [], []
    for q in range(4): tq.append(f"v_mov_b32 v{ONES+q}, 0x3f803f80")
    for db in range(2):
        for qb in range(2):
            s0 = AACC + (2*db+qb)*4
            for h in range(2): tq.append(f"v_cvt_pk_bf16_f32 v{QP+4*qb+2*db+h}, v{s0+2*h}, v{s0+2*h+1}")
    for qb in range(2):
        for h in range(2): tq.append(f"v_and_b32 v{QP+4*qb+2+h}, v{vZ}, v{QP+4*qb+2+h}")
    for db in range(2):
        for kb in range(3):
            s0 = AACC + 16 + (3*db+kb)*4
            for h in range(2): tk.append(f"v_cvt_pk_bf16_f32 v{KPk+4*kb+2*db+h}, v{s0+2*h}, v{s0+2*h+1}")
    tl = tq + tk
    def smfma():
        for qb in range(2):
            for t in range(2):
                m = vMask + 4 if t == 1 else (vMask + 8 if qb == 0 else vMask)
                mfma(w, SS + 8*qb + 4*t, KPk + 4*(qb+t), QP + 4*qb, vr(m, 4))
    T0, SAT = G("tail0", -18), G("sat", -3)
    def a_tail(m):
        if m >= T0:
            for _ in range(2):
                if tl: w(tl.pop(0))
        if m == SAT:
            assert not tl
            smfma()
    g1_phase(w, 7, ag, 3, a_x, a_w, 96, 144, 3, G("pA", 10), G("gapA", 3), G("leadA", 6), a_tail, xfirst=True, xearly=G('xearly', False))
    stamp(w, 5)
    if SAT >= 0:
        for x in tl: w(x)
        w("s_nop 1"); smfma()
    vc = []
    for db in range(2):
        for kb in range(3):
            s0 = AACC + 40 + (3*db+kb)*4
            for h in range(2): vc.append(f"v_cvt_pk_bf16_f32 v{VP+6*db+2*kb+h}, v{s0+2*h}, v{s0+2*h+1}")
    def fill(n):
        for _ in range(n): w(vc.pop(0) if vc else "s_nop 0")
    fill(4)
    if SAT > -3: w("s_nop 1")
    T, U = vT0, vT1
    for qb in range(2):
        for e in range(4): w(f"v_max_f32 v{MM+4*qb+e}, v{SS+8*qb+e}, v{SS+8*qb+4+e}")
    for qb in range(2): w(f"v_max3_f32 v{T+qb}, v{MM+4*qb}, v{MM+4*qb+1}, v{MM+4*qb+2}")
    for qb in range(2): w(f"v_max_f32 v{T+qb}, v{T+qb}, v{MM+4*qb+3}")
    fill(2); w(f"v_permlane32_swap_b32 v{T}, v{U}"); fill(1)
    w(f"v_max_f32 v{T}, v{T}, v{U}\nv_mov_b32 v{U}, v{T}")
    fill(2); w(f"v_permlane16_swap_b32 v{T}, v{U}"); fill(1)
    w(f"v_max_f32 v{T}, v{T}, v{U}\nv_mul_f32 v{U}, s{sC2}, v{T}\nv_mul_f32 v{T}, s{sC2}, v{T}")
    fill(2); w(f"v_permlane32_swap_b32 v{T}, v{U}"); fill(1)
    assert not vc
    rest = []
    r = rest.append
    for qb in range(2):
        m0 = MM + 4*qb
        for e in range(4): r(f"v_fma_f32 v{m0+e}, v{m0+e}, s{sC2}, -v{T+qb}")
        for e in range(4): r(f"v_exp_f32 v{m0+e}, v{m0+e}")
        r(f"v_cvt_pk_bf16_f32 v{m0}, v{m0}, v{m0+1}"); r(f"v_cvt_pk_bf16_f32 v{m0+2}, v{m0+2}, v{m0+3}")
        for h in range(2): r(f"v_bfi_b32 v{PP+4*qb+h}, v{vPM[h]}, 0, v{m0+2*h}")
        for h in range(2): r(f"v_and_b32 v{PP+4*qb+2+h}, v{vPM[h]}, v{m0+2*h}")
        x = Asm()
        if qb == 0: x("s_nop 1")
        else: setup_v2(x)
        mfma(x, LL + 4*qb, ONES, PP + 4*qb, "0")
        for db in range(2): mfma(x, OO + 8*qb + 4*db, VP + 6*db + 2*qb, PP + 4*qb, "0")
        rest += x.L
    for qb in range(2):
        if G("dn") == qb: r("s_nop 7")
        r(f"v_rcp_f32 v{LL+4*qb}, v{LL+4*qb}\ns_nop 0")
        r(f"v_mul_f32 v{LL+4*qb}, {f2u(1 / ALPHA)}, v{LL+4*qb}"); r(f"v_and_b32 v{LL+4*qb+1}, v{vZ}, v{LL+4*qb}")
        if G("dn") == 5 + qb: r("s_nop 7")
        for db in range(2):
            o0 = OO + 8*qb + 4*db
            if qb in G("opk", []):
                for e in (0, 2): r(f"v_pk_mul_f32 {vr(o0+e,2)}, {vr(o0+e,2)}, {vr(LL+4*qb,2)} op_sel:[0,{db}] op_sel_hi:[1,{db}]")
            else:
                for e in range(4): r(f"v_mul_f32 v{o0+e}, v{LL+4*qb+db}, v{o0+e}")
        if G("dn") == 2 + qb: r("s_nop 7")
        for q in range(4): r(f"v_cvt_pk_bf16_f32 v{PP+8+4*qb+q}, v{OO+8*qb+2*q}, v{OO+8*qb+2*q+1}")
    hb = Asm(); h_frags(hb, v19h); hq = list(zip(hb.L, hb.lg))
    BHI, HS = G("bhi", 24), G("hs", 2)
    for i, ins in enumerate(rest):
        if i == BHI: barrier(w, BH)
        w(ins)
        if HS and i >= BHI + G("hd", 0) and (i - BHI) % HS == 0 and hq: w.ds(*hq.pop(0))
    if G("dn") == 4: w("s_nop 7")
    for qb in range(2):
        w.ds(f"ds_write_b128 v{vActW}, {vr(PP+8+4*qb,4)} offset:{ACT + qb*1024}", "ow")
    while hq: w.ds(*hq.pop(0))
    w(f"s_setprio {G('a2prio', 2)}")
    stamp(w, 6)
    g2_phase(w, "A")
    T_a2 = w.cut()

    l = aL.fork(); l.nostamp = G('lite') or G('nol')
    xp = 1 if G('pfg', 1) else xm
    vW1a, vW1b, vW2A, vPF, vR0, vR1, vNon, vZero, vRP, vSent, vPA, vXR = 8, 9, 10, 11, 12, 13, 14, 15, 16, 24, 28, 29
    vNeed, vRng, vPoll, vPv, vPg = 24, 25, 26, 27, 30
    vW1 = 32
    l("; ---- loader waves\nL_L:")
    l(f"s_setprio {G('lprio0',3)}")
    common2(l)
    l(f"""
s_or_b32 s{sT3}, s2, s{sW}
s_cmp_lg_u32 s{sT3}, 0
s_cbranch_scc1 L_nolead0
s_memrealtime s[{sN0}:{sN1}]
L_nolead0:
""")
    for i, d in ((0, vR0), (1, vR1)):
        l(f"""
v_add_u32 v{vT0}, {64*i}, v{vL}
v_mul_u32_u24 v{vT2}, 2979, v{vT0}
v_lshrrev_b32 v{vT2}, 16, v{vT2}
v_mul_u32_u24 v{vT3}, 22, v{vT2}
v_sub_u32 v{vT0}, v{vT0}, v{vT3}
v_min_u32 v{vT0}, 20, v{vT0}
v_mul_u32_u24 v{vT3}, 37, v{vT0}
v_lshrrev_b32 v{vT3}, 8, v{vT3}
v_mul_u32_u24 v{vT3}, {896-112}, v{vT3}
v_lshl_add_u32 v{vT0}, v{vT0}, 4, v{vT3}
v_mul_u32_u24 v{vT2}, 2688, v{vT2}
v_add_u32 v{d}, v{vT0}, v{vT2}
""")
    l(f"""
s_and_b32 s{sT2}, s{sA}, 1
s_lshl_b32 s{sT2}, s{sT2}, 3
s_lshr_b32 s{sT1}, s{sA}, 1
s_lshl_b32 s{sT1}, s{sT1}, 2
s_add_u32 s{sT2}, s{sT2}, s{sT1}
s_lshl_b32 s{sT1}, s{sRB}, 4
s_add_u32 s{sT2}, s{sT2}, s{sT1}
s_mul_i32 s{sT2}, s{sT2}, 2688
s_mul_i32 s{sT1}, s{sS}, 112
s_add_u32 s{sC2}, s{sT2}, s{sT1}
; W1 prefetch offsets (rows 0..127)
s_and_b32 s{sJJ}, s{sRB}, {32//xp-1}
s_lshl_b32 s{sT1}, s{sJJ}, 2
s_add_u32 s{sRH}, s{sT1}, s{sA}
s_mul_i32 s{sT1}, s{sRH}, {xp}
v_min_u32 v{vT1}, {4*xp-1}, v{vL}
v_lshrrev_b32 v{vT2}, 2, v{vT1}
v_add_u32 v{vT2}, s{sT1}, v{vT2}
v_and_b32 v{vT1}, 3, v{vT1}
v_mul_u32_u24 v{vT2}, 3584, v{vT2}
v_lshl_add_u32 v{vPA}, v{vT1}, 7, v{vT2}
s_mul_i32 s{sW1o}, s{sS}, {448*448 if G('x_w1lin') else 448}
s_and_b32 s{sHI}, s{sW1o}, 0xffffff80
v_mov_b32 v{vZero}, 0
s_waitcnt lgkmcnt(0)
""")
    mark(l, "ka")
    srd(l, SWQ, 6, 448 * 1344 * 2); srd(l, SW1, 12, 448 * 1792 * 2)
    def op_pfa():
        l.vmem(f"buffer_load_dword v{vPF}, v{vPA}, {sq(SW1)}, s{sHI} offen {G('ntw','')}", "pf")
    def op_rpl():
        l.vmem(f"buffer_load_dwordx4 {vr(vRP,4)}, v{vR0}, {sq(SWQ)}, s{sC2} offen {G('ntr','')}", "rp")
        l("s_mov_b64 exec, 0xffffff")
        l.vmem(f"buffer_load_dwordx4 {vr(vRP+4,4)}, v{vR1}, {sq(SWQ)}, s{sC2} offen {G('ntr','')}", "rp")
        l("s_mov_b64 exec, -1")
    def op_init():
        srd(l, SDBG, 24, 256)
        l(f"""
s_cmp_lg_u32 s{sT3}, 0
s_cbranch_scc1 L_nolead1
s_and_b32 s{sN0}, s{sN0}, -16
s_or_b32 s62, s{sN0}, 16
s_atomic_swap s62, s[{SDBG}:{SDBG+1}], 0
s_atomic_swap s62, s[{SDBG}:{SDBG+1}], 64
L_nolead1:
""")
        srd(l, SWS, 26, 0x10000000); srd(l, SW2, 16, 1792 * 448 * 2); srd(l, SWO, 8, 448 * 448 * 2)
        srd(l, SX, 4, 2048 * 896); srd(l, SB2, 18, 896)
        first_stamps(l)
        l(f"""
v_mul_u32_u24 v{vT0}, 2341, v{vL}
v_xor_b32 v{vT1}, 32, v{vL16}
v_and_b32 v{vT2}, 32, v{vL}
v_xor_b32 v{vT2}, v{vT2}, v{vL16}
s_movk_i32 s{sT1}, {0 if G('x_w1lin') else 3584-448}
""")
        for i in range(7):
            l(f"v_add_u32 v{vT3}, {64*i*2341}, v{vT0}\nv_lshrrev_b32 v{vT3}, 16, v{vT3}\nv_mad_u32_u24 v{vW1+i}, v{vT3}, s{sT1}, v{vL16 if i < 3 else (vT2 if i == 3 else vT1)}")
        l(f"""
s_mul_i32 s{sT1}, s{sA}, {16*448 if G('x_w1lin') else 16*3584}
s_add_u32 s{sW1o}, s{sW1o}, s{sT1}
s_mul_i32 s{sM0}, s{sA}, 7168
""")
    def op_pfb():
        l(f"""
s_mul_i32 s{sT1}, s{sRH}, {10*xp}
s_add_u32 s{sT1}, s{sT1}, 512
v_min_u32 v{vT1}, {10*xp-1}, v{vL}
v_add_u32 v{vT1}, s{sT1}, v{vT1}
v_lshrrev_b32 v{vT2}, 2, v{vT1}
v_and_b32 v{vT1}, 3, v{vT1}
v_mul_u32_u24 v{vT2}, 3584, v{vT2}
v_lshl_add_u32 v{vT1}, v{vT1}, 7, v{vT2}
""")
        l.vmem(f"buffer_load_dword v{vPF}, v{vT1}, {sq(SW1)}, s{sHI} offen {G('ntw','')}", "pf")
    def op_pf2():
        per = 49 * xp; pw = (per + 3) // 4
        l(f"""
s_mul_i32 s{sT2}, s{sJJ}, {per}
s_mul_i32 s{sT1}, s{sA}, {pw}
v_min_u32 v{vT1}, {pw-1}, v{vL}
v_add_u32 v{vT1}, s{sT1}, v{vT1}
v_min_u32 v{vT1}, {per-1}, v{vT1}
v_add_lshl_u32 v{vT1}, v{vT1}, s{sT2}, 7
s_mul_i32 s{sT1}, s{sS}, {224*896}
""")
        l.vmem(f"buffer_load_dword v{vPF}, v{vT1}, {sq(SW2)}, s{sT1} offen {G('nt2','')}", "pf2")
        per = 13 * xp; pw = (per + 3) // 4
        l(f"""
s_mul_i32 s{sT2}, s{sJJ}, {per}
s_mul_i32 s{sT1}, s{sA}, {pw}
v_min_u32 v{vT1}, {pw-1}, v{vL}
v_add_u32 v{vT1}, s{sT1}, v{vT1}
v_min_u32 v{vT1}, {per-1}, v{vT1}
v_add_u32 v{vT1}, s{sT2}, v{vT1}
v_min_u32 v{vT1}, 391, v{vT1}
v_lshlrev_b32 v{vT1}, 7, v{vT1}
s_mul_i32 s{sT1}, s{sS}, {56*896}
""")
        l.vmem(f"buffer_load_dword v{vPF}, v{vT1}, {sq(SWO)}, s{sT1} offen {G('nt2','')}", "pf2")
    def op_g(k):
        if k < 3:
            l(f"""
s_mul_i32 s{sT2}, s{sRB}, 49
s_mul_i32 s{sT1}, s{sA}, 5
s_add_u32 s{sT1}, s{sT1}, {17*k}
v_min_u32 v{vT1}, 4, v{vL}
v_add_u32 v{vT1}, s{sT1}, v{vT1}
v_min_u32 v{vT1}, {min(17*k+16, 48)}, v{vT1}
v_add_lshl_u32 v{vT1}, v{vT1}, s{sT2}, 7
s_mul_i32 s{sT1}, s{sS}, {224*896}
""")
            l.vmem(f"buffer_load_dword v{vPF}, v{vT1}, {sq(SW2)}, s{sT1} offen {G('nt2','')}", "pf2")
        else:
            l(f"""
s_mul_i32 s{sT2}, s{sRB}, 13
s_lshl_b32 s{sT1}, s{sA}, 2
v_min_u32 v{vT1}, 3, v{vL}
v_add_u32 v{vT1}, s{sT1}, v{vT1}
v_min_u32 v{vT1}, 12, v{vT1}
v_add_u32 v{vT1}, s{sT2}, v{vT1}
v_min_u32 v{vT1}, 391, v{vT1}
v_lshlrev_b32 v{vT1}, 7, v{vT1}
s_mul_i32 s{sT1}, s{sS}, {56*896}
""")
            l.vmem(f"buffer_load_dword v{vPF}, v{vT1}, {sq(SWO)}, s{sT1} offen {G('nt2','')}", "pf2")
    def op_b2():
        col128(l, sT1, sE)
        l(f"""s_cmp_eq_u32 s{sE}, 7
s_cselect_b32 s{sT1}, {OOB}, s{sT1}
s_mov_b32 m0, {XRES + 8192}
s_mov_b64 exec, 0xff""")
        l.vmem(f"buffer_load_dwordx4 v{vL16}, {sq(SB2)}, s{sT1} offen lds", "xr")
        l("s_mov_b64 exec, -1")
    def op_xr():
        col128(l, sT1, sE)
        l(f"""
s_lshl_b32 s{sT0}, s{sA}, 5
s_add_u32 s{sT0}, s{sT0}, s{sROW0}
s_mul_i32 s{sT0}, s{sT0}, 896
s_cmp_eq_u32 s{sE}, 7
s_cselect_b32 s{sT1}, {OOB}, s{sT1}
s_add_u32 s{sT0}, s{sT0}, s{sT1}
s_lshl_b32 s{sT2}, s{sA}, 11""")
        for i in range(2):
            l(f"s_add_u32 m0, s{sT2}, {XRES + 1024*i}\ns_add_u32 s{sT0}, s{sT0}, {16*896*i}")
            l.vmem(f"buffer_load_dwordx4 v{vXR}, {sq(SX)}, s{sT0} offen lds", "xr")
    def op_rps():
        l(f"""
s_mul_i32 s{sT1}, s{sS}, {448*352}
s_add_u32 s{sT1}, s{sT1}, {WS_WQ}
s_lshl_b32 s{sT0}, s{sRB}, 2
s_add_u32 s{sT0}, s{sT0}, s{sA}
s_mul_i32 s{sT0}, s{sT0}, {4*352}
s_add_u32 s{sT0}, s{sT0}, s{sT1}
s_cmp_ge_u32 s{sRB}, 28
s_cselect_b32 s{sT0}, {OOB}, s{sT0}
""")
        region(l, 25)
        ni = lab("ni")
        l(f"""s_add_u32 s25, s25, {FOFF}
s_lshl_b32 s{sT1}, s{sA}, 13
s_add_u32 s{sT1}, s{sT1}, s25
s_lshr_b32 s{sT2}, s{sA}, 1""")
        for q in range(4): l(f"v_mov_b32 v{24+q}, 0")
        l(f"v_lshrrev_b32 v{vT0}, 3, v{vL}\nv_and_b32 v{vT1}, 0x70, v{vL16}\nv_lshl_add_u32 v{vT0}, v{vT0}, {WSH}, v{vT1}")
        l(f"""s_or_b32 s{sT2}, s{sT2}, s{sS}
s_cselect_b32 s{sT1}, {OOB}, s{sT1}
s_lshl_b32 s26, s{sS}, 5
s_add_u32 s26, s26, s{sRB}
s_lshl_b32 s26, s26, 7
s_add_u32 s26, s26, {WS_F1}
s_cmp_eq_u32 s{sA}, 3
s_cselect_b32 s{sT1}, s26, s{sT1}
s_cselect_b64 s[60:61], 0xff, -1""")
        l.need(vm=["rp"])
        l("s_mov_b64 exec, s[60:61]")
        l.vmem(f"buffer_store_dwordx4 v[24:27], v{vT0}, {sq(SWS)}, s{sT1} offen sc1", "rps")
        l("s_mov_b64 exec, -1")
        l.vmem(f"buffer_store_dwordx4 {vr(vRP,4)}, v{vL16}, {sq(SWS)}, s{sT0} offen sc1", "rps")
        l("s_mov_b64 exec, 0xffffff")
        l.vmem(f"buffer_store_dwordx4 {vr(vRP+4,4)}, v{vL16}, {sq(SWS)}, s{sT0} offen offset:1024 sc1", "rps")
        l("s_mov_b64 exec, -1")
    gl = get_nonce(l, vT0, 0)
    def op_noi(): next(gl)
    def op_non():
        next(gl)
    def op_rpw(): l.need(vm=["rps"])
    def op_fl1():
        only0(lambda: l(f"s_atomic_swap s{sN0}, s[{SWS}:{SWS+1}], s26"))
    def op_tab():
        chunks(l)
        l(f"""
v_lshrrev_b32 v{vT0}, 3, v{vL}
v_lshrrev_b32 v{vT1}, 4, v{vL}
v_lshlrev_b32 v{vT1}, 1, v{vT1}
v_and_b32 v{vT2}, 7, v{vL}
v_xor_b32 v{vT1}, v{vT1}, v{vT2}
v_mul_u32_u24 v{vT0}, 896, v{vT0}
v_lshl_add_u32 v{vW2A}, v{vT1}, 4, v{vT0}
v_add_u32 v{vXR}, v{vW2A}, v{vT0}
s_mul_i32 s{sW2o}, s{sS}, {224*896}
s_mul_i32 s{sT0}, s{sA}, {8*896}
s_add_u32 s{sW2o}, s{sW2o}, s{sT0}
s_lshl_b32 s27, s{sA}, 10
s_mul_i32 s{sWQo}, s{sS}, {448*352}
s_add_u32 s{sWQo}, s{sWQo}, {WS_WQ}
s_mul_i32 s{sM1}, s{sA}, {16*352}
s_add_u32 s{sWQo}, s{sWQo}, s{sM1}
s_mul_i32 s{sT2}, s{sS}, {56*896}
s_lshl_b32 s{sT0}, s{sA}, 1
s_add_u32 s{sT1}, s{sT0}, 1
s_min_u32 s{sT1}, s{sT1}, 6
s_lshl_b32 s20, s{sT0}, 10
s_lshl_b32 s21, s{sT1}, 10
s_mul_i32 s22, s{sT0}, {8*896}
s_mul_i32 s23, s{sT1}, {8*896}
s_add_u32 s22, s22, s{sT2}
s_add_u32 s23, s23, s{sT2}
; inbox: source offsets per slot (s4..s10), poll address / need per lane
s_cmp_eq_u32 s{sA}, 3
s_cselect_b64 s[18:19], 0xff, -1
""")
    def stage_off(first, step):
        if first: l(f"s_mul_i32 s{sK}, s{sR}, {step}")
        else: l(f"s_add_u32 s{sK}, s{sK}, {step}\ns_cmp_eq_u32 s{sK}, {7*step}\ns_cselect_b32 s{sK}, 0, s{sK}")
    def dma_w1(st):
        stage_off(st == 0, 64 * (448 if G('x_w1lin') else 3584))
        for i in range(7):
            if i == 0: l(f"s_add_u32 m0, s{sM0}, {RING + (st%3)*SLOT}\ns_add_u32 s{sT0}, s{sW1o}, s{sK}")
            if i == 4: l(f"s_add_u32 m0, s{sM0}, {RING + (st%3)*SLOT + 4096}\ns_add_u32 s{sT0}, s{sT0}, 4096")
            l.vmem(f"buffer_load_dwordx4 v{vW1+i}, {sq(SW1)}, s{sT0} offen offset:{1024*(i%4)} lds", f"st{st}")
    def dma_wq(st):
        if G("nodma"): return
        stage_off(st == 7, 22528)
        for i in range(6):
            if i == 0: l(f"s_add_u32 m0, s{sM1}, {RING + (st%3)*SLOT}\ns_add_u32 s{sT0}, s{sWQo}, s{sK}")
            if i == 4: l(f"s_add_u32 m0, s{sM1}, {RING + (st%3)*SLOT + 4096}\ns_add_u32 s{sT0}, s{sT0}, 4096")
            if i == 5: l("s_mov_b32 exec_hi, 0")
            l.vmem(f"buffer_load_dwordx4 v{vL16}, {sq(SWS)}, s{sT0} offen offset:{1024*(i%4)} lds", f"st{st}")
        l("s_mov_b32 exec_hi, -1")
    def dma_w2(cc, i0=0, i1=7):
        if G("nodma"): return
        col128(l, sT2, sCH + cc); l(f"s_add_u32 s{sT2}, s{sT2}, s{sW2o}")
        for i in range(i0, i1):
            l(f"s_add_u32 m0, s27, {W2LOC[cc] + 4096*i}\ns_add_u32 s{sT0}, s{sT2}, {32*896*i}")
            l.vmem(f"buffer_load_dwordx4 v{vW2A}, {sq(SW2)}, s{sT0} offen lds", f"w2{cc}")
    def dma_wo(cc):
        if G("nodma"): return
        col128(l, sT2, sCH + cc)
        for i in range(2):
            l(f"s_add_u32 m0, s{20+i}, {WOLOC[cc]}\ns_add_u32 s{sT0}, s{22+i}, s{sT2}")
            if i == 1 and G("nodup", True): l("s_mov_b64 exec, s[18:19]")
            l.vmem(f"buffer_load_dwordx4 v{vW2A}, {sq(SWO)}, s{sT0} offen lds", f"wo{cc}")
            if i == 1 and G("nodup", True): l("s_mov_b64 exec, -1")
    vD0, vD1, vD2, vE0, vE1 = 8, 9, 12, 13, 14
    def pace():
        if G("pace"): l(G("pace"))
    def op_stg():
        l(f"""v_add_u32 v{vD0}, s27, v{vL16}
v_add_u32 v{vD1}, {RING}, v{vD0}
v_add_u32 v{vD2}, {RING + 2*SLOT}, v{vD0}
v_add_u32 v{vE0}, s20, v{vL16}
v_add_u32 v{vE1}, s21, v{vL16}""")
    def stg_w2(cc, i0=0, i1=7):
        col128(l, sT2, sCH + cc); l(f"s_add_u32 s{sT2}, s{sT2}, s{sW2o}")
        for i in range(i0, i1):
            l(f"s_add_u32 s{sT0}, s{sT2}, {32*896*i}")
            l.vmem(f"buffer_load_dwordx4 {vr(32 + 28*(cc-3) + 4*i, 4)}, v{vW2A}, {sq(SW2)}, s{sT0} offen", f"v{cc}{i}")
    def stg_wo(cc):
        col128(l, sT2, sCH + cc)
        for i in range(2):
            l(f"s_add_u32 s{sT0}, s{22+i}, s{sT2}")
            l.vmem(f"buffer_load_dwordx4 {vr(144 + 8*(cc-4) + 4*i, 4)}, v{vW2A}, {sq(SWO)}, s{sT0} offen", f"u{cc}")
    def put_w2(cc, i0=0, i1=7):
        loc = W2LOC[cc]; base, o = (vD0, 0) if loc == 0 else ((vD2, 0) if loc == RING + 2 * SLOT else (vD1, loc - RING))
        for i in range(i0, i1):
            l.need(vm=[f"v{cc}{i}"])
            l.ds(f"ds_write_b128 v{base}, {vr(32 + 28*(cc-3) + 4*i, 4)} offset:{o + 4096*i}", "put"); pace()
    def put_wo(cc):
        l.need(vm=[f"u{cc}"])
        for i in range(2): l.ds(f"ds_write_b128 v{vE0+i}, {vr(144 + 8*(cc-4) + 4*i, 4)} offset:{WOLOC[cc]}", "put"); pace()
    def only0(fn, n=1):
        sk = lab("o0")
        l(f"s_cmp_ge_u32 s{sA}, {n}\ns_cbranch_scc1 {sk}"); fn(); l(f"{sk}:")
    def op_cki():
        only0(lambda: l(f"s_buffer_load_dword s61, {sq(SDBG)}, 128"), 2)
    def op_ck():
        again, got = lab("ca"), lab("cg")
        sel = {"auto": "s_cselect_b32 s61, 1, 0", "inv": "s_cselect_b32 s61, 0, 1", "0": "s_mov_b32 s61, 0"}[G("hsel", "auto")]
        def body():
            l(f"""s_waitcnt lgkmcnt(0)
s_mov_b32 s{sPoll}, 0
s_cmp_ge_u32 s61, {64 << 16}
s_cbranch_scc0 {again}
{got}:
s_and_b32 s61, s61, 0xffff
s_sub_u32 s60, s61, {64*32 - 12}
s_cmp_gt_u32 s61, {64*32}
{sel}
s_cmp_lt_u32 s60, 25
s_cselect_b32 s61, s{sRB}, s61
s_add_u32 s60, s25, s{SWS}
s_lshr_b32 s60, s60, 21
s_xor_b32 s61, s61, s60
s_lshr_b32 s60, s{sRB}, 4
s_xor_b32 s61, s61, s60
s_and_b32 s61, s61, 1
s_lshl_b32 s61, s61, 13
v_mov_b32 v{vT0}, {CNT + 4}
v_mov_b32 v{vT1}, s61
s_mov_b64 exec, 1
ds_write_b32 v{vT0}, v{vT1}
s_mov_b64 exec, -1
s_add_u32 s25, s25, s61
s_lshl_b32 s{sT0}, s{sE}, 17
s_add_u32 s{sPart}, s25, s{sT0}
s_sub_u32 s{sPart}, s{sPart}, {FOFF}
s_lshl_b32 s{sT0}, s{sE}, {WSH}
s_add_u32 s24, s25, s{sT0}""")
            if STAMP: l(f"s_lshr_b32 s61, s61, 13\nv_writelane_b32 v0, s61, 59\nv_writelane_b32 v0, s{sPoll}, 60")
        only0(body, 2)
        l.smem = True
        x = Asm()
        x(f"""{again}:
buffer_load_dword v{vT0}, v{vZero}, {sq(SDBG)}, 0 offen offset:128 sc1
s_add_u32 s{sPoll}, s{sPoll}, 1
s_cmp_gt_u32 s{sPoll}, {SPIN}
s_waitcnt vmcnt(0)
v_readfirstlane_b32 s61, v{vT0}
s_cbranch_scc1 {got}
s_cmp_ge_u32 s61, {64 << 16}
s_cbranch_scc0 {again}
s_branch {got}""")
        SLOW.append(x.cut())
    pdone = [0]
    def progress(n):
        ks = list(range(pdone[0], n)); pdone[0] = n
        for k in ks: arrival(l, k, 4 + 2 * k, 25); l(f"s_atomic_add s{4+2*k}, s[{SWS}:{SWS+1}], s{5+2*k}")
    def op_pg(n): only0(lambda: progress(n))
    def poll(): l(f"s_mov_b32 s13, 0\ns_atomic_add s13, s[{SWS}:{SWS+1}], s24 glc")
    def dma_last(ng=1):
        nw = 4 - ng
        col128(l, sT2, sCH + 6)
        l(f"""s_sub_u32 s16, s{sA}, {ng}
s_mul_i32 s17, s{sS}, {224*896}
s_add_u32 s17, s17, s{sT2}
s_mul_i32 s18, s{sS}, {56*896}
s_add_u32 s18, s18, s{sT2}""")
        for n, base, loc, srdn in ((28, 17, W2LOC[6], SW2), (7, 18, WOLOC[6], SWO)):
            for i in range((n + nw - 1) // nw):
                l(f"s_add_u32 s{sT0}, s16, {nw*i}")
                if nw * i + nw - 1 >= n: l(f"s_min_u32 s{sT0}, s{sT0}, {n-1}")
                l(f"s_lshl_b32 s{sT1}, s{sT0}, 10\ns_add_u32 m0, s{sT1}, {loc}\ns_mul_i32 s{sT0}, s{sT0}, {8*896}\ns_add_u32 s{sT0}, s{sT0}, s{base}")
                if not G("nodma"): l.vmem(f"buffer_load_dwordx4 v{vW2A}, {sq(srdn)}, s{sT0} offen lds", "w26")
    NG = 2 if NE else 1
    def own_pieces():
        nw = 4 - NG; k = 0
        for n, base, loc, srdn in ((28, 14, W2LOC[6], SW2), (7, 15, WOLOC[6], SWO)):
            for i in range((n + nw - 1) // nw):
                yield k, i, n, base, loc, srdn, nw; k += 1
    def op_sg6(lo, hi):
        sk = lab("g6")
        l(f"s_cmp_lt_u32 s{sA}, {NG}\ns_cbranch_scc1 {sk}\ns_cmp_eq_u32 s{sE}, 7\ns_cbranch_scc1 {sk}")
        if lo == 0:
            l.need(vm=list(l.vm))
            col128(l, sT2, sCH + 6)
            l(f"""s_sub_u32 s13, s{sA}, {NG}
s_mul_i32 s14, s{sS}, {224*896}
s_add_u32 s14, s14, s{sT2}
s_mul_i32 s15, s{sS}, {56*896}
s_add_u32 s15, s15, s{sT2}""")
        for k, i, n, base, loc, srdn, nw in own_pieces():
            if not lo <= k < hi: continue
            l(f"s_add_u32 s{sT0}, s13, {nw*i}")
            if nw * i + nw - 1 >= n: l(f"s_min_u32 s{sT0}, s{sT0}, {n-1}")
            l(f"s_mul_i32 s{sT0}, s{sT0}, {8*896}\ns_add_u32 s{sT0}, s{sT0}, s{base}")
            l(f"buffer_load_dwordx4 {vr(40 + 4*k, 4)}, v{vW2A}, {sq(srdn)}, s{sT0} offen")
        l(f"{sk}:")
    def put6():
        for k, i, n, base, loc, srdn, nw in own_pieces():
            if i == 0 or nw * i + nw - 1 >= n:
                l(f"s_add_u32 s{sT0}, s13, {nw*i}\ns_min_u32 s{sT0}, s{sT0}, {n-1}\ns_lshl_b32 s{sT0}, s{sT0}, 10\ns_add_u32 s{sT0}, s{sT0}, {loc}\nv_add_u32 v{vT2}, s{sT0}, v{vL16}")
                i0 = i
            l(f"ds_write_b128 v{vT2}, {vr(40 + 4*k, 4)} offset:{1024*nw*(i-i0)}")
        l("s_waitcnt lgkmcnt(0)")
    def lds_add(off):
        l(f"v_mov_b32 v{vT0}, {CNT + off}\nv_mov_b32 v{vT1}, 1\ns_mov_b64 exec, 1\ns_waitcnt vmcnt(0)\nds_add_u32 v{vT0}, v{vT1}\ns_mov_b64 exec, -1")
    def gate_wait(val):
        gt, go = lab("gt"), lab("go")
        l(f"""v_mov_b32 v{vT2}, {CNT + 20}
s_mov_b32 s{sPoll}, 0
{gt}:
ds_read_b32 v{vT3}, v{vT2}
s_add_u32 s{sPoll}, s{sPoll}, 1
s_cmp_gt_u32 s{sPoll}, {SPIN * 16}
s_waitcnt lgkmcnt(0)
v_cmp_gt_u32 vcc, {val}, v{vT3}
s_cbranch_scc1 {go}
s_nop 0
s_cbranch_vccnz {gt}
{go}:""")
    def tail3():
        z, top, out, fin = lab("z"), lab("tl"), lab("to"), lab("tf")
        ng = 2 if NE else 1
        l(f"s_cmp_lt_u32 s{sA}, {ng}\ns_cbranch_scc1 {z}")
        if G("sg6", True):
            n7 = lab("n7")
            l(f"s_cmp_eq_u32 s{sE}, 7\ns_cbranch_scc1 {n7}\ns_waitcnt vmcnt(0)\ns_barrier\ns_setprio {G('putprio', 0)}")
            if G("gate"): gate_wait(G("gate"))
            put6(); lds_add(12)
            l(f"s_branch {fin}\n{n7}:")
        if G("w6at", 19) == 19: dma_last(ng)
        barrier(l, 20, vm=["w25", "wo5", "xr"])
        if G("w6at", 19) == 20: dma_last(ng)
        lds_add(12)
        l.need(drain=True)
        l(f"s_branch {fin}\n{z}:")
        l.vm = []
        em = (1 << NE) - 1
        l(f"s_cmp_eq_u32 s{sA}, 0\ns_cselect_b32 s12, {em}, {0x7f ^ em}\ns_cmp_eq_u32 s{sE}, 7\ns_cselect_b32 s12, 0x7f, s12\ns_mov_b32 s13, 0")
        if G("noinb"): l("s_mov_b32 s12, 0x7f")
        TK = G("tk19", True)
        if TK:
            sk = lab("np"); l(f"s_cmp_eq_u32 s{sA}, {ng - 1}\ns_cbranch_scc0 {sk}\ns_load_dword s13, s[{SWS}:{SWS+1}], s24 glc\n{sk}:")
        def b20():
            l("s_barrier")
            if "20" in PROG: op_pg(PROG["20"])
            if G("gateL"): only0(lambda: gate_wait(G("gateL")), G("gateN", 1))
        b2, b2r = lab("b20"), lab("b2r")
        if TK == "pre":
            assert NE == 3
            sk = lab("nw"); l(f"s_waitcnt vmcnt(0)\ns_cmp_eq_u32 s{sA}, 0\ns_cbranch_scc1 {sk}\ns_waitcnt lgkmcnt(0)\ns_and_b32 s13, s13, 0x7f\n{sk}:")
            main = l.L; l.L = []; l(f"{b2}:"); b20(); l(f"s_mov_b32 s{sPoll}, 0\ns_branch {b2r}"); SLOW.append(l.cut()); l.L = main
        else:
            l("s_waitcnt vmcnt(0)"); b20()
            sk = lab("nw"); l(f"s_cmp_lg_u32 s{sA}, {ng - 1}\ns_cbranch_scc1 {sk}\ns_waitcnt lgkmcnt(0)\ns_and_b32 s13, s13, 0x7f\n{sk}:")
        if G("x_75"): l("s_mov_b32 exec_hi, 0xffff")
        again = lab("ta")
        l(f"""s_mov_b32 s{sPoll}, 0
s_add_u32 s17, s{sE}, 6
.p2align 6
{top}:
s_andn2_b32 s14, s13, s12
s_cbranch_scc0 {again}
s_ff1_i32_b32 s14, s14
s_bitset1_b32 s12, s14
s_sub_u32 s15, s17, s14
s_sub_u32 s16, s15, 7
s_min_u32 s15, s15, s16
s_cmp_eq_u32 s14, 6
s_cselect_b32 s15, 7, s15
s_lshl_b32 s15, s15, 14
s_add_u32 s15, s15, s{sPart}
s_cmp_lt_u32 s14, 3
s_cselect_b32 s16, {(INLOC[0] + 24576) >> 12}, 0
s_lshl_b32 s14, s14, 1
s_add_u32 s14, s14, s16
s_sub_u32 s14, s14, 6
s_lshl_b32 m0, s14, 12
s_add_u32 s16, s15, 4096""")
        for q in range(4): l(f"buffer_load_dwordx4 v{vL16}, {sq(SWS)}, s15 offen offset:{1024*q} sc1 lds")
        l("s_add_u32 m0, m0, 4096\ns_cmp_eq_u32 s12, 0x7f")
        for q in range(4): l(f"buffer_load_dwordx4 v{vL16}, {sq(SWS)}, s16 offen offset:{1024*q} sc1 lds")
        l(f"""s_cbranch_scc0 {top}
{again}:""")
        if TK == "pre": l(f"s_cmp_eq_u32 s{sPoll}, 0\ns_cbranch_scc1 {b2}\n{b2r}:")
        l(f"""s_add_u32 s{sPoll}, s{sPoll}, 1
s_cmp_gt_u32 s{sPoll}, {SPIN}
s_cselect_b32 s12, 0x7f, s12
s_cmp_eq_u32 s12, 0x7f
s_cbranch_scc1 {out}""")
        if G("pollop", "load") == "load": l(f"s_load_dword s13, s[{SWS}:{SWS+1}], s24 glc")
        else: poll()
        l(f"s_waitcnt lgkmcnt(0)\ns_and_b32 s13, s13, 0x7f\ns_branch {top}\n{out}:")
        if STAMP: l(f"{SOP} s[64:65]")
        l("s_waitcnt vmcnt(0)")
        if STAMP: l(f"{SOP} s[66:67]\ns_waitcnt lgkmcnt(0)\nv_writelane_b32 v0, s{sPoll}, 61\nv_writelane_b32 v0, s64, 35\nv_writelane_b32 v0, s66, 36")
        if NE:
            l(f"s_cmp_eq_u32 s{sA}, 0\ns_cbranch_scc1 {fin}"); lds_add(16)
        l(f"{fin}:\ns_cmp_eq_u32 s{sE}, 7\ns_cbranch_scc1 L_Lend\ns_barrier\nL_Lend:")
    def op_tail(): tail3()
    OPS = dict(pfa=op_pfa, init=op_init, rpl=op_rpl, pfb=op_pfb, pf2=op_pf2, rps=op_rps, fl1=op_fl1, rpw=op_rpw, tab=op_tab, non=op_non, noi=op_noi,
               xr=op_xr, b2=op_b2, stg=op_stg, dr=lambda: l('s_waitcnt lgkmcnt(0)'), g6a=lambda: op_sg6(0, G('g6n', 10)), g6b=lambda: op_sg6(G('g6n', 10), 99), vm0=lambda: l.need(vm=list(l.vm)), cki=op_cki, ck=op_ck, tail=op_tail,
               lo=lambda: l("s_setprio 0"), hi=lambda: l(f"s_setprio {G('lprio',3)}"))
    for k in range(7):
        OPS[f"s{k}"] = lambda k=k: dma_w1(k); OPS[f"q{k}"] = lambda k=k: dma_wq(7 + k)
        OPS[f"g{k}"] = lambda k=k: op_g(k)
        OPS[f"v{k}"] = lambda k=k: stg_w2(k); OPS[f"u{k}"] = lambda k=k: stg_wo(k)
        OPS[f"d{k}"] = lambda k=k: put_w2(k); OPS[f"e{k}"] = lambda k=k: put_wo(k)
        OPS[f"P{k}"] = lambda k=k: l(f"s_setprio {k}")
        OPS[f"w{k}"] = lambda k=k: dma_w2(k); OPS[f"o{k}"] = lambda k=k: dma_wo(k)
    PRO = G("pro", "rpl init lo s0 tab rps noi s1 non s2")
    MID = G("mid0", "B0 hi pf2 b2 rpw B1 fl1 s3 B2 s4 B3 s5 B4 s6 dr") + " " + \
          G("mid1", "B5 q0 B6 q1 B7 q2 xr B8 q3 w002 B9 q4 w024 B10 q5 w046") + " " + \
          G("mid2", "B11 q6 w067 o0 B12 w1 o1 B13 w2 cki B14 vm0 g6a ck o2 B22 g6b o3 B15 lo w3") + " " + \
          G("mid3", "B16 w4 o4 B17 w5 o5 B18 B19 tail")
    k = 1
    for o in PRO.split():
        OPS[o](); mark(l, o)
        if o in ("bx", "rps", "s0", "s1", "s2"):
            if len(l.pend) >= 3: l.need(drain=True)
            stamp(l, k); k += 1
    T_l1 = l.cut(); l("L_L2:")
    for o in MID.split():
        if o[0] == "B":
            j = int(o[1:]); need = []
            if j <= 13: need = [f"st{j}"]
            elif j == BH: need = [f"w2{i}" for i in range(RA)]
            elif j == 15: need = ["w20", "xr"] + [f"wo{i}" for i in range(max(RA, 1))]
            elif j > 15: need = [f"w2{j-15}", f"wo{j-15}"] + (["w22", "wo2"] if RA == 2 else [])
            barrier(l, j, vm=need); mark(l, o)
            if str(j) in PROG: op_pg(PROG[str(j)])
        elif o[0] in "wvd" and len(o) == 4 and o[1:].isdigit(): dict(w=dma_w2, v=stg_w2, d=put_w2)[o[0]](int(o[1]), int(o[2]), int(o[3]))
        else: OPS[o]()
    l.need(drain=True)
    if G("spin"):
        l(f"""s_add_u32 s40, s100, {G("spin")[1]}
L_spin:
s_sleep 2
s_memrealtime s[42:43]
s_waitcnt lgkmcnt(0)
s_sub_u32 s44, s42, s40
s_cmp_lt_i32 s44, 0
s_cbranch_scc1 L_spin""")
    l("L_fin:")
    if STAMP:
        l(f"""s_waitcnt vmcnt(0)
s_memrealtime s[96:97]
{SOP} s[98:99]
s_waitcnt lgkmcnt(0)
v_writelane_b32 v0, s96, 63
v_writelane_b32 v0, s98, 41
s_mul_i32 s{sT0}, s2, 12
s_add_u32 s{sT0}, s{sT0}, s{sW}
s_lshl_b32 s{sT0}, s{sT0}, 8
s_add_u32 s{sT0}, s{sT0}, {WS_STAMP}
v_lshlrev_b32 v{vT0}, 2, v{vL}
buffer_store_dword v0, v{vT0}, {sq(SWS)}, s{sT0} offen
""")
    l("L_end:\ns_endpgm")
    T_l2 = l.cut()

    K1 = NAME + "_kernel"
    return f"""; @launch grid=(256,1,1) block=(768,1,1) lds={LDS_BYTES}
;
; slice s = heads 2s, 2s+1 and hidden columns [224 s, 224 s + 224).  12 waves: 0-3 loaders (LDS DMA of the weights through a
; ring, barriers B0..B20), 4-7 FFN waves, 8-11 attention waves.
;   2. FFN waves: H^T = w1^T x^T (+ b1);  3. attention waves: Q^T, K^T, V while the FFN waves apply gelu
;   5. all 8 waves: [h | o] @ [w2 ; wo] by 64-column chunks.  Seven of the eight workgroups of a row block own one chunk each;
.amdgcn_target "amdgcn-amd-amdhsa--gfx950"
.text
.globl {K1}
.p2align 8
.type {K1},@function
{K1}:
{T_entry}{T_c1}{T_f2}{T_a2}{T_l1}{T_l2}{''.join(SLOW)}L_codeend:
.section .rodata,"a"
.p2align 6
.amdhsa_kernel {K1}
  .amdhsa_next_free_vgpr 168
  .amdhsa_next_free_sgpr 102
  .amdhsa_accum_offset 168
  .amdhsa_group_segment_fixed_size 0
  .amdhsa_kernarg_size 88
  .amdhsa_user_sgpr_count 2
  .amdhsa_user_sgpr_kernarg_segment_ptr 1
  .amdhsa_system_sgpr_workgroup_id_x 1
.end_amdhsa_kernel
"""

if __name__ == "__main__":
    import json
    cfg = json.loads(sys.argv[2]) if len(sys.argv) > 2 else {}
    open(sys.argv[1], "w").write(gen(cfg))
```
